```python
import torch

def _softmax(x, axis=-1):
    return torch.softmax(x, dim=axis)
def _gelu(x):
    return torch.nn.functional.gelu(x, approximate="tanh")
def _silu(x):
    return torch.nn.functional.silu(x)
def _sigmoid(x):
    return torch.sigmoid(x)
def _layernorm(x, axis=-1, eps=1e-5):
    m = x.mean(dim=axis, keepdim=True)
    v = x.var(dim=axis, keepdim=True, unbiased=False)
    return (x - m) / torch.sqrt(v + eps)
def _scatter_add(tgt, idx, src, axis=0):
    return tgt.clone().index_add_(axis, idx, src)
def _segment_sum(src, seg, n):
    out = torch.zeros((n,) + src.shape[1:], dtype=src.dtype)
    return out.index_add_(0, seg, src)
def _pad(x, pw):
    flat = tuple(v for pair in reversed(pw) for v in pair)
    return torch.nn.functional.pad(x, flat)

kernel_name = 'sequential_preLN__softmax_full_mha__glu_gated_reglu__prompt'

def setup_inputs():

    _w = (lambda a: (lambda t: t.to(torch.bfloat16) if t.is_floating_point() else t)(torch.as_tensor(a)))
    def _A_setup():
        B, S, D = 1, 2048, 448
        return {
            "x": _w((lambda *s: torch.randn(*s, dtype=torch.bfloat16) * 0.05)(B, S, D)),
            "wqkv": _w((lambda *s: torch.randn(*s, dtype=torch.bfloat16) * 0.05)(D, 3 * D)),
            "wo": _w((lambda *s: torch.randn(*s, dtype=torch.bfloat16) * 0.05)(D, D)),
        }
    _A_in = _A_setup()

    def _B_setup():
        B, S, D, F = 1, 2048, 448, 1792
        return {
            "x": _w((lambda *s: torch.randn(*s, dtype=torch.bfloat16) * 0.05)(B, S, D)),
            "W_gate": _w((lambda *s: torch.randn(*s, dtype=torch.bfloat16) * 0.4)(D, F) * (2.0 / D) ** 0.5),
            "W_up": _w((lambda *s: torch.randn(*s, dtype=torch.bfloat16) * 0.4)(D, F) * (2.0 / D) ** 0.5),
            "W_down": _w((lambda *s: torch.randn(*s, dtype=torch.bfloat16) * 0.4)(F, D) * (1.0 / F) ** 0.5),
        }
    _B_in = _B_setup()

    return {
        "A_x": _A_in["x"],
        "A_wqkv": _A_in["wqkv"],
        "A_wo": _A_in["wo"],
        "B_x": _B_in["x"],
        "B_W_gate": _B_in["W_gate"],
        "B_W_up": _B_in["W_up"],
        "B_W_down": _B_in["W_down"],
    }

def reference(A_x, A_wqkv, A_wo, B_x, B_W_gate, B_W_up, B_W_down):
    def _A_ref(x, wqkv, wo):
        B, S, D = x.shape
        H = 16; Dh = D // H
        qkv = (lambda x, *d: x.permute(*d))((x @ wqkv).reshape(B, S, 3, H, Dh), 2, 0, 3, 1, 4)
        q, k, v = qkv[0], qkv[1], qkv[2]
        scale = Dh ** -0.5
        scores = torch.einsum("bhqd,bhkd->bhqk", q, k) * scale
        p = _softmax(scores, axis=-1)
        o = torch.einsum("bhqk,bhkd->bhqd", p, v)
        return (lambda x, *d: x.permute(*d))(o, 0, 2, 1, 3).reshape(B, S, D) @ wo

    def _B_ref(x, W_gate, W_up, W_down):
        gate = torch.einsum("bsd,df->bsf", x, W_gate)
        up = torch.einsum("bsd,df->bsf", x, W_up)
        gate = gate * (lambda x, dt: x.to(dt))(gate > 0, gate.dtype)
        h = gate * up
        return torch.einsum("bsf,fd->bsd", h, W_down)

    x = A_x
    h = x + _A_ref(_layernorm(x, axis=-1), A_wqkv, A_wo)
    h2 = h + _B_ref(_layernorm(h, axis=-1), B_W_gate, B_W_up, B_W_down)
    return h2
```

```python
import re

REG_RE = re.compile(r'^(-|abs\()?\s*([vsa])(\d+)\)?$')
RANGE_RE = re.compile(r'^(-|abs\()?\s*([vsa])\[(\d+):(\d+)\]\)?$')

def regs_of(op):
    op = op.strip()
    m = REG_RE.match(op)
    if m:
        return {(m.group(2), int(m.group(3)))}
    m = RANGE_RE.match(op)
    if m:
        return {(m.group(2), i) for i in range(int(m.group(3)), int(m.group(4)) + 1)}
    if op == 'vcc':
        return {('s', 106), ('s', 107)}
    if op == 'vcc_lo': return {('s', 106)}
    if op == 'vcc_hi': return {('s', 107)}
    if op == 'exec':
        return {('s', 126), ('s', 127)}
    if op == 'exec_lo': return {('s', 126)}
    if op == 'exec_hi': return {('s', 127)}
    if op == 'm0':
        return {('s', 124)}
    return set()

def split_ops(s):
    out, depth, cur = [], 0, ''
    for ch in s:
        if ch in '[(':
            depth += 1
        if ch in '])':
            depth -= 1
        if ch == ',' and depth == 0:
            out.append(cur.strip()); cur = ''
        else:
            cur += ch
    if cur.strip():
        out.append(cur.strip())
    return out

TRANS = ('v_exp_f32', 'v_log_f32', 'v_rcp_f32', 'v_rsq_f32', 'v_sqrt_f32', 'v_sin_f32', 'v_cos_f32', 'v_rcp_iflag_f32',
         'v_exp_f16', 'v_rcp_f16', 'v_rsq_f16', 'v_sqrt_f16', 'v_log_f16')

class Ins:
    def __init__(self, text):
        self.text = text
        t = text.split(';')[0].strip()
        self.label = t.endswith(':')
        self.directive = t.startswith('.')
        self.mn = ''
        self.ops = []
        self.mods = ''
        self.W = set(); self.R = set()
        self.kind = 'other'
        self.srcC = set(); self.srcAB = set()
        self.passes = 0
        self.dpp = False
        self.states = 0 if (self.label or self.directive or not t) else 1
        if self.label or self.directive or not t:
            return
        parts = t.split(None, 1)
        self.mn = mn = parts[0]
        rest = parts[1] if len(parts) > 1 else ''
        ops = split_ops(rest)
        if ops:
            last = ops[-1].split()
            if len(last) > 1 and not ops[-1].startswith('abs('):
                ops[-1] = last[0]; self.mods = ' '.join(last[1:])
        self.ops = ops
        R = lambda i: regs_of(ops[i]) if i < len(ops) else set()
        allfrom = lambda i: set().union(*[regs_of(o) for o in ops[i:]]) if len(ops) > i else set()
        if mn == 's_nop':
            self.states = int(ops[0], 0) + 1; self.kind = 'salu'
        elif mn.startswith('v_mfma'):
            self.kind = 'mfma'
            self.W = R(0); self.srcAB = R(1) | R(2); self.srcC = R(3); self.R = self.srcAB | self.srcC
            self.passes = 8 if '32x32' in mn else 4
        elif mn.startswith('v_'):
            self.kind = 'valu'
            self.dpp = ('row_' in self.mods or 'quad_perm' in self.mods or 'wave_' in self.mods or '_dpp' in mn)
            if mn.startswith('v_permlane') and 'swap' in mn:
                self.W = R(0) | R(1); self.R = R(0) | R(1)
            elif '_co_' in mn or mn.startswith('v_div_scale') or mn.startswith('v_mad_u64'):
                self.W = R(0) | R(1); self.R = allfrom(2)
            elif mn.startswith('v_cmpx'):
                self.W = R(0) | regs_of('exec'); self.R = allfrom(1)
            else:
                self.W = R(0); self.R = allfrom(1)
                if mn.startswith('v_fmac') or mn.startswith('v_dot2c') or mn.startswith('v_pk_fmac') or mn.startswith('v_writelane') \
                        or 'UNUSED_PRESERVE' in self.mods or self.dpp:
                    self.R |= R(0)
                if mn.startswith('v_cndmask') and len(ops) == 3:
                    self.R |= regs_of('vcc')
                if mn.startswith('v_div_fmas'):
                    self.R |= regs_of('vcc')
        elif mn.startswith('ds_'):
            self.kind = 'ds'
            if mn.startswith('ds_read') or mn.startswith('ds_bpermute') or mn.startswith('ds_permute') or mn.startswith('ds_swizzle') or '_rtn' in mn:
                self.W = R(0); self.R = allfrom(1)
            else:
                self.R = allfrom(0)
        elif mn.startswith('buffer_'):
            self.kind = 'vmem'
            if ' lds' in (' ' + self.mods) :
                self.R = allfrom(0) | regs_of('m0'); self.lds_dma = True
            elif mn.startswith('buffer_load'):
                self.W = R(0); self.R = allfrom(1)
            elif mn.startswith('buffer_atomic') and 'sc0' in self.mods:
                self.W = R(0); self.R = allfrom(0)
            else:
                self.R = allfrom(0)
                if mn.startswith('buffer_store') and ('x3' in mn or 'x4' in mn):
                    self.wide_data = R(0)
        elif mn.startswith('global_'):
            self.kind = 'vmem'
            if mn.startswith('global_load_lds'):
                self.R = allfrom(0) | regs_of('m0'); self.lds_dma = True
            elif mn.startswith('global_load'):
                self.W = R(0); self.R = allfrom(1)
            elif mn.startswith('global_atomic') and 'sc0' in self.mods:
                self.W = R(0); self.R = allfrom(1)
            else:
                self.R = allfrom(0)
                if mn.startswith('global_store') and ('x3' in mn or 'x4' in mn):
                    self.wide_data = R(1)
        elif mn.startswith('s_'):
            self.kind = 'salu'
            if mn.startswith('s_cmp') or mn.startswith('s_cbranch') or mn.startswith('s_branch') or mn.startswith('s_waitcnt') \
                    or mn in ('s_barrier', 's_endpgm', 's_setprio', 's_sleep') or mn.startswith('s_bitcmp'):
                self.R = allfrom(0)
            else:
                self.W = R(0); self.R = allfrom(1)
                if 'saveexec' in mn:
                    self.W |= regs_of('exec')
        self.is_trans = mn.split('_e32')[0].split('_e64')[0] in TRANS

def need(prod, cons):
    n = 0
    vW = {r for r in prod.W if r[0] in 'va'}
    sW = {r for r in prod.W if r[0] == 's'}
    if prod.kind == 'valu':
        if cons.kind == 'mfma' and vW & cons.R: n = max(n, 2)
        if cons.kind == 'valu':
            if cons.mn.startswith('v_readlane') or cons.mn.startswith('v_readfirstlane'):
                if vW & cons.R: n = max(n, 1)
            if cons.mn.startswith('v_permlane') and vW & cons.R: n = max(n, 2)
            if cons.dpp and vW & cons.R: n = max(n, 2)
            if prod.is_trans and not cons.is_trans and vW & (cons.R): n = max(n, 1)
            if ('sdwa' in prod.mn or 'op_sel' in prod.mods) and vW & (cons.R | cons.W): n = max(n, 1)
            if sW & cons.R:
                n = max(n, 4 if (cons.mn.startswith('v_readlane') or cons.mn.startswith('v_writelane') or cons.mn.startswith('v_div_fmas')) else 2)
            if sW & regs_of('exec'):
                if cons.dpp: n = max(n, 5)
                if cons.mn.startswith('v_read') or cons.mn.startswith('v_writelane') or cons.mn.startswith('v_permlane'): n = max(n, 4)
            if prod.mn.startswith('v_dot') and vW & (cons.R | cons.W):
                same = cons.mn == prod.mn
                if same:
                    ab = set().union(*[regs_of(o) for o in cons.ops[1:3]])
                    if vW & ab: n = max(n, 3)
                else:
                    n = max(n, 3)
        if prod.mn.startswith('v_dot') and cons.kind in ('mfma', 'vmem', 'ds') and vW & (cons.R | cons.W): n = max(n, 3)
        if cons.kind == 'mfma' and sW & regs_of('exec'): n = max(n, 4)
        if cons.kind == 'vmem' and sW & cons.R: n = max(n, 5)
        if cons.kind == 'salu' and sW & cons.R: n = max(n, 1)
    if prod.kind == 'mfma':
        p = prod.passes
        big = {4: 8, 8: 12}[p]
        if cons.kind == 'mfma':
            if vW & cons.srcAB: n = max(n, big)
            if vW & cons.srcC:
                if not (cons.srcC == prod.W and cons.passes == p): n = max(n, {4: 6, 8: 10}[p])
            elif vW & cons.W: n = max(n, {4: 6, 8: 10}[p])
        elif cons.kind in ('valu', 'vmem', 'ds'):
            if vW & (cons.R | cons.W): n = max(n, big)
        if cons.kind == 'valu' and prod.srcC & cons.W: n = max(n, {4: 3, 8: 7}[p])
    if prod.kind == 'salu':
        if regs_of('m0') & prod.W and getattr(cons, 'lds_dma', False): n = max(n, 1)
        if regs_of('m0') & prod.W and cons.mn.startswith('s_movrel'): n = max(n, 1)
    if prod.kind == 'vmem' and getattr(prod, 'wide_data', None):
        if prod.wide_data & cons.W: n = max(n, 2)
    return n

MAXW = 13

class Asm:
    def __init__(self):
        self.lines = []
    def __call__(self, text):
        for l in text.split('\n'):
            l = l.strip()
            if l and not l.startswith(';'):
                self.lines.append(l)
    def emit(self, *ls):
        for l in ls: self(l)

    def finish(self, verbose=False):
        ins = [Ins(l) for l in self.lines]
        changed = True
        npad = 0
        it = 0
        while changed:
            changed = False
            it += 1
            labels = {i.text.split(':')[0].strip(): k for k, i in enumerate(ins) if i.label}
            preds = {}
            for k, i in enumerate(ins):
                if i.mn.startswith('s_branch') or i.mn.startswith('s_cbranch'):
                    tgt = i.ops[0]
                    if tgt in labels:
                        preds.setdefault(labels[tgt], []).append(k)
            k = 0
            while k < len(ins):
                c = ins[k]
                if c.states == 0 or c.mn == 's_nop':
                    k += 1; continue
                worst = 0
                stack = [(k - 1, 0)]
                seen = set()
                while stack:
                    j, dist = stack.pop()
                    while j >= 0 and dist < MAXW:
                        if (j, dist) in seen: break
                        seen.add((j, dist))
                        p = ins[j]
                        if p.label:
                            for b in preds.get(j, []):
                                stack.append((b, dist))
                        if p.mn in ('s_branch', 's_endpgm', 's_setpc_b64') and j != k - 1 and False:
                            break
                        if p.states:
                            nreq = need(p, c)
                            if nreq > dist:
                                worst = max(worst, nreq - dist)
                            dist += p.states
                        j -= 1
                        if j >= 0 and ins[j].mn in ('s_branch', 's_endpgm') :
                            break
                if worst > 0:
                    ins.insert(k, Ins(f's_nop {worst-1}'))
                    npad += 1
                    changed = True
                    break
                k += 1
        if verbose:
            print('inserted nops:', npad)
        return '\n'.join(('' if i.label else '    ') + i.text for i in ins) + '\n'
```

```python
import sys, math
from asmlib import Asm

NAME = "sequential_preLN__softmax_full_mha__glu_gated_reglu__prompt"
QF  = 0x000000
KVF = 0x200000
KN  = 0x600000
OF  = 0x700000
HF  = 0x900000
HH  = 0xC00000
WOF = 0x1400000
WGU = 0x1500000
WDF = 0x1900000
WS_BYTES = 0x10000000

def f2u(x):
    import struct
    return struct.unpack('<I', struct.pack('<f', x))[0]

def srd(a, d, base, nbytes):
    a(f"""
    s_mov_b32 s{d}, s{base}
    s_mov_b32 s{d+1}, s{base+1}
    s_mov_b32 s{d+2}, {nbytes:#x}
    s_mov_b32 s{d+3}, 0x00020000
    """)

def vr(b, n=4):
    return f"v[{b}:{b+n-1}]"

kernels = []

def finish_kernel(name, a, vgpr, grid, block, lds, sgpr=64, accum=None):
    body = a.finish(verbose=True)
    kernels.append((name, body, vgpr, accum if accum else ((vgpr + 3) // 4) * 4, sgpr, grid, block, lds))

def gen_p0():
    a = Asm()
    n = "wt"
    a(f"""
    s_cmp_ge_u32 s2, 1274
    s_cbranch_scc1 L_{n}_end
    s_load_dwordx2 s[4:5], s[0:1], 16      ; wo
    s_load_dwordx4 s[8:11], s[0:1], 32
    s_load_dwordx2 s[12:13], s[0:1], 48    ; down
    s_load_dwordx2 s[14:15], s[0:1], 72    ; ws
    v_lshrrev_b32 v1, 6, v0
    v_readfirstlane_b32 s16, v1
    s_lshl_b32 s17, s2, 2
    s_add_u32 s17, s17, s16
    v_and_b32 v1, 63, v0                   ; lane
    v_lshrrev_b32 v2, 5, v1                ; hf
    v_bfe_u32 v3, v1, 3, 2                 ; a
    v_bfe_u32 v4, v1, 2, 1                 ; b
    v_and_b32 v5, 3, v1                    ; c
    v_lshlrev_b32 v20, 4, v1               ; lane*16
    s_waitcnt lgkmcnt(0)
    s_cmp_ge_u32 s17, 392
    s_cbranch_scc1 L_{n}_notwo
    ; ---- WOF: mt = g/28, ks = g%28
    s_mul_i32 s18, s17, 2341
    s_lshr_b32 s18, s18, 16                ; g/28
    s_mul_i32 s19, s18, 28
    s_sub_u32 s19, s17, s19                ; ks
    s_mov_b32 s20, s4
    s_mov_b32 s21, s5
    s_lshl_b32 s22, s17, 10
    s_add_u32 s22, s22, {WOF}
    s_branch L_{n}_phi
L_{n}_notwo:
    s_cmp_ge_u32 s17, 3528
    s_cbranch_scc0 L_{n}_gu
    ; ---- WDF: g' = g-3528; mt = g'/112, ks = g'%112
    s_sub_u32 s17, s17, 3528
    s_mul_i32 s18, s17, 9363
    s_lshr_b32 s18, s18, 20                ; g'/112
    s_mul_i32 s19, s18, 112
    s_sub_u32 s19, s17, s19
    s_mov_b32 s20, s12
    s_mov_b32 s21, s13
    s_lshl_b32 s22, s17, 10
    s_add_u32 s22, s22, {WDF}
L_{n}_phi:
    v_lshrrev_b32 v6, 1, v3
    v_lshlrev_b32 v6, 4, v6
    v_lshl_add_u32 v6, v4, 3, v6
    v_and_b32 v7, 1, v3
    v_lshl_add_u32 v6, v7, 2, v6
    v_add_u32 v6, v6, v5
    s_lshl_b32 s18, s18, 5
    v_add_u32 v6, s18, v6
    v_lshlrev_b32 v6, 1, v6
    s_lshl_b32 s19, s19, 4
    v_lshl_add_u32 v7, v2, 3, s19          ; k0
    v_mul_u32_u24 v7, 896, v7
    v_add_u32 v6, v6, v7
    """)
    for j in range(8):
        if j == 4:
            a("v_add_u32 v6, 3584, v6")
        a(f"global_load_ushort v{32+j}, v6, s[20:21] offset:{(j%4)*896}")
    a(f"""
    s_branch L_{n}_store
L_{n}_gu:
    s_sub_u32 s17, s17, 392
    s_mul_i32 s18, s17, 9363
    s_lshr_b32 s18, s18, 18                ; /28
    s_mul_i32 s19, s18, 28
    s_sub_u32 s19, s17, s19
    s_lshl_b32 s22, s17, 10
    s_add_u32 s22, s22, {WGU}
    v_lshrrev_b32 v6, 1, v3
    v_lshlrev_b32 v6, 2, v6
    v_lshl_add_u32 v6, v4, 3, v6
    v_add_u32 v6, v6, v5
    s_lshl_b32 s18, s18, 4
    v_add_u32 v6, s18, v6
    v_lshlrev_b32 v6, 1, v6
    s_lshl_b32 s19, s19, 4
    v_lshl_add_u32 v7, v2, 3, s19
    v_mul_u32_u24 v7, 3584, v7
    v_add_u32 v6, v6, v7
    """)
    for j in range(8):
        a(f"v_add_u32 v{24+j}, {3584*j}, v6")
    for mask, base in ((0x00FF00FF, 8), (0xFF00FF00, 10)):
        a(f"s_mov_b32 exec_lo, {mask:#x}\ns_mov_b32 exec_hi, {mask:#x}")
        for j in range(8):
            a(f"global_load_ushort v{32+j}, v{24+j}, s[{base}:{base+1}]")
    a(f"""
    s_mov_b64 exec, -1
L_{n}_store:
    v_add_u32 v20, s22, v20
    s_waitcnt vmcnt(0)
    v_lshl_or_b32 v12, v33, 16, v32
    v_lshl_or_b32 v13, v35, 16, v34
    v_lshl_or_b32 v14, v37, 16, v36
    v_lshl_or_b32 v15, v39, 16, v38
    global_store_dwordx4 v20, v[12:15], s[14:15]
L_{n}_end:
    s_endpgm
    """)
    finish_kernel("wt_kernel", a, 40, 1274, 256, 0)

def ln_finalize(a, vsum, vsq, vt, vsel_lo, vsel_hi, vc):
    a(f"""
    v_mov_b32 v{vt}, v{vsum}
    v_mov_b32 v{vt+1}, v{vsq}
    v_permlane32_swap_b32 v{vsum}, v{vt}
    v_permlane32_swap_b32 v{vsq}, v{vt+1}
    v_add_f32 v{vsum}, v{vsum}, v{vt}
    v_add_f32 v{vsq}, v{vsq}, v{vt+1}
    v_mul_f32 v{vsum}, {f2u(1.0/448):#x}, v{vsum}        ; mean
    v_mul_f32 v{vsq}, {f2u(1.0/448):#x}, v{vsq}
    v_fma_f32 v{vsq}, -v{vsum}, v{vsum}, v{vsq}           ; var
    v_max_f32 v{vsq}, 0, v{vsq}
    v_add_f32 v{vsq}, {f2u(1e-5):#x}, v{vsq}
    v_rsq_f32 v{vsq}, v{vsq}
    v_cvt_pk_bf16_f32 v{vsel_lo}, v{vsq}, 0
    v_lshlrev_b32 v{vsel_hi}, 16, v{vsel_lo}
    v_mul_f32 v{vc}, v{vsum}, v{vsel_hi}
    v_sub_f32 v{vc}, 0, v{vc}
    """)

def norm_ops(frag, tmp, vsel_lo, vsel_hi, vc):
    L = []
    for i in range(4):
        L.append(f"v_dot2_f32_bf16 v{tmp+2*i}, v{frag+i}, v{vsel_lo}, v{vc}")
        L.append(f"v_dot2_f32_bf16 v{tmp+2*i+1}, v{frag+i}, v{vsel_hi}, v{vc}")
    for i in range(4):
        L.append(f"v_cvt_pk_bf16_f32 v{frag+i}, v{tmp+2*i}, v{tmp+2*i+1}")
    return L

def gen_p1():
    a = Asm()
    n = "qkv"
    XB = 49152
    X = 64
    ACC = 16
    WA = 176
    TMP = 200
    a(f"""
    s_cmp_ge_u32 s2, 256
    s_cbranch_scc1 L_{n}_end
    s_load_dwordx4 s[4:7], s[0:1], 0
    s_load_dwordx2 s[8:9], s[0:1], 72
    v_lshrrev_b32 v1, 6, v0
    v_readfirstlane_b32 s10, v1            ; wave
    v_and_b32 v1, 63, v0                   ; lane
    s_and_b32 s11, s2, 7                   ; xcd
    s_lshr_b32 s24, s2, 3                  ; i
    s_lshr_b32 s25, s11, 1
    s_lshl_b32 s25, s25, 2
    s_and_b32 s26, s24, 3
    s_add_u32 s25, s25, s26                ; rb
    s_and_b32 s26, s11, 1
    s_lshl_b32 s26, s26, 3
    s_lshr_b32 s27, s24, 2
    s_add_u32 s26, s26, s27                ; cb
    v_lshrrev_b32 v2, 3, v1
    v_mul_u32_u24 v2, 896, v2
    v_lshrrev_b32 v3, 4, v1
    v_and_b32 v4, 7, v1
    v_xor_b32 v3, v3, v4
    v_lshl_add_u32 v2, v3, 4, v2           ; vxe
    v_xor_b32 v3, 64, v2                   ; vxo
    s_lshl_b32 s27, s25, 2
    s_add_u32 s27, s27, s10
    s_mul_i32 s28, s27, {32*896}
    s_mul_i32 s29, s10, 28672
    s_add_u32 s29, s29, {XB}
    s_waitcnt lgkmcnt(0)
    """)
    srd(a, 12, 4, 2048*896)
    srd(a, 16, 6, 448*2688)
    srd(a, 20, 8, WS_BYTES)
    a(f"""
    s_mov_b32 s30, 0
    s_mov_b32 m0, s29
    s_mov_b32 s31, s28
L_{n}_xl:
    buffer_load_dwordx4 v2, s[12:15], s31 offen lds
    s_add_u32 m0, m0, 1024
    s_add_u32 s32, s31, 7168
    buffer_load_dwordx4 v3, s[12:15], s32 offen lds
    s_add_u32 m0, m0, 1024
    s_add_u32 s32, s31, 14336
    buffer_load_dwordx4 v2, s[12:15], s32 offen lds
    s_add_u32 m0, m0, 1024
    s_add_u32 s32, s31, 21504
    buffer_load_dwordx4 v3, s[12:15], s32 offen lds
    s_add_u32 m0, m0, 1024
    s_add_u32 s31, s31, 128
    s_add_u32 s30, s30, 1
    s_cmp_lt_u32 s30, 7
    s_cbranch_scc1 L_{n}_xl
    """)
    for u in range(3):
        a(f"""
        v_add_u32 v8, {64*u}, v1
        v_mul_u32_u24 v9, 43691, v8
        v_lshrrev_b32 v9, 19, v9           ; row
        v_mul_u32_u24 v10, 12, v9
        v_sub_u32 v10, v8, v10             ; cc
        v_min_u32 v10, 10, v10
        v_mul_u32_u24 v9, 2688, v9
        v_lshl_add_u32 v{5+u}, v10, 4, v9
        """)
    a(f"""
    s_mul_i32 s33, s26, 168
    s_and_b32 s34, s26, 1
    s_lshl_b32 s34, s34, 3                 ; colshift
    s_sub_u32 s33, s33, s34                ; colstart
    s_mul_i32 s35, s10, {16*2688}
    s_add_u32 s35, s35, s33
    s_mul_i32 s36, s10, 3072
    """)
    def wdma(cnt, tag):
        a(f"""
        s_mov_b32 s30, 0
L_{n}_wl{tag}:
        s_mov_b32 m0, s36
        s_nop 0
        buffer_load_dwordx4 v5, s[16:19], s35 offen lds
        s_add_u32 m0, m0, 1024
        s_nop 0
        buffer_load_dwordx4 v6, s[16:19], s35 offen lds
        s_add_u32 m0, m0, 1024
        s_nop 0
        buffer_load_dwordx4 v7, s[16:19], s35 offen lds
        s_add_u32 s35, s35, {4*16*2688}
        s_add_u32 s36, s36, {4*3072}
        s_add_u32 s30, s30, 1
        s_cmp_lt_u32 s30, {cnt}
        s_cbranch_scc1 L_{n}_wl{tag}
        """)
    wdma(4, 1)
    a(f"""
    v_and_b32 v12, 31, v1                  ; t
    v_lshrrev_b32 v13, 5, v1               ; hf
    v_bfe_u32 v14, v12, 1, 3
    v_xor_b32 v14, v14, v13
    v_lshlrev_b32 v14, 4, v14
    v_lshl_add_u32 v14, v12, 7, v14
    v_add_u32 v8, s29, v14
    v_xor_b32 v9, 32, v8
    v_xor_b32 v10, 64, v8
    v_xor_b32 v11, 96, v8
    v_mov_b32 v15, 0x3f803f80
    v_mov_b32 v208, 0
    v_mov_b32 v209, 0
    v_mov_b32 v210, 0
    v_mov_b32 v211, 0
    """)
    for c in range(7):
        a(f"s_waitcnt vmcnt({40-4*(c+1)})")
        for i in range(4):
            a(f"ds_read_b128 {vr(X+16*c+4*i)}, v{8+i} offset:{c*4096}")
        if c > 0:
            a(f"s_waitcnt lgkmcnt(4)")
            for r in range(16):
                reg = X + 16*(c-1) + r
                a(f"v_dot2c_f32_bf16 v{208+(r&1)}, v{reg}, v15")
                a(f"v_dot2c_f32_bf16 v{210+(r&1)}, v{reg}, v{reg}")
    a("s_waitcnt lgkmcnt(0)\ns_barrier")
    wdma(3, 2)
    for r in range(16):
        reg = X + 16*6 + r
        a(f"v_dot2c_f32_bf16 v{208+(r&1)}, v{reg}, v15")
        a(f"v_dot2c_f32_bf16 v{210+(r&1)}, v{reg}, v{reg}")
    a("v_add_f32 v208, v208, v209\nv_add_f32 v210, v210, v211")
    SELL, SELH, VC = 212, 213, 214
    ln_finalize(a, 208, 210, TMP, SELL, SELH, VC)
    a(f"""
    v_lshrrev_b32 v4, 4, v1                ; g
    v_and_b32 v5, 1, v4                    ; ch
    v_bfe_u32 v6, v1, 2, 2                 ; r
    v_lshl_add_u32 v6, v13, 3, v6          ; 8hf + r
    v_mul_u32_u24 v6, 192, v6
    v_lshl_add_u32 v6, v5, 5, v6
    v_and_b32 v7, 3, v1
    v_lshl_add_u32 v6, v7, 3, v6
    v_add_u32 v2, s34, v6
    v_add_u32 v3, 43008, v2
    """)
    a.emit(*norm_ops(X, TMP, SELL, SELH, VC))
    a(f"""
    s_waitcnt vmcnt(9)
    s_barrier
    s_cmp_lt_u32 s26, 10
    s_cbranch_scc1 L_{n}_v0
    s_cmp_eq_u32 s26, 10
    s_cbranch_scc1 L_{n}_v1
    s_branch L_{n}_v2
    """)
    def wreads(ks):
        buf = WA + 12*(ks & 1)
        base, off = (2, ks*3072) if ks < 14 else (3, (ks-14)*3072)
        L = []
        for j in range(3):
            for u in range(2):
                L.append(f"ds_read_b64_tr_b16 v[{buf+4*j+2*u}:{buf+4*j+2*u+1}], v{base} offset:{off+u*768+j*56}")
        return L
    for var, isv in enumerate(((0,0,0), (0,0,1), (1,1,1))):
        a(f"L_{n}_v{var}:")
        a.emit(*wreads(0))
        for ks in range(28):
            if ks == 15:
                a("s_waitcnt vmcnt(0)\ns_barrier")
            nxt = wreads(ks+1) if ks < 27 else []
            nrm = norm_ops(X+4*(ks+1), TMP, SELL, SELH, VC) if ks < 27 else []
            a.emit(*nxt)
            a(f"s_waitcnt lgkmcnt({len(nxt)})")
            buf = WA + 12*(ks & 1)
            for j in range(3):
                A, B = vr(buf+4*j), vr(X+4*ks)
                if isv[j]: A, B = B, A
                C = "0" if ks == 0 else vr(ACC+16*j, 16)
                a(f"v_mfma_f32_32x32x16_bf16 {vr(ACC+16*j,16)}, {A}, {B}, {C}")
                a.emit(*nrm[4*j:4*j+4])
        if var < 2:
            a(f"s_branch L_{n}_epi")
    QS = f2u(28 ** -0.5 * math.log2(math.e))
    a(f"""
L_{n}_epi:
    v_lshlrev_b32 v2, 4, v1                ; lane*16
    s_mul_i32 s37, s26, 3                  ; p
    """)
    P = X
    for j in range(3):
        acc = ACC + 16*j
        a(f"""
        s_and_b32 s38, s37, 15             ; h
        s_lshl_b32 s38, s38, 6
        s_add_u32 s38, s38, s27            ; h*64+tt
        s_cmp_ge_u32 s37, 16
        s_cbranch_scc1 L_{n}_e{j}_kv
        """)
        for r in range(16):
            a(f"v_mul_f32 v{acc+r}, {QS:#x}, v{acc+r}")
        for r in range(8):
            a(f"v_cvt_pk_bf16_f32 v{P+r}, v{acc+2*r}, v{acc+2*r+1}")
        a(f"""
        s_mov_b32 exec_lo, 0
        v_mov_b32 v{P+6}, 0
        v_mov_b32 v{P+7}, 0
        s_mov_b32 exec_lo, -1
        s_lshl_b32 s39, s38, 11
        s_add_u32 s39, s39, {QF}
        s_branch L_{n}_e{j}_st
L_{n}_e{j}_kv:
        """)
        for r in range(8):
            a(f"v_cvt_pk_bf16_f32 v{P+r}, v{acc+2*r}, v{acc+2*r+1}")
        a(f"""
        s_lshl_b32 s39, s38, 12
        s_add_u32 s39, s39, {KVF}
        s_cmp_ge_u32 s37, 32
        s_cbranch_scc1 L_{n}_e{j}_v
        s_mov_b32 exec_lo, 0
        v_mov_b32 v{P+6}, 0
        v_mov_b32 v{P+7}, 0
        s_mov_b32 exec_lo, -1
        v_mov_b32 v208, 0
        """)
        for r in range(8):
            a(f"v_dot2c_f32_bf16 v208, v{P+r}, v{P+r}")
        a(f"""
        v_mov_b32 v209, v208
        v_permlane32_swap_b32 v208, v209
        v_add_f32 v208, v208, v209
        v_max_f32_dpp v208, v208, v208 row_shr:1 row_mask:0xf bank_mask:0xf
        v_max_f32_dpp v208, v208, v208 row_shr:2 row_mask:0xf bank_mask:0xf
        v_max_f32_dpp v208, v208, v208 row_shr:4 row_mask:0xf bank_mask:0xf
        v_max_f32_dpp v208, v208, v208 row_shr:8 row_mask:0xf bank_mask:0xf
        v_max_f32_dpp v208, v208, v208 row_bcast:15 row_mask:0xa bank_mask:0xf
        s_lshl_b32 s40, s38, 2
        s_add_u32 s40, s40, {KN}
        v_mov_b32 v209, 0
        s_mov_b32 exec_hi, 0
        s_mov_b32 exec_lo, 0x80000000
        buffer_store_dword v208, v209, s[20:23], s40 offen
        s_mov_b32 exec_hi, -1
        s_mov_b32 exec_lo, 0
        v_mov_b32 v{P+6}, v15
        s_mov_b32 exec_lo, -1
        s_branch L_{n}_e{j}_st
L_{n}_e{j}_v:
        s_add_u32 s39, s39, 2048
        s_mov_b32 exec_lo, 0x10000000
        s_mov_b32 exec_hi, 0x10000000
        """)
        for r in range(8):
            a(f"v_mov_b32 v{P+r}, v15")
        a("s_mov_b32 exec_lo, 0xe0000000\ns_mov_b32 exec_hi, 0xe0000000")
        for r in range(8):
            a(f"v_mov_b32 v{P+r}, 0")
        a(f"""
        s_mov_b64 exec, -1
L_{n}_e{j}_st:
        buffer_store_dwordx4 {vr(P)}, v2, s[20:23], s39 offen
        buffer_store_dwordx4 {vr(P+4)}, v2, s[20:23], s39 offen offset:1024
        s_add_u32 s37, s37, 1
        """)
        P += 8
    a(f"L_{n}_end:\ns_endpgm")
    finish_kernel("qkv_kernel", a, 216, 256, 256, 163840)

def gen_p2():
    a = Asm()
    n = "att"
    Q = 16; O = 24; S0 = 40; S1 = 56; P = 72; K0 = 80; K1 = 84; V0 = 88; V1 = 92
    VL16 = 2; VCUR = 3; VNXT = 4; VKN = 5
    a(f"""
    s_cmp_ge_u32 s2, 256
    s_cbranch_scc1 L_{n}_end
    s_load_dwordx2 s[8:9], s[0:1], 72
    v_lshrrev_b32 v1, 6, v0
    v_readfirstlane_b32 s10, v1            ; wave
    v_and_b32 v1, 63, v0                   ; lane
    v_lshlrev_b32 v{VL16}, 4, v1
    v_lshlrev_b32 v6, 2, v1
    s_and_b32 s11, s2, 15                  ; h  (xcd = h&7)
    s_lshr_b32 s12, s2, 4                  ; qb
    s_and_b32 s13, s10, 3                  ; w&3
    s_lshr_b32 s14, s10, 2                 ; kh
    s_lshl_b32 s15, s12, 2
    s_add_u32 s15, s15, s13                ; qt
    s_lshl_b32 s16, s11, 6                 ; h*64
    s_add_u32 s17, s16, s15
    s_lshl_b32 s17, s17, 11
    s_add_u32 s17, s17, {QF}               ; Q soffset
    s_lshl_b32 s18, s11, 8
    s_add_u32 s18, s18, {KN}
    s_lshl_b32 s19, s14, 5
    s_add_u32 s19, s19, s16                ; h*64 + kh*32
    s_lshl_b32 s28, s19, 12
    s_add_u32 s28, s28, {KVF}
    s_add_u32 s19, s19, s13
    s_lshl_b32 s19, s19, 12
    s_add_u32 s19, s19, {KVF}
    s_lshl_b32 s24, s10, 12
    s_mov_b32 s29, 0                       ; pass
    s_waitcnt lgkmcnt(0)
    """)
    srd(a, 20, 8, WS_BYTES)
    a(f"""
    buffer_load_dwordx4 {vr(Q)}, v{VL16}, s[20:23], s17 offen
    buffer_load_dwordx4 {vr(Q+4)}, v{VL16}, s[20:23], s17 offen offset:1024
    buffer_load_dword v{VKN}, v6, s[20:23], s18 offen
L_{n}_restart:
    s_mov_b32 s25, s19
    s_mov_b32 s26, s24
    """)
    def dma():
        a("s_mov_b32 m0, s26")
        for i in range(4):
            a(f"buffer_load_dwordx4 v{VL16}, s[20:23], s25 offen offset:{i*1024} lds")
        a(f"""
        s_add_u32 s25, s25, 16384
        s_add_u32 s26, s26, 32768
        s_and_b32 s26, s26, 0x1ffff
        """)
    for s in range(3):
        dma()
    a(f"""
    s_lshl_b32 s27, s14, 14
    v_add_u32 v{VCUR}, s27, v{VL16}
    v_add_u32 v{VNXT}, 32768, v{VCUR}
    s_cmp_lg_u32 s29, 0
    s_cbranch_scc1 L_{n}_havem
    s_waitcnt vmcnt(12)
    v_mov_b32 v7, 0
    """)
    for r in range(8):
        a(f"v_dot2c_f32_bf16 v7, v{Q+r}, v{Q+r}")
    a(f"""
    v_max_f32_dpp v{VKN}, v{VKN}, v{VKN} row_shr:1 row_mask:0xf bank_mask:0xf
    v_max_f32_dpp v{VKN}, v{VKN}, v{VKN} row_shr:2 row_mask:0xf bank_mask:0xf
    v_max_f32_dpp v{VKN}, v{VKN}, v{VKN} row_shr:4 row_mask:0xf bank_mask:0xf
    v_max_f32_dpp v{VKN}, v{VKN}, v{VKN} row_shr:8 row_mask:0xf bank_mask:0xf
    v_max_f32_dpp v{VKN}, v{VKN}, v{VKN} row_bcast:15 row_mask:0xa bank_mask:0xf
    v_max_f32_dpp v{VKN}, v{VKN}, v{VKN} row_bcast:31 row_mask:0xc bank_mask:0xf
    v_mov_b32 v8, v7
    v_permlane32_swap_b32 v7, v8
    v_add_f32 v7, v7, v8
    v_readlane_b32 s30, v{VKN}, 63
    v_mul_f32 v7, s30, v7
    v_sqrt_f32 v7, v7
    v_mul_f32 v7, {f2u(1.0+1.0/64):#x}, v7
    v_add_u32 v7, 0xffff, v7
    v_lshrrev_b32 v7, 16, v7
    v_or_b32 v7, 0x8000, v7
    s_mov_b32 exec_lo, 0
    v_mov_b32 v{Q+6}, v7
    s_mov_b32 exec_lo, -1
L_{n}_havem:
    """)
    for r in range(16):
        a(f"v_mov_b32 v{O+r}, 0")
    for r in range(4):
        a(f"v_mov_b32 v{P+4+r}, 0\nv_mov_b32 v{V1+r}, 0")
    a(f"""
    s_waitcnt vmcnt(8)
    s_barrier
    ds_read_b128 {vr(K0)}, v{VCUR}
    ds_read_b128 {vr(K1)}, v{VCUR} offset:1024
    s_waitcnt lgkmcnt(0)
    v_mfma_f32_32x32x16_bf16 {vr(S0,16)}, {vr(K0)}, {vr(Q)}, 0
    v_mfma_f32_32x32x16_bf16 {vr(S0,16)}, {vr(K1)}, {vr(Q+4)}, {vr(S0,16)}
    ds_read_b128 {vr(K0)}, v{VCUR} offset:4096
    ds_read_b128 {vr(K0)}, v{VCUR} offset:4096
    ds_read_b128 {vr(K1)}, v{VCUR} offset:5120
    ds_read_b128 {vr(V0)}, v{VCUR} offset:2048
    s_mov_b32 s31, 0
L_{n}_loop:
    """)
    def addr(i):
        return (VCUR, i*4096) if i < 4 else (VNXT, (i-4)*4096)
    for i in range(4):
        Sc, Sn = (S0, S1) if i % 2 == 0 else (S1, S0)
        if i == 2:
            a(f"""
            s_cmp_ge_u32 s31, 6
            s_cbranch_scc1 L_{n}_w0
            s_waitcnt vmcnt(4)
            s_branch L_{n}_w1
L_{n}_w0:
            s_waitcnt vmcnt(0)
L_{n}_w1:
            s_barrier
            s_cmp_ge_u32 s31, 5
            s_cbranch_scc1 L_{n}_nodma
            """)
            dma()
            a(f"L_{n}_nodma:")
        e = lambda r: f"v_exp_f32 v{Sc+r}, v{Sc+r}"
        c = lambda r: f"v_cvt_pk_bf16_f32 v{P+r}, v{Sc+2*r}, v{Sc+2*r+1}"
        b2, o2 = addr(i+2); b0, o0 = addr(i); b1, o1 = addr(i+1)
        a(f"""
        s_waitcnt lgkmcnt(3)
        v_mfma_f32_32x32x16_bf16 {vr(Sn,16)}, {vr(K0)}, {vr(Q)}, 0
        ds_read_b128 {vr(K0)}, v{b2} offset:{o2}
        """)
        a.emit(e(0), e(1), e(2), e(3), e(4))
        a(f"""
        s_waitcnt lgkmcnt(3)
        v_mfma_f32_32x32x16_bf16 {vr(O,16)}, {vr(V1)}, {vr(P+4)}, {vr(O,16)}
        ds_read_b128 {vr(V1)}, v{b0} offset:{o0+3072}
        """)
        a.emit(e(5), e(6), e(7), c(0), c(1), c(2), c(3))
        a(f"""
        s_waitcnt lgkmcnt(3)
        v_mfma_f32_32x32x16_bf16 {vr(Sn,16)}, {vr(K1)}, {vr(Q+4)}, {vr(Sn,16)}
        ds_read_b128 {vr(K1)}, v{b2} offset:{o2+1024}
        """)
        a.emit(e(8), e(9), e(10), e(11), e(12))
        a(f"""
        s_waitcnt lgkmcnt(3)
        v_mfma_f32_32x32x16_bf16 {vr(O,16)}, {vr(V0)}, {vr(P)}, {vr(O,16)}
        ds_read_b128 {vr(V0)}, v{b1} offset:{o1+2048}
        """)
        a.emit(e(13), e(14), e(15), c(4), c(5), c(6), c(7))
    a(f"""
    v_mov_b32 v{VCUR}, v{VNXT}
    v_add_u32 v{VNXT}, 32768, v{VNXT}
    v_and_b32 v{VNXT}, 0x1ffff, v{VNXT}
    s_add_u32 s31, s31, 1
    s_cmp_lt_u32 s31, 8
    s_cbranch_scc1 L_{n}_loop
    s_waitcnt lgkmcnt(0)
    v_mfma_f32_32x32x16_bf16 {vr(O,16)}, {vr(V1)}, {vr(P+4)}, {vr(O,16)}
    s_barrier
    s_lshl_b32 s27, s13, 12
    v_add_u32 v7, s27, v{VL16}
    v_mov_b32 v9, 0x10000
    v_mov_b32 v10, 0
    s_cmp_eq_u32 s14, 0
    s_cbranch_scc1 L_{n}_lo1
    """)
    for r in range(4):
        a(f"ds_write_b128 v7, {vr(O+4*r)} offset:{r*1024}")
    a(f"""
    ds_write_b32 v9, v10
    s_waitcnt lgkmcnt(0)
    s_barrier
    s_branch L_{n}_join
L_{n}_lo1:
    s_barrier
    """)
    for r in range(4):
        a(f"ds_read_b128 {vr(S0+4*r)}, v7 offset:{r*1024}")
    a("s_waitcnt lgkmcnt(0)")
    for r in range(16):
        a(f"v_add_f32 v{O+r}, v{O+r}, v{S0+r}")
    a(f"""
    v_mov_b32 v11, v{O+12}
    v_mov_b32 v12, v{O+12}
    v_permlane32_swap_b32 v11, v12
    v_mov_b32 v13, 0x1f800000
    v_cmp_nge_f32 vcc, v12, v13
    v_rcp_f32 v12, v12
    s_cmp_eq_u64 vcc, 0
    s_cbranch_scc1 L_{n}_ok
    v_mov_b32 v10, 1
    ds_write_b32 v9, v10
L_{n}_ok:
    """)
    for r in range(16):
        a(f"v_mul_f32 v{O+r}, v{O+r}, v12")
    for r in range(8):
        a(f"v_cvt_pk_bf16_f32 v{P+r}, v{O+2*r}, v{O+2*r+1}")
    a(f"""
    v_and_b32 v11, 31, v1                  ; t
    v_lshrrev_b32 v13, 5, v1               ; hf
    s_mul_i32 s32, s11, 7
    v_add_u32 v13, s32, v13                ; p0 = 7h + hf
    s_mul_i32 s33, s15, 28672
    s_add_u32 s33, s33, {OF}
    """)
    for i in range(4):
        a(f"""
        v_add_u32 v14, {2*i}, v13
        v_lshrrev_b32 v15, 1, v14
        v_lshlrev_b32 v15, 9, v15          ; (p>>1)*512
        v_and_b32 v14, 1, v14
        v_lshl_add_u32 v15, v14, 3, v15
        v_lshl_add_u32 v15, v11, 4, v15
        """)
        if i == 3:
            a("s_mov_b32 exec_hi, 0")
        a(f"buffer_store_dwordx2 v[{P+2*i}:{P+2*i+1}], v15, s[20:23], s33 offen")
    a(f"""
    s_mov_b32 exec_hi, -1
    s_waitcnt lgkmcnt(0)
L_{n}_join:
    s_cmp_lg_u32 s29, 0
    s_cbranch_scc1 L_{n}_end
    s_barrier
    ds_read_b32 v10, v9
    s_waitcnt lgkmcnt(0)
    v_readfirstlane_b32 s34, v10
    s_cmp_eq_u32 s34, 0
    s_cbranch_scc1 L_{n}_end
    s_mov_b32 s29, 1
    s_mov_b32 exec_lo, 0
    v_mov_b32 v{Q+6}, 0
    s_mov_b32 exec_lo, -1
    v_mov_b32 v10, 0xff800000
    s_mov_b32 s31, 0
    s_mov_b32 s35, s28
L_{n}_mx:
    buffer_load_dwordx4 {vr(K0)}, v{VL16}, s[20:23], s35 offen
    buffer_load_dwordx4 {vr(K1)}, v{VL16}, s[20:23], s35 offen offset:1024
    s_waitcnt vmcnt(0)
    v_mfma_f32_32x32x16_bf16 {vr(S0,16)}, {vr(K0)}, {vr(Q)}, 0
    v_mfma_f32_32x32x16_bf16 {vr(S0,16)}, {vr(K1)}, {vr(Q+4)}, {vr(S0,16)}
    """)
    for r in range(8):
        a(f"v_max3_f32 v10, v{S0+2*r}, v{S0+2*r+1}, v10")
    a(f"""
    s_add_u32 s35, s35, 4096
    s_add_u32 s31, s31, 1
    s_cmp_lt_u32 s31, 32
    s_cbranch_scc1 L_{n}_mx
    v_mov_b32 v11, v10
    v_permlane32_swap_b32 v10, v11
    v_max_f32 v10, v10, v11
    s_lshl_b32 s27, s10, 8
    v_add_u32 v12, s27, v6                 ; w*256 + lane*4
    v_xor_b32 v13, 1024, v12
    s_barrier
    ds_write_b32 v12, v10
    s_waitcnt lgkmcnt(0)
    s_barrier
    ds_read_b32 v11, v13
    s_waitcnt lgkmcnt(0)
    v_max_f32 v10, v10, v11
    v_sub_f32 v10, 0, v10                  ; -m
    v_and_b32 v11, 0xffff0000, v10
    v_sub_f32 v12, v10, v11
    v_cvt_pk_bf16_f32 v10, v11, v12
    s_mov_b32 exec_lo, 0
    v_mov_b32 v{Q+6}, v10
    s_mov_b32 exec_lo, -1
    s_barrier
    s_branch L_{n}_restart
L_{n}_end:
    s_endpgm
    """)
    finish_kernel("att_kernel", a, 96, 256, 512, 131072)

def gen_p3():
    a = Asm()
    n = "wo"
    ACC = 16; AB = 32; XR = 64
    a(f"""
    s_cmp_ge_u32 s2, 224
    s_cbranch_scc1 L_{n}_end
    s_load_dwordx2 s[4:5], s[0:1], 0
    s_load_dwordx2 s[8:9], s[0:1], 72
    v_lshrrev_b32 v1, 6, v0
    v_readfirstlane_b32 s10, v1            ; wave
    v_and_b32 v1, 63, v0
    v_lshlrev_b32 v2, 4, v1
    s_and_b32 s11, s2, 7
    s_lshr_b32 s12, s2, 3                  ; i
    s_lshl_b32 s11, s11, 2
    s_and_b32 s13, s12, 3
    s_add_u32 s11, s11, s13                ; tb
    s_lshr_b32 s12, s12, 2                 ; fb
    s_and_b32 s13, s10, 1                  ; tt_l
    s_lshr_b32 s14, s10, 1                 ; ft_l
    s_cmp_ge_u32 s10, 2
    s_cselect_b32 s15, s12, s11
    s_mov_b32 s16, {OF}
    s_cselect_b32 s16, {WOF}, s16
    s_lshl_b32 s15, s15, 1
    s_add_u32 s15, s15, s13
    s_mul_i32 s15, s15, 28672
    s_add_u32 s15, s15, s16
    s_mul_i32 s17, s10, 28672
    s_lshl_b32 s18, s11, 1
    s_add_u32 s18, s18, s13                ; tt
    s_lshl_b32 s19, s12, 1
    s_add_u32 s19, s19, s14                ; ft
    v_and_b32 v3, 31, v1
    v_mul_u32_u24 v3, 896, v3
    v_lshrrev_b32 v4, 5, v1
    v_lshl_add_u32 v3, v4, 4, v3
    s_mul_i32 s24, s18, {32*896}
    s_lshl_b32 s25, s19, 6
    s_add_u32 s24, s24, s25
    s_waitcnt lgkmcnt(0)
    """)
    srd(a, 28, 4, 2048*896)
    srd(a, 20, 8, WS_BYTES)
    a(f"""
    buffer_load_dwordx4 {vr(XR)}, v3, s[28:31], s24 offen
    buffer_load_dwordx4 {vr(XR+4)}, v3, s[28:31], s24 offen offset:32
    s_mov_b32 s26, 0
L_{n}_dl:
    s_mov_b32 m0, s17
    s_nop 0
    buffer_load_dwordx4 v2, s[20:23], s15 offen lds
    buffer_load_dwordx4 v2, s[20:23], s15 offen offset:1024 lds
    buffer_load_dwordx4 v2, s[20:23], s15 offen offset:2048 lds
    buffer_load_dwordx4 v2, s[20:23], s15 offen offset:3072 lds
    s_add_u32 s15, s15, 4096
    s_add_u32 s17, s17, 4096
    s_add_u32 s26, s26, 1
    s_cmp_lt_u32 s26, 7
    s_cbranch_scc1 L_{n}_dl
    s_mul_i32 s27, s13, 28672
    v_add_u32 v5, s27, v2                  ; B (O) addr
    s_mul_i32 s27, s14, 28672
    s_add_u32 s27, s27, 57344
    v_add_u32 v6, s27, v2
    """)
    for ch in range(7):
        a(f"s_waitcnt vmcnt({24-4*ch})\ns_barrier")
        for q in range(4):
            ks = 4*ch + q
            a(f"ds_read_b128 {vr(AB+8*q)}, v6 offset:{ks*1024}\nds_read_b128 {vr(AB+8*q+4)}, v5 offset:{ks*1024}")
        for q in range(4):
            ks = 4*ch + q
            a(f"s_waitcnt lgkmcnt({6-2*q})")
            a(f"v_mfma_f32_32x32x16_bf16 {vr(ACC,16)}, {vr(AB+8*q)}, {vr(AB+8*q+4)}, {'0' if ks==0 else vr(ACC,16)}")
    for r in range(8):
        a(f"v_cvt_pk_bf16_f32 v{AB+r}, v{ACC+2*r}, v{ACC+2*r+1}")
    for r in range(8):
        a(f"""
        v_lshlrev_b32 v{ACC+2*r}, 16, v{AB+r}
        v_and_b32 v{ACC+2*r+1}, 0xffff0000, v{AB+r}
        v_lshlrev_b32 v{AB+8}, 16, v{XR+r}
        v_and_b32 v{AB+9}, 0xffff0000, v{XR+r}
        v_add_f32 v{ACC+2*r}, v{ACC+2*r}, v{AB+8}
        v_add_f32 v{ACC+2*r+1}, v{ACC+2*r+1}, v{AB+9}
        v_cvt_pk_bf16_f32 v{AB+16+r}, v{ACC+2*r}, v{ACC+2*r+1}
        """)
    a(f"""
    s_mul_i32 s24, s18, 28672
    s_lshl_b32 s25, s19, 11
    s_add_u32 s24, s24, s25
    s_add_u32 s24, s24, {HF}
    buffer_store_dwordx4 {vr(AB+16)}, v2, s[20:23], s24 offen
    buffer_store_dwordx4 {vr(AB+20)}, v2, s[20:23], s24 offen offset:1024
L_{n}_end:
    s_endpgm
    """)
    finish_kernel("wo_kernel", a, 72, 224, 256, 114688)

def gen_p4():
    a = Asm()
    n = "gu"
    X = 64; ACC = 16; AW = 176; TMP = 208; OUT = 216
    SELL, SELH, VC = 12, 13, 14
    a(f"""
    s_cmp_ge_u32 s2, 256
    s_cbranch_scc1 L_{n}_end
    s_load_dwordx2 s[8:9], s[0:1], 72
    v_lshrrev_b32 v1, 6, v0
    v_readfirstlane_b32 s10, v1
    v_and_b32 v1, 63, v0
    v_lshlrev_b32 v2, 4, v1
    s_and_b32 s11, s2, 7
    s_lshr_b32 s12, s2, 3
    s_and_b32 s13, s11, 1
    s_lshl_b32 s13, s13, 3
    s_and_b32 s14, s12, 7
    s_add_u32 s13, s13, s14                ; rb
    s_lshr_b32 s14, s11, 1
    s_lshl_b32 s14, s14, 2
    s_lshr_b32 s15, s12, 3
    s_add_u32 s14, s14, s15                ; cb
    s_lshl_b32 s15, s13, 2
    s_add_u32 s15, s15, s10                ; tt
    s_mul_i32 s16, s15, 28672
    s_add_u32 s16, s16, {HF}
    s_mul_i32 s17, s14, {7*28672}
    s_mul_i32 s18, s10, 7168
    s_add_u32 s17, s17, s18
    s_add_u32 s17, s17, {WGU}
    s_mov_b32 s19, s18
    s_waitcnt lgkmcnt(0)
    """)
    srd(a, 20, 8, WS_BYTES)
    for ks in range(28):
        if ks % 4 == 0 and ks:
            a("s_add_u32 s16, s16, 4096")
        a(f"buffer_load_dwordx4 {vr(X+4*ks)}, v2, s[20:23], s16 offen offset:{(ks%4)*1024}")
    def dma_tile():
        a(f"""
        s_mov_b32 m0, s19
        s_add_u32 s24, s17, 4096
        buffer_load_dwordx4 v2, s[20:23], s17 offen lds
        buffer_load_dwordx4 v2, s[20:23], s17 offen offset:1024 lds
        buffer_load_dwordx4 v2, s[20:23], s17 offen offset:2048 lds
        buffer_load_dwordx4 v2, s[20:23], s17 offen offset:3072 lds
        s_add_u32 m0, m0, 4096
        s_add_u32 s17, s17, 28672
        buffer_load_dwordx4 v2, s[20:23], s24 offen lds
        buffer_load_dwordx4 v2, s[20:23], s24 offen offset:1024 lds
        buffer_load_dwordx4 v2, s[20:23], s24 offen offset:2048 lds
        s_add_u32 s19, s19, 28672
        """)
    a(f"s_mov_b32 s25, 0\nL_{n}_dl:")
    dma_tile()
    a(f"""
    s_add_u32 s25, s25, 1
    s_cmp_lt_u32 s25, 5
    s_cbranch_scc1 L_{n}_dl
    s_mov_b32 s19, s18
    v_mov_b32 v15, 0x3f803f80
    v_mov_b32 v8, 0
    v_mov_b32 v9, 0
    v_mov_b32 v10, 0
    v_mov_b32 v11, 0
    """)
    for c in range(7):
        a(f"s_waitcnt vmcnt({63-4*(c+1)})")
        for r in range(16):
            reg = X + 16*c + r
            a(f"v_dot2c_f32_bf16 v{8+(r&1)}, v{reg}, v15")
            a(f"v_dot2c_f32_bf16 v{10+(r&1)}, v{reg}, v{reg}")
    a("v_add_f32 v8, v8, v9\nv_add_f32 v10, v10, v11")
    ln_finalize(a, 8, 10, TMP, SELL, SELH, VC)
    for ks in range(28):
        a.emit(*norm_ops(X+4*ks, TMP, SELL, SELH, VC))
    a(f"""
    s_mul_i32 s26, s15, {112*1024}
    s_mul_i32 s27, s14, 7168
    s_add_u32 s26, s26, s27
    s_add_u32 s26, s26, {HH}
    v_mov_b32 v3, v2
    v_add_u32 v4, {2*28672}, v2
    v_add_u32 v5, {4*28672}, v2
    """)
    def epi(acc):
        L = []
        for g in range(2):
            for c in range(4):
                L.append(f"v_max_f32 v{acc+8*g+c}, 0, v{acc+8*g+c}")
            for c in range(4):
                L.append(f"v_mul_f32 v{acc+8*g+c}, v{acc+8*g+c}, v{acc+8*g+4+c}")
            L.append(f"v_cvt_pk_bf16_f32 v{OUT+2*g}, v{acc+8*g}, v{acc+8*g+1}")
            L.append(f"v_cvt_pk_bf16_f32 v{OUT+2*g+1}, v{acc+8*g+2}, v{acc+8*g+3}")
        L.append(f"buffer_store_dwordx4 {vr(OUT)}, v2, s[20:23], s26 offen")
        L.append(f"s_add_u32 s26, s26, 1024")
        return L
    outstanding = ["D0"]*7 + ["D1"]*7 + ["D2"]*7 + ["D3"]*7 + ["D4"]*7
    for mt in range(7):
        acc = ACC + 16*(mt & 1)
        slot = mt % 5
        base = 3 + slot // 2
        off0 = (slot % 2) * 28672
        last = max(i for i, t in enumerate(outstanding) if t == f"D{mt}")
        a(f"s_waitcnt vmcnt({len(outstanding)-1-last})\ns_barrier")
        if mt in (1, 2):
            dma_tile()
            outstanding += [f"D{mt+4}"]*7
        pend = epi(ACC + 16*((mt-1) & 1)) if mt > 0 else []
        if mt > 0: outstanding += [f"S{mt-1}"]
        NB = 8
        for ks in range(min(NB-1, 28)):
            a(f"ds_read_b128 {vr(AW+4*(ks%NB))}, v{base} offset:{off0+ks*1024}")
        for ks in range(28):
            nk = ks + NB - 1
            if nk < 28:
                a(f"ds_read_b128 {vr(AW+4*(nk%NB))}, v{base} offset:{off0+nk*1024}")
                a(f"s_waitcnt lgkmcnt({NB-1})")
            else:
                a(f"s_waitcnt lgkmcnt({27-ks})")
            a(f"v_mfma_f32_32x32x16_bf16 {vr(acc,16)}, {vr(AW+4*(ks%NB))}, {vr(X+4*ks)}, {'0' if ks==0 else vr(acc,16)}")
            if ks >= 4 and pend:
                a.emit(*pend[:2]); pend = pend[2:]
    a.emit(*epi(ACC + 16*(6 & 1)))
    a(f"L_{n}_end:\ns_endpgm")
    finish_kernel("gu_kernel", a, 220, 256, 256, 5*28672)

def gen_p5():
    a = Asm()
    n = "dn"
    ACC = 16; B = 64; AW = 176; HR = 208
    a(f"""
    s_cmp_ge_u32 s2, 224
    s_cbranch_scc1 L_{n}_end
    s_load_dwordx2 s[4:5], s[0:1], 56
    s_load_dwordx2 s[8:9], s[0:1], 72
    v_lshrrev_b32 v1, 6, v0
    v_readfirstlane_b32 s10, v1
    v_and_b32 v1, 63, v0
    v_lshlrev_b32 v2, 4, v1
    s_and_b32 s11, s2, 7
    s_lshr_b32 s12, s2, 3
    s_lshl_b32 s11, s11, 2
    s_and_b32 s13, s12, 3
    s_add_u32 s11, s11, s13                ; tb
    s_lshr_b32 s12, s12, 2                 ; fb
    s_and_b32 s13, s10, 1
    s_lshr_b32 s14, s10, 1                 ; kq
    s_lshl_b32 s15, s11, 1
    s_add_u32 s15, s15, s13                ; tt
    s_mul_i32 s16, s15, {112*1024}
    s_mul_i32 s17, s14, 28672
    s_add_u32 s16, s16, s17
    s_add_u32 s16, s16, {HH}
    s_lshl_b32 s18, s12, 1
    s_add_u32 s18, s18, s13
    s_mul_i32 s18, s18, {112*1024}
    s_add_u32 s18, s18, s17
    s_add_u32 s18, s18, {WDF}              ; W src
    s_mul_i32 s19, s10, 20480
    s_waitcnt lgkmcnt(0)
    """)
    srd(a, 20, 8, WS_BYTES)
    srd(a, 28, 4, 2048*896)
    outstanding = []
    def wgrp(g):
        a(f"s_mov_b32 m0, s19")
        a("s_nop 0")
        for q in range(4):
            a(f"buffer_load_dwordx4 v2, s[20:23], s18 offen offset:{q*1024} lds")
        a("s_add_u32 s18, s18, 4096\ns_add_u32 s19, s19, 4096")
        outstanding.extend([f"G{g}"]*4)
    def bgrp(g):
        for q in range(4):
            a(f"buffer_load_dwordx4 {vr(B+16*g+4*q)}, v2, s[20:23], s16 offen offset:{q*1024}")
        a("s_add_u32 s16, s16, 4096")
        outstanding.extend([f"G{g}"]*4)
    for g in range(7):
        if g < 5: wgrp(g)
        bgrp(g)
    a(f"""
    s_mul_i32 s19, s10, 20480
    s_mul_i32 s24, s15, 28672
    s_lshl_b32 s25, s12, 2
    s_add_u32 s25, s25, s14
    s_lshl_b32 s26, s25, 10
    s_add_u32 s24, s24, s26
    s_add_u32 s24, s24, {HF}
    buffer_load_dwordx4 {vr(HR)}, v2, s[20:23], s24 offen
    s_mul_i32 s27, s14, 40960
    v_add_u32 v3, s27, v2
    """)
    outstanding.append("H")
    for g in range(7):
        last = max(i for i, t in enumerate(outstanding) if t == f"G{g}")
        a(f"s_waitcnt vmcnt({len(outstanding)-1-last})\ns_barrier")
        if g in (1, 2):
            wgrp(g + 4)
        slot = g % 5
        for q in range(4):
            for f in range(2):
                a(f"ds_read_b128 {vr(AW+8*q+4*f)}, v3 offset:{f*20480+slot*4096+q*1024}")
        for q in range(4):
            ks = 4*g + q
            for f in range(2):
                a(f"s_waitcnt lgkmcnt({7-2*q-f})")
                a(f"v_mfma_f32_32x32x16_bf16 {vr(ACC+16*f,16)}, {vr(AW+8*q+4*f)}, {vr(B+4*ks)}, {'0' if ks==0 else vr(ACC+16*f,16)}")
    a(f"""
    s_barrier
    s_lshl_b32 s27, s13, 15
    s_lshl_b32 s26, s14, 11
    s_add_u32 s26, s26, s27
    v_add_u32 v4, s26, v2
    s_lshl_b32 s26, s14, 13
    s_add_u32 s26, s26, s27
    v_add_u32 v5, s26, v2
    """)
    for part in range(4):
        for hh in range(2):
            a(f"ds_write_b128 v4, {vr(ACC+8*part+4*hh)} offset:{part*8192+hh*1024}")
    a("s_waitcnt lgkmcnt(0)\ns_barrier")
    for kq in range(4):
        for hh in range(2):
            a(f"ds_read_b128 {vr(B+8*kq+4*hh)}, v5 offset:{kq*2048+hh*1024}")
    a("s_waitcnt lgkmcnt(0)")
    for r in range(8):
        a(f"v_add_f32 v{B+r}, v{B+r}, v{B+8+r}\nv_add_f32 v{B+16+r}, v{B+16+r}, v{B+24+r}")
    for r in range(8):
        a(f"v_add_f32 v{B+r}, v{B+r}, v{B+16+r}")
    for r in range(4):
        a(f"v_cvt_pk_bf16_f32 v{B+8+r}, v{B+2*r}, v{B+2*r+1}")
    a("s_waitcnt vmcnt(0)")
    for r in range(4):
        a(f"""
        v_lshlrev_b32 v{B+16}, 16, v{B+8+r}
        v_and_b32 v{B+17}, 0xffff0000, v{B+8+r}
        v_lshlrev_b32 v{B+18}, 16, v{HR+r}
        v_and_b32 v{B+19}, 0xffff0000, v{HR+r}
        v_add_f32 v{B+16}, v{B+16}, v{B+18}
        v_add_f32 v{B+17}, v{B+17}, v{B+19}
        v_cvt_pk_bf16_f32 v{B+20+r}, v{B+16}, v{B+17}
        """)
    a(f"""
    v_and_b32 v3, 31, v1
    v_mul_u32_u24 v3, 896, v3
    v_lshrrev_b32 v4, 5, v1
    v_lshl_add_u32 v3, v4, 4, v3
    s_mul_i32 s24, s15, {32*896}
    s_lshl_b32 s25, s25, 5
    s_add_u32 s24, s24, s25
    buffer_store_dwordx4 {vr(B+20)}, v3, s[28:31], s24 offen
L_{n}_end:
    s_endpgm
    """)
    finish_kernel("dn_kernel", a, 212, 224, 512, 163840)

def build(path):
    gen_p0(); gen_p1(); gen_p2(); gen_p3(); gen_p4(); gen_p5()
    hdr = open(f"cdna_kernels/{NAME}.s.ref").read().split("; Override launch")[0]
    out = hdr
    for (name, body, vgpr, accum, sgpr, grid, block, lds) in kernels:
        out += f"; @launch kernel={name} grid=({grid},1,1) block=({block},1,1) lds={lds}\n"
    out += '.amdgcn_target "amdgcn-amd-amdhsa--gfx950"\n.text\n'
    for (name, body, vgpr, accum, sgpr, grid, block, lds) in kernels:
        out += f".globl {name}\n.p2align 8\n.type {name},@function\n{name}:\n{body}\n"
    out += '.section .rodata,"a"\n'
    for (name, body, vgpr, accum, sgpr, grid, block, lds) in kernels:
        out += f""".p2align 6
.amdhsa_kernel {name}
  .amdhsa_next_free_vgpr {vgpr}
  .amdhsa_next_free_sgpr {sgpr}
  .amdhsa_accum_offset {accum}
  .amdhsa_group_segment_fixed_size 0
  .amdhsa_kernarg_size 80
  .amdhsa_user_sgpr_count 2
  .amdhsa_user_sgpr_kernarg_segment_ptr 1
  .amdhsa_system_sgpr_workgroup_id_x 1
.end_amdhsa_kernel
"""
    open(path, "w").write(out)

if __name__ == "__main__":
    build(sys.argv[1] if len(sys.argv) > 1 else f"cdna_kernels/{NAME}.s")
```

```python
import re

REG_RE = re.compile(r'^(-|abs\()?\s*([vsa])(\d+)\)?$')
RANGE_RE = re.compile(r'^(-|abs\()?\s*([vsa])\[(\d+):(\d+)\]\)?$')

def regs_of(op):
    op = op.strip()
    m = REG_RE.match(op)
    if m:
        return {(m.group(2), int(m.group(3)))}
    m = RANGE_RE.match(op)
    if m:
        return {(m.group(2), i) for i in range(int(m.group(3)), int(m.group(4)) + 1)}
    if op == 'vcc':
        return {('s', 106), ('s', 107)}
    if op == 'vcc_lo': return {('s', 106)}
    if op == 'vcc_hi': return {('s', 107)}
    if op == 'exec':
        return {('s', 126), ('s', 127)}
    if op == 'exec_lo': return {('s', 126)}
    if op == 'exec_hi': return {('s', 127)}
    if op == 'm0':
        return {('s', 124)}
    return set()

def split_ops(s):
    out, depth, cur = [], 0, ''
    for ch in s:
        if ch in '[(':
            depth += 1
        if ch in '])':
            depth -= 1
        if ch == ',' and depth == 0:
            out.append(cur.strip()); cur = ''
        else:
            cur += ch
    if cur.strip():
        out.append(cur.strip())
    return out

TRANS = ('v_exp_f32', 'v_log_f32', 'v_rcp_f32', 'v_rsq_f32', 'v_sqrt_f32', 'v_sin_f32', 'v_cos_f32', 'v_rcp_iflag_f32',
         'v_exp_f16', 'v_rcp_f16', 'v_rsq_f16', 'v_sqrt_f16', 'v_log_f16')

class Ins:
    def __init__(self, text):
        self.text = text
        t = text.split(';')[0].strip()
        self.label = t.endswith(':')
        self.directive = t.startswith('.')
        self.mn = ''
        self.ops = []
        self.mods = ''
        self.W = set(); self.R = set()
        self.kind = 'other'
        self.srcC = set(); self.srcAB = set()
        self.passes = 0
        self.dpp = False
        self.states = 0 if (self.label or self.directive or not t) else 1
        if self.label or self.directive or not t:
            return
        parts = t.split(None, 1)
        self.mn = mn = parts[0]
        rest = parts[1] if len(parts) > 1 else ''
        ops = split_ops(rest)
        if ops:
            last = ops[-1].split()
            if len(last) > 1 and not ops[-1].startswith('abs('):
                ops[-1] = last[0]; self.mods = ' '.join(last[1:])
        self.ops = ops
        R = lambda i: regs_of(ops[i]) if i < len(ops) else set()
        allfrom = lambda i: set().union(*[regs_of(o) for o in ops[i:]]) if len(ops) > i else set()
        if mn == 's_nop':
            self.states = int(ops[0], 0) + 1; self.kind = 'salu'
        elif mn.startswith('v_mfma'):
            self.kind = 'mfma'
            self.W = R(0); self.srcAB = R(1) | R(2); self.srcC = R(3); self.R = self.srcAB | self.srcC
            self.passes = 8 if '32x32' in mn else 4
        elif mn.startswith('v_'):
            self.kind = 'valu'
            self.dpp = ('row_' in self.mods or 'quad_perm' in self.mods or 'wave_' in self.mods or '_dpp' in mn)
            if mn.startswith('v_permlane') and 'swap' in mn:
                self.W = R(0) | R(1); self.R = R(0) | R(1)
            elif '_co_' in mn or mn.startswith('v_div_scale') or mn.startswith('v_mad_u64'):
                self.W = R(0) | R(1); self.R = allfrom(2)
            elif mn.startswith('v_cmpx'):
                self.W = R(0) | regs_of('exec'); self.R = allfrom(1)
            else:
                self.W = R(0); self.R = allfrom(1)
                if mn.startswith('v_fmac') or mn.startswith('v_dot2c') or mn.startswith('v_pk_fmac') or mn.startswith('v_writelane') \
                        or 'UNUSED_PRESERVE' in self.mods or self.dpp:
                    self.R |= R(0)
                if mn.startswith('v_cndmask') and len(ops) == 3:
                    self.R |= regs_of('vcc')
                if mn.startswith('v_div_fmas'):
                    self.R |= regs_of('vcc')
        elif mn.startswith('ds_'):
            self.kind = 'ds'
            if mn.startswith('ds_read') or mn.startswith('ds_bpermute') or mn.startswith('ds_permute') or mn.startswith('ds_swizzle') or '_rtn' in mn:
                self.W = R(0); self.R = allfrom(1)
            else:
                self.R = allfrom(0)
        elif mn.startswith('buffer_'):
            self.kind = 'vmem'
            if ' lds' in (' ' + self.mods) :
                self.R = allfrom(0) | regs_of('m0'); self.lds_dma = True
            elif mn.startswith('buffer_load'):
                self.W = R(0); self.R = allfrom(1)
            elif mn.startswith('buffer_atomic') and 'sc0' in self.mods:
                self.W = R(0); self.R = allfrom(0)
            else:
                self.R = allfrom(0)
                if mn.startswith('buffer_store') and ('x3' in mn or 'x4' in mn):
                    self.wide_data = R(0)
        elif mn.startswith('global_'):
            self.kind = 'vmem'
            if mn.startswith('global_load_lds'):
                self.R = allfrom(0) | regs_of('m0'); self.lds_dma = True
            elif mn.startswith('global_load'):
                self.W = R(0); self.R = allfrom(1)
            elif mn.startswith('global_atomic') and 'sc0' in self.mods:
                self.W = R(0); self.R = allfrom(1)
            else:
                self.R = allfrom(0)
                if mn.startswith('global_store') and ('x3' in mn or 'x4' in mn):
                    self.wide_data = R(1)
        elif mn.startswith('s_'):
            self.kind = 'salu'
            if mn.startswith('s_cmp') or mn.startswith('s_cbranch') or mn.startswith('s_branch') or mn.startswith('s_waitcnt') \
                    or mn in ('s_barrier', 's_endpgm', 's_setprio', 's_sleep') or mn.startswith('s_bitcmp'):
                self.R = allfrom(0)
            else:
                self.W = R(0); self.R = allfrom(1)
                if 'saveexec' in mn:
                    self.W |= regs_of('exec')
        self.is_trans = mn.split('_e32')[0].split('_e64')[0] in TRANS

def need(prod, cons):
    n = 0
    vW = {r for r in prod.W if r[0] in 'va'}
    sW = {r for r in prod.W if r[0] == 's'}
    if prod.kind == 'valu':
        if cons.kind == 'mfma' and vW & cons.R: n = max(n, 2)
        if cons.kind == 'valu':
            if cons.mn.startswith('v_readlane') or cons.mn.startswith('v_readfirstlane'):
                if vW & cons.R: n = max(n, 1)
            if cons.mn.startswith('v_permlane') and vW & cons.R: n = max(n, 2)
            if cons.dpp and vW & cons.R: n = max(n, 2)
            if prod.is_trans and not cons.is_trans and vW & (cons.R): n = max(n, 1)
            if ('sdwa' in prod.mn or 'op_sel' in prod.mods) and vW & (cons.R | cons.W): n = max(n, 1)
            if sW & cons.R:
                n = max(n, 4 if (cons.mn.startswith('v_readlane') or cons.mn.startswith('v_writelane') or cons.mn.startswith('v_div_fmas')) else 2)
            if sW & regs_of('exec'):
                if cons.dpp: n = max(n, 5)
                if cons.mn.startswith('v_read') or cons.mn.startswith('v_writelane') or cons.mn.startswith('v_permlane'): n = max(n, 4)
            if prod.mn.startswith('v_dot') and vW & (cons.R | cons.W):
                same = cons.mn == prod.mn
                if same:
                    ab = set().union(*[regs_of(o) for o in cons.ops[1:3]])
                    if vW & ab: n = max(n, 3)
                else:
                    n = max(n, 3)
        if prod.mn.startswith('v_dot') and cons.kind in ('mfma', 'vmem', 'ds') and vW & (cons.R | cons.W): n = max(n, 3)
        if cons.kind == 'mfma' and sW & regs_of('exec'): n = max(n, 4)
        if cons.kind == 'vmem' and sW & cons.R: n = max(n, 5)
        if cons.kind == 'salu' and sW & cons.R: n = max(n, 1)
    if prod.kind == 'mfma':
        p = prod.passes
        big = {4: 8, 8: 12}[p]
        if cons.kind == 'mfma':
            if vW & cons.srcAB: n = max(n, big)
            if vW & cons.srcC:
                if not (cons.srcC == prod.W and cons.passes == p): n = max(n, {4: 6, 8: 10}[p])
            elif vW & cons.W: n = max(n, {4: 6, 8: 10}[p])
        elif cons.kind in ('valu', 'vmem', 'ds'):
            if vW & (cons.R | cons.W): n = max(n, big)
        if cons.kind == 'valu' and prod.srcC & cons.W: n = max(n, {4: 3, 8: 7}[p])
    if prod.kind == 'salu':
        if regs_of('m0') & prod.W and getattr(cons, 'lds_dma', False): n = max(n, 1)
        if regs_of('m0') & prod.W and cons.mn.startswith('s_movrel'): n = max(n, 1)
    if prod.kind == 'vmem' and getattr(prod, 'wide_data', None):
        if prod.wide_data & cons.W: n = max(n, 2)
    return n

MAXW = 13

class Asm:
    def __init__(self):
        self.lines = []
    def __call__(self, text):
        for l in text.split('\n'):
            l = l.strip()
            if l and not l.startswith(';'):
                self.lines.append(l)
    def emit(self, *ls):
        for l in ls: self(l)

    def finish(self, verbose=False):
        ins = [Ins(l) for l in self.lines]
        npad = 0
        def build():
            labels = {i.text.split(':')[0].strip(): k for k, i in enumerate(ins) if i.label}
            preds = {}
            for k, i in enumerate(ins):
                if i.mn.startswith('s_branch') or i.mn.startswith('s_cbranch'):
                    tgt = i.ops[0]
                    assert tgt in labels, f"unknown label {tgt}"
                    preds.setdefault(labels[tgt], []).append(k)
            return preds
        preds = build()
        k = 0
        while k < len(ins):
            c = ins[k]
            if c.states == 0 or c.mn == 's_nop':
                k += 1; continue
            worst = 0
            stack = [(k - 1, 0)]
            seen = set()
            while stack:
                j, dist = stack.pop()
                while j >= 0 and dist < MAXW:
                    if (j, dist) in seen: break
                    seen.add((j, dist))
                    p = ins[j]
                    if p.label:
                        for b in preds.get(j, []):
                            stack.append((b, dist))
                    if p.states:
                        nreq = need(p, c)
                        if nreq > dist:
                            worst = max(worst, nreq - dist)
                        dist += p.states
                    j -= 1
                    if j >= 0 and ins[j].mn in ('s_branch', 's_endpgm'):
                        break
            if worst > 0:
                ins.insert(k, Ins(f's_nop {worst-1}'))
                npad += 1
                preds = build()
                k += 1
            k += 1
        if verbose:
            print('inserted nops:', npad)
        return '\n'.join(('' if i.label else '    ') + i.text for i in ins) + '\n'
```

```python
import sys, math
from asmlib import Asm

NAME = "sequential_preLN__softmax_full_mha__glu_gated_reglu__prompt"
QF  = 0x000000
KVF = 0x200000
KN  = 0x600000
OF  = 0x700000
HF  = 0x900000
HH  = 0xC00000
WOF = 0x1400000
WGU = 0x1500000
WDF = 0x1900000
WS_BYTES = 0x10000000

def f2u(x):
    import struct
    return struct.unpack('<I', struct.pack('<f', x))[0]

def srd(a, d, base, nbytes):
    a(f"""
    s_mov_b32 s{d}, s{base}
    s_mov_b32 s{d+1}, s{base+1}
    s_mov_b32 s{d+2}, {nbytes:#x}
    s_mov_b32 s{d+3}, 0x00020000
    """)

def vr(b, n=4):
    return f"v[{b}:{b+n-1}]"

import os
DIAG = int(os.environ.get("DIAG", "0"))
TS = 0x4000000
def stamp(a, i):
    if DIAG:
        a(f"s_memtime s[{64+2*i}:{65+2*i}]\ns_waitcnt lgkmcnt(0)")
def stamp_start(a):
    if DIAG:
        a("s_memrealtime s[96:97]")
        for i in range(8):
            a(f"s_mov_b64 s[{64+2*i}:{65+2*i}], 0")
        a("s_memtime s[64:65]")
def stamp_end(a, kidx, swave, last=7):
    if DIAG:
        a(f"""
        s_mov_b64 exec, -1
        s_waitcnt vmcnt(0) lgkmcnt(0)
        s_memtime s[{64+2*last}:{65+2*last}]
        s_memrealtime s[98:99]
        s_waitcnt lgkmcnt(0)
        s_lshl_b32 s60, s2, 3
        s_add_u32 s60, s60, s{swave}
        s_lshl_b32 s60, s60, 6
        s_add_u32 s60, s60, {TS + kidx*0x40000}
        v_mov_b32 v0, 0
        """)
        for i in range(8):
            a(f"v_mov_b32 v{4+i}, s{64+2*i}")
        a("v_mov_b32 v12, s96\nv_mov_b32 v13, s98\nv_mov_b32 v14, 0\nv_mov_b32 v15, 0")
        a("s_mov_b64 exec, 1")
        for i in range(3):
            a(f"buffer_store_dwordx4 v[{4+4*i}:{7+4*i}], v0, s[20:23], s60 offen offset:{16*i}")

kernels = []

def finish_kernel(name, a, vgpr, grid, block, lds, sgpr=(102 if DIAG else 64), accum=None):
    body = a.finish(verbose=True)
    kernels.append((name, body, vgpr, accum if accum else ((vgpr + 3) // 4) * 4, sgpr, grid, block, lds))

def gen_p0():
    a = Asm()
    n = "wt"
    a(f"""
    s_cmp_ge_u32 s2, 1274
    s_cbranch_scc1 L_{n}_end
    s_load_dwordx2 s[4:5], s[0:1], 16      ; wo
    s_load_dwordx4 s[8:11], s[0:1], 32
    s_load_dwordx2 s[12:13], s[0:1], 48    ; down
    s_load_dwordx2 s[14:15], s[0:1], 72    ; ws
    v_lshrrev_b32 v1, 6, v0
    v_readfirstlane_b32 s16, v1
    s_lshl_b32 s17, s2, 2
    s_add_u32 s17, s17, s16
    v_and_b32 v1, 63, v0                   ; lane
    v_lshrrev_b32 v2, 5, v1                ; hf
    v_bfe_u32 v3, v1, 3, 2                 ; a
    v_bfe_u32 v4, v1, 2, 1                 ; b
    v_and_b32 v5, 3, v1                    ; c
    v_lshlrev_b32 v20, 4, v1               ; lane*16
    s_waitcnt lgkmcnt(0)
    s_cmp_ge_u32 s17, 392
    s_cbranch_scc1 L_{n}_notwo
    ; ---- WOF: mt = g/28, ks = g%28
    s_mul_i32 s18, s17, 2341
    s_lshr_b32 s18, s18, 16                ; g/28
    s_mul_i32 s19, s18, 28
    s_sub_u32 s19, s17, s19                ; ks
    s_mov_b32 s20, s4
    s_mov_b32 s21, s5
    s_lshl_b32 s22, s17, 10
    s_add_u32 s22, s22, {WOF}
    s_branch L_{n}_phi
L_{n}_notwo:
    s_cmp_ge_u32 s17, 3528
    s_cbranch_scc0 L_{n}_gu
    ; ---- WDF: g' = g-3528; mt = g'/112, ks = g'%112
    s_sub_u32 s17, s17, 3528
    s_mul_i32 s18, s17, 9363
    s_lshr_b32 s18, s18, 20                ; g'/112
    s_mul_i32 s19, s18, 112
    s_sub_u32 s19, s17, s19
    s_mov_b32 s20, s12
    s_mov_b32 s21, s13
    s_lshl_b32 s22, s17, 10
    s_add_u32 s22, s22, {WDF}
L_{n}_phi:
    v_lshrrev_b32 v6, 1, v3
    v_lshlrev_b32 v6, 4, v6
    v_lshl_add_u32 v6, v4, 3, v6
    v_and_b32 v7, 1, v3
    v_lshl_add_u32 v6, v7, 2, v6
    v_add_u32 v6, v6, v5
    s_lshl_b32 s18, s18, 5
    v_add_u32 v6, s18, v6
    v_lshlrev_b32 v6, 1, v6
    s_lshl_b32 s19, s19, 4
    v_lshl_add_u32 v7, v2, 3, s19          ; k0
    v_mul_u32_u24 v7, 896, v7
    v_add_u32 v6, v6, v7
    """)
    for j in range(8):
        if j == 4:
            a("v_add_u32 v6, 3584, v6")
        a(f"global_load_ushort v{32+j}, v6, s[20:21] offset:{(j%4)*896}")
    a(f"""
    s_branch L_{n}_store
L_{n}_gu:
    s_sub_u32 s17, s17, 392
    s_mul_i32 s18, s17, 9363
    s_lshr_b32 s18, s18, 18                ; /28
    s_mul_i32 s19, s18, 28
    s_sub_u32 s19, s17, s19
    s_lshl_b32 s22, s17, 10
    s_add_u32 s22, s22, {WGU}
    v_lshrrev_b32 v6, 1, v3
    v_lshlrev_b32 v6, 2, v6
    v_lshl_add_u32 v6, v4, 3, v6
    v_add_u32 v6, v6, v5
    s_lshl_b32 s18, s18, 4
    v_add_u32 v6, s18, v6
    v_lshlrev_b32 v6, 1, v6
    s_lshl_b32 s19, s19, 4
    v_lshl_add_u32 v7, v2, 3, s19
    v_mul_u32_u24 v7, 3584, v7
    v_add_u32 v6, v6, v7
    """)
    for j in range(8):
        a(f"v_add_u32 v{24+j}, {3584*j}, v6")
    for mask, base in ((0x00FF00FF, 8), (0xFF00FF00, 10)):
        a(f"s_mov_b32 exec_lo, {mask:#x}\ns_mov_b32 exec_hi, {mask:#x}")
        for j in range(8):
            a(f"global_load_ushort v{32+j}, v{24+j}, s[{base}:{base+1}]")
    a(f"""
    s_mov_b64 exec, -1
L_{n}_store:
    v_add_u32 v20, s22, v20
    s_waitcnt vmcnt(0)
    v_lshl_or_b32 v12, v33, 16, v32
    v_lshl_or_b32 v13, v35, 16, v34
    v_lshl_or_b32 v14, v37, 16, v36
    v_lshl_or_b32 v15, v39, 16, v38
    global_store_dwordx4 v20, v[12:15], s[14:15]
L_{n}_end:
    s_endpgm
    """)
    finish_kernel("wt_kernel", a, 40, 1274, 256, 0)

def ln_finalize(a, vsum, vsq, vt, vsel_lo, vsel_hi, vc):
    a(f"""
    v_mov_b32 v{vt}, v{vsum}
    v_mov_b32 v{vt+1}, v{vsq}
    v_permlane32_swap_b32 v{vsum}, v{vt}
    v_permlane32_swap_b32 v{vsq}, v{vt+1}
    v_add_f32 v{vsum}, v{vsum}, v{vt}
    v_add_f32 v{vsq}, v{vsq}, v{vt+1}
    v_mul_f32 v{vsum}, {f2u(1.0/448):#x}, v{vsum}        ; mean
    v_mul_f32 v{vsq}, {f2u(1.0/448):#x}, v{vsq}
    v_fma_f32 v{vsq}, -v{vsum}, v{vsum}, v{vsq}           ; var
    v_max_f32 v{vsq}, 0, v{vsq}
    v_add_f32 v{vsq}, {f2u(1e-5):#x}, v{vsq}
    v_rsq_f32 v{vsq}, v{vsq}
    v_cvt_pk_bf16_f32 v{vsel_lo}, v{vsq}, 0
    v_lshlrev_b32 v{vsel_hi}, 16, v{vsel_lo}
    v_mul_f32 v{vc}, v{vsum}, v{vsel_hi}
    v_sub_f32 v{vc}, 0, v{vc}
    """)

def norm_ops(frag, tmp, vsel_lo, vsel_hi, vc):
    L = []
    for i in range(4):
        L.append(f"v_dot2_f32_bf16 v{tmp+2*i}, v{frag+i}, v{vsel_lo}, v{vc}")
        L.append(f"v_dot2_f32_bf16 v{tmp+2*i+1}, v{frag+i}, v{vsel_hi}, v{vc}")
    for i in range(4):
        L.append(f"v_cvt_pk_bf16_f32 v{frag+i}, v{tmp+2*i}, v{tmp+2*i+1}")
    return L

def gen_p1():
    a = Asm()
    n = "qkv"
    XB = 49152
    X = 64
    ACC = 16
    WA = 176
    TMP = 200
    stamp_start(a)
    a(f"""
    s_cmp_ge_u32 s2, 256
    s_cbranch_scc1 L_{n}_end
    s_load_dwordx4 s[4:7], s[0:1], 0
    s_load_dwordx2 s[8:9], s[0:1], 72
    v_lshrrev_b32 v1, 6, v0
    v_readfirstlane_b32 s10, v1            ; wave
    v_and_b32 v1, 63, v0                   ; lane
    s_and_b32 s11, s2, 7                   ; xcd
    s_lshr_b32 s24, s2, 3                  ; i
    s_lshr_b32 s25, s11, 1
    s_lshl_b32 s25, s25, 2
    s_and_b32 s26, s24, 3
    s_add_u32 s25, s25, s26                ; rb
    s_and_b32 s26, s11, 1
    s_lshl_b32 s26, s26, 3
    s_lshr_b32 s27, s24, 2
    s_add_u32 s26, s26, s27                ; cb
    v_lshrrev_b32 v2, 3, v1
    v_mul_u32_u24 v2, 896, v2
    v_lshrrev_b32 v3, 4, v1
    v_and_b32 v4, 7, v1
    v_xor_b32 v3, v3, v4
    v_lshl_add_u32 v2, v3, 4, v2           ; vxe
    v_xor_b32 v3, 64, v2                   ; vxo
    s_lshl_b32 s27, s25, 2
    s_add_u32 s27, s27, s10
    s_mul_i32 s28, s27, {32*896}
    s_mul_i32 s29, s10, 28672
    s_add_u32 s29, s29, {XB}
    s_waitcnt lgkmcnt(0)
    """)
    srd(a, 12, 4, 2048*896)
    srd(a, 16, 6, 448*2688)
    srd(a, 20, 8, WS_BYTES)
    a(f"""
    s_mov_b32 s30, 0
    s_mov_b32 m0, s29
    s_mov_b32 s31, s28
L_{n}_xl:
    buffer_load_dwordx4 v2, s[12:15], s31 offen lds
    s_add_u32 m0, m0, 1024
    s_add_u32 s32, s31, 7168
    buffer_load_dwordx4 v3, s[12:15], s32 offen lds
    s_add_u32 m0, m0, 1024
    s_add_u32 s32, s31, 14336
    buffer_load_dwordx4 v2, s[12:15], s32 offen lds
    s_add_u32 m0, m0, 1024
    s_add_u32 s32, s31, 21504
    buffer_load_dwordx4 v3, s[12:15], s32 offen lds
    s_add_u32 m0, m0, 1024
    s_add_u32 s31, s31, 128
    s_add_u32 s30, s30, 1
    s_cmp_lt_u32 s30, 7
    s_cbranch_scc1 L_{n}_xl
    """)
    for u in range(3):
        a(f"""
        v_add_u32 v8, {64*u}, v1
        v_mul_u32_u24 v9, 43691, v8
        v_lshrrev_b32 v9, 19, v9           ; row
        v_mul_u32_u24 v10, 12, v9
        v_sub_u32 v10, v8, v10             ; cc
        v_min_u32 v10, 10, v10
        v_mul_u32_u24 v9, 2688, v9
        v_lshl_add_u32 v{5+u}, v10, 4, v9
        """)
    a(f"""
    s_mul_i32 s33, s26, 168
    s_and_b32 s34, s26, 1
    s_lshl_b32 s34, s34, 3                 ; colshift
    s_sub_u32 s33, s33, s34                ; colstart
    s_mul_i32 s35, s10, {16*2688}
    s_add_u32 s35, s35, s33
    s_mul_i32 s36, s10, 3072
    """)
    def wdma(cnt, tag):
        a(f"""
        s_mov_b32 s30, 0
L_{n}_wl{tag}:
        s_mov_b32 m0, s36
        s_nop 0
        buffer_load_dwordx4 v5, s[16:19], s35 offen lds
        s_add_u32 m0, m0, 1024
        s_nop 0
        buffer_load_dwordx4 v6, s[16:19], s35 offen lds
        s_add_u32 m0, m0, 1024
        s_nop 0
        buffer_load_dwordx4 v7, s[16:19], s35 offen lds
        s_add_u32 s35, s35, {4*16*2688}
        s_add_u32 s36, s36, {4*3072}
        s_add_u32 s30, s30, 1
        s_cmp_lt_u32 s30, {cnt}
        s_cbranch_scc1 L_{n}_wl{tag}
        """)
    wdma(4, 1)
    stamp(a, 1)
    a(f"""
    v_and_b32 v12, 31, v1                  ; t
    v_lshrrev_b32 v13, 5, v1               ; hf
    v_bfe_u32 v14, v12, 1, 3
    v_xor_b32 v14, v14, v13
    v_lshlrev_b32 v14, 4, v14
    v_lshl_add_u32 v14, v12, 7, v14
    v_add_u32 v8, s29, v14
    v_xor_b32 v9, 32, v8
    v_xor_b32 v10, 64, v8
    v_xor_b32 v11, 96, v8
    v_mov_b32 v15, 0x3f803f80
    v_mov_b32 v208, 0
    v_mov_b32 v209, 0
    v_mov_b32 v210, 0
    v_mov_b32 v211, 0
    """)
    for c in range(7):
        a(f"s_waitcnt vmcnt({40-4*(c+1)})")
        for i in range(4):
            a(f"ds_read_b128 {vr(X+16*c+4*i)}, v{8+i} offset:{c*4096}")
        if c > 0:
            a(f"s_waitcnt lgkmcnt(4)")
            for r in range(16):
                reg = X + 16*(c-1) + r
                a(f"v_dot2c_f32_bf16 v{208+(r&1)}, v{reg}, v15")
                a(f"v_dot2c_f32_bf16 v{210+(r&1)}, v{reg}, v{reg}")
    stamp(a, 2)
    a("s_waitcnt lgkmcnt(0)\ns_barrier")
    wdma(3, 2)
    for r in range(16):
        reg = X + 16*6 + r
        a(f"v_dot2c_f32_bf16 v{208+(r&1)}, v{reg}, v15")
        a(f"v_dot2c_f32_bf16 v{210+(r&1)}, v{reg}, v{reg}")
    a("v_add_f32 v208, v208, v209\nv_add_f32 v210, v210, v211")
    SELL, SELH, VC = 212, 213, 214
    ln_finalize(a, 208, 210, TMP, SELL, SELH, VC)
    a(f"""
    v_lshrrev_b32 v4, 4, v1                ; g
    v_and_b32 v5, 1, v4                    ; ch
    v_bfe_u32 v6, v1, 2, 2                 ; r
    v_lshl_add_u32 v6, v13, 3, v6          ; 8hf + r
    v_mul_u32_u24 v6, 192, v6
    v_lshl_add_u32 v6, v5, 5, v6
    v_and_b32 v7, 3, v1
    v_lshl_add_u32 v6, v7, 3, v6
    v_add_u32 v2, s34, v6
    v_add_u32 v3, 43008, v2
    """)
    a.emit(*norm_ops(X, TMP, SELL, SELH, VC))
    stamp(a, 3)
    a("s_waitcnt vmcnt(9)\ns_barrier")
    stamp(a, 4)
    a(f"""
    s_cmp_lt_u32 s26, 10
    s_cbranch_scc1 L_{n}_v0
    s_cmp_eq_u32 s26, 10
    s_cbranch_scc1 L_{n}_v1
    s_branch L_{n}_v2
    """)
    def wreads(ks):
        buf = WA + 12*(ks & 1)
        base, off = (2, ks*3072) if ks < 14 else (3, (ks-14)*3072)
        L = []
        for j in range(3):
            for u in range(2):
                L.append(f"ds_read_b64_tr_b16 v[{buf+4*j+2*u}:{buf+4*j+2*u+1}], v{base} offset:{off+u*768+j*56}")
        return L
    for var, isv in enumerate(((0,0,0), (0,0,1), (1,1,1))):
        a(f"L_{n}_v{var}:")
        a.emit(*wreads(0))
        for ks in range(28):
            if ks == 15:
                stamp(a, 5)
                a("s_waitcnt vmcnt(0)\ns_barrier")
            nxt = wreads(ks+1) if ks < 27 else []
            nrm = norm_ops(X+4*(ks+1), TMP, SELL, SELH, VC) if ks < 27 else []
            a.emit(*nxt)
            a(f"s_waitcnt lgkmcnt({len(nxt)})")
            buf = WA + 12*(ks & 1)
            for j in range(3):
                A, B = vr(buf+4*j), vr(X+4*ks)
                if isv[j]: A, B = B, A
                C = "0" if ks == 0 else vr(ACC+16*j, 16)
                a(f"v_mfma_f32_32x32x16_bf16 {vr(ACC+16*j,16)}, {A}, {B}, {C}")
                a.emit(*nrm[4*j:4*j+4])
        if var < 2:
            a(f"s_branch L_{n}_epi")
    QS = f2u(28 ** -0.5 * math.log2(math.e))
    a(f"""
L_{n}_epi:
    v_lshlrev_b32 v2, 4, v1                ; lane*16
    s_mul_i32 s37, s26, 3                  ; p
    """)
    stamp(a, 6)
    P = X
    for j in range(3):
        acc = ACC + 16*j
        a(f"""
        s_and_b32 s38, s37, 15             ; h
        s_lshl_b32 s38, s38, 6
        s_add_u32 s38, s38, s27            ; h*64+tt
        s_cmp_ge_u32 s37, 16
        s_cbranch_scc1 L_{n}_e{j}_kv
        """)
        for r in range(16):
            a(f"v_mul_f32 v{acc+r}, {QS:#x}, v{acc+r}")
        for r in range(8):
            a(f"v_cvt_pk_bf16_f32 v{P+r}, v{acc+2*r}, v{acc+2*r+1}")
        a(f"""
        s_mov_b32 exec_lo, 0
        v_mov_b32 v{P+6}, 0
        v_mov_b32 v{P+7}, 0
        s_mov_b32 exec_lo, -1
        s_lshl_b32 s39, s38, 11
        s_add_u32 s39, s39, {QF}
        s_branch L_{n}_e{j}_st
L_{n}_e{j}_kv:
        """)
        for r in range(8):
            a(f"v_cvt_pk_bf16_f32 v{P+r}, v{acc+2*r}, v{acc+2*r+1}")
        a(f"""
        s_lshl_b32 s39, s38, 12
        s_add_u32 s39, s39, {KVF}
        s_cmp_ge_u32 s37, 32
        s_cbranch_scc1 L_{n}_e{j}_v
        s_mov_b32 exec_lo, 0
        v_mov_b32 v{P+6}, 0
        v_mov_b32 v{P+7}, 0
        s_mov_b32 exec_lo, -1
        v_mov_b32 v208, 0
        """)
        for r in range(8):
            a(f"v_dot2c_f32_bf16 v208, v{P+r}, v{P+r}")
        a(f"""
        v_mov_b32 v209, v208
        v_permlane32_swap_b32 v208, v209
        v_add_f32 v208, v208, v209
        v_max_f32_dpp v208, v208, v208 row_shr:1 row_mask:0xf bank_mask:0xf
        v_max_f32_dpp v208, v208, v208 row_shr:2 row_mask:0xf bank_mask:0xf
        v_max_f32_dpp v208, v208, v208 row_shr:4 row_mask:0xf bank_mask:0xf
        v_max_f32_dpp v208, v208, v208 row_shr:8 row_mask:0xf bank_mask:0xf
        v_max_f32_dpp v208, v208, v208 row_bcast:15 row_mask:0xa bank_mask:0xf
        s_lshl_b32 s40, s38, 2
        s_add_u32 s40, s40, {KN}
        v_mov_b32 v209, 0
        s_mov_b32 exec_hi, 0
        s_mov_b32 exec_lo, 0x80000000
        buffer_store_dword v208, v209, s[20:23], s40 offen
        s_mov_b32 exec_hi, -1
        s_mov_b32 exec_lo, 0
        v_mov_b32 v{P+6}, v15
        s_mov_b32 exec_lo, -1
        s_branch L_{n}_e{j}_st
L_{n}_e{j}_v:
        s_add_u32 s39, s39, 2048
        s_mov_b32 exec_lo, 0x10000000
        s_mov_b32 exec_hi, 0x10000000
        """)
        for r in range(8):
            a(f"v_mov_b32 v{P+r}, v15")
        a("s_mov_b32 exec_lo, 0xe0000000\ns_mov_b32 exec_hi, 0xe0000000")
        for r in range(8):
            a(f"v_mov_b32 v{P+r}, 0")
        a(f"""
        s_mov_b64 exec, -1
L_{n}_e{j}_st:
        buffer_store_dwordx4 {vr(P)}, v2, s[20:23], s39 offen
        buffer_store_dwordx4 {vr(P+4)}, v2, s[20:23], s39 offen offset:1024
        s_add_u32 s37, s37, 1
        """)
        P += 8
    stamp_end(a, 1, 10)
    a(f"L_{n}_end:\ns_endpgm")
    finish_kernel("qkv_kernel", a, 216, 256, 256, 163840)

def gen_p2():
    a = Asm()
    n = "att"
    Q = 16; O = 24; S0 = 40; S1 = 56; P = 72; K0 = 80; K1 = 84; V0 = 88; V1 = 92
    VL16 = 2; VCUR = 3; VNXT = 4; VKN = 5
    stamp_start(a)
    a(f"""
    s_cmp_ge_u32 s2, 256
    s_cbranch_scc1 L_{n}_end
    s_load_dwordx2 s[8:9], s[0:1], 72
    v_lshrrev_b32 v1, 6, v0
    v_readfirstlane_b32 s10, v1            ; wave
    v_and_b32 v1, 63, v0                   ; lane
    v_lshlrev_b32 v{VL16}, 4, v1
    v_lshlrev_b32 v6, 2, v1
    s_and_b32 s11, s2, 15                  ; h  (xcd = h&7)
    s_lshr_b32 s12, s2, 4                  ; qb
    s_and_b32 s13, s10, 3                  ; w&3
    s_lshr_b32 s14, s10, 2                 ; kh
    s_lshl_b32 s15, s12, 2
    s_add_u32 s15, s15, s13                ; qt
    s_lshl_b32 s16, s11, 6                 ; h*64
    s_add_u32 s17, s16, s15
    s_lshl_b32 s17, s17, 11
    s_add_u32 s17, s17, {QF}               ; Q soffset
    s_lshl_b32 s18, s11, 8
    s_add_u32 s18, s18, {KN}
    s_lshl_b32 s19, s14, 5
    s_add_u32 s19, s19, s16                ; h*64 + kh*32
    s_lshl_b32 s28, s19, 12
    s_add_u32 s28, s28, {KVF}
    s_add_u32 s19, s19, s13
    s_lshl_b32 s19, s19, 12
    s_add_u32 s19, s19, {KVF}
    s_lshl_b32 s24, s10, 12
    s_mov_b32 s29, 0                       ; pass
    s_waitcnt lgkmcnt(0)
    """)
    srd(a, 20, 8, WS_BYTES)
    a(f"""
    buffer_load_dwordx4 {vr(Q)}, v{VL16}, s[20:23], s17 offen
    buffer_load_dwordx4 {vr(Q+4)}, v{VL16}, s[20:23], s17 offen offset:1024
    buffer_load_dword v{VKN}, v6, s[20:23], s18 offen
L_{n}_restart:
    s_mov_b32 s25, s19
    s_mov_b32 s26, s24
    """)
    def dma():
        a("s_mov_b32 m0, s26")
        for i in range(4):
            a(f"buffer_load_dwordx4 v{VL16}, s[20:23], s25 offen offset:{i*1024} lds")
        a(f"""
        s_add_u32 s25, s25, 16384
        s_add_u32 s26, s26, 32768
        s_and_b32 s26, s26, 0x1ffff
        """)
    for s in range(3):
        dma()
    a(f"""
    s_lshl_b32 s27, s14, 14
    v_add_u32 v{VCUR}, s27, v{VL16}
    v_add_u32 v{VNXT}, 32768, v{VCUR}
    s_cmp_lg_u32 s29, 0
    s_cbranch_scc1 L_{n}_havem
    s_waitcnt vmcnt(12)
    v_mov_b32 v7, 0
    """)
    for r in range(8):
        a(f"v_dot2c_f32_bf16 v7, v{Q+r}, v{Q+r}")
    a(f"""
    v_max_f32_dpp v{VKN}, v{VKN}, v{VKN} row_shr:1 row_mask:0xf bank_mask:0xf
    v_max_f32_dpp v{VKN}, v{VKN}, v{VKN} row_shr:2 row_mask:0xf bank_mask:0xf
    v_max_f32_dpp v{VKN}, v{VKN}, v{VKN} row_shr:4 row_mask:0xf bank_mask:0xf
    v_max_f32_dpp v{VKN}, v{VKN}, v{VKN} row_shr:8 row_mask:0xf bank_mask:0xf
    v_max_f32_dpp v{VKN}, v{VKN}, v{VKN} row_bcast:15 row_mask:0xa bank_mask:0xf
    v_max_f32_dpp v{VKN}, v{VKN}, v{VKN} row_bcast:31 row_mask:0xc bank_mask:0xf
    v_mov_b32 v8, v7
    v_permlane32_swap_b32 v7, v8
    v_add_f32 v7, v7, v8
    v_readlane_b32 s30, v{VKN}, 63
    v_mul_f32 v7, s30, v7
    v_sqrt_f32 v7, v7
    v_mul_f32 v7, {f2u(1.0+1.0/64):#x}, v7
    v_add_u32 v7, 0xffff, v7
    v_lshrrev_b32 v7, 16, v7
    v_or_b32 v7, 0x8000, v7
    s_mov_b32 exec_lo, 0
    v_mov_b32 v{Q+6}, v7
    s_mov_b32 exec_lo, -1
L_{n}_havem:
    """)
    for r in range(16):
        a(f"v_mov_b32 v{O+r}, 0")
    for r in range(4):
        a(f"v_mov_b32 v{P+4+r}, 0\nv_mov_b32 v{V1+r}, 0")
    stamp(a, 1)
    a("s_waitcnt vmcnt(8)\ns_barrier")
    stamp(a, 2)
    a(f"""
    ds_read_b128 {vr(K0)}, v{VCUR}
    ds_read_b128 {vr(K1)}, v{VCUR} offset:1024
    s_waitcnt lgkmcnt(0)
    v_mfma_f32_32x32x16_bf16 {vr(S0,16)}, {vr(K0)}, {vr(Q)}, 0
    v_mfma_f32_32x32x16_bf16 {vr(S0,16)}, {vr(K1)}, {vr(Q+4)}, {vr(S0,16)}
    ds_read_b128 {vr(K0)}, v{VCUR} offset:4096
    ds_read_b128 {vr(K0)}, v{VCUR} offset:4096
    ds_read_b128 {vr(K1)}, v{VCUR} offset:5120
    ds_read_b128 {vr(V0)}, v{VCUR} offset:2048
    s_mov_b32 s31, 0
L_{n}_loop:
    """)
    def addr(i):
        return (VCUR, i*4096) if i < 4 else (VNXT, (i-4)*4096)
    for i in range(4):
        Sc, Sn = (S0, S1) if i % 2 == 0 else (S1, S0)
        AV = os.environ.get("AV", "")
        if i == 2 and "nobar" not in AV:
            a(f"""
            s_cmp_ge_u32 s31, 6
            s_cbranch_scc1 L_{n}_w0
            s_waitcnt vmcnt(4)
            s_branch L_{n}_w1
L_{n}_w0:
            s_waitcnt vmcnt(0)
L_{n}_w1:
            s_barrier
            s_cmp_ge_u32 s31, 5
            s_cbranch_scc1 L_{n}_nodma
            """)
            if "nodma" not in AV: dma()
            a(f"L_{n}_nodma:")
        if "bal1" in AV:
            a(f"s_setprio {3 - ((i + 2) % 4)}")
        if "bal2" in AV and i in (2, 0, 1):
            a(f"s_setprio {dict([(2,3),(0,2),(1,1)])[i]}")
        e = lambda r: f"v_exp_f32 v{Sc+r}, v{Sc+r}"
        c = lambda r: f"v_cvt_pk_bf16_f32 v{P+r}, v{Sc+2*r}, v{Sc+2*r+1}"
        b2, o2 = addr(i+2); b0, o0 = addr(i); b1, o1 = addr(i+1)
        a(f"""
        s_waitcnt lgkmcnt(3)
        v_mfma_f32_32x32x16_bf16 {vr(Sn,16)}, {vr(K0)}, {vr(Q)}, 0
        ds_read_b128 {vr(K0)}, v{b2} offset:{o2}
        """)
        a.emit(e(0), e(1), e(2), e(3), e(4))
        a(f"""
        s_waitcnt lgkmcnt(3)
        v_mfma_f32_32x32x16_bf16 {vr(O,16)}, {vr(V1)}, {vr(P+4)}, {vr(O,16)}
        ds_read_b128 {vr(V1)}, v{b0} offset:{o0+3072}
        """)
        a.emit(e(5), e(6), e(7), c(0), c(1), c(2), c(3))
        if "bal2" in AV and i == 1:
            a("s_setprio 0")
        a(f"""
        s_waitcnt lgkmcnt(3)
        v_mfma_f32_32x32x16_bf16 {vr(Sn,16)}, {vr(K1)}, {vr(Q+4)}, {vr(Sn,16)}
        ds_read_b128 {vr(K1)}, v{b2} offset:{o2+1024}
        """)
        a.emit(e(8), e(9), e(10), e(11), e(12))
        a(f"""
        s_waitcnt lgkmcnt(3)
        v_mfma_f32_32x32x16_bf16 {vr(O,16)}, {vr(V0)}, {vr(P)}, {vr(O,16)}
        ds_read_b128 {vr(V0)}, v{b1} offset:{o1+2048}
        """)
        a.emit(e(13), e(14), e(15), c(4), c(5), c(6), c(7))
    a(f"""
    v_mov_b32 v{VCUR}, v{VNXT}
    v_add_u32 v{VNXT}, 32768, v{VNXT}
    v_and_b32 v{VNXT}, 0x1ffff, v{VNXT}
    s_add_u32 s31, s31, 1
    s_cmp_lt_u32 s31, 8
    s_cbranch_scc1 L_{n}_loop
    s_waitcnt lgkmcnt(0)
    v_mfma_f32_32x32x16_bf16 {vr(O,16)}, {vr(V1)}, {vr(P+4)}, {vr(O,16)}
    """)
    stamp(a, 3)
    a("s_barrier")
    stamp(a, 4)
    a(f"""
    s_lshl_b32 s27, s13, 12
    v_add_u32 v7, s27, v{VL16}
    v_mov_b32 v9, 0x10000
    v_mov_b32 v10, 0
    s_cmp_eq_u32 s14, 0
    s_cbranch_scc1 L_{n}_lo1
    """)
    for r in range(4):
        a(f"ds_write_b128 v7, {vr(O+4*r)} offset:{r*1024}")
    a(f"""
    ds_write_b32 v9, v10
    s_waitcnt lgkmcnt(0)
    s_barrier
    s_branch L_{n}_join
L_{n}_lo1:
    s_barrier
    """)
    for r in range(4):
        a(f"ds_read_b128 {vr(S0+4*r)}, v7 offset:{r*1024}")
    a("s_waitcnt lgkmcnt(0)")
    for r in range(16):
        a(f"v_add_f32 v{O+r}, v{O+r}, v{S0+r}")
    a(f"""
    v_mov_b32 v11, v{O+12}
    v_mov_b32 v12, v{O+12}
    v_permlane32_swap_b32 v11, v12
    v_mov_b32 v13, 0x1f800000
    v_cmp_nge_f32 vcc, v12, v13
    v_rcp_f32 v12, v12
    s_cmp_eq_u64 vcc, 0
    s_cbranch_scc1 L_{n}_ok
    v_mov_b32 v10, 1
    ds_write_b32 v9, v10
L_{n}_ok:
    """)
    for r in range(16):
        a(f"v_mul_f32 v{O+r}, v{O+r}, v12")
    for r in range(8):
        a(f"v_cvt_pk_bf16_f32 v{P+r}, v{O+2*r}, v{O+2*r+1}")
    a(f"""
    v_and_b32 v11, 31, v1                  ; t
    v_lshrrev_b32 v13, 5, v1               ; hf
    s_mul_i32 s32, s11, 7
    v_add_u32 v13, s32, v13                ; p0 = 7h + hf
    s_mul_i32 s33, s15, 28672
    s_add_u32 s33, s33, {OF}
    """)
    for i in range(4):
        a(f"""
        v_add_u32 v14, {2*i}, v13
        v_lshrrev_b32 v15, 1, v14
        v_lshlrev_b32 v15, 9, v15          ; (p>>1)*512
        v_and_b32 v14, 1, v14
        v_lshl_add_u32 v15, v14, 3, v15
        v_lshl_add_u32 v15, v11, 4, v15
        """)
        if i == 3:
            a("s_mov_b32 exec_hi, 0")
        a(f"buffer_store_dwordx2 v[{P+2*i}:{P+2*i+1}], v15, s[20:23], s33 offen")
    a(f"""
    s_mov_b32 exec_hi, -1
    s_waitcnt lgkmcnt(0)
L_{n}_join:
    s_cmp_lg_u32 s29, 0
    s_cbranch_scc1 L_{n}_fin
    s_barrier
    ds_read_b32 v10, v9
    s_waitcnt lgkmcnt(0)
    v_readfirstlane_b32 s34, v10
    s_cmp_eq_u32 s34, 0
    s_cbranch_scc1 L_{n}_fin
    s_mov_b32 s29, 1
    s_mov_b32 exec_lo, 0
    v_mov_b32 v{Q+6}, 0
    s_mov_b32 exec_lo, -1
    v_mov_b32 v10, 0xff800000
    s_mov_b32 s31, 0
    s_mov_b32 s35, s28
L_{n}_mx:
    buffer_load_dwordx4 {vr(K0)}, v{VL16}, s[20:23], s35 offen
    buffer_load_dwordx4 {vr(K1)}, v{VL16}, s[20:23], s35 offen offset:1024
    s_waitcnt vmcnt(0)
    v_mfma_f32_32x32x16_bf16 {vr(S0,16)}, {vr(K0)}, {vr(Q)}, 0
    v_mfma_f32_32x32x16_bf16 {vr(S0,16)}, {vr(K1)}, {vr(Q+4)}, {vr(S0,16)}
    """)
    for r in range(8):
        a(f"v_max3_f32 v10, v{S0+2*r}, v{S0+2*r+1}, v10")
    a(f"""
    s_add_u32 s35, s35, 4096
    s_add_u32 s31, s31, 1
    s_cmp_lt_u32 s31, 32
    s_cbranch_scc1 L_{n}_mx
    v_mov_b32 v11, v10
    v_permlane32_swap_b32 v10, v11
    v_max_f32 v10, v10, v11
    s_lshl_b32 s27, s10, 8
    v_add_u32 v12, s27, v6                 ; w*256 + lane*4
    v_xor_b32 v13, 1024, v12
    s_barrier
    ds_write_b32 v12, v10
    s_waitcnt lgkmcnt(0)
    s_barrier
    ds_read_b32 v11, v13
    s_waitcnt lgkmcnt(0)
    v_max_f32 v10, v10, v11
    v_sub_f32 v10, 0, v10                  ; -m
    v_and_b32 v11, 0xffff0000, v10
    v_sub_f32 v12, v10, v11
    v_cvt_pk_bf16_f32 v10, v11, v12
    s_mov_b32 exec_lo, 0
    v_mov_b32 v{Q+6}, v10
    s_mov_b32 exec_lo, -1
    s_barrier
    s_branch L_{n}_restart
L_{n}_fin:
    """)
    stamp_end(a, 2, 10)
    a(f"L_{n}_end:\ns_endpgm")
    if "nods" in AV:
        i0 = a.lines.index(f"L_{n}_loop:"); i1 = a.lines.index(f"s_cbranch_scc1 L_{n}_loop")
        a.lines = [l for k, l in enumerate(a.lines) if not (i0 < k < i1 and (l.startswith("ds_read") or l.startswith("s_waitcnt lgkmcnt")))]
    if "prio" in AV:
        i0 = a.lines.index(f"L_{n}_loop:")
        a.lines[i0:i0] = ["s_cmp_eq_u32 s14, 0", f"s_cbranch_scc1 L_{n}_loop", "s_setprio 1"]
    finish_kernel("att_kernel", a, 96, 256, 512, 131072)

def gen_p3():
    a = Asm()
    n = "wo"
    ACC = 16; AB = 32; XR = 64
    stamp_start(a)
    a(f"""
    s_cmp_ge_u32 s2, 224
    s_cbranch_scc1 L_{n}_end
    s_load_dwordx2 s[4:5], s[0:1], 0
    s_load_dwordx2 s[8:9], s[0:1], 72
    v_lshrrev_b32 v1, 6, v0
    v_readfirstlane_b32 s10, v1            ; wave
    v_and_b32 v1, 63, v0
    v_lshlrev_b32 v2, 4, v1
    s_and_b32 s11, s2, 7
    s_lshr_b32 s12, s2, 3                  ; i
    s_lshl_b32 s11, s11, 2
    s_and_b32 s13, s12, 3
    s_add_u32 s11, s11, s13                ; tb
    s_lshr_b32 s12, s12, 2                 ; fb
    s_and_b32 s13, s10, 1                  ; tt_l
    s_lshr_b32 s14, s10, 1                 ; ft_l
    s_cmp_ge_u32 s10, 2
    s_cselect_b32 s15, s12, s11
    s_mov_b32 s16, {OF}
    s_cselect_b32 s16, {WOF}, s16
    s_lshl_b32 s15, s15, 1
    s_add_u32 s15, s15, s13
    s_mul_i32 s15, s15, 28672
    s_add_u32 s15, s15, s16
    s_mul_i32 s17, s10, 28672
    s_lshl_b32 s18, s11, 1
    s_add_u32 s18, s18, s13                ; tt
    s_lshl_b32 s19, s12, 1
    s_add_u32 s19, s19, s14                ; ft
    v_and_b32 v3, 31, v1
    v_mul_u32_u24 v3, 896, v3
    v_lshrrev_b32 v4, 5, v1
    v_lshl_add_u32 v3, v4, 4, v3
    s_mul_i32 s24, s18, {32*896}
    s_lshl_b32 s25, s19, 6
    s_add_u32 s24, s24, s25
    s_waitcnt lgkmcnt(0)
    """)
    srd(a, 28, 4, 2048*896)
    srd(a, 20, 8, WS_BYTES)
    a(f"""
    buffer_load_dwordx4 {vr(XR)}, v3, s[28:31], s24 offen
    buffer_load_dwordx4 {vr(XR+4)}, v3, s[28:31], s24 offen offset:32
    s_mov_b32 s26, 0
L_{n}_dl:
    s_mov_b32 m0, s17
    s_nop 0
    buffer_load_dwordx4 v2, s[20:23], s15 offen lds
    buffer_load_dwordx4 v2, s[20:23], s15 offen offset:1024 lds
    buffer_load_dwordx4 v2, s[20:23], s15 offen offset:2048 lds
    buffer_load_dwordx4 v2, s[20:23], s15 offen offset:3072 lds
    s_add_u32 s15, s15, 4096
    s_add_u32 s17, s17, 4096
    s_add_u32 s26, s26, 1
    s_cmp_lt_u32 s26, 7
    s_cbranch_scc1 L_{n}_dl
    s_mul_i32 s27, s13, 28672
    v_add_u32 v5, s27, v2                  ; B (O) addr
    s_mul_i32 s27, s14, 28672
    s_add_u32 s27, s27, 57344
    v_add_u32 v6, s27, v2
    """)
    stamp(a, 1)
    for ch in range(7):
        a(f"s_waitcnt vmcnt({24-4*ch})\ns_barrier")
        if ch in (0, 3, 6): stamp(a, 2 + ch // 3)
        for q in range(4):
            ks = 4*ch + q
            a(f"ds_read_b128 {vr(AB+8*q)}, v6 offset:{ks*1024}\nds_read_b128 {vr(AB+8*q+4)}, v5 offset:{ks*1024}")
        for q in range(4):
            ks = 4*ch + q
            a(f"s_waitcnt lgkmcnt({6-2*q})")
            a(f"v_mfma_f32_32x32x16_bf16 {vr(ACC,16)}, {vr(AB+8*q)}, {vr(AB+8*q+4)}, {'0' if ks==0 else vr(ACC,16)}")
    for r in range(8):
        a(f"v_cvt_pk_bf16_f32 v{AB+r}, v{ACC+2*r}, v{ACC+2*r+1}")
    for r in range(8):
        a(f"""
        v_lshlrev_b32 v{ACC+2*r}, 16, v{AB+r}
        v_and_b32 v{ACC+2*r+1}, 0xffff0000, v{AB+r}
        v_lshlrev_b32 v{AB+8}, 16, v{XR+r}
        v_and_b32 v{AB+9}, 0xffff0000, v{XR+r}
        v_add_f32 v{ACC+2*r}, v{ACC+2*r}, v{AB+8}
        v_add_f32 v{ACC+2*r+1}, v{ACC+2*r+1}, v{AB+9}
        v_cvt_pk_bf16_f32 v{AB+16+r}, v{ACC+2*r}, v{ACC+2*r+1}
        """)
    a(f"""
    s_mul_i32 s24, s18, 28672
    s_lshl_b32 s25, s19, 11
    s_add_u32 s24, s24, s25
    s_add_u32 s24, s24, {HF}
    buffer_store_dwordx4 {vr(AB+16)}, v2, s[20:23], s24 offen
    buffer_store_dwordx4 {vr(AB+20)}, v2, s[20:23], s24 offen offset:1024
    """)
    stamp(a, 5)
    stamp_end(a, 3, 10)
    a(f"L_{n}_end:\ns_endpgm")
    finish_kernel("wo_kernel", a, 72, 224, 256, 114688)

def gen_p4():
    a = Asm()
    n = "gu"
    X = 64; ACC = 16; AW = 176; TMP = 208; OUT = 216
    SELL, SELH, VC = 12, 13, 14
    stamp_start(a)
    a(f"""
    s_cmp_ge_u32 s2, 256
    s_cbranch_scc1 L_{n}_end
    s_load_dwordx2 s[8:9], s[0:1], 72
    v_lshrrev_b32 v1, 6, v0
    v_readfirstlane_b32 s10, v1
    v_and_b32 v1, 63, v0
    v_lshlrev_b32 v2, 4, v1
    s_and_b32 s11, s2, 7
    s_lshr_b32 s12, s2, 3
    s_and_b32 s13, s11, 1
    s_lshl_b32 s13, s13, 3
    s_and_b32 s14, s12, 7
    s_add_u32 s13, s13, s14                ; rb
    s_lshr_b32 s14, s11, 1
    s_lshl_b32 s14, s14, 2
    s_lshr_b32 s15, s12, 3
    s_add_u32 s14, s14, s15                ; cb
    s_lshl_b32 s15, s13, 2
    s_add_u32 s15, s15, s10                ; tt
    s_mul_i32 s16, s15, 28672
    s_add_u32 s16, s16, {HF}
    s_mul_i32 s17, s14, {7*28672}
    s_mul_i32 s18, s10, 7168
    s_add_u32 s17, s17, s18
    s_add_u32 s17, s17, {WGU}
    s_mov_b32 s19, s18
    s_waitcnt lgkmcnt(0)
    """)
    srd(a, 20, 8, WS_BYTES)
    for ks in range(28):
        if ks % 4 == 0 and ks:
            a("s_add_u32 s16, s16, 4096")
        a(f"buffer_load_dwordx4 {vr(X+4*ks)}, v2, s[20:23], s16 offen offset:{(ks%4)*1024}")
    def dma_tile():
        a(f"""
        s_mov_b32 m0, s19
        s_add_u32 s24, s17, 4096
        buffer_load_dwordx4 v2, s[20:23], s17 offen lds
        buffer_load_dwordx4 v2, s[20:23], s17 offen offset:1024 lds
        buffer_load_dwordx4 v2, s[20:23], s17 offen offset:2048 lds
        buffer_load_dwordx4 v2, s[20:23], s17 offen offset:3072 lds
        s_add_u32 m0, m0, 4096
        s_add_u32 s17, s17, 28672
        buffer_load_dwordx4 v2, s[20:23], s24 offen lds
        buffer_load_dwordx4 v2, s[20:23], s24 offen offset:1024 lds
        buffer_load_dwordx4 v2, s[20:23], s24 offen offset:2048 lds
        s_add_u32 s19, s19, 28672
        """)
    a(f"s_mov_b32 s25, 0\nL_{n}_dl:")
    dma_tile()
    a(f"""
    s_add_u32 s25, s25, 1
    s_cmp_lt_u32 s25, 5
    s_cbranch_scc1 L_{n}_dl
    s_mov_b32 s19, s18
    v_mov_b32 v15, 0x3f803f80
    v_mov_b32 v8, 0
    v_mov_b32 v9, 0
    v_mov_b32 v10, 0
    v_mov_b32 v11, 0
    """)
    stamp(a, 1)
    for c in range(7):
        a(f"s_waitcnt vmcnt({63-4*(c+1)})")
        for r in range(16):
            reg = X + 16*c + r
            a(f"v_dot2c_f32_bf16 v{8+(r&1)}, v{reg}, v15")
            a(f"v_dot2c_f32_bf16 v{10+(r&1)}, v{reg}, v{reg}")
    a("v_add_f32 v8, v8, v9\nv_add_f32 v10, v10, v11")
    stamp(a, 2)
    ln_finalize(a, 8, 10, TMP, SELL, SELH, VC)
    for ks in range(28):
        a.emit(*norm_ops(X+4*ks, TMP, SELL, SELH, VC))
    stamp(a, 3)
    a(f"""
    s_mul_i32 s26, s15, {112*1024}
    s_mul_i32 s27, s14, 7168
    s_add_u32 s26, s26, s27
    s_add_u32 s26, s26, {HH}
    v_mov_b32 v3, v2
    v_add_u32 v4, {2*28672}, v2
    v_add_u32 v5, {4*28672}, v2
    """)
    def epi(acc):
        L = []
        for g in range(2):
            for c in range(4):
                L.append(f"v_max_f32 v{acc+8*g+c}, 0, v{acc+8*g+c}")
            for c in range(4):
                L.append(f"v_mul_f32 v{acc+8*g+c}, v{acc+8*g+c}, v{acc+8*g+4+c}")
            L.append(f"v_cvt_pk_bf16_f32 v{OUT+2*g}, v{acc+8*g}, v{acc+8*g+1}")
            L.append(f"v_cvt_pk_bf16_f32 v{OUT+2*g+1}, v{acc+8*g+2}, v{acc+8*g+3}")
        L.append(f"buffer_store_dwordx4 {vr(OUT)}, v2, s[20:23], s26 offen")
        L.append(f"s_add_u32 s26, s26, 1024")
        return L
    outstanding = ["D0"]*7 + ["D1"]*7 + ["D2"]*7 + ["D3"]*7 + ["D4"]*7
    for mt in range(7):
        acc = ACC + 16*(mt & 1)
        slot = mt % 5
        base = 3 + slot // 2
        off0 = (slot % 2) * 28672
        last = max(i for i, t in enumerate(outstanding) if t == f"D{mt}")
        a(f"s_waitcnt vmcnt({len(outstanding)-1-last})\ns_barrier")
        if mt in (1, 4): stamp(a, 4 if mt == 1 else 5)
        if mt in (1, 2):
            dma_tile()
            outstanding += [f"D{mt+4}"]*7
        pend = epi(ACC + 16*((mt-1) & 1)) if mt > 0 else []
        if mt > 0: outstanding += [f"S{mt-1}"]
        NB = 8
        for ks in range(min(NB-1, 28)):
            a(f"ds_read_b128 {vr(AW+4*(ks%NB))}, v{base} offset:{off0+ks*1024}")
        for ks in range(28):
            nk = ks + NB - 1
            if nk < 28:
                a(f"ds_read_b128 {vr(AW+4*(nk%NB))}, v{base} offset:{off0+nk*1024}")
                a(f"s_waitcnt lgkmcnt({NB-1})")
            else:
                a(f"s_waitcnt lgkmcnt({27-ks})")
            a(f"v_mfma_f32_32x32x16_bf16 {vr(acc,16)}, {vr(AW+4*(ks%NB))}, {vr(X+4*ks)}, {'0' if ks==0 else vr(acc,16)}")
            if ks >= 4 and pend:
                a.emit(*pend[:2]); pend = pend[2:]
    stamp(a, 6)
    a.emit(*epi(ACC + 16*(6 & 1)))
    stamp_end(a, 4, 10)
    a(f"L_{n}_end:\ns_endpgm")
    finish_kernel("gu_kernel", a, 220, 256, 256, 5*28672)

def gen_p5():
    a = Asm()
    n = "dn"
    ACC = 16; B = 64; AW = 176; HR = 208
    stamp_start(a)
    a(f"""
    s_cmp_ge_u32 s2, 224
    s_cbranch_scc1 L_{n}_end
    s_load_dwordx2 s[4:5], s[0:1], 56
    s_load_dwordx2 s[8:9], s[0:1], 72
    v_lshrrev_b32 v1, 6, v0
    v_readfirstlane_b32 s10, v1
    v_and_b32 v1, 63, v0
    v_lshlrev_b32 v2, 4, v1
    s_and_b32 s11, s2, 7
    s_lshr_b32 s12, s2, 3
    s_lshl_b32 s11, s11, 2
    s_and_b32 s13, s12, 3
    s_add_u32 s11, s11, s13                ; tb
    s_lshr_b32 s12, s12, 2                 ; fb
    s_and_b32 s13, s10, 1
    s_lshr_b32 s14, s10, 1                 ; kq
    s_lshl_b32 s15, s11, 1
    s_add_u32 s15, s15, s13                ; tt
    s_mul_i32 s16, s15, {112*1024}
    s_mul_i32 s17, s14, 28672
    s_add_u32 s16, s16, s17
    s_add_u32 s16, s16, {HH}
    s_lshl_b32 s18, s12, 1
    s_add_u32 s18, s18, s13
    s_mul_i32 s18, s18, {112*1024}
    s_add_u32 s18, s18, s17
    s_add_u32 s18, s18, {WDF}              ; W src
    s_mul_i32 s19, s10, 20480
    s_waitcnt lgkmcnt(0)
    """)
    srd(a, 20, 8, WS_BYTES)
    srd(a, 28, 4, 2048*896)
    outstanding = []
    def wgrp(g):
        a(f"s_mov_b32 m0, s19")
        a("s_nop 0")
        for q in range(4):
            a(f"buffer_load_dwordx4 v2, s[20:23], s18 offen offset:{q*1024} lds")
        a("s_add_u32 s18, s18, 4096\ns_add_u32 s19, s19, 4096")
        outstanding.extend([f"G{g}"]*4)
    def bgrp(g):
        for q in range(4):
            a(f"buffer_load_dwordx4 {vr(B+16*g+4*q)}, v2, s[20:23], s16 offen offset:{q*1024}")
        a("s_add_u32 s16, s16, 4096")
        outstanding.extend([f"G{g}"]*4)
    for g in range(7):
        if g < 5: wgrp(g)
        bgrp(g)
    a(f"""
    s_mul_i32 s19, s10, 20480
    s_mul_i32 s24, s15, 28672
    s_lshl_b32 s25, s12, 2
    s_add_u32 s25, s25, s14
    s_lshl_b32 s26, s25, 10
    s_add_u32 s24, s24, s26
    s_add_u32 s24, s24, {HF}
    buffer_load_dwordx4 {vr(HR)}, v2, s[20:23], s24 offen
    s_mul_i32 s27, s14, 40960
    v_add_u32 v3, s27, v2
    """)
    outstanding.append("H")
    stamp(a, 1)
    for g in range(7):
        last = max(i for i, t in enumerate(outstanding) if t == f"G{g}")
        a(f"s_waitcnt vmcnt({len(outstanding)-1-last})\ns_barrier")
        if g in (0, 3, 6): stamp(a, 2 + g // 3)
        if g in (1, 2):
            wgrp(g + 4)
        slot = g % 5
        for q in range(4):
            for f in range(2):
                a(f"ds_read_b128 {vr(AW+8*q+4*f)}, v3 offset:{f*20480+slot*4096+q*1024}")
        for q in range(4):
            ks = 4*g + q
            for f in range(2):
                a(f"s_waitcnt lgkmcnt({7-2*q-f})")
                a(f"v_mfma_f32_32x32x16_bf16 {vr(ACC+16*f,16)}, {vr(AW+8*q+4*f)}, {vr(B+4*ks)}, {'0' if ks==0 else vr(ACC+16*f,16)}")
    stamp(a, 5)
    a(f"""
    s_barrier
    s_lshl_b32 s27, s13, 15
    s_lshl_b32 s26, s14, 11
    s_add_u32 s26, s26, s27
    v_add_u32 v4, s26, v2
    s_lshl_b32 s26, s14, 13
    s_add_u32 s26, s26, s27
    v_add_u32 v5, s26, v2
    """)
    for part in range(4):
        for hh in range(2):
            a(f"ds_write_b128 v4, {vr(ACC+8*part+4*hh)} offset:{part*8192+hh*1024}")
    a("s_waitcnt lgkmcnt(0)\ns_barrier")
    for kq in range(4):
        for hh in range(2):
            a(f"ds_read_b128 {vr(B+8*kq+4*hh)}, v5 offset:{kq*2048+hh*1024}")
    a("s_waitcnt lgkmcnt(0)")
    for r in range(8):
        a(f"v_add_f32 v{B+r}, v{B+r}, v{B+8+r}\nv_add_f32 v{B+16+r}, v{B+16+r}, v{B+24+r}")
    for r in range(8):
        a(f"v_add_f32 v{B+r}, v{B+r}, v{B+16+r}")
    for r in range(4):
        a(f"v_cvt_pk_bf16_f32 v{B+8+r}, v{B+2*r}, v{B+2*r+1}")
    a("s_waitcnt vmcnt(0)")
    for r in range(4):
        a(f"""
        v_lshlrev_b32 v{B+16}, 16, v{B+8+r}
        v_and_b32 v{B+17}, 0xffff0000, v{B+8+r}
        v_lshlrev_b32 v{B+18}, 16, v{HR+r}
        v_and_b32 v{B+19}, 0xffff0000, v{HR+r}
        v_add_f32 v{B+16}, v{B+16}, v{B+18}
        v_add_f32 v{B+17}, v{B+17}, v{B+19}
        v_cvt_pk_bf16_f32 v{B+20+r}, v{B+16}, v{B+17}
        """)
    a(f"""
    v_and_b32 v3, 31, v1
    v_mul_u32_u24 v3, 896, v3
    v_lshrrev_b32 v4, 5, v1
    v_lshl_add_u32 v3, v4, 4, v3
    s_mul_i32 s24, s15, {32*896}
    s_lshl_b32 s25, s25, 5
    s_add_u32 s24, s24, s25
    buffer_store_dwordx4 {vr(B+20)}, v3, s[28:31], s24 offen
    """)
    stamp(a, 6)
    stamp_end(a, 5, 10)
    a(f"L_{n}_end:\ns_endpgm")
    finish_kernel("dn_kernel", a, 212, 224, 512, 163840)

def build(path):
    gen_p0(); gen_p1(); gen_p2(); gen_p3(); gen_p4(); gen_p5()
    write(path)

def write(path):
    hdr = open(f"cdna_kernels/{NAME}.s.ref").read().split("; Override launch")[0]
    out = hdr
    for (name, body, vgpr, accum, sgpr, grid, block, lds) in kernels:
        out += f"; @launch {'kernel=' + name + ' ' if len(kernels) > 1 else ''}grid=({grid},1,1) block=({block},1,1) lds={lds}\n"
    out += '.amdgcn_target "amdgcn-amd-amdhsa--gfx950"\n.text\n'
    for (name, body, vgpr, accum, sgpr, grid, block, lds) in kernels:
        out += f".globl {name}\n.p2align 8\n.type {name},@function\n{name}:\n{body}\n"
    out += '.section .rodata,"a"\n'
    for (name, body, vgpr, accum, sgpr, grid, block, lds) in kernels:
        out += f""".p2align 6
.amdhsa_kernel {name}
  .amdhsa_next_free_vgpr {vgpr}
  .amdhsa_next_free_sgpr {sgpr}
  .amdhsa_accum_offset {accum}
  .amdhsa_group_segment_fixed_size 0
  .amdhsa_kernarg_size 80
  .amdhsa_user_sgpr_count 2
  .amdhsa_user_sgpr_kernarg_segment_ptr 1
  .amdhsa_system_sgpr_workgroup_id_x 1
.end_amdhsa_kernel
"""
    open(path, "w").write(out)

if __name__ == "__main__":
    build(sys.argv[1] if len(sys.argv) > 1 else f"cdna_kernels/{NAME}.s")
```

```python
import sys, math, os, struct
from asmlib import Asm
import gen1
from gen1 import f2u, vr, NAME

DIAG = int(os.environ.get("DIAG", "0"))
UPTO = int(os.environ.get("UPTO", "5"))
QF  = 0x000000
KVF = 0x200000
KN  = 0x600000
FL  = 0x680000
OF  = 0x700000
HF  = 0x900000
ST  = 0xB00000
HH  = 0xC00000
TS  = 0x4000000
WS_BYTES = 0x10000000
FA, FB, FC, FD = FL, FL + 0x1000, FL + 0x2000, FL + 0x3000

SW, SW3 = 3, 4
SX, SWQ, SWO, SWS, SG, SU, SD, SOUT, SDBG = 8, 12, 16, 20, 24, 28, 32, 36, 40
NON = 44
SKV = 48
def sr(b): return f"s[{b}:{b+3}]"
POLL_MAX = 40000
PFW = int(os.environ.get('PFW', '2'))

class Role(Asm):
    def __init__(self, tag):
        super().__init__(); self.tag = tag; self.bars = []; self.nst = 0
    def bar(self, name):
        self.bars.append(name); self("s_barrier")
    def stamp(self, i):
        if DIAG:
            self(f"s_memtime s[100:101]\ns_waitcnt lgkmcnt(0)\ns_mov_b32 s{64+i}, s100")

class VM:
    def __init__(self): self.q = []
    def add(self, tag, n=1): self.q += [tag] * n
    def wait(self, tag):
        idx = [i for i, t in enumerate(self.q) if t == tag]
        if not idx: return None
        n = len(self.q) - 1 - idx[-1]
        self.q = self.q[idx[-1] + 1:]
        assert n <= 63
        return f"s_waitcnt vmcnt({n})"

def stamp_end(a):
    if DIAG:
        a(f"""
        s_mov_b64 exec, -1
        s_waitcnt vmcnt(0) lgkmcnt(0)
        s_memtime s[100:101]
        s_memrealtime s[98:99]
        s_waitcnt lgkmcnt(0)
        s_mov_b32 s93, s100
        s_mov_b32 s94, s96
        s_mov_b32 s95, s98
        s_lshl_b32 s60, s2, 3
        s_add_u32 s60, s60, s{SW}
        s_lshl_b32 s60, s60, 7
        s_add_u32 s60, s60, {TS}
        v_mov_b32 v0, 0
        """)
        for i in range(32):
            a(f"v_mov_b32 v{4+i}, s{64+i}")
        a("s_mov_b64 exec, 1")
        for i in range(8):
            a(f"buffer_store_dwordx4 v[{4+4*i}:{7+4*i}], v0, {sr(SWS)}, s60 offen offset:{16*i}")

CODE_KB = 64
KNAME = NAME + "_kernel"
def prologue(a):
    if DIAG:
        a("s_memrealtime s[96:97]\ns_memtime s[100:101]\ns_mov_b32 s84, 0\ns_mov_b32 s86, 0")
    a(f"""
    s_cmp_ge_u32 s2, 256
    s_cbranch_scc1 L_end
    s_load_dwordx16 s[64:79], s[0:1], 0
    s_load_dwordx4 s[80:83], s[0:1], 64
    s_getpc_b64 s[6:7]
    s_lshr_b32 s5, s2, 3
    s_and_b32 s5, s5, {CODE_KB//8 - 1}
    s_lshl_b32 s5, s5, 13
    v_lshl_add_u32 v1, v0, 4, s5
    v_min_u32 v1, L_end-{KNAME}-16, v1
    s_and_b32 s6, s6, 0xffffff00
    global_load_dwordx4 v[252:255], v1, s[6:7]
    v_lshrrev_b32 v1, 6, v0
    v_readfirstlane_b32 s{SW}, v1
    v_and_b32 v1, 63, v0                   ; lane
    s_and_b32 s5, s2, 7                    ; xcd
    s_lshr_b32 s6, s2, 3                   ; i
    s_and_b32 s{SW3}, s{SW}, 3
    s_lshr_b32 s52, s5, 1
    s_lshl_b32 s52, s52, 2
    s_and_b32 s53, s6, 3
    s_add_u32 s52, s52, s53                ; rb
    s_and_b32 s53, s5, 1
    s_lshl_b32 s53, s53, 3
    s_lshr_b32 s54, s6, 2
    s_add_u32 s53, s53, s54                ; cb
    s_lshl_b32 s54, s52, 2
    s_add_u32 s54, s54, s{SW3}             ; tt
    s_and_b32 s55, s53, 1
    s_lshl_b32 s55, s55, 3                 ; colshift
    s_mov_b32 s{SX+2}, {2048*896:#x}
    s_mov_b32 s{SX+3}, 0x00020000
    s_mov_b32 s{SWQ+2}, {448*2688:#x}
    s_mov_b32 s{SWQ+3}, 0x00020000
    s_cmp_lt_u32 s{SW}, 4
    s_cbranch_scc1 L_compute
    """)

def common_setup(a):
    for d, nb in ((SWO, 448*896), (SWS, WS_BYTES), (SG, 448*3584), (SU, 448*3584), (SD, 1792*896), (SOUT, 2048*896), (SDBG, 256)):
        a(f"s_mov_b32 s{d+2}, {nb:#x}\ns_mov_b32 s{d+3}, 0x00020000")
    for d, src in ((SWO, 68), (SG, 72), (SU, 74), (SD, 76), (SOUT, 78), (SDBG, 80), (SWS, 82)):
        a(f"s_mov_b64 s[{d}:{d+1}], s[{src}:{src+1}]")
    if DIAG:
        a("s_waitcnt lgkmcnt(0)")
        for i in range(0, 32, 2):
            if i in (20, 22): a(f"s_mov_b32 s{65+i}, 0")
            else: a(f"s_mov_b64 s[{64+i}:{65+i}], 0")
        a("s_mov_b32 s64, s100")
    a(f"""
    v_and_b32 v12, 31, v1                  ; t
    v_lshrrev_b32 v13, 5, v1               ; hf
    v_bfe_u32 v14, v12, 1, 3
    v_xor_b32 v14, v14, v13
    v_lshlrev_b32 v14, 4, v14
    v_lshl_add_u32 v14, v12, 7, v14
    s_lshl_b32 s61, s{SW3}, 12
    v_add_u32 v4, s61, v14
    v_xor_b32 v5, 32, v4
    v_xor_b32 v6, 64, v4
    v_xor_b32 v7, 96, v4
    v_bfe_u32 v9, v1, 4, 1                 ; ch
    v_bfe_u32 v10, v1, 2, 2                ; r
    v_lshl_add_u32 v10, v13, 3, v10        ; 8hf + r
    v_mul_u32_u24 v10, 192, v10
    v_lshl_add_u32 v10, v9, 5, v10
    v_and_b32 v11, 3, v1
    v_lshl_add_u32 v10, v11, 3, v10
    s_add_u32 s61, s55, 16384
    v_add_u32 v8, s61, v10
    v_mov_b32 v15, 0x3f803f80
    """)

AUX1 = 143360
NAHEAD = int(os.environ.get('NAHEAD', '3'))
def rebase(a, c, regs):
    d = 28672 if c % 5 else -4 * 28672
    for r in regs:
        a(f"v_add_u32 v{r}, {d & 0xffffffff:#x}, v{r}")

def p1_compute(a):
    ACC = 16; WA = 64; XF = 100
    def reads(ks):
        c, i = divmod(ks, 4)
        L = []
        if i == 0 and c > 0:
            d = 28672 if c % 5 else -4 * 28672
            L += [f"v_add_u32 v{r}, {d & 0xffffffff:#x}, v{r}" for r in (4, 5, 6, 7, 8)]
        buf = WA + 12 * (ks % 3)
        L.append(f"ds_read_b128 {vr(XF+4*(ks%3))}, v{4+i}")
        for j in range(3):
            for u in range(2):
                L.append(f"ds_read_b64_tr_b16 v[{buf+4*j+2*u}:{buf+4*j+2*u+1}], v8 offset:{i*3072+u*768+j*56}")
        return L
    p1_dma_setup(a, 2)
    common_setup(a)
    p1_issue(a)
    a.bar("p1s0")
    a.stamp(1)
    a(f"""
    s_cmp_lt_u32 s53, 10
    s_cbranch_scc1 L_p1_v0
    s_cmp_eq_u32 s53, 10
    s_cbranch_scc1 L_p1_v1
    s_branch L_p1_v2
    """)
    bars0 = list(a.bars)
    for var, isv in enumerate(((0,0,0), (0,0,1), (1,1,1))):
        a.bars = list(bars0)
        a(f"L_p1_v{var}:")
        a.emit(*reads(0)); a.emit(*reads(1))
        for ks in range(28):
            if ks % 4 == 2 and ks < 26:
                if ks == 6: a("s_waitcnt vmcnt(0)")
                a.bar(f"p1s{ks//4+1}")
            nxt = reads(ks + 2) if ks < 26 else []
            buf = WA + 12 * (ks % 3)
            a(f"s_waitcnt lgkmcnt({7 if ks < 27 else 0})")
            pre = [l for l in nxt if l.startswith("v_add")]; rd = [l for l in nxt if not l.startswith("v_add")]
            a.emit(*pre)
            for j in range(3):
                A, B = vr(buf + 4*j), vr(XF + 4*(ks % 3))
                if isv[j]: A, B = B, A
                C = "0" if ks == 0 else vr(ACC + 16*j, 16)
                a(f"v_mfma_f32_32x32x16_bf16 {vr(ACC+16*j,16)}, {A}, {B}, {C}")
                a.emit(*rd[[0,3,5][j]:[3,5,7][j]])
        if var < 2:
            a("s_branch L_p1_epi")
    QS = f2u(28 ** -0.5 * math.log2(math.e))
    a("L_p1_epi:")
    a.stamp(2)
    a.bar("p1S")
    a.stamp(3)
    MEAN, RSTD, CS, P = 64, 80, 96, 112
    a(f"""
    v_lshlrev_b32 v2, 4, v1                ; lane*16
    s_mul_i32 s57, s53, 3                  ; p
    s_lshl_b32 s56, s{SW3}, 8
    s_add_u32 s56, s56, {AUX1}
    v_lshl_add_u32 v4, v12, 2, s56
    v_lshl_add_u32 v5, v13, 4, s56
    v_lshlrev_b32 v6, 4, v13
    v_add_u32 v6, {AUX1+1024}, v6
    v_lshlrev_b32 v7, 2, v12
    v_add_u32 v7, {AUX1+1024}, v7
    ds_read_b32 v10, v4
    ds_read_b32 v11, v4 offset:128
    """)
    for q in range(4):
        a(f"ds_read_b128 {vr(MEAN+4*q)}, v5 offset:{32*q}\nds_read_b128 {vr(RSTD+4*q)}, v5 offset:{128+32*q}")
    for j in range(3):
        acc = ACC + 16*j
        a(f"""
        s_and_b32 s58, s57, 15             ; h
        s_lshl_b32 s58, s58, 6
        s_add_u32 s58, s58, s54            ; h*64+tt
        s_cmp_ge_u32 s57, 32
        s_cbranch_scc1 L_p1_e{j}_v
        """)
        for q in range(4):
            a(f"ds_read_b128 {vr(CS+4*q)}, v6 offset:{128*j+32*q}")
        a(f"""
        s_mov_b32 s59, 1.0
        s_cmp_lt_u32 s57, 16
        s_cselect_b32 s59, {QS:#x}, s59
        s_waitcnt lgkmcnt(0)
        v_mul_f32 v8, s59, v11             ; rs
        v_mul_f32 v9, v10, v8
        v_sub_f32 v9, 0, v9                ; -mean*rs
        """)
        for r in range(16):
            a(f"v_mul_f32 v{CS+r}, v{CS+r}, v9")
        for r in range(16):
            a(f"v_fma_f32 v{acc+r}, v{acc+r}, v8, v{CS+r}")
        for r in range(8):
            a(f"v_cvt_pk_bf16_f32 v{P+r}, v{acc+2*r}, v{acc+2*r+1}")
        a(f"""
        s_mov_b32 exec_lo, 0
        v_mov_b32 v{P+6}, 0
        v_mov_b32 v{P+7}, 0
        s_mov_b32 exec_lo, -1
        v_mov_b32 v8, 0
        """)
        for r in range(8):
            a(f"v_dot2c_f32_bf16 v8, v{P+r}, v{P+r}")
        a(f"""
        v_mov_b32 v9, v8
        v_permlane32_swap_b32 v8, v9
        v_add_f32 v8, v8, v9
        s_cmp_ge_u32 s57, 16
        s_cbranch_scc1 L_p1_e{j}_k
        v_sqrt_f32 v8, v8
        v_mul_f32 v8, {f2u(1.0+1.0/128):#x}, v8
        v_add_u32 v8, 0xffff, v8
        v_lshrrev_b32 v8, 16, v8
        s_mov_b32 exec_lo, 0
        v_mov_b32 v{P+6}, v8
        s_mov_b32 exec_lo, -1
        s_lshl_b32 s59, s58, 11
        s_branch L_p1_e{j}_st
L_p1_e{j}_k:
        v_max_f32_dpp v8, v8, v8 row_shr:1 row_mask:0xf bank_mask:0xf
        v_max_f32_dpp v8, v8, v8 row_shr:2 row_mask:0xf bank_mask:0xf
        v_max_f32_dpp v8, v8, v8 row_shr:4 row_mask:0xf bank_mask:0xf
        v_max_f32_dpp v8, v8, v8 row_shr:8 row_mask:0xf bank_mask:0xf
        v_max_f32_dpp v8, v8, v8 row_bcast:15 row_mask:0xa bank_mask:0xf
        s_lshl_b32 s59, s58, 2
        s_add_u32 s59, s59, {KN}
        v_mov_b32 v9, 0
        s_mov_b32 exec_hi, 0
        s_mov_b32 exec_lo, 0x80000000
        buffer_store_dword v8, v9, {sr(SWS)}, s59 offen sc1
        s_mov_b32 exec_hi, -1
        s_mov_b32 exec_lo, 0
        v_mov_b32 v{P+6}, v15
        s_mov_b32 exec_lo, -1
        s_lshl_b32 s59, s58, 12
        s_add_u32 s59, s59, {KVF}
        s_branch L_p1_e{j}_st
L_p1_e{j}_v:
        ds_read_b32 v8, v7 offset:{128*j}
        s_waitcnt lgkmcnt(0)
        """)
        for r in range(16):
            a(f"v_fma_f32 v{acc+r}, -v{MEAN+r}, v8, v{acc+r}")
        for r in range(16):
            a(f"v_mul_f32 v{acc+r}, v{acc+r}, v{RSTD+r}")
        for r in range(8):
            a(f"v_cvt_pk_bf16_f32 v{P+r}, v{acc+2*r}, v{acc+2*r+1}")
        a(f"""
        s_lshl_b32 s59, s58, 12
        s_add_u32 s59, s59, {KVF+2048}
        s_mov_b32 exec_lo, 0x10000000
        s_mov_b32 exec_hi, 0x10000000
        """)
        for r in range(8):
            a(f"v_mov_b32 v{P+r}, v15")
        a("s_mov_b32 exec_lo, 0xe0000000\ns_mov_b32 exec_hi, 0xe0000000")
        for r in range(8):
            a(f"v_mov_b32 v{P+r}, 0")
        a(f"""
        s_mov_b64 exec, -1
L_p1_e{j}_st:
        buffer_store_dwordx4 {vr(P)}, v2, {sr(SWS)}, s59 offen sc1
        buffer_store_dwordx4 {vr(P+4)}, v2, {sr(SWS)}, s59 offen offset:1024 sc1
        s_add_u32 s57, s57, 1
        """)
        P += 8
    a.stamp(4)
    a("s_waitcnt vmcnt(0)")
    a.stamp(5)
    a.bar("p1X")

def p1_dma_setup(a, first):
    a(f"""
    v_lshrrev_b32 v2, 3, v1
    v_mul_u32_u24 v2, 896, v2
    v_lshrrev_b32 v3, 4, v1
    v_and_b32 v9, 7, v1
    v_xor_b32 v3, v3, v9
    v_lshl_add_u32 v2, v3, 4, v2
    v_xor_b32 v3, 64, v2
    s_mul_i32 s56, s54, {32*896}
    s_lshl_b32 s57, s{SW3}, 12
    """)
    for u in range(3):
        a(f"""
        v_add_u32 v9, {64*u}, v1
        v_mul_u32_u24 v10, 43691, v9
        v_lshrrev_b32 v10, 19, v10
        v_mul_u32_u24 v11, 12, v10
        v_sub_u32 v11, v9, v11
        v_min_u32 v11, 10, v11
        v_mul_u32_u24 v10, 2688, v10
        v_lshl_add_u32 v{16+u}, v11, 4, v10
        """)
    a(f"""
    s_mul_i32 s58, s53, 168
    s_sub_u32 s58, s58, s55
    s_mul_i32 s59, s{SW3}, {16*2688}
    s_add_u32 s58, s58, s59
    s_mul_i32 s59, s{SW3}, 3072
    s_add_u32 s59, s59, 16384
    s_add_u32 s60, s6, {first}
    s_mul_i32 s46, s60, 9363
    s_lshr_b32 s46, s46, 16
    s_mul_i32 s46, s46, 7
    s_sub_u32 s46, s60, s46
    s_mov_b32 s47, {first*28672}
    s_waitcnt lgkmcnt(0)
    s_mov_b64 s[{SX}:{SX+1}], s[64:65]
    s_mov_b64 s[{SWQ}:{SWQ+1}], s[66:67]
    """)

def p1_adv(a):
    a(f"""
    s_add_u32 s46, s46, 1
    s_cmp_eq_u32 s46, 7
    s_cselect_b32 s46, 0, s46
    s_add_u32 s47, s47, 28672
    s_cmp_eq_u32 s47, {5*28672}
    s_cselect_b32 s47, 0, s47
    """)

def p1_issue(a):
    a(f"""
    s_lshl_b32 s60, s46, 7
    s_add_u32 s60, s60, s56
    s_add_u32 m0, s57, s47
    s_mul_i32 s61, s46, {4*16*2688}
    """)
    for q in range(4):
        a(f"buffer_load_dwordx4 v{2+(q&1)}, {sr(SX)}, s60 offen lds")
        if q < 3: a("s_add_u32 m0, m0, 1024\ns_add_u32 s60, s60, 7168")
    a(f"s_add_u32 m0, s59, s47\ns_add_u32 s61, s61, s58")
    for u in range(3):
        a(f"buffer_load_dwordx4 v{16+u}, {sr(SWQ)}, s61 offen lds")
        if u < 2: a("s_add_u32 m0, m0, 1024")
    p1_adv(a)

def p1_helper(a):
    XF = 96; CSA = 64; G = 68; SM = 76; SEL = 84; ONES = 88
    vm = VM()
    p1_dma_setup(a, 0)
    a("L_h1_il:")
    p1_issue(a)
    a(f"s_cmp_lt_u32 s47, {2*28672}\ns_cbranch_scc1 L_h1_il")
    p1_adv(a)
    vm.add("s0", 7); vm.add("s1", 7)
    common_setup(a)
    a.stamp(1)
    a(f"""
    s_cmp_lg_u32 s{SW}, 4
    s_cbranch_scc1 L_h_nononce
    s_cmp_lg_u32 s2, 0
    s_cbranch_scc1 L_h_nononce
    s_memrealtime s[{NON}:{NON+1}]
    s_waitcnt lgkmcnt(0)
    s_or_b32 s{NON+1}, s{NON+1}, 0x80000000
    v_mov_b32 v10, s{NON}
    v_mov_b32 v11, s{NON+1}
    v_mov_b32 v9, 0
    s_mov_b64 exec, 1
    buffer_store_dwordx2 v[10:11], v9, {sr(SDBG)}, 0 offen sc1
    s_mov_b64 exec, -1
L_h_nononce:
    s_mul_i32 s60, s{SW3}, 56
    v_add_u32 v8, s60, v8
    v_and_b32 v9, 15, v1
    v_lshrrev_b32 v10, 1, v9
    v_lshrrev_b32 v11, 4, v1
    v_xor_b32 v10, v10, v11
    v_lshlrev_b32 v10, 4, v10
    v_lshl_add_u32 v10, v9, 7, v10
    v_add_u32 v4, s57, v10
    v_xor_b32 v5, 64, v4
    """)
    for r in range(4):
        a(f"v_mov_b32 v{SEL+r}, 0\nv_mov_b32 v{ONES+r}, v15")
    a("s_mov_b32 exec_lo, 0x00020001\ns_mov_b32 exec_hi, 0x00020001")
    for r in range(4):
        a(f"v_mov_b32 v{SEL+r}, v15")
    a(f"s_mov_b64 exec, -1\ns_and_b32 s63, s{SW}, 1")
    def work(c):
        xf = XF + 32 * (c & 1); wf = xf + 16
        for i in range(4):
            th, kh = i & 1, i >> 1
            z = (c == 0 and kh == 0)
            a(f"v_mfma_f32_16x16x32_bf16 {vr(G+4*th)}, {vr(xf+4*i)}, {vr(xf+4*i)}, {'0' if z else vr(G+4*th)}")
            a(f"v_mfma_f32_16x16x32_bf16 {vr(SM+4*th)}, {vr(ONES)}, {vr(xf+4*i)}, {'0' if z else vr(SM+4*th)}")
            a(f"v_mfma_f32_16x16x32_bf16 {vr(CSA)}, {vr(SEL)}, {vr(wf+4*i)}, {'0' if c==0 and i==0 else vr(CSA)}")
    for c in range(7):
        w = vm.wait(f"s{c}")
        if w: a(w)
        a("s_waitcnt lgkmcnt(0)")
        if c in (0, 3, 6): a.stamp(2 + c // 3)
        a.bar(f"p1s{c}")
        if c > 0: rebase(a, c, (4, 5, 8))
        xf = XF + 32 * (c & 1); wf = xf + 16
        for i in range(4):
            a(f"ds_read_b128 {vr(xf+4*i)}, v{4+(i>>1)} offset:{(i&1)*2048}")
        for i in range(4):
            for u in range(2):
                a(f"ds_read_b64_tr_b16 v[{wf+4*i+2*u}:{wf+4*i+2*u+1}], v8 offset:{i*3072+u*768}")
        n = c + 3
        if n <= 6:
            a(f"s_cmp_lg_u32 s63, 0\ns_cbranch_scc1 L_h1_a{c}")
            p1_issue(a)
            a(f"L_h1_a{c}:")
        if c > 0: work(c - 1)
        if n <= 6:
            a(f"s_cmp_eq_u32 s63, 0\ns_cbranch_scc1 L_h1_b{c}")
            p1_issue(a)
            a(f"L_h1_b{c}:")
            vm.add(f"s{n}", 7)
    a("s_waitcnt lgkmcnt(0)")
    work(6)
    a(f"""
    s_lshl_b32 s60, s{SW3}, 8
    s_add_u32 s60, s60, {AUX1}
    v_lshl_add_u32 v9, v9, 2, s60
    s_lshl_b32 s60, s{SW3}, 7
    s_add_u32 s60, s60, {AUX1+1024}
    v_lshl_add_u32 v10, v12, 2, s60
    """)
    for r in range(1, 4):
        m = sum(1 << (20*g + r) for g in range(4))
        a(f"s_mov_b32 exec_lo, {m & 0xffffffff:#x}\ns_mov_b32 exec_hi, {m >> 32:#x}")
        a(f"v_mov_b32 v{G}, v{G+r}\nv_mov_b32 v{G+4}, v{G+4+r}")
    m = sum(15 << (20*g) for g in range(4))
    a(f"s_mov_b32 exec_lo, {m & 0xffffffff:#x}\ns_mov_b32 exec_hi, {m >> 32:#x}")
    for th in range(2):
        mn, sq = SM + 4*th, G + 4*th
        a(f"""
        v_mul_f32 v{mn}, {f2u(1.0/448):#x}, v{mn}
        v_mul_f32 v{sq}, {f2u(1.0/448):#x}, v{sq}
        v_fma_f32 v{sq}, -v{mn}, v{mn}, v{sq}
        v_max_f32 v{sq}, 0, v{sq}
        v_add_f32 v{sq}, {f2u(1e-5):#x}, v{sq}
        v_rsq_f32 v{sq}, v{sq}
        ds_write_b32 v9, v{mn} offset:{64*th}
        s_nop 0
        ds_write_b32 v9, v{sq} offset:{128+64*th}
        """)
    a(f"""
    s_mov_b64 exec, 0xffff
    ds_write_b32 v10, v{CSA}
    ds_write_b32 v10, v{CSA+1} offset:64
    s_mov_b64 exec, -1
    s_waitcnt lgkmcnt(0)
    """)
    a.bar("p1S")
    get_nonce(a, "h")
    a.bar("p1X")

def get_nonce(a, tag):
    a(f"""
    v_mov_b32 v9, 0
    s_mov_b32 s60, 0
L_{tag}_nl:
    buffer_load_dwordx2 v[10:11], v9, {sr(SDBG)}, 0 offen sc1
    s_add_u32 s60, s60, 1
    s_waitcnt vmcnt(0)
    v_readfirstlane_b32 s{NON}, v10
    v_readfirstlane_b32 s{NON+1}, v11
    s_cmp_gt_u32 s60, {POLL_MAX}
    s_cbranch_scc1 L_{tag}_gotnonce
    s_cmp_eq_u32 s{NON+1}, 0
    s_cbranch_scc1 L_{tag}_nl
L_{tag}_gotnonce:
    """)

def publish(a, tag, soff_code):
    a(f"""
    s_cmp_lg_u32 s{SW}, 4
    s_cbranch_scc1 L_pub_{tag}
    {soff_code}
    v_mov_b32 v10, s{NON}
    v_mov_b32 v11, s{NON+1}
    v_mov_b32 v9, 0
    s_mov_b64 exec, 1
    buffer_store_dwordx2 v[10:11], v9, {sr(SWS)}, s60 offen sc1
    s_mov_b64 exec, -1
L_pub_{tag}:
    """)

def poll(a, tag, vaddr, mask_lo, mask_hi=0):
    a(f"""
    s_mov_b32 exec_lo, {mask_lo:#x}
    s_mov_b32 exec_hi, {mask_hi:#x}
    s_mov_b32 s60, 0
L_poll_{tag}:
    buffer_load_dwordx2 v[10:11], v{vaddr}, {sr(SWS)}, 0 offen sc1
    s_add_u32 s60, s60, 1
    s_waitcnt vmcnt(0)
    v_cmp_ne_u64 vcc, s[{NON}:{NON+1}], v[10:11]
    s_cmp_gt_u32 s60, {POLL_MAX}
    s_cbranch_scc1 L_polld_{tag}
    s_cbranch_vccnz L_poll_{tag}
L_polld_{tag}:
    s_mov_b64 exec, -1
    """)

RREG = 106496
AUX2 = RREG + 49152 + 64
WOREG = 49152
SLOT = 8736
def p2_ids(a):
    a(f"""
    s_and_b32 s52, s2, 15                  ; h
    s_lshr_b32 s53, s2, 4                  ; qb
    """)

def p2_compute(a):
    Q = 16; O = 48; S = [112, 128]; P = 144; KV = 152
    p2_ids(a)
    a(f"""
    s_lshl_b32 s54, s52, 6                 ; h*64
    s_lshl_b32 s55, s{SW3}, 4
    s_add_u32 s55, s55, s54
    s_lshl_b32 s55, s55, 12
    s_add_u32 s55, s55, {KVF}
    s_add_u32 s{SKV}, s{SWS}, s55
    s_addc_u32 s{SKV+1}, s{SWS+1}, 0
    s_mov_b32 s{SKV+2}, 65536
    s_mov_b32 s{SKV+3}, 0x00020000
    s_lshl_b32 s55, s53, 2
    s_add_u32 s55, s55, s54                ; h*64 + qb*4
    s_lshl_b32 s56, s52, 8
    s_add_u32 s56, s56, {KN}
    v_lshlrev_b32 v3, 2, v1
    s_mov_b32 s62, 0                       ; pass
    """)
    a.bar("p2P")
    a.stamp(6)
    a(f"buffer_load_dword v5, v3, {sr(SWS)}, s56 offen sc1")
    for j in range(4):
        a(f"""
        s_add_u32 s57, s{SW3}, {j}
        s_and_b32 s57, s57, 3
        s_add_u32 s57, s57, s55
        s_lshl_b32 s57, s57, 11
        buffer_load_dwordx4 {vr(Q+8*j)}, v2, {sr(SWS)}, s57 offen sc1
        buffer_load_dwordx4 {vr(Q+8*j+4)}, v2, {sr(SWS)}, s57 offen offset:1024 sc1
        """)
    a("L_p2_restart:")
    for t in range(13):
        kt, f = divmod(t, 4)
        if f == 0: a(f"s_mov_b32 s57, {kt*4096}")
        a(f"buffer_load_dwordx4 {vr(KV+16*kt+4*f)}, v2, {sr(SKV)}, s57 offen offset:{f*1024} sc1")
    for r in range(64):
        a(f"v_mov_b32 v{O+r}, 0")
    for r in range(4):
        a(f"v_mov_b32 v{P+4+r}, 0\nv_mov_b32 v{KV+48+12+r}, 0")
    a(f"""
    s_cmp_lg_u32 s62, 0
    s_cbranch_scc1 L_p2_havem
    s_waitcnt vmcnt(13)
    v_max_f32_dpp v5, v5, v5 row_shr:1 row_mask:0xf bank_mask:0xf
    v_max_f32_dpp v5, v5, v5 row_shr:2 row_mask:0xf bank_mask:0xf
    v_max_f32_dpp v5, v5, v5 row_shr:4 row_mask:0xf bank_mask:0xf
    v_max_f32_dpp v5, v5, v5 row_shr:8 row_mask:0xf bank_mask:0xf
    v_max_f32_dpp v5, v5, v5 row_bcast:15 row_mask:0xa bank_mask:0xf
    v_max_f32_dpp v5, v5, v5 row_bcast:31 row_mask:0xc bank_mask:0xf
    v_sqrt_f32 v5, v5
    v_mul_f32 v5, {f2u(1.0+1.0/128):#x}, v5
    v_readlane_b32 s58, v5, 63
    s_mov_b32 exec_lo, 0
    """)
    for j in range(4):
        a(f"""
        v_lshlrev_b32 v6, 16, v{Q+8*j+6}
        v_mul_f32 v6, s58, v6
        v_add_u32 v6, 0x8000ffff, v6
        v_lshrrev_b32 v{Q+8*j+6}, 16, v6
        """)
    a("s_mov_b32 exec_lo, -1")
    a.bar("p2Y")
    a(f"""
L_p2_havem:
    s_waitcnt vmcnt(9)
    v_mfma_f32_32x32x16_bf16 {vr(S[0],16)}, {vr(KV)}, {vr(Q)}, 0
    v_mfma_f32_32x32x16_bf16 {vr(S[0],16)}, {vr(KV+4)}, {vr(Q+4)}, {vr(S[0],16)}
    s_mov_b32 s59, 0
    """)
    a.stamp(7)
    a("L_p2_loop:")
    for u in range(16):
        kt, qi = divmod(u, 4)
        ktn, qn = divmod((u + 1) % 16, 4)
        ktp, qp = divmod((u - 1) % 16, 4)
        Sc, Sn = S[u & 1], S[(u + 1) & 1]
        e = lambda r: f"v_exp_f32 v{Sc+r}, v{Sc+r}"
        c = lambda r: f"v_cvt_pk_bf16_f32 v{P+r}, v{Sc+2*r}, v{Sc+2*r+1}"
        A = f"v_mfma_f32_32x32x16_bf16 {vr(Sn,16)}, {vr(KV+16*ktn)}, {vr(Q+8*qn)}, 0"
        B = f"v_mfma_f32_32x32x16_bf16 {vr(O+16*qp,16)}, {vr(KV+16*ktp+12)}, {vr(P+4)}, {vr(O+16*qp,16)}"
        C = f"v_mfma_f32_32x32x16_bf16 {vr(Sn,16)}, {vr(KV+16*ktn+4)}, {vr(Q+8*qn+4)}, {vr(Sn,16)}"
        D = f"v_mfma_f32_32x32x16_bf16 {vr(O+16*qi,16)}, {vr(KV+16*kt+8)}, {vr(P)}, {vr(O+16*qi,16)}"
        if qi == 3: lb, lf = kt, 0
        else: lb, lf = (kt - 1) % 4, qi + 1
        L = f"buffer_load_dwordx4 {vr(KV+16*lb+4*lf)}, v2, {sr(SKV)}, s57 offen offset:{lf*1024} sc1"
        if qi == 3: a("s_waitcnt vmcnt(8)")
        a.emit(A, e(0), e(1), e(2), e(3), c(0), c(1), B, e(4), e(5), e(6), e(7), c(2), c(3), C, L)
        a.emit(e(8), e(9), e(10), e(11), c(4), c(5), D, e(12), e(13), e(14), e(15), c(6), c(7))
        if qi == 2: a("s_add_u32 s57, s57, 4096")
    a(f"""
    s_add_u32 s59, s59, 1
    s_cmp_lt_u32 s59, 4
    s_cbranch_scc1 L_p2_loop
    v_mfma_f32_32x32x16_bf16 {vr(O+48,16)}, {vr(KV+48+12)}, {vr(P+4)}, {vr(O+48,16)}
    """)
    a.stamp(8)
    for j in (1, 2, 3):
        a(f"""
        s_add_u32 s57, s{SW3}, {j}
        s_and_b32 s57, s57, 3
        s_mul_i32 s57, s57, 12288
        s_add_u32 s57, s57, {RREG + (j-1)*4096}
        v_add_u32 v6, s57, v2
        """)
        for q in range(4):
            a(f"ds_write_b128 v6, {vr(O+16*j+4*q)} offset:{q*1024}")
    a(f"""
    s_mul_i32 s57, s{SW3}, 12288
    s_add_u32 s57, s57, {RREG}
    v_add_u32 v6, s57, v2
    v_mov_b32 v9, {AUX2}
    s_waitcnt lgkmcnt(0)
    """)
    a.bar("p2R1")
    a.stamp(9)
    for q in range(12):
        a(f"ds_read_b128 {vr(O+16+4*q)}, v6 offset:{q*1024}")
    for j in range(3):
        a(f"s_waitcnt lgkmcnt({8-4*j})")
        for r in range(16):
            a(f"v_add_f32 v{O+r}, v{O+r}, v{O+16+16*j+r}")
    a(f"""
    v_mov_b32 v10, v{O+12}
    v_mov_b32 v11, v{O+12}
    v_permlane32_swap_b32 v10, v11          ; v11 = l
    v_mov_b32 v10, 0x1f800000
    v_cmp_nge_f32 vcc, v11, v10
    v_rcp_f32 v11, v11
    s_cmp_eq_u64 vcc, 0
    s_cbranch_scc1 L_p2_ok
    v_mov_b32 v10, 1
    ds_write_b32 v9, v10
L_p2_ok:
    """)
    for r in range(16):
        a(f"v_mul_f32 v{O+r}, v{O+r}, v11")
    for r in range(8):
        a(f"v_cvt_pk_bf16_f32 v{P+r}, v{O+2*r}, v{O+2*r+1}")
    a(f"""
    s_mul_i32 s57, s52, 7
    v_add_u32 v10, s57, v13                ; p0 = 7h + hf
    s_lshl_b32 s57, s53, 2
    s_add_u32 s57, s57, s{SW3}
    s_mul_i32 s57, s57, 28672
    s_add_u32 s57, s57, {OF}
    """)
    for i in range(4):
        a(f"""
        v_add_u32 v14, {2*i}, v10
        v_lshrrev_b32 v11, 1, v14
        v_lshlrev_b32 v11, 9, v11
        v_and_b32 v14, 1, v14
        v_lshl_add_u32 v11, v14, 3, v11
        v_lshl_add_u32 v11, v12, 4, v11
        """)
        if i == 3: a("s_mov_b32 exec_hi, 0")
        a(f"buffer_store_dwordx2 v[{P+2*i}:{P+2*i+1}], v11, {sr(SWS)}, s57 offen sc1")
    a("s_mov_b32 exec_hi, -1")
    a.stamp(10)
    a("s_waitcnt vmcnt(0) lgkmcnt(0)")
    a.bar("p2R2")
    a(f"""
    s_cmp_lg_u32 s62, 0
    s_cbranch_scc1 L_p2_done
    ds_read_b32 v10, v9
    s_waitcnt lgkmcnt(0)
    v_readfirstlane_b32 s57, v10
    s_cmp_eq_u32 s57, 0
    s_cbranch_scc1 L_p2_done
    s_mov_b32 s62, 1
    s_mov_b32 exec_lo, 0
    """)
    for j in range(4):
        a(f"v_mov_b32 v{Q+8*j+6}, 0")
    a("s_mov_b32 exec_lo, -1")
    for j in range(4):
        a(f"v_mov_b32 v{O+j}, 0xff800000")
    a(f"""
    s_mov_b32 s57, 0
L_p2_mx:
    buffer_load_dwordx4 {vr(KV)}, v2, {sr(SKV)}, s57 offen sc1
    buffer_load_dwordx4 {vr(KV+4)}, v2, {sr(SKV)}, s57 offen offset:1024 sc1
    s_waitcnt vmcnt(0)
    """)
    for j in range(4):
        a(f"""
        v_mfma_f32_32x32x16_bf16 {vr(S[0],16)}, {vr(KV)}, {vr(Q+8*j)}, 0
        v_mfma_f32_32x32x16_bf16 {vr(S[0],16)}, {vr(KV+4)}, {vr(Q+8*j+4)}, {vr(S[0],16)}
        """)
        for r in range(8):
            a(f"v_max3_f32 v{O+j}, v{S[0]+2*r}, v{S[0]+2*r+1}, v{O+j}")
    a(f"""
    s_add_u32 s57, s57, 4096
    s_cmp_lt_u32 s57, 65536
    s_cbranch_scc1 L_p2_mx
    """)
    for j in range(4):
        a(f"""
        v_mov_b32 v10, v{O+j}
        v_permlane32_swap_b32 v{O+j}, v10
        v_max_f32 v{O+j}, v{O+j}, v10
        s_add_u32 s57, s{SW3}, {j}
        s_and_b32 s57, s57, 3
        s_lshl_b32 s57, s57, 10
        s_add_u32 s57, s57, {RREG}
        v_add_u32 v{O+8+j}, s57, v3
        s_lshl_b32 s58, s{SW3}, 8
        v_add_u32 v10, s58, v{O+8+j}
        ds_write_b32 v10, v{O+j}
        """)
    a("s_waitcnt lgkmcnt(0)\ns_barrier")
    for j in range(4):
        for w in range(4):
            a(f"ds_read_b32 v{O+16+4*j+w}, v{O+8+j} offset:{256*w}")
    a("s_waitcnt lgkmcnt(0)")
    for j in range(4):
        b = O + 16 + 4*j
        a(f"""
        v_max3_f32 v10, v{b}, v{b+1}, v{b+2}
        v_max_f32 v10, v10, v{b+3}
        v_sub_f32 v10, 0, v10
        v_and_b32 v11, 0xffff0000, v10
        v_sub_f32 v14, v10, v11
        v_cvt_pk_bf16_f32 v10, v11, v14
        s_mov_b32 exec_lo, 0
        v_mov_b32 v{Q+8*j+6}, v10
        s_mov_b32 exec_lo, -1
        """)
    a("s_barrier\ns_branch L_p2_restart\nL_p2_done:")
    a.stamp(11)

def late_ids(a):
    a(f"""
    s_lshl_b32 s47, s5, 2
    s_and_b32 s46, s6, 3
    s_add_u32 s47, s47, s46                ; tb
    s_lshr_b32 s46, s6, 2                  ; fb
    s_and_b32 s56, s5, 1
    s_lshl_b32 s56, s56, 3
    s_and_b32 s57, s6, 7
    s_add_u32 s56, s56, s57                ; rb
    s_lshr_b32 s57, s5, 1
    s_lshl_b32 s57, s57, 2
    s_lshr_b32 s60, s6, 3
    s_add_u32 s57, s57, s60                ; cb
    """)

def gu_dma(a, n, tag, vm):
    a(f"""
    s_mov_b32 s61, 0
L_gu_{tag}:
    s_mov_b32 m0, s59
    s_add_u32 s59, s59, {SLOT}
    buffer_load_dwordx4 v20, {sr(SG)}, s58 offen lds
    s_add_u32 m0, m0, 4384
    s_add_u32 s63, s63, 1
    buffer_load_dwordx4 v20, {sr(SU)}, s58 offen lds
    s_add_u32 s58, s58, {16*3584}
    s_cmp_lt_u32 s63, 28
    s_cbranch_scc1 L_gu_{tag}_n
    s_mov_b32 s63, 0
    s_sub_u32 s58, s58, {28*16*3584}
L_gu_{tag}_n:
    s_add_u32 s61, s61, 1
    s_cmp_lt_u32 s61, {n}
    s_cbranch_scc1 L_gu_{tag}
    """)
    vm.add(tag, 2 * n)

def rot4(a, dst):
    a(f"""
    s_lshr_b32 s60, s6, 3
    s_lshl_b32 s60, s60, 1
    s_add_u32 s60, s60, s6
    s_and_b32 s60, s60, 7
    s_mul_i32 s{dst}, s60, 7
    s_lshr_b32 s{dst}, s{dst}, 1
    """)

def p2_helper(a, vm):
    publish(a, "A", f"s_lshl_b32 s60, s53, 7\ns_lshl_b32 s61, s52, 3\ns_add_u32 s60, s60, s61\ns_add_u32 s60, s60, {FA}")
    p2_ids(a)
    a(f"s_cmp_lg_u32 s{SW}, 4\ns_cbranch_scc1 L_h2_np")
    a(f"""
    s_add_u32 s60, s52, 16
    s_mul_i32 s60, s60, 43691
    s_lshr_b32 s60, s60, 17                ; cbK
    s_add_u32 s61, s52, 32
    s_mul_i32 s61, s61, 43691
    s_lshr_b32 s61, s61, 17                ; cbV
    s_mul_i32 s63, s52, 43691
    s_lshr_b32 s63, s63, 17                ; cbQ
    s_lshl_b32 s60, s60, 7
    s_lshl_b32 s61, s61, 7
    s_lshl_b32 s63, s63, 7
    s_lshl_b32 s59, s53, 3
    s_add_u32 s63, s63, s59
    v_and_b32 v16, 15, v1
    v_lshlrev_b32 v16, 3, v16
    v_add_u32 v17, s60, v16
    s_mov_b32 exec_lo, 0xffff0000
    v_add_u32 v17, s61, v16
    s_mov_b32 exec_lo, 0
    v_mov_b32 v17, s63
    s_mov_b32 exec_lo, -1
    v_add_u32 v17, {FA}, v17
    """)
    poll(a, "A", 17, 0xffffffff, 1)
    a("L_h2_np:")
    a.bar("p2P")
    late_ids(a)
    a(f"""
    v_mov_b32 v19, {AUX2}
    v_mov_b32 v10, 0
    ds_write_b32 v19, v10
    s_mov_b32 s62, 0
    v_lshlrev_b32 v2, 4, v1
    v_lshrrev_b32 v9, 3, v1
    v_mul_u32_u24 v9, 896, v9
    v_bfe_u32 v10, v1, 4, 1
    v_lshlrev_b32 v10, 2, v10
    v_and_b32 v11, 7, v1
    v_xor_b32 v10, v10, v11
    v_lshl_add_u32 v21, v10, 4, v9
    v_lshrrev_b32 v9, 4, v1
    v_mul_u32_u24 v9, {4*3584}, v9
    v_and_b32 v10, 15, v1
    v_lshl_add_u32 v20, v10, 4, v9
    """)
    a.bar("p2Y")
    if UPTO >= 5:
        a(f"""
        s_cmp_ge_u32 s6, 28
        s_cbranch_scc1 L_h2_nowd
        s_and_b32 s58, s6, 3
        s_lshl_b32 s58, s58, 2
        s_add_u32 s58, s58, s{SW3}
        s_mul_i32 s58, s58, {14*8*896}
        s_lshl_b32 s59, s46, 7
        s_add_u32 s58, s58, s59
        s_mov_b32 s61, 0
L_h2_wd:
        buffer_load_dwordx4 v[24:27], v21, {sr(SD)}, s58 offen
        s_add_u32 s58, s58, {8*896}
        s_add_u32 s61, s61, 1
        s_waitcnt vmcnt({PFW})
        s_cmp_lt_u32 s61, 14
        s_cbranch_scc1 L_h2_wd
L_h2_nowd:
        """)
    if UPTO >= 3:
        a(f"""
        s_cmp_ge_u32 s6, 28
        s_cbranch_scc1 L_h2_nowo
        s_mul_i32 s58, s{SW3}, {14*8*896}
        s_lshl_b32 s59, s46, 7
        s_add_u32 s58, s58, s59
        s_mul_i32 s59, s{SW3}, 14336
        s_add_u32 m0, s59, {WOREG}
        s_mov_b32 s61, 0
L_h2_wo:
        buffer_load_dwordx4 v21, {sr(SWO)}, s58 offen lds
        s_add_u32 m0, m0, 1024
        s_add_u32 s58, s58, {8*896}
        s_add_u32 s61, s61, 1
        s_waitcnt vmcnt({PFW})
        s_cmp_lt_u32 s61, 14
        s_cbranch_scc1 L_h2_wo
L_h2_nowo:
        """)
    if UPTO >= 4:
        rot4(a, 63)
        a(f"""
        s_lshl_b32 s58, s63, 4
        s_add_u32 s58, s58, s{SW3}
        s_mul_i32 s58, s58, 3584
        s_mul_i32 s59, s57, 224
        s_and_b32 s59, s59, 0xffffffc0
        s_add_u32 s58, s58, s59
        s_mul_i32 s59, s{SW3}, 1088
        """)
        gu_dma(a, 5, "g0", vm)
        a.stamp(7)
    a("s_waitcnt vmcnt(0) lgkmcnt(0)")
    vm.q = []
    a("L_h2_again:")
    a.bar("p2R1")
    a.bar("p2R2")
    a(f"""
    s_cmp_lg_u32 s62, 0
    s_cbranch_scc1 L_h2_done
    ds_read_b32 v10, v19
    s_waitcnt lgkmcnt(0)
    v_readfirstlane_b32 s60, v10
    s_cmp_eq_u32 s60, 0
    s_cbranch_scc1 L_h2_done
    s_mov_b32 s62, 1
    s_barrier
    s_barrier
    s_branch L_h2_again
L_h2_done:
    """)

def tr128_addr(a, dst, sft, sxh):
    a(f"""
    v_bfe_u32 v9, v1, 2, 2                 ; r
    v_lshl_add_u32 v10, v13, 3, v9         ; 8hf + r
    v_lshlrev_b32 v10, 7, v10
    v_lshrrev_b32 v9, 1, v9
    v_xor_b32 v9, s{sft}, v9
    v_lshl_add_u32 v10, v9, 6, v10         ; half ^ (r>>1)
    v_bfe_u32 v9, v1, 4, 1                 ; ch
    {f"v_xor_b32 v9, s{sxh}, v9" if sxh else ""}
    v_lshl_add_u32 v10, v9, 5, v10
    v_and_b32 v9, 1, v1
    v_lshl_add_u32 v10, v9, 4, v10
    v_bfe_u32 v9, v1, 1, 1
    v_lshl_add_u32 v{dst}, v9, 3, v10
    """)

def p3_compute(a):
    ACC = 16; AF = 64; BF = 32; XR = 176; T = 184
    late_ids(a)
    a(f"""
    s_cmp_ge_u32 s6, 28
    s_cbranch_scc1 L_p3_skipA
    s_and_b32 s52, s{SW3}, 1               ; tt_l
    s_lshr_b32 s53, s{SW3}, 1              ; ft_l
    s_lshl_b32 s54, s47, 1
    s_add_u32 s54, s54, s52                ; tt
    s_lshl_b32 s55, s46, 1
    s_add_u32 s55, s55, s53                ; ft
    v_mul_u32_u24 v3, 896, v12
    v_lshl_add_u32 v3, v13, 4, v3
    s_mul_i32 s60, s54, {32*896}
    s_lshl_b32 s61, s55, 6
    s_add_u32 s60, s60, s61
    buffer_load_dwordx4 {vr(XR)}, v3, {sr(SX)}, s60 offen
    buffer_load_dwordx4 {vr(XR+4)}, v3, {sr(SX)}, s60 offen offset:32
    """)
    tr128_addr(a, 4, 53, None)
    a(f"""
    s_lshl_b32 s60, s46, 13
    s_add_u32 s60, s60, {WOREG}
    v_add_u32 v4, s60, v4
    s_mul_i32 s60, s52, 28672
    s_add_u32 s60, s60, {RREG}
    v_add_u32 v5, s60, v2
    """)
    for g in range(7):
        if g > 0:
            a(f"""
            s_add_u32 s60, s46, {g}
            s_cmp_eq_u32 s60, 7
            s_cselect_b32 s60, {(8192 - 57344) & 0xffffffff:#x}, 8192
            v_add_u32 v4, s60, v4
            """.replace("s_cselect_b32 s60, 0xffff4000, 8192", "s_mov_b32 s60, 8192\ns_cselect_b32 s60, 0xffff4000, s60"))
        for q in range(4):
            for u in range(2):
                b = AF + 16*g + 4*q + 2*u
                a(f"ds_read_b64_tr_b16 v[{b}:{b+1}], v4 offset:{q*2048+u*512}")
        a("s_waitcnt lgkmcnt(4)")
    a("s_waitcnt lgkmcnt(0)\nL_p3_skipA:")
    a.bar("p3A")
    a.stamp(12)
    a("s_cmp_ge_u32 s6, 28\ns_cbranch_scc1 L_p3_skipB")
    a.bar("p3P")
    for st in range(4):
        a.bar(f"p3s{st}")
        if st == 0: a.stamp(13)
        for q in range(7):
            a(f"ds_read_b128 {vr(BF+4*q)}, v5 offset:{(7*st+q)*1024}")
        for q in range(7):
            p = 7*st + q
            a(f"s_waitcnt lgkmcnt({6-q})")
            a(f"v_mfma_f32_32x32x16_bf16 {vr(ACC,16)}, {vr(AF+4*p)}, {vr(BF+4*q)}, {'0' if p==0 else vr(ACC,16)}")
    a.stamp(14)
    a("s_waitcnt vmcnt(0)")
    for r in range(8):
        a(f"v_lshlrev_b32 v{T+2*r}, 16, v{XR+r}\nv_and_b32 v{T+2*r+1}, 0xffff0000, v{XR+r}")
    for r in range(16):
        a(f"v_add_f32 v{ACC+r}, v{ACC+r}, v{T+r}")
    for r in range(8):
        a(f"v_cvt_pk_bf16_f32 v{BF+r}, v{ACC+2*r}, v{ACC+2*r+1}")
    a(f"""
    s_mul_i32 s60, s54, 28672
    s_lshl_b32 s61, s55, 11
    s_add_u32 s60, s60, s61
    s_add_u32 s60, s60, {HF}
    buffer_store_dwordx4 {vr(BF)}, v2, {sr(SWS)}, s60 offen sc1
    buffer_store_dwordx4 {vr(BF+4)}, v2, {sr(SWS)}, s60 offen offset:1024 sc1
    v_mov_b32 v6, 0
    v_mov_b32 v7, 0
    """)
    for r in range(8):
        a(f"v_dot2c_f32_bf16 v6, v{BF+r}, v15\nv_dot2c_f32_bf16 v7, v{BF+r}, v{BF+r}")
    a(f"""
    v_mov_b32 v8, v6
    v_mov_b32 v9, v7
    v_permlane32_swap_b32 v6, v8
    v_permlane32_swap_b32 v7, v9
    v_add_f32 v6, v6, v8
    v_add_f32 v7, v7, v9
    s_mul_i32 s60, s54, 14
    s_add_u32 s60, s60, s55
    s_lshl_b32 s60, s60, 8
    s_add_u32 s60, s60, {ST}
    v_lshlrev_b32 v8, 3, v1
    s_mov_b32 exec_hi, 0
    buffer_store_dwordx2 v[6:7], v8, {sr(SWS)}, s60 offen sc1
    s_mov_b32 exec_hi, -1
    """)
    a.stamp(15)
    a("s_waitcnt vmcnt(0)\nL_p3_skipB:")
    a.bar("p3X")
    a.stamp(16)

def p3_helper(a, vm):
    publish(a, "B", f"s_lshl_b32 s60, s53, 7\ns_lshl_b32 s61, s52, 3\ns_add_u32 s60, s60, s61\ns_add_u32 s60, s60, {FB}")
    a.bar("p3A")
    if UPTO >= 4: gu_dma(a, 7, "g1", vm)
    a.stamp(12)
    a(f"""
    s_cmp_ge_u32 s6, 28
    s_cbranch_scc1 L_h3_skip
    s_lshr_b32 s60, s47, 1
    s_lshl_b32 s60, s60, 7
    s_add_u32 s60, s60, {FB}
    v_lshl_add_u32 v17, v1, 3, s60
    s_cmp_lg_u32 s{SW}, 4
    s_cbranch_scc1 L_h3_np
    """)
    poll(a, "B", 17, 0xffff)
    a("L_h3_np:")
    a.bar("p3P")
    a.stamp(13)
    a(f"""
    s_and_b32 s52, s{SW3}, 1
    s_lshr_b32 s53, s{SW3}, 1
    s_lshl_b32 s54, s47, 1
    s_add_u32 s54, s54, s52
    s_mul_i32 s54, s54, 28672
    s_add_u32 s54, s54, {OF}
    s_lshl_b32 s55, s46, 2
    s_add_u32 s55, s55, s53
    s_mul_i32 s60, s52, 28672
    s_lshl_b32 s61, s53, 10
    s_add_u32 s60, s60, s61
    s_add_u32 m0, s60, {RREG}
    s_mov_b32 s61, 0
L_h3_o:
    s_lshl_b32 s60, s55, 10
    s_add_u32 s60, s60, s54
    buffer_load_dwordx4 v2, {sr(SWS)}, s60 offen sc1 lds
    s_add_u32 m0, m0, 2048
    s_add_u32 s55, s55, 2
    s_cmp_lt_u32 s55, 28
    s_cbranch_scc1 L_h3_on
    s_sub_u32 s55, s55, 28
L_h3_on:
    s_add_u32 s61, s61, 1
    s_cmp_lt_u32 s61, 14
    s_cbranch_scc1 L_h3_o
    """)
    for st, n in enumerate((3, 6, 10, 13)):
        a(f"s_waitcnt vmcnt({13-n})")
        a.bar(f"p3s{st}")
    a("L_h3_skip:")
    a.bar("p3X")

NBW = 8
def p4_compute(a):
    ACC = 16; AF = 128; BF = 156; T = 188; OUT = 196; STT = 204
    RS, CC = 6, 7
    vm = VM()
    a(f"""
    s_lshl_b32 s54, s56, 2
    s_add_u32 s54, s54, s{SW3}             ; tt
    s_mul_i32 s55, s54, 28672
    s_add_u32 s55, s55, {HF}
    """)
    rot4(a, 58)
    a(f"""
    v_bfe_u32 v9, v1, 2, 2
    v_mul_u32_u24 v10, 1088, v9
    v_lshl_add_u32 v10, v13, 9, v10
    v_and_b32 v9, 1, v1
    v_lshl_add_u32 v10, v9, 4, v10
    v_bfe_u32 v9, v1, 4, 1
    v_lshl_add_u32 v10, v9, 3, v10
    v_bfe_u32 v9, v1, 1, 1
    v_mul_u32_u24 v9, 4384, v9
    v_add_u32 v10, v10, v9
    s_mul_i32 s60, s57, 224
    s_and_b32 s60, s60, 63
    v_add_u32 v4, s60, v10
    v_mul_u32_u24 v5, {7*256}, v13
    v_lshl_add_u32 v5, v12, 3, v5
    s_mul_i32 s59, s54, {14*256}
    s_add_u32 s59, s59, {ST}
    """)
    base = [0]
    def tr(p, j):
        L = []
        slot = p % 18
        off = slot * SLOT - base[0]
        if j == 0 and (off < 0 or off + SLOT > 65536):
            d = slot * SLOT - base[0]
            L.append(f"v_add_u32 v4, {d & 0xffffffff:#x}, v4")
            base[0] = slot * SLOT; off = 0
        for u in range(2):
            b = AF + 4*j + 2*u
            L.append(f"ds_read_b64_tr_b16 v[{b}:{b+1}], v4 offset:{off + u*256 + j*32}")
        return L
    for j in range(7): a.emit(*tr(0, j))
    a.bar("p4P")
    a.stamp(17)
    for q in range(7):
        a(f"buffer_load_dwordx2 v[{STT+2*q}:{STT+2*q+1}], v5, {sr(SWS)}, s59 offen offset:{q*256} sc1")
    vm.add("st", 7)
    def bload(p):
        vm.add(f"b{p}")
        return [f"s_lshl_b32 s60, s58, 10", "s_add_u32 s60, s60, s55",
                f"buffer_load_dwordx4 {vr(BF+4*(p%NBW))}, v2, {sr(SWS)}, s60 offen sc1",
                "s_add_u32 s58, s58, 1", "s_cmp_eq_u32 s58, 28", "s_cselect_b32 s58, 0, s58"]
    for p in range(NBW): a.emit(*bload(p))
    a(vm.wait("st"))
    for q in (1, 2, 3):
        a(f"v_add_f32 v{STT+2*q}, v{STT+2*q}, v{STT+2*q+6}\nv_add_f32 v{STT+2*q+1}, v{STT+2*q+1}, v{STT+2*q+7}")
    a(f"""
    v_add_f32 v{STT}, v{STT}, v{STT+2}
    v_add_f32 v{STT+1}, v{STT+1}, v{STT+3}
    v_add_f32 v{STT+4}, v{STT+4}, v{STT+6}
    v_add_f32 v{STT+5}, v{STT+5}, v{STT+7}
    v_add_f32 v{STT}, v{STT}, v{STT+4}
    v_add_f32 v{STT+1}, v{STT+1}, v{STT+5}
    v_mov_b32 v{STT+2}, v{STT}
    v_mov_b32 v{STT+3}, v{STT+1}
    v_permlane32_swap_b32 v{STT}, v{STT+2}
    v_permlane32_swap_b32 v{STT+1}, v{STT+3}
    v_add_f32 v{STT}, v{STT}, v{STT+2}
    v_add_f32 v{STT+1}, v{STT+1}, v{STT+3}
    v_mul_f32 v{STT}, {f2u(1.0/448):#x}, v{STT}
    v_mul_f32 v{STT+1}, {f2u(1.0/448):#x}, v{STT+1}
    v_fma_f32 v{STT+1}, -v{STT}, v{STT}, v{STT+1}
    v_max_f32 v{STT+1}, 0, v{STT+1}
    v_add_f32 v{STT+1}, {f2u(1e-5):#x}, v{STT+1}
    v_rsq_f32 v{RS}, v{STT+1}
    v_mul_f32 v{CC}, v{STT}, v{RS}
    v_sub_f32 v{CC}, 0, v{CC}
    """)
    def norm(p):
        f = BF + 4*(p % NBW)
        L = []
        for i in range(4):
            L += [f"v_lshlrev_b32 v{T+2*i}, 16, v{f+i}", f"v_and_b32 v{T+2*i+1}, 0xffff0000, v{f+i}"]
        for i in range(8):
            L.append(f"v_fma_f32 v{T+i}, v{T+i}, v{RS}, v{CC}")
        for i in range(4):
            L.append(f"v_cvt_pk_bf16_f32 v{f+i}, v{T+2*i}, v{T+2*i+1}")
        return L
    a(vm.wait("b0"))
    a.emit(*norm(0))
    a.stamp(18)
    for p in range(28):
        if p in (4, 10, 16, 20): a.bar(f"p4b{p}")
        nrm = norm(p + 1) if p < 27 else []
        for j in range(7):
            if j == 0: a("s_waitcnt lgkmcnt(6)")
            if j == 4: a(f"s_waitcnt lgkmcnt({8 if p < 27 else 0})")
            a(f"v_mfma_f32_32x32x16_bf16 {vr(ACC+16*j,16)}, {vr(AF+4*j)}, {vr(BF+4*(p%NBW))}, {'0' if p==0 else vr(ACC+16*j,16)}")
            if p < 27: a.emit(*tr(p + 1, j))
            if j == 0:
                if p >= 1 and p - 1 + NBW < 28: a.emit(*bload(p - 1 + NBW))
                if p < 27: a(vm.wait(f"b{p+1}"))
            else:
                k0 = [0, 4, 8, 11, 14, 17, 20]
                a.emit(*nrm[k0[j-1]:k0[j]])
    a.stamp(19)
    a.bar("p4E")
    a(f"""
    s_mul_i32 s60, s54, {112*1024}
    s_mul_i32 s61, s57, 7168
    s_add_u32 s60, s60, s61
    s_add_u32 s60, s60, {HH}
    """)
    for j in range(7):
        acc = ACC + 16*j; o = OUT + 4*(j & 1)
        for g in range(2):
            for c in range(4):
                a(f"v_max_f32 v{acc+8*g+c}, 0, v{acc+8*g+c}")
            for c in range(4):
                a(f"v_mul_f32 v{acc+8*g+c}, v{acc+8*g+c}, v{acc+8*g+4+c}")
            a(f"v_cvt_pk_bf16_f32 v{o+2*g}, v{acc+8*g}, v{acc+8*g+1}")
            a(f"v_cvt_pk_bf16_f32 v{o+2*g+1}, v{acc+8*g+2}, v{acc+8*g+3}")
        if j == 4: a("s_add_u32 s60, s60, 4096")
        a(f"buffer_store_dwordx4 {vr(o)}, v2, {sr(SWS)}, s60 offen offset:{(j%4)*1024} sc1")
    a.stamp(21)
    if UPTO >= 5: p5_pre(a, "c")
    a("s_waitcnt vmcnt(0)")
    a.bar("p4X")
    a.stamp(23)

B1 = 10 * SLOT
def wd_dma(a, n, tag, vm, dst_code):
    a(f"""
    s_cmp_ge_u32 s6, 28
    s_cbranch_scc1 L_wd_{tag}_skip
    {dst_code}
    s_mov_b32 s61, 0
L_wd_{tag}:
    s_mul_i32 s60, s58, {16*896}
    s_add_u32 s60, s60, s59
    buffer_load_dwordx4 v21, {sr(SD)}, s60 offen lds
    s_add_u32 m0, m0, 1024
    s_add_u32 s60, s60, {8*896}
    s_add_u32 s58, s58, 1
    buffer_load_dwordx4 v21, {sr(SD)}, s60 offen lds
    s_add_u32 m0, m0, 1024
    s_cmp_eq_u32 s58, 28
    s_cselect_b32 s58, 0, s58
    s_add_u32 s61, s61, 1
    s_cmp_lt_u32 s61, {n}
    s_cbranch_scc1 L_wd_{tag}
L_wd_{tag}_skip:
    """)
    vm.add(tag, 2 * n)

def p4_helper(a, vm):
    a("s_cmp_ge_u32 s6, 28\ns_cbranch_scc1 L_pub_C")
    publish(a, "C", f"""s_lshr_b32 s60, s47, 1
    s_lshl_b32 s60, s60, 7
    s_and_b32 s61, s47, 1
    s_mul_i32 s61, s61, 7
    s_add_u32 s61, s61, s46
    s_lshl_b32 s61, s61, 3
    s_add_u32 s60, s60, s61
    s_add_u32 s60, s60, {FC}""")
    gu_dma(a, 6, "g2", vm)
    a(f"""
    s_sub_u32 s59, s59, {18*SLOT}
    s_cmp_lg_u32 s{SW}, 4
    s_cbranch_scc1 L_h4_np
    s_lshl_b32 s60, s56, 7
    s_add_u32 s60, s60, {FC}
    v_lshl_add_u32 v17, v1, 3, s60
    """)
    a.stamp(16)
    poll(a, "C", 17, 0x3fff)
    a("L_h4_np:")
    a.bar("p4P")
    a(vm.wait("g1"))
    a.bar("p4b4")
    gu_dma(a, 4, "g3", vm)
    a(vm.wait("g2"))
    a.bar("p4b10")
    gu_dma(a, 6, "g4", vm)
    a(vm.wait("g3"))
    a.bar("p4b16")
    a(vm.wait("g4"))
    a.bar("p4b20")
    if UPTO >= 5:
        a(f"""
        s_lshl_b32 s58, s46, 2
        s_mul_i32 s59, s{SW3}, {28*16*896}
        s_lshl_b32 s60, s46, 7
        s_add_u32 s59, s59, s60
        """)
        wd_dma(a, 8, "w1", vm, f"s_lshl_b32 s60, s{SW3}, 14\ns_add_u32 m0, s60, {B1}")
        a("s_waitcnt vmcnt(0)")
        vm.q = []
    a.bar("p4E")
    if UPTO >= 5:
        wd_dma(a, 10, "w2", vm, f"s_mul_i32 m0, s{SW3}, 20480")
        p5_pre(a, "h")
    a.bar("p4X")

P5_ACC, P5_A1, P5_AF, P5_B, P5_HR = 24, 56, 120, 136, 248
def p5_pre(a, tag):
    a(f"""
    s_cmp_ge_u32 s6, 28
    s_cbranch_scc1 L_p5pre_{tag}
    s_lshr_b32 s52, s{SW3}, 1              ; kq>>1
    s_and_b32 s53, s{SW3}, 1               ; kq&1
    """)
    tr128_addr(a, 4, 52, 53)
    a(f"""
    v_xor_b32 v5, 64, v4
    s_lshl_b32 s60, s{SW3}, 14
    s_add_u32 s60, s60, {B1}
    v_add_u32 v6, s60, v4
    v_add_u32 v7, s60, v5
    """)
    for p in range(8):
        for f in range(2):
            for u in range(2):
                b = P5_A1 + 8*p + 4*f + 2*u
                a(f"ds_read_b64_tr_b16 v[{b}:{b+1}], v{6+f} offset:{p*2048+u*512}")
        if p % 2 == 1: a("s_waitcnt lgkmcnt(4)")
    a(f"s_waitcnt lgkmcnt(0)\nL_p5pre_{tag}:")

def p5_main(a, tag, vmpre):
    ACC, A1, AF, B, HR = P5_ACC, P5_A1, P5_AF, P5_B, P5_HR
    vm = VM()
    a(f"""
    s_lshr_b32 s52, s{SW}, 2               ; tt_l
    s_lshl_b32 s54, s47, 1
    s_add_u32 s54, s54, s52                ; tt
    s_mul_i32 s55, s54, {112*1024}
    s_mul_i32 s60, s{SW3}, 28672
    s_add_u32 s55, s55, s60
    s_add_u32 s55, s55, {HH}
    s_lshl_b32 s63, s46, 2
    s_add_u32 s63, s63, s{SW3}
    s_mul_i32 s60, s54, 28672
    s_lshl_b32 s61, s63, 10
    s_add_u32 s60, s60, s61
    s_add_u32 s60, s60, {HF}
    buffer_load_dwordx4 {vr(HR)}, v2, {sr(SWS)}, s60 offen sc1
    s_mul_i32 s60, s{SW3}, 20480
    v_add_u32 v6, s60, v4
    v_add_u32 v7, s60, v5
    s_lshr_b32 s60, s47, 1
    s_lshl_b32 s60, s60, 7
    s_add_u32 s60, s60, {FD}
    v_lshl_add_u32 v17, v1, 3, s60
    s_mov_b32 s53, s46
    """)
    if tag == "h":
        a(f"s_cmp_lg_u32 s{SW}, 4\ns_cbranch_scc1 L_h5_np")
        a.stamp(23)
        poll(a, "D" + tag, 17, 0xffff)
        a("L_h5_np:")
    a.bar("p5P")
    a.stamp(24)
    def bgrp(g):
        a(f"s_lshl_b32 s60, s53, 12\ns_add_u32 s60, s60, s55")
        for q in range(4):
            a(f"buffer_load_dwordx4 {vr(B+16*g+4*q)}, v2, {sr(SWS)}, s60 offen offset:{q*1024} sc1")
            vm.add(f"b{4*g+q}")
        a("s_add_u32 s53, s53, 1\ns_cmp_eq_u32 s53, 7\ns_cselect_b32 s53, 0, s53")
    def rd(p):
        L = []
        if p == 18: L += ["v_add_u32 v6, 81920, v6", "v_add_u32 v7, 81920, v7"]
        off = ((p - 8) % 10) * 2048
        for f in range(2):
            for u in range(2):
                b = AF + 8*(p & 1) + 4*f + 2*u
                L.append(f"ds_read_b64_tr_b16 v[{b}:{b+1}], v{6+f} offset:{off+u*512}")
        return L
    bgrp(0); bgrp(1); bgrp(2)
    for p in range(28):
        if p % 4 == 0 and p // 4 + 3 < 7: bgrp(p // 4 + 3)
        if p == 7: a.bar("p5W")
        if 8 <= p + 1 < 28: a.emit(*rd(p + 1))
        a(vm.wait(f"b{p}"))
        if p >= 8: a(f"s_waitcnt lgkmcnt({4 if p < 27 else 0})")
        for f in range(2):
            A = vr(A1 + 8*p + 4*f) if p < 8 else vr(AF + 8*(p & 1) + 4*f)
            a(f"v_mfma_f32_32x32x16_bf16 {vr(ACC+16*f,16)}, {A}, {vr(B+4*p)}, {'0' if p==0 else vr(ACC+16*f,16)}")
    a.stamp(25)
    a.bar("p5R0")
    for j in (1, 2, 3):
        a(f"""
        s_xor_b32 s60, s{SW}, {j}
        s_mul_i32 s60, s60, 6144
        v_add_u32 v8, s60, v2
        ds_write_b128 v8, {vr(ACC+8*j)} offset:{(j-1)*2048}
        ds_write_b128 v8, {vr(ACC+8*j+4)} offset:{(j-1)*2048+1024}
        """)
    a(f"""
    s_mul_i32 s60, s{SW}, 6144
    v_add_u32 v8, s60, v2
    v_mul_u32_u24 v3, 896, v12
    v_lshl_add_u32 v3, v13, 4, v3
    s_mul_i32 s60, s54, {32*896}
    s_lshl_b32 s61, s63, 5
    s_add_u32 s60, s60, s61
    """)
    for r in range(4):
        a(f"v_lshlrev_b32 v{A1+2*r}, 16, v{HR+r}\nv_and_b32 v{A1+2*r+1}, 0xffff0000, v{HR+r}")
    for r in range(8):
        a(f"v_add_f32 v{ACC+r}, v{ACC+r}, v{A1+r}")
    a("s_waitcnt lgkmcnt(0)")
    a.bar("p5R1")
    for q in range(6):
        a(f"ds_read_b128 {vr(B+4*q)}, v8 offset:{q*1024}")
    for j in range(3):
        a(f"s_waitcnt lgkmcnt({4-2*j})")
        for r in range(8):
            a(f"v_add_f32 v{ACC+r}, v{ACC+r}, v{B+8*j+r}")
    for r in range(4):
        a(f"v_cvt_pk_bf16_f32 v{A1+r}, v{ACC+2*r}, v{ACC+2*r+1}")
    a(f"buffer_store_dwordx4 {vr(A1)}, v3, {sr(SOUT)}, s60 offen")
    a.stamp(26)

def p5_compute(a):
    a("s_cmp_ge_u32 s6, 28\ns_cbranch_scc1 L_p5_skip_c")
    p5_main(a, "c", None)
    a("L_p5_skip_c:")

def p5_helper(a, vm):
    publish(a, "D", f"s_lshl_b32 s60, s56, 7\ns_lshl_b32 s61, s57, 3\ns_add_u32 s60, s60, s61\ns_add_u32 s60, s60, {FD}")
    wd_dma(a, 10, "w3", vm, f"s_mul_i32 s60, s{SW3}, 20480\ns_add_u32 m0, s60, 81920")
    a("s_cmp_ge_u32 s6, 28\ns_cbranch_scc1 L_p5_skip_h")
    p5_main(a, "h", vm)
    a("L_p5_skip_h:")

def build(path):
    a = Asm()
    prologue(a)
    C = Role("c"); H = Role("h")
    p1_compute(C); p1_helper(H)
    vm = VM()
    p2_compute(C); p2_helper(H, vm)
    if UPTO >= 3: p3_compute(C); p3_helper(H, vm)
    if UPTO >= 4: p4_compute(C); p4_helper(H, vm)
    if UPTO >= 5: p5_compute(C); p5_helper(H, vm)
    assert C.bars == H.bars, (C.bars, H.bars)
    XV = os.environ.get("XV", "")
    if "nodot" in XV: H.lines = [l for l in H.lines if not l.startswith("v_dot2c")]
    if "nohm" in XV: H.lines = [l for l in H.lines if not l.startswith("v_mfma")]
    if "nohds" in XV: H.lines = [l for l in H.lines if not (l.startswith("ds_read_b128") or l.startswith("ds_read_b64_tr"))]
    if "notr" in XV: C.lines = [l for l in C.lines if not l.startswith("ds_read_b64_tr")]
    a.lines += H.lines
    stamp_end(a)
    a("s_endpgm\nL_compute:")
    a.lines += C.lines
    stamp_end(a)
    a("L_end:\ns_endpgm")
    gen1.kernels.clear()
    gen1.DIAG = 0
    if UPTO < 5: gen1.gen_p0()
    gen1.kernels.append((KNAME, a.finish(True), 256, 256, 102, 256, 512, 163840))
    if UPTO < 3: gen1.gen_p3()
    if UPTO < 4: gen1.gen_p4()
    if UPTO < 5: gen1.gen_p5()
    gen1.write(path)

if __name__ == "__main__":
    build(sys.argv[1] if len(sys.argv) > 1 else f"cdna_kernels/{NAME}.s")
```

```python
import sys, math, os, struct
from asmlib import Asm
import gen1
from gen1 import f2u, vr, NAME

DIAG = int(os.environ.get("DIAG", "0"))
UPTO = int(os.environ.get("UPTO", "5"))
QF  = 0x000000
KVF = 0x200000
KN  = 0x600000
FL  = 0x680000
OF  = 0x700000
HF  = 0x900000
ST  = 0xB00000
HH  = 0xC00000
TS  = 0x4000000
WS_BYTES = 0x10000000
FA, FB, FC, FD = FL, FL + 0x1000, FL + 0x2000, FL + 0x3000

SW, SW3 = 3, 4
SX, SWQ, SWO, SWS, SG, SU, SD, SOUT, SDBG = 8, 12, 16, 20, 24, 28, 32, 36, 40
NON = 44
SKV = 48
def sr(b): return f"s[{b}:{b+3}]"
POLL_MAX = 40000
PFW = int(os.environ.get('PFW', '2'))

class Role(Asm):
    def __init__(self, tag):
        super().__init__(); self.tag = tag; self.bars = []; self.nst = 0
    def bar(self, name):
        self.bars.append(name); self("s_barrier")
    def stamp(self, i):
        if DIAG:
            self(f"s_memtime s[100:101]\ns_waitcnt lgkmcnt(0)\ns_mov_b32 s{64+i}, s100")

class VM:
    def __init__(self): self.q = []
    def add(self, tag, n=1): self.q += [tag] * n
    def wait(self, tag):
        idx = [i for i, t in enumerate(self.q) if t == tag]
        if not idx: return None
        n = len(self.q) - 1 - idx[-1]
        self.q = self.q[idx[-1] + 1:]
        assert n <= 63
        return f"s_waitcnt vmcnt({n})"

DBGT = int(os.environ.get("DBGT", "0"))
def stamp_end(a):
    if DBGT:
        a(f"""
        s_mov_b64 exec, -1
        s_waitcnt vmcnt(0) lgkmcnt(0)
        s_memrealtime s[98:99]
        s_memtime s[94:95]
        s_waitcnt lgkmcnt(0)
        s_not_b32 s96, s96
        s_sub_u32 s94, s94, s100
        v_mov_b32 v0, 0
        v_mov_b32 v4, s98
        v_mov_b32 v5, s96
        v_mov_b32 v6, s94
        s_mov_b64 exec, 1
        buffer_atomic_umax v4, v0, {sr(SDBG)}, 0 offen offset:16
        buffer_atomic_umax v5, v0, {sr(SDBG)}, 0 offen offset:20
        buffer_atomic_umax v6, v0, {sr(SDBG)}, 0 offen offset:24
        """)
    if DIAG:
        a(f"""
        s_mov_b64 exec, -1
        s_waitcnt vmcnt(0) lgkmcnt(0)
        s_memtime s[100:101]
        s_memrealtime s[98:99]
        s_waitcnt lgkmcnt(0)
        s_mov_b32 s93, s100
        s_mov_b32 s94, s96
        s_mov_b32 s95, s98
        s_lshl_b32 s60, s2, 3
        s_add_u32 s60, s60, s{SW}
        s_lshl_b32 s60, s60, 7
        s_add_u32 s60, s60, {TS}
        v_mov_b32 v0, 0
        """)
        for i in range(32):
            a(f"v_mov_b32 v{4+i}, s{64+i}")
        a("s_mov_b64 exec, 1")
        for i in range(8):
            a(f"buffer_store_dwordx4 v[{4+4*i}:{7+4*i}], v0, {sr(SWS)}, s60 offen offset:{16*i}")

CODE_KB = 64
KNAME = NAME + "_kernel"
def prologue(a):
    if DBGT:
        a("s_memrealtime s[96:97]\ns_memtime s[100:101]")
    if DIAG:
        a("s_memrealtime s[96:97]\ns_memtime s[100:101]\ns_mov_b32 s84, 0\ns_mov_b32 s86, 0")
    a(f"""
    s_cmp_ge_u32 s2, 256
    s_cbranch_scc1 L_end
    s_load_dwordx16 s[64:79], s[0:1], 0
    s_load_dwordx4 s[80:83], s[0:1], 64
    s_getpc_b64 s[6:7]
    s_lshr_b32 s5, s2, 3
    s_and_b32 s5, s5, {CODE_KB//8 - 1}
    s_lshl_b32 s5, s5, 13
    v_lshl_add_u32 v1, v0, 4, s5
    v_min_u32 v1, L_end-{KNAME}-16, v1
    s_and_b32 s6, s6, 0xffffff00
    global_load_dwordx4 v[252:255], v1, s[6:7]
    v_lshrrev_b32 v1, 6, v0
    v_readfirstlane_b32 s{SW}, v1
    v_and_b32 v1, 63, v0                   ; lane
    s_and_b32 s5, s2, 7                    ; xcd
    s_lshr_b32 s6, s2, 3                   ; i
    s_and_b32 s{SW3}, s{SW}, 3
    s_lshr_b32 s52, s5, 1
    s_lshl_b32 s52, s52, 2
    s_and_b32 s53, s6, 3
    s_add_u32 s52, s52, s53                ; rb
    s_and_b32 s53, s5, 1
    s_lshl_b32 s53, s53, 3
    s_lshr_b32 s54, s6, 2
    s_add_u32 s53, s53, s54                ; cb
    s_lshl_b32 s54, s52, 2
    s_add_u32 s54, s54, s{SW3}             ; tt
    s_and_b32 s55, s53, 1
    s_lshl_b32 s55, s55, 3                 ; colshift
    s_mov_b32 s{SX+2}, {2048*896:#x}
    s_mov_b32 s{SX+3}, 0x00020000
    s_mov_b32 s{SWQ+2}, {448*2688:#x}
    s_mov_b32 s{SWQ+3}, 0x00020000
    s_cmp_lt_u32 s{SW}, 4
    s_cbranch_scc1 L_compute
    """)

def common_setup(a):
    for d, nb in ((SWO, 448*896), (SWS, WS_BYTES), (SG, 448*3584), (SU, 448*3584), (SD, 1792*896), (SOUT, 2048*896), (SDBG, 256)):
        a(f"s_mov_b32 s{d+2}, {nb:#x}\ns_mov_b32 s{d+3}, 0x00020000")
    for d, src in ((SWO, 68), (SG, 72), (SU, 74), (SD, 76), (SOUT, 78), (SDBG, 80), (SWS, 82)):
        a(f"s_mov_b64 s[{d}:{d+1}], s[{src}:{src+1}]")
    if DIAG:
        a("s_waitcnt lgkmcnt(0)")
        for i in range(0, 32, 2):
            if i in (20, 22): a(f"s_mov_b32 s{65+i}, 0")
            else: a(f"s_mov_b64 s[{64+i}:{65+i}], 0")
        a("s_mov_b32 s64, s100")
    a(f"""
    v_and_b32 v12, 31, v1                  ; t
    v_lshrrev_b32 v13, 5, v1               ; hf
    v_bfe_u32 v14, v12, 1, 3
    v_xor_b32 v14, v14, v13
    v_lshlrev_b32 v14, 4, v14
    v_lshl_add_u32 v14, v12, 7, v14
    s_lshl_b32 s61, s{SW3}, 12
    v_add_u32 v4, s61, v14
    v_xor_b32 v5, 32, v4
    v_xor_b32 v6, 64, v4
    v_xor_b32 v7, 96, v4
    v_bfe_u32 v9, v1, 4, 1                 ; ch
    v_bfe_u32 v10, v1, 2, 2                ; r
    v_lshl_add_u32 v10, v13, 3, v10        ; 8hf + r
    v_mul_u32_u24 v10, 192, v10
    v_lshl_add_u32 v10, v9, 5, v10
    v_and_b32 v11, 3, v1
    v_lshl_add_u32 v10, v11, 3, v10
    s_add_u32 s61, s55, 16384
    v_add_u32 v8, s61, v10
    v_mov_b32 v15, 0x3f803f80
    """)

AUX1 = 143360
NAHEAD = int(os.environ.get('NAHEAD', '3'))
def rebase(a, c, regs):
    d = 28672 if c % 5 else -4 * 28672
    for r in regs:
        a(f"v_add_u32 v{r}, {d & 0xffffffff:#x}, v{r}")

def p1_compute(a):
    ACC = 16; WA = 64; XF = 100
    def reads(ks):
        c, i = divmod(ks, 4)
        L = []
        if i == 0 and c > 0:
            d = 28672 if c % 5 else -4 * 28672
            L += [f"v_add_u32 v{r}, {d & 0xffffffff:#x}, v{r}" for r in (4, 5, 6, 7, 8)]
        buf = WA + 12 * (ks % 3)
        L.append(f"ds_read_b128 {vr(XF+4*(ks%3))}, v{4+i}")
        for j in range(3):
            for u in range(2):
                L.append(f"ds_read_b64_tr_b16 v[{buf+4*j+2*u}:{buf+4*j+2*u+1}], v8 offset:{i*3072+u*768+j*56}")
        return L
    p1_dma_setup(a, 2)
    common_setup(a)
    p1_issue(a)
    a.bar("p1s0")
    a.stamp(1)
    a(f"""
    s_cmp_lt_u32 s53, 10
    s_cbranch_scc1 L_p1_v0
    s_cmp_eq_u32 s53, 10
    s_cbranch_scc1 L_p1_v1
    s_branch L_p1_v2
    """)
    bars0 = list(a.bars)
    for var, isv in enumerate(((0,0,0), (0,0,1), (1,1,1))):
        a.bars = list(bars0)
        a(f"L_p1_v{var}:")
        a.emit(*reads(0)); a.emit(*reads(1))
        for ks in range(28):
            if ks % 4 == 2 and ks < 26:
                if ks == 6: a("s_waitcnt vmcnt(0)")
                a.bar(f"p1s{ks//4+1}")
            nxt = reads(ks + 2) if ks < 26 else []
            buf = WA + 12 * (ks % 3)
            a(f"s_waitcnt lgkmcnt({7 if ks < 27 else 0})")
            pre = [l for l in nxt if l.startswith("v_add")]; rd = [l for l in nxt if not l.startswith("v_add")]
            a.emit(*pre)
            for j in range(3):
                A, B = vr(buf + 4*j), vr(XF + 4*(ks % 3))
                if isv[j]: A, B = B, A
                C = "0" if ks == 0 else vr(ACC + 16*j, 16)
                a(f"v_mfma_f32_32x32x16_bf16 {vr(ACC+16*j,16)}, {A}, {B}, {C}")
                a.emit(*rd[[0,3,5][j]:[3,5,7][j]])
        if var < 2:
            a("s_branch L_p1_epi")
    QS = f2u(28 ** -0.5 * math.log2(math.e))
    a("L_p1_epi:")
    a.stamp(2)
    a.bar("p1S")
    a.stamp(3)
    MEAN, RSTD, CS, P = 64, 80, 96, 112
    a(f"""
    v_lshlrev_b32 v2, 4, v1                ; lane*16
    s_mul_i32 s57, s53, 3                  ; p
    s_lshl_b32 s56, s{SW3}, 8
    s_add_u32 s56, s56, {AUX1}
    v_lshl_add_u32 v4, v12, 2, s56
    v_lshl_add_u32 v5, v13, 4, s56
    v_lshlrev_b32 v6, 4, v13
    v_add_u32 v6, {AUX1+1024}, v6
    v_lshlrev_b32 v7, 2, v12
    v_add_u32 v7, {AUX1+1024}, v7
    ds_read_b32 v10, v4
    ds_read_b32 v11, v4 offset:128
    """)
    for q in range(4):
        a(f"ds_read_b128 {vr(MEAN+4*q)}, v5 offset:{32*q}\nds_read_b128 {vr(RSTD+4*q)}, v5 offset:{128+32*q}")
    for j in range(3):
        acc = ACC + 16*j
        a(f"""
        s_and_b32 s58, s57, 15             ; h
        s_lshl_b32 s58, s58, 6
        s_add_u32 s58, s58, s54            ; h*64+tt
        s_cmp_ge_u32 s57, 32
        s_cbranch_scc1 L_p1_e{j}_v
        """)
        for q in range(4):
            a(f"ds_read_b128 {vr(CS+4*q)}, v6 offset:{128*j+32*q}")
        a(f"""
        s_mov_b32 s59, 1.0
        s_cmp_lt_u32 s57, 16
        s_cselect_b32 s59, {QS:#x}, s59
        s_waitcnt lgkmcnt(0)
        v_mul_f32 v8, s59, v11             ; rs
        v_mul_f32 v9, v10, v8
        v_sub_f32 v9, 0, v9                ; -mean*rs
        """)
        for r in range(16):
            a(f"v_mul_f32 v{CS+r}, v{CS+r}, v9")
        for r in range(16):
            a(f"v_fma_f32 v{acc+r}, v{acc+r}, v8, v{CS+r}")
        for r in range(8):
            a(f"v_cvt_pk_bf16_f32 v{P+r}, v{acc+2*r}, v{acc+2*r+1}")
        a(f"""
        s_mov_b32 exec_lo, 0
        v_mov_b32 v{P+6}, 0
        v_mov_b32 v{P+7}, 0
        s_mov_b32 exec_lo, -1
        v_mov_b32 v8, 0
        """)
        for r in range(8):
            a(f"v_dot2c_f32_bf16 v8, v{P+r}, v{P+r}")
        a(f"""
        v_mov_b32 v9, v8
        v_permlane32_swap_b32 v8, v9
        v_add_f32 v8, v8, v9
        s_cmp_ge_u32 s57, 16
        s_cbranch_scc1 L_p1_e{j}_k
        v_sqrt_f32 v8, v8
        v_mul_f32 v8, {f2u(1.0+1.0/128):#x}, v8
        v_add_u32 v8, 0xffff, v8
        v_lshrrev_b32 v8, 16, v8
        s_mov_b32 exec_lo, 0
        v_mov_b32 v{P+6}, v8
        s_mov_b32 exec_lo, -1
        s_lshl_b32 s59, s58, 11
        s_branch L_p1_e{j}_st
L_p1_e{j}_k:
        v_max_f32_dpp v8, v8, v8 row_shr:1 row_mask:0xf bank_mask:0xf
        v_max_f32_dpp v8, v8, v8 row_shr:2 row_mask:0xf bank_mask:0xf
        v_max_f32_dpp v8, v8, v8 row_shr:4 row_mask:0xf bank_mask:0xf
        v_max_f32_dpp v8, v8, v8 row_shr:8 row_mask:0xf bank_mask:0xf
        v_max_f32_dpp v8, v8, v8 row_bcast:15 row_mask:0xa bank_mask:0xf
        s_lshl_b32 s59, s58, 2
        s_add_u32 s59, s59, {KN}
        v_mov_b32 v9, 0
        s_mov_b32 exec_hi, 0
        s_mov_b32 exec_lo, 0x80000000
        buffer_store_dword v8, v9, {sr(SWS)}, s59 offen sc1
        s_mov_b32 exec_hi, -1
        s_mov_b32 exec_lo, 0
        v_mov_b32 v{P+6}, v15
        s_mov_b32 exec_lo, -1
        s_lshl_b32 s59, s58, 12
        s_add_u32 s59, s59, {KVF}
        s_branch L_p1_e{j}_st
L_p1_e{j}_v:
        ds_read_b32 v8, v7 offset:{128*j}
        s_waitcnt lgkmcnt(0)
        """)
        for r in range(16):
            a(f"v_fma_f32 v{acc+r}, -v{MEAN+r}, v8, v{acc+r}")
        for r in range(16):
            a(f"v_mul_f32 v{acc+r}, v{acc+r}, v{RSTD+r}")
        for r in range(8):
            a(f"v_cvt_pk_bf16_f32 v{P+r}, v{acc+2*r}, v{acc+2*r+1}")
        a(f"""
        s_lshl_b32 s59, s58, 12
        s_add_u32 s59, s59, {KVF+2048}
        s_mov_b32 exec_lo, 0x10000000
        s_mov_b32 exec_hi, 0x10000000
        """)
        for r in range(8):
            a(f"v_mov_b32 v{P+r}, v15")
        a("s_mov_b32 exec_lo, 0xe0000000\ns_mov_b32 exec_hi, 0xe0000000")
        for r in range(8):
            a(f"v_mov_b32 v{P+r}, 0")
        a(f"""
        s_mov_b64 exec, -1
L_p1_e{j}_st:
        buffer_store_dwordx4 {vr(P)}, v2, {sr(SWS)}, s59 offen sc1
        buffer_store_dwordx4 {vr(P+4)}, v2, {sr(SWS)}, s59 offen offset:1024 sc1
        s_add_u32 s57, s57, 1
        """)
        P += 8
    a.stamp(4)
    a("s_waitcnt vmcnt(0)")
    a.stamp(5)
    a.bar("p1X")

def p1_dma_setup(a, first):
    a(f"""
    v_lshrrev_b32 v2, 3, v1
    v_mul_u32_u24 v2, 896, v2
    v_lshrrev_b32 v3, 4, v1
    v_and_b32 v9, 7, v1
    v_xor_b32 v3, v3, v9
    v_lshl_add_u32 v2, v3, 4, v2
    v_xor_b32 v3, 64, v2
    s_mul_i32 s56, s54, {32*896}
    s_lshl_b32 s57, s{SW3}, 12
    """)
    for u in range(3):
        a(f"""
        v_add_u32 v9, {64*u}, v1
        v_mul_u32_u24 v10, 43691, v9
        v_lshrrev_b32 v10, 19, v10
        v_mul_u32_u24 v11, 12, v10
        v_sub_u32 v11, v9, v11
        v_min_u32 v11, 10, v11
        v_mul_u32_u24 v10, 2688, v10
        v_lshl_add_u32 v{16+u}, v11, 4, v10
        """)
    a(f"""
    s_mul_i32 s58, s53, 168
    s_sub_u32 s58, s58, s55
    s_mul_i32 s59, s{SW3}, {16*2688}
    s_add_u32 s58, s58, s59
    s_mul_i32 s59, s{SW3}, 3072
    s_add_u32 s59, s59, 16384
    s_add_u32 s60, s6, {first}
    s_mul_i32 s46, s60, 9363
    s_lshr_b32 s46, s46, 16
    s_mul_i32 s46, s46, 7
    s_sub_u32 s46, s60, s46
    s_mov_b32 s47, {first*28672}
    s_waitcnt lgkmcnt(0)
    s_mov_b64 s[{SX}:{SX+1}], s[64:65]
    s_mov_b64 s[{SWQ}:{SWQ+1}], s[66:67]
    """)

def p1_adv(a):
    a(f"""
    s_add_u32 s46, s46, 1
    s_cmp_eq_u32 s46, 7
    s_cselect_b32 s46, 0, s46
    s_add_u32 s47, s47, 28672
    s_cmp_eq_u32 s47, {5*28672}
    s_cselect_b32 s47, 0, s47
    """)

def p1_issue(a):
    a(f"""
    s_lshl_b32 s60, s46, 7
    s_add_u32 s60, s60, s56
    s_add_u32 m0, s57, s47
    s_mul_i32 s61, s46, {4*16*2688}
    """)
    for q in range(4):
        a(f"buffer_load_dwordx4 v{2+(q&1)}, {sr(SX)}, s60 offen lds")
        if q < 3: a("s_add_u32 m0, m0, 1024\ns_add_u32 s60, s60, 7168")
    a(f"s_add_u32 m0, s59, s47\ns_add_u32 s61, s61, s58")
    for u in range(3):
        a(f"buffer_load_dwordx4 v{16+u}, {sr(SWQ)}, s61 offen lds")
        if u < 2: a("s_add_u32 m0, m0, 1024")
    p1_adv(a)

def p1_helper(a):
    XF = 96; CSA = 64; G = 68; SM = 76; SEL = 84; ONES = 88
    vm = VM()
    p1_dma_setup(a, 0)
    a("L_h1_il:")
    p1_issue(a)
    a(f"s_cmp_lt_u32 s47, {2*28672}\ns_cbranch_scc1 L_h1_il")
    p1_adv(a)
    vm.add("s0", 7); vm.add("s1", 7)
    common_setup(a)
    a.stamp(1)
    a(f"""
    s_cmp_lg_u32 s{SW}, 4
    s_cbranch_scc1 L_h_nononce
    s_cmp_lg_u32 s2, 0
    s_cbranch_scc1 L_h_nononce
    s_memrealtime s[{NON}:{NON+1}]
    s_waitcnt lgkmcnt(0)
    s_or_b32 s{NON+1}, s{NON+1}, 0x80000000
    v_mov_b32 v10, s{NON}
    v_mov_b32 v11, s{NON+1}
    v_mov_b32 v9, 0
    s_mov_b64 exec, 1
    buffer_store_dwordx2 v[10:11], v9, {sr(SDBG)}, 0 offen sc1
    s_mov_b64 exec, -1
L_h_nononce:
    s_mul_i32 s60, s{SW3}, 56
    v_add_u32 v8, s60, v8
    v_and_b32 v9, 15, v1
    v_lshrrev_b32 v10, 1, v9
    v_lshrrev_b32 v11, 4, v1
    v_xor_b32 v10, v10, v11
    v_lshlrev_b32 v10, 4, v10
    v_lshl_add_u32 v10, v9, 7, v10
    v_add_u32 v4, s57, v10
    v_xor_b32 v5, 64, v4
    """)
    for r in range(4):
        a(f"v_mov_b32 v{SEL+r}, 0\nv_mov_b32 v{ONES+r}, v15")
    a("s_mov_b32 exec_lo, 0x00020001\ns_mov_b32 exec_hi, 0x00020001")
    for r in range(4):
        a(f"v_mov_b32 v{SEL+r}, v15")
    a(f"s_mov_b64 exec, -1\ns_and_b32 s63, s{SW}, 1")
    def work(c):
        xf = XF + 32 * (c & 1); wf = xf + 16
        for i in range(4):
            th, kh = i & 1, i >> 1
            z = (c == 0 and kh == 0)
            a(f"v_mfma_f32_16x16x32_bf16 {vr(G+4*th)}, {vr(xf+4*i)}, {vr(xf+4*i)}, {'0' if z else vr(G+4*th)}")
            a(f"v_mfma_f32_16x16x32_bf16 {vr(SM+4*th)}, {vr(ONES)}, {vr(xf+4*i)}, {'0' if z else vr(SM+4*th)}")
            a(f"v_mfma_f32_16x16x32_bf16 {vr(CSA)}, {vr(SEL)}, {vr(wf+4*i)}, {'0' if c==0 and i==0 else vr(CSA)}")
    for c in range(7):
        w = vm.wait(f"s{c}")
        if w: a(w)
        a("s_waitcnt lgkmcnt(0)")
        if c in (0, 3, 6): a.stamp(2 + c // 3)
        a.bar(f"p1s{c}")
        if c > 0: rebase(a, c, (4, 5, 8))
        xf = XF + 32 * (c & 1); wf = xf + 16
        for i in range(4):
            a(f"ds_read_b128 {vr(xf+4*i)}, v{4+(i>>1)} offset:{(i&1)*2048}")
        for i in range(4):
            for u in range(2):
                a(f"ds_read_b64_tr_b16 v[{wf+4*i+2*u}:{wf+4*i+2*u+1}], v8 offset:{i*3072+u*768}")
        n = c + 3
        if n <= 6:
            a(f"s_cmp_lg_u32 s63, 0\ns_cbranch_scc1 L_h1_a{c}")
            p1_issue(a)
            a(f"L_h1_a{c}:")
        if c > 0: work(c - 1)
        if n <= 6:
            a(f"s_cmp_eq_u32 s63, 0\ns_cbranch_scc1 L_h1_b{c}")
            p1_issue(a)
            a(f"L_h1_b{c}:")
            vm.add(f"s{n}", 7)
    a("s_waitcnt lgkmcnt(0)")
    work(6)
    a(f"""
    s_lshl_b32 s60, s{SW3}, 8
    s_add_u32 s60, s60, {AUX1}
    v_lshl_add_u32 v9, v9, 2, s60
    s_lshl_b32 s60, s{SW3}, 7
    s_add_u32 s60, s60, {AUX1+1024}
    v_lshl_add_u32 v10, v12, 2, s60
    """)
    for r in range(1, 4):
        m = sum(1 << (20*g + r) for g in range(4))
        a(f"s_mov_b32 exec_lo, {m & 0xffffffff:#x}\ns_mov_b32 exec_hi, {m >> 32:#x}")
        a(f"v_mov_b32 v{G}, v{G+r}\nv_mov_b32 v{G+4}, v{G+4+r}")
    m = sum(15 << (20*g) for g in range(4))
    a(f"s_mov_b32 exec_lo, {m & 0xffffffff:#x}\ns_mov_b32 exec_hi, {m >> 32:#x}")
    for th in range(2):
        mn, sq = SM + 4*th, G + 4*th
        a(f"""
        v_mul_f32 v{mn}, {f2u(1.0/448):#x}, v{mn}
        v_mul_f32 v{sq}, {f2u(1.0/448):#x}, v{sq}
        v_fma_f32 v{sq}, -v{mn}, v{mn}, v{sq}
        v_max_f32 v{sq}, 0, v{sq}
        v_add_f32 v{sq}, {f2u(1e-5):#x}, v{sq}
        v_rsq_f32 v{sq}, v{sq}
        ds_write_b32 v9, v{mn} offset:{64*th}
        s_nop 0
        ds_write_b32 v9, v{sq} offset:{128+64*th}
        """)
    a(f"""
    s_mov_b64 exec, 0xffff
    ds_write_b32 v10, v{CSA}
    ds_write_b32 v10, v{CSA+1} offset:64
    s_mov_b64 exec, -1
    s_waitcnt lgkmcnt(0)
    """)
    a.bar("p1S")
    get_nonce(a, "h")
    a.bar("p1X")

def get_nonce(a, tag):
    a(f"""
    v_mov_b32 v9, 0
    s_mov_b32 s60, 0
L_{tag}_nl:
    buffer_load_dwordx2 v[10:11], v9, {sr(SDBG)}, 0 offen sc1
    s_add_u32 s60, s60, 1
    s_waitcnt vmcnt(0)
    v_readfirstlane_b32 s{NON}, v10
    v_readfirstlane_b32 s{NON+1}, v11
    s_cmp_gt_u32 s60, {POLL_MAX}
    s_cbranch_scc1 L_{tag}_gotnonce
    s_cmp_eq_u32 s{NON+1}, 0
    s_cbranch_scc1 L_{tag}_nl
L_{tag}_gotnonce:
    """)

def publish(a, tag, soff_code):
    a(f"""
    s_cmp_lg_u32 s{SW}, 4
    s_cbranch_scc1 L_pub_{tag}
    {soff_code}
    v_mov_b32 v10, s{NON}
    v_mov_b32 v11, s{NON+1}
    v_mov_b32 v9, 0
    s_mov_b64 exec, 1
    buffer_store_dwordx2 v[10:11], v9, {sr(SWS)}, s60 offen sc1
    s_mov_b64 exec, -1
L_pub_{tag}:
    """)

def poll(a, tag, vaddr, mask_lo, mask_hi=0):
    a(f"""
    s_mov_b32 exec_lo, {mask_lo:#x}
    s_mov_b32 exec_hi, {mask_hi:#x}
    s_mov_b32 s60, 0
L_poll_{tag}:
    buffer_load_dwordx2 v[10:11], v{vaddr}, {sr(SWS)}, 0 offen sc1
    s_add_u32 s60, s60, 1
    s_waitcnt vmcnt(0)
    v_cmp_ne_u64 vcc, s[{NON}:{NON+1}], v[10:11]
    s_cmp_gt_u32 s60, {POLL_MAX}
    s_cbranch_scc1 L_polld_{tag}
    s_cbranch_vccnz L_poll_{tag}
L_polld_{tag}:
    s_mov_b64 exec, -1
    """)

RREG = 106496
AUX2 = RREG + 49152 + 64
WOREG = 49152
SLOT = 8736
def p2_ids(a):
    a(f"""
    s_and_b32 s52, s2, 15                  ; h
    s_lshr_b32 s53, s2, 4                  ; qb
    """)

def p2_compute(a):
    Q = 16; O = 48; S = [112, 128]; P = 144; KV = 152
    p2_ids(a)
    a(f"""
    s_lshl_b32 s54, s52, 6                 ; h*64
    s_lshl_b32 s55, s{SW3}, 4
    s_add_u32 s55, s55, s54
    s_lshl_b32 s55, s55, 12
    s_add_u32 s55, s55, {KVF}
    s_add_u32 s{SKV}, s{SWS}, s55
    s_addc_u32 s{SKV+1}, s{SWS+1}, 0
    s_mov_b32 s{SKV+2}, 65536
    s_mov_b32 s{SKV+3}, 0x00020000
    s_lshl_b32 s55, s53, 2
    s_add_u32 s55, s55, s54                ; h*64 + qb*4
    s_lshl_b32 s56, s52, 8
    s_add_u32 s56, s56, {KN}
    v_lshlrev_b32 v3, 2, v1
    s_mov_b32 s62, 0                       ; pass
    """)
    a.bar("p2P")
    a.stamp(6)
    a(f"buffer_load_dword v5, v3, {sr(SWS)}, s56 offen sc1")
    for j in range(4):
        a(f"""
        s_add_u32 s57, s{SW3}, {j}
        s_and_b32 s57, s57, 3
        s_add_u32 s57, s57, s55
        s_lshl_b32 s57, s57, 11
        buffer_load_dwordx4 {vr(Q+8*j)}, v2, {sr(SWS)}, s57 offen sc1
        buffer_load_dwordx4 {vr(Q+8*j+4)}, v2, {sr(SWS)}, s57 offen offset:1024 sc1
        """)
    a("L_p2_restart:")
    for t in range(13):
        kt, f = divmod(t, 4)
        if f == 0: a(f"s_mov_b32 s57, {kt*4096}")
        a(f"buffer_load_dwordx4 {vr(KV+16*kt+4*f)}, v2, {sr(SKV)}, s57 offen offset:{f*1024} sc1")
    for r in range(64):
        a(f"v_mov_b32 v{O+r}, 0")
    for r in range(4):
        a(f"v_mov_b32 v{P+4+r}, 0\nv_mov_b32 v{KV+48+12+r}, 0")
    a(f"""
    s_cmp_lg_u32 s62, 0
    s_cbranch_scc1 L_p2_havem
    s_waitcnt vmcnt(13)
    v_max_f32_dpp v5, v5, v5 row_shr:1 row_mask:0xf bank_mask:0xf
    v_max_f32_dpp v5, v5, v5 row_shr:2 row_mask:0xf bank_mask:0xf
    v_max_f32_dpp v5, v5, v5 row_shr:4 row_mask:0xf bank_mask:0xf
    v_max_f32_dpp v5, v5, v5 row_shr:8 row_mask:0xf bank_mask:0xf
    v_max_f32_dpp v5, v5, v5 row_bcast:15 row_mask:0xa bank_mask:0xf
    v_max_f32_dpp v5, v5, v5 row_bcast:31 row_mask:0xc bank_mask:0xf
    v_sqrt_f32 v5, v5
    v_mul_f32 v5, {f2u(1.0+1.0/128):#x}, v5
    v_readlane_b32 s58, v5, 63
    s_mov_b32 exec_lo, 0
    """)
    for j in range(4):
        a(f"""
        v_lshlrev_b32 v6, 16, v{Q+8*j+6}
        v_mul_f32 v6, s58, v6
        v_add_u32 v6, 0x8000ffff, v6
        v_lshrrev_b32 v{Q+8*j+6}, 16, v6
        """)
    a("s_mov_b32 exec_lo, -1")
    a.bar("p2Y")
    a(f"""
L_p2_havem:
    s_waitcnt vmcnt(9)
    v_mfma_f32_32x32x16_bf16 {vr(S[0],16)}, {vr(KV)}, {vr(Q)}, 0
    v_mfma_f32_32x32x16_bf16 {vr(S[0],16)}, {vr(KV+4)}, {vr(Q+4)}, {vr(S[0],16)}
    s_mov_b32 s59, 0
    """)
    a.stamp(7)
    a("L_p2_loop:")
    for u in range(16):
        kt, qi = divmod(u, 4)
        ktn, qn = divmod((u + 1) % 16, 4)
        ktp, qp = divmod((u - 1) % 16, 4)
        Sc, Sn = S[u & 1], S[(u + 1) & 1]
        e = lambda r: f"v_exp_f32 v{Sc+r}, v{Sc+r}"
        c = lambda r: f"v_cvt_pk_bf16_f32 v{P+r}, v{Sc+2*r}, v{Sc+2*r+1}"
        A = f"v_mfma_f32_32x32x16_bf16 {vr(Sn,16)}, {vr(KV+16*ktn)}, {vr(Q+8*qn)}, 0"
        B = f"v_mfma_f32_32x32x16_bf16 {vr(O+16*qp,16)}, {vr(KV+16*ktp+12)}, {vr(P+4)}, {vr(O+16*qp,16)}"
        C = f"v_mfma_f32_32x32x16_bf16 {vr(Sn,16)}, {vr(KV+16*ktn+4)}, {vr(Q+8*qn+4)}, {vr(Sn,16)}"
        D = f"v_mfma_f32_32x32x16_bf16 {vr(O+16*qi,16)}, {vr(KV+16*kt+8)}, {vr(P)}, {vr(O+16*qi,16)}"
        if qi == 3: lb, lf = kt, 0
        else: lb, lf = (kt - 1) % 4, qi + 1
        L = f"buffer_load_dwordx4 {vr(KV+16*lb+4*lf)}, v2, {sr(SKV)}, s57 offen offset:{lf*1024} sc1"
        if qi == 3: a("s_waitcnt vmcnt(8)")
        a.emit(A, e(0), e(1), e(2), e(3), c(0), c(1), B, e(4), e(5), e(6), e(7), c(2), c(3), C, L)
        a.emit(e(8), e(9), e(10), e(11), c(4), c(5), D, e(12), e(13), e(14), e(15), c(6), c(7))
        if qi == 2: a("s_add_u32 s57, s57, 4096")
    a(f"""
    s_add_u32 s59, s59, 1
    s_cmp_lt_u32 s59, 4
    s_cbranch_scc1 L_p2_loop
    v_mfma_f32_32x32x16_bf16 {vr(O+48,16)}, {vr(KV+48+12)}, {vr(P+4)}, {vr(O+48,16)}
    """)
    a.stamp(8)
    for j in (1, 2, 3):
        a(f"""
        s_add_u32 s57, s{SW3}, {j}
        s_and_b32 s57, s57, 3
        s_mul_i32 s57, s57, 12288
        s_add_u32 s57, s57, {RREG + (j-1)*4096}
        v_add_u32 v6, s57, v2
        """)
        for q in range(4):
            a(f"ds_write_b128 v6, {vr(O+16*j+4*q)} offset:{q*1024}")
    a(f"""
    s_mul_i32 s57, s{SW3}, 12288
    s_add_u32 s57, s57, {RREG}
    v_add_u32 v6, s57, v2
    v_mov_b32 v9, {AUX2}
    s_waitcnt lgkmcnt(0)
    """)
    a.bar("p2R1")
    a.stamp(9)
    for q in range(12):
        a(f"ds_read_b128 {vr(O+16+4*q)}, v6 offset:{q*1024}")
    for j in range(3):
        a(f"s_waitcnt lgkmcnt({8-4*j})")
        for r in range(16):
            a(f"v_add_f32 v{O+r}, v{O+r}, v{O+16+16*j+r}")
    a(f"""
    v_mov_b32 v10, v{O+12}
    v_mov_b32 v11, v{O+12}
    v_permlane32_swap_b32 v10, v11          ; v11 = l
    v_mov_b32 v10, 0x1f800000
    v_cmp_nge_f32 vcc, v11, v10
    v_rcp_f32 v11, v11
    s_cmp_eq_u64 vcc, 0
    s_cbranch_scc1 L_p2_ok
    v_mov_b32 v10, 1
    ds_write_b32 v9, v10
L_p2_ok:
    """)
    for r in range(16):
        a(f"v_mul_f32 v{O+r}, v{O+r}, v11")
    for r in range(8):
        a(f"v_cvt_pk_bf16_f32 v{P+r}, v{O+2*r}, v{O+2*r+1}")
    a(f"""
    s_mul_i32 s57, s52, 7
    v_add_u32 v10, s57, v13                ; p0 = 7h + hf
    s_lshl_b32 s57, s53, 2
    s_add_u32 s57, s57, s{SW3}
    s_mul_i32 s57, s57, 28672
    s_add_u32 s57, s57, {OF}
    """)
    for i in range(4):
        a(f"""
        v_add_u32 v14, {2*i}, v10
        v_lshrrev_b32 v11, 1, v14
        v_lshlrev_b32 v11, 9, v11
        v_and_b32 v14, 1, v14
        v_lshl_add_u32 v11, v14, 3, v11
        v_lshl_add_u32 v11, v12, 4, v11
        """)
        if i == 3: a("s_mov_b32 exec_hi, 0")
        a(f"buffer_store_dwordx2 v[{P+2*i}:{P+2*i+1}], v11, {sr(SWS)}, s57 offen sc1")
    a("s_mov_b32 exec_hi, -1")
    a.stamp(10)
    a("s_waitcnt vmcnt(0) lgkmcnt(0)")
    a.bar("p2R2")
    a(f"""
    s_cmp_lg_u32 s62, 0
    s_cbranch_scc1 L_p2_done
    ds_read_b32 v10, v9
    s_waitcnt lgkmcnt(0)
    v_readfirstlane_b32 s57, v10
    s_cmp_eq_u32 s57, 0
    s_cbranch_scc1 L_p2_done
    s_mov_b32 s62, 1
    s_mov_b32 exec_lo, 0
    """)
    for j in range(4):
        a(f"v_mov_b32 v{Q+8*j+6}, 0")
    a("s_mov_b32 exec_lo, -1")
    for j in range(4):
        a(f"v_mov_b32 v{O+j}, 0xff800000")
    a(f"""
    s_mov_b32 s57, 0
L_p2_mx:
    buffer_load_dwordx4 {vr(KV)}, v2, {sr(SKV)}, s57 offen sc1
    buffer_load_dwordx4 {vr(KV+4)}, v2, {sr(SKV)}, s57 offen offset:1024 sc1
    s_waitcnt vmcnt(0)
    """)
    for j in range(4):
        a(f"""
        v_mfma_f32_32x32x16_bf16 {vr(S[0],16)}, {vr(KV)}, {vr(Q+8*j)}, 0
        v_mfma_f32_32x32x16_bf16 {vr(S[0],16)}, {vr(KV+4)}, {vr(Q+8*j+4)}, {vr(S[0],16)}
        """)
        for r in range(8):
            a(f"v_max3_f32 v{O+j}, v{S[0]+2*r}, v{S[0]+2*r+1}, v{O+j}")
    a(f"""
    s_add_u32 s57, s57, 4096
    s_cmp_lt_u32 s57, 65536
    s_cbranch_scc1 L_p2_mx
    """)
    for j in range(4):
        a(f"""
        v_mov_b32 v10, v{O+j}
        v_permlane32_swap_b32 v{O+j}, v10
        v_max_f32 v{O+j}, v{O+j}, v10
        s_add_u32 s57, s{SW3}, {j}
        s_and_b32 s57, s57, 3
        s_lshl_b32 s57, s57, 10
        s_add_u32 s57, s57, {RREG}
        v_add_u32 v{O+8+j}, s57, v3
        s_lshl_b32 s58, s{SW3}, 8
        v_add_u32 v10, s58, v{O+8+j}
        ds_write_b32 v10, v{O+j}
        """)
    a("s_waitcnt lgkmcnt(0)\ns_barrier")
    for j in range(4):
        for w in range(4):
            a(f"ds_read_b32 v{O+16+4*j+w}, v{O+8+j} offset:{256*w}")
    a("s_waitcnt lgkmcnt(0)")
    for j in range(4):
        b = O + 16 + 4*j
        a(f"""
        v_max3_f32 v10, v{b}, v{b+1}, v{b+2}
        v_max_f32 v10, v10, v{b+3}
        v_sub_f32 v10, 0, v10
        v_and_b32 v11, 0xffff0000, v10
        v_sub_f32 v14, v10, v11
        v_cvt_pk_bf16_f32 v10, v11, v14
        s_mov_b32 exec_lo, 0
        v_mov_b32 v{Q+8*j+6}, v10
        s_mov_b32 exec_lo, -1
        """)
    a("s_barrier\ns_branch L_p2_restart\nL_p2_done:")
    a.stamp(11)

def late_ids(a):
    a(f"""
    s_lshl_b32 s47, s5, 2
    s_and_b32 s46, s6, 3
    s_add_u32 s47, s47, s46                ; tb
    s_lshr_b32 s46, s6, 2                  ; fb
    s_and_b32 s56, s5, 1
    s_lshl_b32 s56, s56, 3
    s_and_b32 s57, s6, 7
    s_add_u32 s56, s56, s57                ; rb
    s_lshr_b32 s57, s5, 1
    s_lshl_b32 s57, s57, 2
    s_lshr_b32 s60, s6, 3
    s_add_u32 s57, s57, s60                ; cb
    """)

def gu_dma(a, n, tag, vm):
    a(f"""
    s_mov_b32 s61, 0
L_gu_{tag}:
    s_mov_b32 m0, s59
    s_add_u32 s59, s59, {SLOT}
    buffer_load_dwordx4 v20, {sr(SG)}, s58 offen lds
    s_add_u32 m0, m0, 4384
    s_add_u32 s63, s63, 1
    buffer_load_dwordx4 v20, {sr(SU)}, s58 offen lds
    s_add_u32 s58, s58, {16*3584}
    s_cmp_lt_u32 s63, 28
    s_cbranch_scc1 L_gu_{tag}_n
    s_mov_b32 s63, 0
    s_sub_u32 s58, s58, {28*16*3584}
L_gu_{tag}_n:
    s_add_u32 s61, s61, 1
    s_cmp_lt_u32 s61, {n}
    s_cbranch_scc1 L_gu_{tag}
    """)
    vm.add(tag, 2 * n)

def rot4(a, dst):
    a(f"""
    s_lshr_b32 s60, s6, 3
    s_lshl_b32 s60, s60, 1
    s_add_u32 s60, s60, s6
    s_and_b32 s60, s60, 7
    s_mul_i32 s{dst}, s60, 7
    s_lshr_b32 s{dst}, s{dst}, 1
    """)

def p2_helper(a, vm):
    publish(a, "A", f"s_lshl_b32 s60, s53, 7\ns_lshl_b32 s61, s52, 3\ns_add_u32 s60, s60, s61\ns_add_u32 s60, s60, {FA}")
    p2_ids(a)
    a(f"s_cmp_lg_u32 s{SW}, 4\ns_cbranch_scc1 L_h2_np")
    a(f"""
    s_add_u32 s60, s52, 16
    s_mul_i32 s60, s60, 43691
    s_lshr_b32 s60, s60, 17                ; cbK
    s_add_u32 s61, s52, 32
    s_mul_i32 s61, s61, 43691
    s_lshr_b32 s61, s61, 17                ; cbV
    s_mul_i32 s63, s52, 43691
    s_lshr_b32 s63, s63, 17                ; cbQ
    s_lshl_b32 s60, s60, 7
    s_lshl_b32 s61, s61, 7
    s_lshl_b32 s63, s63, 7
    s_lshl_b32 s59, s53, 3
    s_add_u32 s63, s63, s59
    v_and_b32 v16, 15, v1
    v_lshlrev_b32 v16, 3, v16
    v_add_u32 v17, s60, v16
    s_mov_b32 exec_lo, 0xffff0000
    v_add_u32 v17, s61, v16
    s_mov_b32 exec_lo, 0
    v_mov_b32 v17, s63
    s_mov_b32 exec_lo, -1
    v_add_u32 v17, {FA}, v17
    """)
    poll(a, "A", 17, 0xffffffff, 1)
    a("L_h2_np:")
    a.bar("p2P")
    late_ids(a)
    a(f"""
    v_mov_b32 v19, {AUX2}
    v_mov_b32 v10, 0
    ds_write_b32 v19, v10
    s_mov_b32 s62, 0
    v_lshlrev_b32 v2, 4, v1
    v_lshrrev_b32 v9, 3, v1
    v_mul_u32_u24 v9, 896, v9
    v_bfe_u32 v10, v1, 4, 1
    v_lshlrev_b32 v10, 2, v10
    v_and_b32 v11, 7, v1
    v_xor_b32 v10, v10, v11
    v_lshl_add_u32 v21, v10, 4, v9
    v_lshrrev_b32 v9, 4, v1
    v_mul_u32_u24 v9, {4*3584}, v9
    v_and_b32 v10, 15, v1
    v_lshl_add_u32 v20, v10, 4, v9
    """)
    a.bar("p2Y")
    if UPTO >= 5:
        a(f"""
        s_cmp_ge_u32 s6, 28
        s_cbranch_scc1 L_h2_nowd
        s_and_b32 s58, s6, 3
        s_lshl_b32 s58, s58, 2
        s_add_u32 s58, s58, s{SW3}
        s_mul_i32 s58, s58, {14*8*896}
        s_lshl_b32 s59, s46, 7
        s_add_u32 s58, s58, s59
        s_mov_b32 s61, 0
L_h2_wd:
        buffer_load_dwordx4 v[24:27], v21, {sr(SD)}, s58 offen
        s_add_u32 s58, s58, {8*896}
        s_add_u32 s61, s61, 1
        s_waitcnt vmcnt({PFW})
        s_cmp_lt_u32 s61, 14
        s_cbranch_scc1 L_h2_wd
L_h2_nowd:
        """)
    if UPTO >= 3:
        a(f"""
        s_cmp_ge_u32 s6, 28
        s_cbranch_scc1 L_h2_nowo
        s_mul_i32 s58, s{SW3}, {14*8*896}
        s_lshl_b32 s59, s46, 7
        s_add_u32 s58, s58, s59
        s_mul_i32 s59, s{SW3}, 14336
        s_add_u32 m0, s59, {WOREG}
        s_mov_b32 s61, 0
L_h2_wo:
        buffer_load_dwordx4 v21, {sr(SWO)}, s58 offen lds
        s_add_u32 m0, m0, 1024
        s_add_u32 s58, s58, {8*896}
        s_add_u32 s61, s61, 1
        s_waitcnt vmcnt({PFW})
        s_cmp_lt_u32 s61, 14
        s_cbranch_scc1 L_h2_wo
L_h2_nowo:
        """)
    if UPTO >= 4:
        rot4(a, 63)
        a(f"""
        s_lshl_b32 s58, s63, 4
        s_add_u32 s58, s58, s{SW3}
        s_mul_i32 s58, s58, 3584
        s_mul_i32 s59, s57, 224
        s_and_b32 s59, s59, 0xffffffc0
        s_add_u32 s58, s58, s59
        s_mul_i32 s59, s{SW3}, 1088
        """)
        gu_dma(a, 5, "g0", vm)
        a.stamp(7)
    a("s_waitcnt vmcnt(0) lgkmcnt(0)")
    vm.q = []
    a("L_h2_again:")
    a.bar("p2R1")
    a.bar("p2R2")
    a(f"""
    s_cmp_lg_u32 s62, 0
    s_cbranch_scc1 L_h2_done
    ds_read_b32 v10, v19
    s_waitcnt lgkmcnt(0)
    v_readfirstlane_b32 s60, v10
    s_cmp_eq_u32 s60, 0
    s_cbranch_scc1 L_h2_done
    s_mov_b32 s62, 1
    s_barrier
    s_barrier
    s_branch L_h2_again
L_h2_done:
    """)

def tr128_addr(a, dst, sft, sxh):
    a(f"""
    v_bfe_u32 v9, v1, 2, 2                 ; r
    v_lshl_add_u32 v10, v13, 3, v9         ; 8hf + r
    v_lshlrev_b32 v10, 7, v10
    v_lshrrev_b32 v9, 1, v9
    v_xor_b32 v9, s{sft}, v9
    v_lshl_add_u32 v10, v9, 6, v10         ; half ^ (r>>1)
    v_bfe_u32 v9, v1, 4, 1                 ; ch
    {f"v_xor_b32 v9, s{sxh}, v9" if sxh else ""}
    v_lshl_add_u32 v10, v9, 5, v10
    v_and_b32 v9, 1, v1
    v_lshl_add_u32 v10, v9, 4, v10
    v_bfe_u32 v9, v1, 1, 1
    v_lshl_add_u32 v{dst}, v9, 3, v10
    """)

def p3_compute(a):
    ACC = 16; AF = 64; BF = 32; XR = 176; T = 184
    late_ids(a)
    a(f"""
    s_cmp_ge_u32 s6, 28
    s_cbranch_scc1 L_p3_skipA
    s_and_b32 s52, s{SW3}, 1               ; tt_l
    s_lshr_b32 s53, s{SW3}, 1              ; ft_l
    s_lshl_b32 s54, s47, 1
    s_add_u32 s54, s54, s52                ; tt
    s_lshl_b32 s55, s46, 1
    s_add_u32 s55, s55, s53                ; ft
    v_mul_u32_u24 v3, 896, v12
    v_lshl_add_u32 v3, v13, 4, v3
    s_mul_i32 s60, s54, {32*896}
    s_lshl_b32 s61, s55, 6
    s_add_u32 s60, s60, s61
    buffer_load_dwordx4 {vr(XR)}, v3, {sr(SX)}, s60 offen
    buffer_load_dwordx4 {vr(XR+4)}, v3, {sr(SX)}, s60 offen offset:32
    """)
    tr128_addr(a, 4, 53, None)
    a(f"""
    s_lshl_b32 s60, s46, 13
    s_add_u32 s60, s60, {WOREG}
    v_add_u32 v4, s60, v4
    s_mul_i32 s60, s52, 28672
    s_add_u32 s60, s60, {RREG}
    v_add_u32 v5, s60, v2
    """)
    for g in range(7):
        if g > 0:
            a(f"""
            s_add_u32 s60, s46, {g}
            s_cmp_eq_u32 s60, 7
            s_cselect_b32 s60, {(8192 - 57344) & 0xffffffff:#x}, 8192
            v_add_u32 v4, s60, v4
            """.replace("s_cselect_b32 s60, 0xffff4000, 8192", "s_mov_b32 s60, 8192\ns_cselect_b32 s60, 0xffff4000, s60"))
        for q in range(4):
            for u in range(2):
                b = AF + 16*g + 4*q + 2*u
                a(f"ds_read_b64_tr_b16 v[{b}:{b+1}], v4 offset:{q*2048+u*512}")
        a("s_waitcnt lgkmcnt(4)")
    a("s_waitcnt lgkmcnt(0)\nL_p3_skipA:")
    a.bar("p3A")
    a.stamp(12)
    a("s_cmp_ge_u32 s6, 28\ns_cbranch_scc1 L_p3_skipB")
    a.bar("p3P")
    for st in range(4):
        a.bar(f"p3s{st}")
        if st == 0: a.stamp(13)
        for q in range(7):
            a(f"ds_read_b128 {vr(BF+4*q)}, v5 offset:{(7*st+q)*1024}")
        for q in range(7):
            p = 7*st + q
            a(f"s_waitcnt lgkmcnt({6-q})")
            a(f"v_mfma_f32_32x32x16_bf16 {vr(ACC,16)}, {vr(AF+4*p)}, {vr(BF+4*q)}, {'0' if p==0 else vr(ACC,16)}")
    a.stamp(14)
    a("s_waitcnt vmcnt(0)")
    for r in range(8):
        a(f"v_lshlrev_b32 v{T+2*r}, 16, v{XR+r}\nv_and_b32 v{T+2*r+1}, 0xffff0000, v{XR+r}")
    for r in range(16):
        a(f"v_add_f32 v{ACC+r}, v{ACC+r}, v{T+r}")
    for r in range(8):
        a(f"v_cvt_pk_bf16_f32 v{BF+r}, v{ACC+2*r}, v{ACC+2*r+1}")
    a(f"""
    s_mul_i32 s60, s54, 28672
    s_lshl_b32 s61, s55, 11
    s_add_u32 s60, s60, s61
    s_add_u32 s60, s60, {HF}
    buffer_store_dwordx4 {vr(BF)}, v2, {sr(SWS)}, s60 offen sc1
    buffer_store_dwordx4 {vr(BF+4)}, v2, {sr(SWS)}, s60 offen offset:1024 sc1
    v_mov_b32 v6, 0
    v_mov_b32 v7, 0
    """)
    for r in range(8):
        a(f"v_dot2c_f32_bf16 v6, v{BF+r}, v15\nv_dot2c_f32_bf16 v7, v{BF+r}, v{BF+r}")
    a(f"""
    v_mov_b32 v8, v6
    v_mov_b32 v9, v7
    v_permlane32_swap_b32 v6, v8
    v_permlane32_swap_b32 v7, v9
    v_add_f32 v6, v6, v8
    v_add_f32 v7, v7, v9
    s_mul_i32 s60, s54, 14
    s_add_u32 s60, s60, s55
    s_lshl_b32 s60, s60, 8
    s_add_u32 s60, s60, {ST}
    v_lshlrev_b32 v8, 3, v1
    s_mov_b32 exec_hi, 0
    buffer_store_dwordx2 v[6:7], v8, {sr(SWS)}, s60 offen sc1
    s_mov_b32 exec_hi, -1
    """)
    a.stamp(15)
    a("s_waitcnt vmcnt(0)\nL_p3_skipB:")
    a.bar("p3X")
    a.stamp(16)

def p3_helper(a, vm):
    publish(a, "B", f"s_lshl_b32 s60, s53, 7\ns_lshl_b32 s61, s52, 3\ns_add_u32 s60, s60, s61\ns_add_u32 s60, s60, {FB}")
    a.bar("p3A")
    if UPTO >= 4: gu_dma(a, 7, "g1", vm)
    a.stamp(12)
    a(f"""
    s_cmp_ge_u32 s6, 28
    s_cbranch_scc1 L_h3_skip
    s_lshr_b32 s60, s47, 1
    s_lshl_b32 s60, s60, 7
    s_add_u32 s60, s60, {FB}
    v_lshl_add_u32 v17, v1, 3, s60
    s_cmp_lg_u32 s{SW}, 4
    s_cbranch_scc1 L_h3_np
    """)
    poll(a, "B", 17, 0xffff)
    a("L_h3_np:")
    a.bar("p3P")
    a.stamp(13)
    a(f"""
    s_and_b32 s52, s{SW3}, 1
    s_lshr_b32 s53, s{SW3}, 1
    s_lshl_b32 s54, s47, 1
    s_add_u32 s54, s54, s52
    s_mul_i32 s54, s54, 28672
    s_add_u32 s54, s54, {OF}
    s_lshl_b32 s55, s46, 2
    s_add_u32 s55, s55, s53
    s_mul_i32 s60, s52, 28672
    s_lshl_b32 s61, s53, 10
    s_add_u32 s60, s60, s61
    s_add_u32 m0, s60, {RREG}
    s_mov_b32 s61, 0
L_h3_o:
    s_lshl_b32 s60, s55, 10
    s_add_u32 s60, s60, s54
    buffer_load_dwordx4 v2, {sr(SWS)}, s60 offen sc1 lds
    s_add_u32 m0, m0, 2048
    s_add_u32 s55, s55, 2
    s_cmp_lt_u32 s55, 28
    s_cbranch_scc1 L_h3_on
    s_sub_u32 s55, s55, 28
L_h3_on:
    s_add_u32 s61, s61, 1
    s_cmp_lt_u32 s61, 14
    s_cbranch_scc1 L_h3_o
    """)
    for st, n in enumerate((3, 6, 10, 13)):
        a(f"s_waitcnt vmcnt({13-n})")
        a.bar(f"p3s{st}")
    a("L_h3_skip:")
    a.bar("p3X")

NBW = 8
def p4_compute(a):
    ACC = 16; AF = 128; BF = 156; T = 188; OUT = 196; STT = 204
    RS, CC = 6, 7
    vm = VM()
    a(f"""
    s_lshl_b32 s54, s56, 2
    s_add_u32 s54, s54, s{SW3}             ; tt
    s_mul_i32 s55, s54, 28672
    s_add_u32 s55, s55, {HF}
    """)
    rot4(a, 58)
    a(f"""
    v_bfe_u32 v9, v1, 2, 2
    v_mul_u32_u24 v10, 1088, v9
    v_lshl_add_u32 v10, v13, 9, v10
    v_and_b32 v9, 1, v1
    v_lshl_add_u32 v10, v9, 4, v10
    v_bfe_u32 v9, v1, 4, 1
    v_lshl_add_u32 v10, v9, 3, v10
    v_bfe_u32 v9, v1, 1, 1
    v_mul_u32_u24 v9, 4384, v9
    v_add_u32 v10, v10, v9
    s_mul_i32 s60, s57, 224
    s_and_b32 s60, s60, 63
    v_add_u32 v4, s60, v10
    v_mul_u32_u24 v5, {7*256}, v13
    v_lshl_add_u32 v5, v12, 3, v5
    s_mul_i32 s59, s54, {14*256}
    s_add_u32 s59, s59, {ST}
    """)
    base = [0]
    def tr(p, j):
        L = []
        slot = p % 18
        off = slot * SLOT - base[0]
        if j == 0 and (off < 0 or off + SLOT > 65536):
            d = slot * SLOT - base[0]
            L.append(f"v_add_u32 v4, {d & 0xffffffff:#x}, v4")
            base[0] = slot * SLOT; off = 0
        for u in range(2):
            b = AF + 4*j + 2*u
            L.append(f"ds_read_b64_tr_b16 v[{b}:{b+1}], v4 offset:{off + u*256 + j*32}")
        return L
    for j in range(7): a.emit(*tr(0, j))
    a.bar("p4P")
    a.stamp(17)
    for q in range(7):
        a(f"buffer_load_dwordx2 v[{STT+2*q}:{STT+2*q+1}], v5, {sr(SWS)}, s59 offen offset:{q*256} sc1")
    vm.add("st", 7)
    def bload(p):
        vm.add(f"b{p}")
        return [f"s_lshl_b32 s60, s58, 10", "s_add_u32 s60, s60, s55",
                f"buffer_load_dwordx4 {vr(BF+4*(p%NBW))}, v2, {sr(SWS)}, s60 offen sc1",
                "s_add_u32 s58, s58, 1", "s_cmp_eq_u32 s58, 28", "s_cselect_b32 s58, 0, s58"]
    for p in range(NBW): a.emit(*bload(p))
    a(vm.wait("st"))
    for q in (1, 2, 3):
        a(f"v_add_f32 v{STT+2*q}, v{STT+2*q}, v{STT+2*q+6}\nv_add_f32 v{STT+2*q+1}, v{STT+2*q+1}, v{STT+2*q+7}")
    a(f"""
    v_add_f32 v{STT}, v{STT}, v{STT+2}
    v_add_f32 v{STT+1}, v{STT+1}, v{STT+3}
    v_add_f32 v{STT+4}, v{STT+4}, v{STT+6}
    v_add_f32 v{STT+5}, v{STT+5}, v{STT+7}
    v_add_f32 v{STT}, v{STT}, v{STT+4}
    v_add_f32 v{STT+1}, v{STT+1}, v{STT+5}
    v_mov_b32 v{STT+2}, v{STT}
    v_mov_b32 v{STT+3}, v{STT+1}
    v_permlane32_swap_b32 v{STT}, v{STT+2}
    v_permlane32_swap_b32 v{STT+1}, v{STT+3}
    v_add_f32 v{STT}, v{STT}, v{STT+2}
    v_add_f32 v{STT+1}, v{STT+1}, v{STT+3}
    v_mul_f32 v{STT}, {f2u(1.0/448):#x}, v{STT}
    v_mul_f32 v{STT+1}, {f2u(1.0/448):#x}, v{STT+1}
    v_fma_f32 v{STT+1}, -v{STT}, v{STT}, v{STT+1}
    v_max_f32 v{STT+1}, 0, v{STT+1}
    v_add_f32 v{STT+1}, {f2u(1e-5):#x}, v{STT+1}
    v_rsq_f32 v{RS}, v{STT+1}
    v_mul_f32 v{CC}, v{STT}, v{RS}
    v_sub_f32 v{CC}, 0, v{CC}
    """)
    def norm(p):
        f = BF + 4*(p % NBW)
        L = []
        for i in range(4):
            L += [f"v_lshlrev_b32 v{T+2*i}, 16, v{f+i}", f"v_and_b32 v{T+2*i+1}, 0xffff0000, v{f+i}"]
        for i in range(8):
            L.append(f"v_fma_f32 v{T+i}, v{T+i}, v{RS}, v{CC}")
        for i in range(4):
            L.append(f"v_cvt_pk_bf16_f32 v{f+i}, v{T+2*i}, v{T+2*i+1}")
        return L
    a(vm.wait("b0"))
    a.emit(*norm(0))
    a.stamp(18)
    for p in range(28):
        if p in (4, 10, 16, 20): a.bar(f"p4b{p}")
        nrm = norm(p + 1) if p < 27 else []
        for j in range(7):
            if j == 0: a("s_waitcnt lgkmcnt(6)")
            if j == 4: a(f"s_waitcnt lgkmcnt({8 if p < 27 else 0})")
            a(f"v_mfma_f32_32x32x16_bf16 {vr(ACC+16*j,16)}, {vr(AF+4*j)}, {vr(BF+4*(p%NBW))}, {'0' if p==0 else vr(ACC+16*j,16)}")
            if p < 27: a.emit(*tr(p + 1, j))
            if j == 0:
                if p >= 1 and p - 1 + NBW < 28: a.emit(*bload(p - 1 + NBW))
                if p < 27: a(vm.wait(f"b{p+1}"))
            else:
                k0 = [0, 4, 8, 11, 14, 17, 20]
                a.emit(*nrm[k0[j-1]:k0[j]])
    a.stamp(19)
    a.bar("p4E")
    a(f"""
    s_mul_i32 s60, s54, {112*1024}
    s_mul_i32 s61, s57, 7168
    s_add_u32 s60, s60, s61
    s_add_u32 s60, s60, {HH}
    """)
    for j in range(7):
        acc = ACC + 16*j; o = OUT + 4*(j & 1)
        for g in range(2):
            for c in range(4):
                a(f"v_max_f32 v{acc+8*g+c}, 0, v{acc+8*g+c}")
            for c in range(4):
                a(f"v_mul_f32 v{acc+8*g+c}, v{acc+8*g+c}, v{acc+8*g+4+c}")
            a(f"v_cvt_pk_bf16_f32 v{o+2*g}, v{acc+8*g}, v{acc+8*g+1}")
            a(f"v_cvt_pk_bf16_f32 v{o+2*g+1}, v{acc+8*g+2}, v{acc+8*g+3}")
        if j == 4: a("s_add_u32 s60, s60, 4096")
        a(f"buffer_store_dwordx4 {vr(o)}, v2, {sr(SWS)}, s60 offen offset:{(j%4)*1024} sc1")
    a.stamp(21)
    if UPTO >= 5: p5_pre(a, "c")
    a("s_waitcnt vmcnt(0)")
    a.bar("p4X")
    a.stamp(23)

B1 = 10 * SLOT
def wd_dma(a, n, tag, vm, dst_code):
    a(f"""
    s_cmp_ge_u32 s6, 28
    s_cbranch_scc1 L_wd_{tag}_skip
    {dst_code}
    s_mov_b32 s61, 0
L_wd_{tag}:
    s_mul_i32 s60, s58, {16*896}
    s_add_u32 s60, s60, s59
    buffer_load_dwordx4 v21, {sr(SD)}, s60 offen lds
    s_add_u32 m0, m0, 1024
    s_add_u32 s60, s60, {8*896}
    s_add_u32 s58, s58, 1
    buffer_load_dwordx4 v21, {sr(SD)}, s60 offen lds
    s_add_u32 m0, m0, 1024
    s_cmp_eq_u32 s58, 28
    s_cselect_b32 s58, 0, s58
    s_add_u32 s61, s61, 1
    s_cmp_lt_u32 s61, {n}
    s_cbranch_scc1 L_wd_{tag}
L_wd_{tag}_skip:
    """)
    vm.add(tag, 2 * n)

def p4_helper(a, vm):
    a("s_cmp_ge_u32 s6, 28\ns_cbranch_scc1 L_pub_C")
    publish(a, "C", f"""s_lshr_b32 s60, s47, 1
    s_lshl_b32 s60, s60, 7
    s_and_b32 s61, s47, 1
    s_mul_i32 s61, s61, 7
    s_add_u32 s61, s61, s46
    s_lshl_b32 s61, s61, 3
    s_add_u32 s60, s60, s61
    s_add_u32 s60, s60, {FC}""")
    gu_dma(a, 6, "g2", vm)
    a(f"""
    s_sub_u32 s59, s59, {18*SLOT}
    s_cmp_lg_u32 s{SW}, 4
    s_cbranch_scc1 L_h4_np
    s_lshl_b32 s60, s56, 7
    s_add_u32 s60, s60, {FC}
    v_lshl_add_u32 v17, v1, 3, s60
    """)
    a.stamp(16)
    poll(a, "C", 17, 0x3fff)
    a("L_h4_np:")
    a.bar("p4P")
    a(vm.wait("g1"))
    a.bar("p4b4")
    gu_dma(a, 4, "g3", vm)
    a(vm.wait("g2"))
    a.bar("p4b10")
    gu_dma(a, 6, "g4", vm)
    a(vm.wait("g3"))
    a.bar("p4b16")
    a(vm.wait("g4"))
    a.bar("p4b20")
    if UPTO >= 5:
        a(f"""
        s_lshl_b32 s58, s46, 2
        s_mul_i32 s59, s{SW3}, {28*16*896}
        s_lshl_b32 s60, s46, 7
        s_add_u32 s59, s59, s60
        """)
        wd_dma(a, 8, "w1", vm, f"s_lshl_b32 s60, s{SW3}, 14\ns_add_u32 m0, s60, {B1}")
        a("s_waitcnt vmcnt(0)")
        vm.q = []
    a.bar("p4E")
    if UPTO >= 5:
        wd_dma(a, 10, "w2", vm, f"s_mul_i32 m0, s{SW3}, 20480")
        p5_pre(a, "h")
    a.bar("p4X")

P5_ACC, P5_A1, P5_AF, P5_B, P5_HR = 24, 56, 120, 136, 248
def p5_pre(a, tag):
    a(f"""
    s_cmp_ge_u32 s6, 28
    s_cbranch_scc1 L_p5pre_{tag}
    s_lshr_b32 s52, s{SW3}, 1              ; kq>>1
    s_and_b32 s53, s{SW3}, 1               ; kq&1
    """)
    tr128_addr(a, 4, 52, 53)
    a(f"""
    v_xor_b32 v5, 64, v4
    s_lshl_b32 s60, s{SW3}, 14
    s_add_u32 s60, s60, {B1}
    v_add_u32 v6, s60, v4
    v_add_u32 v7, s60, v5
    """)
    for p in range(8):
        for f in range(2):
            for u in range(2):
                b = P5_A1 + 8*p + 4*f + 2*u
                a(f"ds_read_b64_tr_b16 v[{b}:{b+1}], v{6+f} offset:{p*2048+u*512}")
        if p % 2 == 1: a("s_waitcnt lgkmcnt(4)")
    a(f"s_waitcnt lgkmcnt(0)\nL_p5pre_{tag}:")

def p5_main(a, tag, vmpre):
    ACC, A1, AF, B, HR = P5_ACC, P5_A1, P5_AF, P5_B, P5_HR
    vm = VM()
    a(f"""
    s_lshr_b32 s52, s{SW}, 2               ; tt_l
    s_lshl_b32 s54, s47, 1
    s_add_u32 s54, s54, s52                ; tt
    s_mul_i32 s55, s54, {112*1024}
    s_mul_i32 s60, s{SW3}, 28672
    s_add_u32 s55, s55, s60
    s_add_u32 s55, s55, {HH}
    s_lshl_b32 s63, s46, 2
    s_add_u32 s63, s63, s{SW3}
    s_mul_i32 s60, s54, 28672
    s_lshl_b32 s61, s63, 10
    s_add_u32 s60, s60, s61
    s_add_u32 s60, s60, {HF}
    buffer_load_dwordx4 {vr(HR)}, v2, {sr(SWS)}, s60 offen sc1
    s_mul_i32 s60, s{SW3}, 20480
    v_add_u32 v6, s60, v4
    v_add_u32 v7, s60, v5
    s_lshr_b32 s60, s47, 1
    s_lshl_b32 s60, s60, 7
    s_add_u32 s60, s60, {FD}
    v_lshl_add_u32 v17, v1, 3, s60
    s_mov_b32 s53, s46
    """)
    if tag == "h":
        a(f"s_cmp_lg_u32 s{SW}, 4\ns_cbranch_scc1 L_h5_np")
        a.stamp(23)
        poll(a, "D" + tag, 17, 0xffff)
        a("L_h5_np:")
    a.bar("p5P")
    a.stamp(24)
    def bgrp(g):
        a(f"s_lshl_b32 s60, s53, 12\ns_add_u32 s60, s60, s55")
        for q in range(4):
            a(f"buffer_load_dwordx4 {vr(B+16*g+4*q)}, v2, {sr(SWS)}, s60 offen offset:{q*1024} sc1")
            vm.add(f"b{4*g+q}")
        a("s_add_u32 s53, s53, 1\ns_cmp_eq_u32 s53, 7\ns_cselect_b32 s53, 0, s53")
    def rd(p):
        L = []
        if p == 18: L += ["v_add_u32 v6, 81920, v6", "v_add_u32 v7, 81920, v7"]
        off = ((p - 8) % 10) * 2048
        for f in range(2):
            for u in range(2):
                b = AF + 8*(p & 1) + 4*f + 2*u
                L.append(f"ds_read_b64_tr_b16 v[{b}:{b+1}], v{6+f} offset:{off+u*512}")
        return L
    bgrp(0); bgrp(1); bgrp(2)
    for p in range(28):
        if p % 4 == 0 and p // 4 + 3 < 7: bgrp(p // 4 + 3)
        if p == 7: a.bar("p5W")
        if 8 <= p + 1 < 28: a.emit(*rd(p + 1))
        a(vm.wait(f"b{p}"))
        if p >= 8: a(f"s_waitcnt lgkmcnt({4 if p < 27 else 0})")
        for f in range(2):
            A = vr(A1 + 8*p + 4*f) if p < 8 else vr(AF + 8*(p & 1) + 4*f)
            a(f"v_mfma_f32_32x32x16_bf16 {vr(ACC+16*f,16)}, {A}, {vr(B+4*p)}, {'0' if p==0 else vr(ACC+16*f,16)}")
    a.stamp(25)
    a.bar("p5R0")
    for j in (1, 2, 3):
        a(f"""
        s_xor_b32 s60, s{SW}, {j}
        s_mul_i32 s60, s60, 6144
        v_add_u32 v8, s60, v2
        ds_write_b128 v8, {vr(ACC+8*j)} offset:{(j-1)*2048}
        ds_write_b128 v8, {vr(ACC+8*j+4)} offset:{(j-1)*2048+1024}
        """)
    a(f"""
    s_mul_i32 s60, s{SW}, 6144
    v_add_u32 v8, s60, v2
    v_mul_u32_u24 v3, 896, v12
    v_lshl_add_u32 v3, v13, 4, v3
    s_mul_i32 s60, s54, {32*896}
    s_lshl_b32 s61, s63, 5
    s_add_u32 s60, s60, s61
    """)
    for r in range(4):
        a(f"v_lshlrev_b32 v{A1+2*r}, 16, v{HR+r}\nv_and_b32 v{A1+2*r+1}, 0xffff0000, v{HR+r}")
    for r in range(8):
        a(f"v_add_f32 v{ACC+r}, v{ACC+r}, v{A1+r}")
    a("s_waitcnt lgkmcnt(0)")
    a.bar("p5R1")
    for q in range(6):
        a(f"ds_read_b128 {vr(B+4*q)}, v8 offset:{q*1024}")
    for j in range(3):
        a(f"s_waitcnt lgkmcnt({4-2*j})")
        for r in range(8):
            a(f"v_add_f32 v{ACC+r}, v{ACC+r}, v{B+8*j+r}")
    for r in range(4):
        a(f"v_cvt_pk_bf16_f32 v{A1+r}, v{ACC+2*r}, v{ACC+2*r+1}")
    a(f"buffer_store_dwordx4 {vr(A1)}, v3, {sr(SOUT)}, s60 offen")
    a.stamp(26)

def p5_compute(a):
    a("s_cmp_ge_u32 s6, 28\ns_cbranch_scc1 L_p5_skip_c")
    p5_main(a, "c", None)
    a("L_p5_skip_c:")

def p5_helper(a, vm):
    publish(a, "D", f"s_lshl_b32 s60, s56, 7\ns_lshl_b32 s61, s57, 3\ns_add_u32 s60, s60, s61\ns_add_u32 s60, s60, {FD}")
    wd_dma(a, 10, "w3", vm, f"s_mul_i32 s60, s{SW3}, 20480\ns_add_u32 m0, s60, 81920")
    a("s_cmp_ge_u32 s6, 28\ns_cbranch_scc1 L_p5_skip_h")
    p5_main(a, "h", vm)
    a("L_p5_skip_h:")

def build(path):
    a = Asm()
    prologue(a)
    C = Role("c"); H = Role("h")
    p1_compute(C); p1_helper(H)
    vm = VM()
    p2_compute(C); p2_helper(H, vm)
    if UPTO >= 3: p3_compute(C); p3_helper(H, vm)
    if UPTO >= 4: p4_compute(C); p4_helper(H, vm)
    if UPTO >= 5: p5_compute(C); p5_helper(H, vm)
    assert C.bars == H.bars, (C.bars, H.bars)
    XV = os.environ.get("XV", "")
    if "nodot" in XV: H.lines = [l for l in H.lines if not l.startswith("v_dot2c")]
    if "nohm" in XV: H.lines = [l for l in H.lines if not l.startswith("v_mfma")]
    if "nohds" in XV: H.lines = [l for l in H.lines if not (l.startswith("ds_read_b128") or l.startswith("ds_read_b64_tr"))]
    if "notr" in XV: C.lines = [l for l in C.lines if not l.startswith("ds_read_b64_tr")]
    a.lines += H.lines
    stamp_end(a)
    a("s_endpgm\nL_compute:")
    a.lines += C.lines
    stamp_end(a)
    a("L_end:\ns_endpgm")
    gen1.kernels.clear()
    gen1.DIAG = 0
    if UPTO < 5: gen1.gen_p0()
    gen1.kernels.append((KNAME, a.finish(True), 256, 256, 102, 256, 512, 163840))
    if UPTO < 3: gen1.gen_p3()
    if UPTO < 4: gen1.gen_p4()
    if UPTO < 5: gen1.gen_p5()
    gen1.write(path)

if __name__ == "__main__":
    build(sys.argv[1] if len(sys.argv) > 1 else f"cdna_kernels/{NAME}.s")
```

```python
import sys, math, os, struct
from asmlib import Asm
import gen1
from gen1 import f2u, vr, NAME

DIAG = int(os.environ.get("DIAG", "0"))
UPTO = int(os.environ.get("UPTO", "5"))
QF  = 0x000000
KVF = 0x200000
KN  = 0x600000
FL  = 0x680000
OF  = 0x700000
HF  = 0x900000
ST  = 0xB00000
HH  = 0xC00000
TS  = 0x4000000
WS_BYTES = 0x10000000
FA, FB, FC, FD = FL, FL + 0x1000, FL + 0x2000, FL + 0x3000

SW, SW3 = 3, 4
SX, SWQ, SWO, SWS, SG, SU, SD, SOUT, SDBG = 8, 12, 16, 20, 24, 28, 32, 36, 40
NON = 44
SKV = 48
def sr(b): return f"s[{b}:{b+3}]"
POLL_MAX = 40000
PFW = int(os.environ.get('PFW', '2'))

class Role(Asm):
    def __init__(self, tag):
        super().__init__(); self.tag = tag; self.bars = []; self.nst = 0
    def bar(self, name):
        self.bars.append(name); self("s_barrier")
    def stamp(self, i):
        if DIAG:
            self(f"s_memtime s[100:101]\ns_waitcnt lgkmcnt(0)\ns_mov_b32 s{64+i}, s100")

class VM:
    def __init__(self): self.q = []
    def add(self, tag, n=1): self.q += [tag] * n
    def wait(self, tag):
        idx = [i for i, t in enumerate(self.q) if t == tag]
        if not idx: return None
        n = len(self.q) - 1 - idx[-1]
        self.q = self.q[idx[-1] + 1:]
        assert n <= 63
        return f"s_waitcnt vmcnt({n})"

DBGT = int(os.environ.get("DBGT", "0"))
DBGT_N = [0]
def stamp_end(a):
    if DBGT:
        DBGT_N[0] += 1
        a(f"""
        s_cmp_ge_u32 s2, 6
        s_cbranch_scc1 L_dbgt{DBGT_N[0]}
        s_cmp_lg_u32 s{SW}, 0
        s_cbranch_scc1 L_dbgt{DBGT_N[0]}
        s_mov_b64 exec, -1
        s_waitcnt vmcnt(0) lgkmcnt(0)
        s_memrealtime s[98:99]
        s_memtime s[94:95]
        s_waitcnt lgkmcnt(0)
        s_sub_u32 s98, s98, s96
        s_sub_u32 s94, s94, s100
        s_lshl_b32 s60, s2, 3
        v_mov_b32 v0, 0
        v_mov_b32 v4, s98
        v_mov_b32 v5, s94
        s_mov_b64 exec, 1
        buffer_store_dwordx2 v[4:5], v0, {sr(SDBG)}, s60 offen offset:16
L_dbgt{DBGT_N[0]}:
        """)
    if DIAG:
        a(f"""
        s_mov_b64 exec, -1
        s_waitcnt vmcnt(0) lgkmcnt(0)
        s_memtime s[100:101]
        s_memrealtime s[98:99]
        s_waitcnt lgkmcnt(0)
        s_mov_b32 s93, s100
        s_mov_b32 s94, s96
        s_mov_b32 s95, s98
        s_lshl_b32 s60, s2, 3
        s_add_u32 s60, s60, s{SW}
        s_lshl_b32 s60, s60, 7
        s_add_u32 s60, s60, {TS}
        v_mov_b32 v0, 0
        """)
        for i in range(32):
            a(f"v_mov_b32 v{4+i}, s{64+i}")
        a("s_mov_b64 exec, 1")
        for i in range(8):
            a(f"buffer_store_dwordx4 v[{4+4*i}:{7+4*i}], v0, {sr(SWS)}, s60 offen offset:{16*i}")

CODE_KB = 64
KNAME = NAME + "_kernel"
def prologue(a):
    if DBGT:
        a("s_memrealtime s[96:97]\ns_memtime s[100:101]")
    if DIAG:
        a("s_memrealtime s[96:97]\ns_memtime s[100:101]\ns_mov_b32 s84, 0\ns_mov_b32 s86, 0")
    a(f"""
    s_cmp_ge_u32 s2, 256
    s_cbranch_scc1 L_end
    s_load_dwordx16 s[64:79], s[0:1], 0
    s_load_dwordx4 s[80:83], s[0:1], 64
    s_getpc_b64 s[6:7]
    s_lshr_b32 s5, s2, 3
    s_and_b32 s5, s5, {CODE_KB//8 - 1}
    s_lshl_b32 s5, s5, 13
    v_lshl_add_u32 v1, v0, 4, s5
    v_min_u32 v1, L_end-{KNAME}-16, v1
    s_and_b32 s6, s6, 0xffffff00
    global_load_dwordx4 v[252:255], v1, s[6:7]
    v_lshrrev_b32 v1, 6, v0
    v_readfirstlane_b32 s{SW}, v1
    v_and_b32 v1, 63, v0                   ; lane
    s_and_b32 s5, s2, 7                    ; xcd
    s_lshr_b32 s6, s2, 3                   ; i
    s_and_b32 s{SW3}, s{SW}, 3
    s_lshr_b32 s52, s5, 1
    s_lshl_b32 s52, s52, 2
    s_and_b32 s53, s6, 3
    s_add_u32 s52, s52, s53                ; rb
    s_and_b32 s53, s5, 1
    s_lshl_b32 s53, s53, 3
    s_lshr_b32 s54, s6, 2
    s_add_u32 s53, s53, s54                ; cb
    s_lshl_b32 s54, s52, 2
    s_add_u32 s54, s54, s{SW3}             ; tt
    s_and_b32 s55, s53, 1
    s_lshl_b32 s55, s55, 3                 ; colshift
    s_mov_b32 s{SX+2}, {2048*896:#x}
    s_mov_b32 s{SX+3}, 0x00020000
    s_mov_b32 s{SWQ+2}, {448*2688:#x}
    s_mov_b32 s{SWQ+3}, 0x00020000
    s_cmp_lt_u32 s{SW}, 4
    s_cbranch_scc1 L_compute
    """)

def common_setup(a):
    for d, nb in ((SWO, 448*896), (SWS, WS_BYTES), (SG, 448*3584), (SU, 448*3584), (SD, 1792*896), (SOUT, 2048*896), (SDBG, 256)):
        a(f"s_mov_b32 s{d+2}, {nb:#x}\ns_mov_b32 s{d+3}, 0x00020000")
    for d, src in ((SWO, 68), (SG, 72), (SU, 74), (SD, 76), (SOUT, 78), (SDBG, 80), (SWS, 82)):
        a(f"s_mov_b64 s[{d}:{d+1}], s[{src}:{src+1}]")
    if DIAG:
        a("s_waitcnt lgkmcnt(0)")
        for i in range(0, 32, 2):
            if i in (20, 22): a(f"s_mov_b32 s{65+i}, 0")
            else: a(f"s_mov_b64 s[{64+i}:{65+i}], 0")
        a("s_mov_b32 s64, s100")
    a(f"""
    v_and_b32 v12, 31, v1                  ; t
    v_lshrrev_b32 v13, 5, v1               ; hf
    v_bfe_u32 v14, v12, 1, 3
    v_xor_b32 v14, v14, v13
    v_lshlrev_b32 v14, 4, v14
    v_lshl_add_u32 v14, v12, 7, v14
    s_lshl_b32 s61, s{SW3}, 12
    v_add_u32 v4, s61, v14
    v_xor_b32 v5, 32, v4
    v_xor_b32 v6, 64, v4
    v_xor_b32 v7, 96, v4
    v_bfe_u32 v9, v1, 4, 1                 ; ch
    v_bfe_u32 v10, v1, 2, 2                ; r
    v_lshl_add_u32 v10, v13, 3, v10        ; 8hf + r
    v_mul_u32_u24 v10, 192, v10
    v_lshl_add_u32 v10, v9, 5, v10
    v_and_b32 v11, 3, v1
    v_lshl_add_u32 v10, v11, 3, v10
    s_add_u32 s61, s55, 16384
    v_add_u32 v8, s61, v10
    v_mov_b32 v15, 0x3f803f80
    """)

AUX1 = 143360
NAHEAD = int(os.environ.get('NAHEAD', '3'))
def rebase(a, c, regs):
    d = 28672 if c % 5 else -4 * 28672
    for r in regs:
        a(f"v_add_u32 v{r}, {d & 0xffffffff:#x}, v{r}")

def p1_compute(a):
    ACC = 16; WA = 64; XF = 100
    def reads(ks):
        c, i = divmod(ks, 4)
        L = []
        if i == 0 and c > 0:
            d = 28672 if c % 5 else -4 * 28672
            L += [f"v_add_u32 v{r}, {d & 0xffffffff:#x}, v{r}" for r in (4, 5, 6, 7, 8)]
        buf = WA + 12 * (ks % 3)
        L.append(f"ds_read_b128 {vr(XF+4*(ks%3))}, v{4+i}")
        for j in range(3):
            for u in range(2):
                L.append(f"ds_read_b64_tr_b16 v[{buf+4*j+2*u}:{buf+4*j+2*u+1}], v8 offset:{i*3072+u*768+j*56}")
        return L
    p1_dma_setup(a, 2)
    common_setup(a)
    p1_issue(a)
    a.bar("p1s0")
    a.stamp(1)
    a(f"""
    s_cmp_lt_u32 s53, 10
    s_cbranch_scc1 L_p1_v0
    s_cmp_eq_u32 s53, 10
    s_cbranch_scc1 L_p1_v1
    s_branch L_p1_v2
    """)
    bars0 = list(a.bars)
    for var, isv in enumerate(((0,0,0), (0,0,1), (1,1,1))):
        a.bars = list(bars0)
        a(f"L_p1_v{var}:")
        a.emit(*reads(0)); a.emit(*reads(1))
        for ks in range(28):
            if ks % 4 == 2 and ks < 26:
                if ks == 6: a("s_waitcnt vmcnt(0)")
                a.bar(f"p1s{ks//4+1}")
            nxt = reads(ks + 2) if ks < 26 else []
            buf = WA + 12 * (ks % 3)
            a(f"s_waitcnt lgkmcnt({7 if ks < 27 else 0})")
            pre = [l for l in nxt if l.startswith("v_add")]; rd = [l for l in nxt if not l.startswith("v_add")]
            a.emit(*pre)
            for j in range(3):
                A, B = vr(buf + 4*j), vr(XF + 4*(ks % 3))
                if isv[j]: A, B = B, A
                C = "0" if ks == 0 else vr(ACC + 16*j, 16)
                a(f"v_mfma_f32_32x32x16_bf16 {vr(ACC+16*j,16)}, {A}, {B}, {C}")
                a.emit(*rd[[0,3,5][j]:[3,5,7][j]])
        if var < 2:
            a("s_branch L_p1_epi")
    QS = f2u(28 ** -0.5 * math.log2(math.e))
    a("L_p1_epi:")
    a.stamp(2)
    a.bar("p1S")
    a.stamp(3)
    MEAN, RSTD, CS, P = 64, 80, 96, 112
    a(f"""
    v_lshlrev_b32 v2, 4, v1                ; lane*16
    s_mul_i32 s57, s53, 3                  ; p
    s_lshl_b32 s56, s{SW3}, 8
    s_add_u32 s56, s56, {AUX1}
    v_lshl_add_u32 v4, v12, 2, s56
    v_lshl_add_u32 v5, v13, 4, s56
    v_lshlrev_b32 v6, 4, v13
    v_add_u32 v6, {AUX1+1024}, v6
    v_lshlrev_b32 v7, 2, v12
    v_add_u32 v7, {AUX1+1024}, v7
    ds_read_b32 v10, v4
    ds_read_b32 v11, v4 offset:128
    """)
    for q in range(4):
        a(f"ds_read_b128 {vr(MEAN+4*q)}, v5 offset:{32*q}\nds_read_b128 {vr(RSTD+4*q)}, v5 offset:{128+32*q}")
    for j in range(3):
        acc = ACC + 16*j
        a(f"""
        s_and_b32 s58, s57, 15             ; h
        s_lshl_b32 s58, s58, 6
        s_add_u32 s58, s58, s54            ; h*64+tt
        s_cmp_ge_u32 s57, 32
        s_cbranch_scc1 L_p1_e{j}_v
        """)
        for q in range(4):
            a(f"ds_read_b128 {vr(CS+4*q)}, v6 offset:{128*j+32*q}")
        a(f"""
        s_mov_b32 s59, 1.0
        s_cmp_lt_u32 s57, 16
        s_cselect_b32 s59, {QS:#x}, s59
        s_waitcnt lgkmcnt(0)
        v_mul_f32 v8, s59, v11             ; rs
        v_mul_f32 v9, v10, v8
        v_sub_f32 v9, 0, v9                ; -mean*rs
        """)
        for r in range(16):
            a(f"v_mul_f32 v{CS+r}, v{CS+r}, v9")
        for r in range(16):
            a(f"v_fma_f32 v{acc+r}, v{acc+r}, v8, v{CS+r}")
        for r in range(8):
            a(f"v_cvt_pk_bf16_f32 v{P+r}, v{acc+2*r}, v{acc+2*r+1}")
        a(f"""
        s_mov_b32 exec_lo, 0
        v_mov_b32 v{P+6}, 0
        v_mov_b32 v{P+7}, 0
        s_mov_b32 exec_lo, -1
        v_mov_b32 v8, 0
        """)
        for r in range(8):
            a(f"v_dot2c_f32_bf16 v8, v{P+r}, v{P+r}")
        a(f"""
        v_mov_b32 v9, v8
        v_permlane32_swap_b32 v8, v9
        v_add_f32 v8, v8, v9
        s_cmp_ge_u32 s57, 16
        s_cbranch_scc1 L_p1_e{j}_k
        v_sqrt_f32 v8, v8
        v_mul_f32 v8, {f2u(1.0+1.0/128):#x}, v8
        v_add_u32 v8, 0xffff, v8
        v_lshrrev_b32 v8, 16, v8
        s_mov_b32 exec_lo, 0
        v_mov_b32 v{P+6}, v8
        s_mov_b32 exec_lo, -1
        s_lshl_b32 s59, s58, 11
        s_branch L_p1_e{j}_st
L_p1_e{j}_k:
        v_max_f32_dpp v8, v8, v8 row_shr:1 row_mask:0xf bank_mask:0xf
        v_max_f32_dpp v8, v8, v8 row_shr:2 row_mask:0xf bank_mask:0xf
        v_max_f32_dpp v8, v8, v8 row_shr:4 row_mask:0xf bank_mask:0xf
        v_max_f32_dpp v8, v8, v8 row_shr:8 row_mask:0xf bank_mask:0xf
        v_max_f32_dpp v8, v8, v8 row_bcast:15 row_mask:0xa bank_mask:0xf
        s_lshl_b32 s59, s58, 2
        s_add_u32 s59, s59, {KN}
        v_mov_b32 v9, 0
        s_mov_b32 exec_hi, 0
        s_mov_b32 exec_lo, 0x80000000
        buffer_store_dword v8, v9, {sr(SWS)}, s59 offen sc1
        s_mov_b32 exec_hi, -1
        s_mov_b32 exec_lo, 0
        v_mov_b32 v{P+6}, v15
        s_mov_b32 exec_lo, -1
        s_lshl_b32 s59, s58, 12
        s_add_u32 s59, s59, {KVF}
        s_branch L_p1_e{j}_st
L_p1_e{j}_v:
        ds_read_b32 v8, v7 offset:{128*j}
        s_waitcnt lgkmcnt(0)
        """)
        for r in range(16):
            a(f"v_fma_f32 v{acc+r}, -v{MEAN+r}, v8, v{acc+r}")
        for r in range(16):
            a(f"v_mul_f32 v{acc+r}, v{acc+r}, v{RSTD+r}")
        for r in range(8):
            a(f"v_cvt_pk_bf16_f32 v{P+r}, v{acc+2*r}, v{acc+2*r+1}")
        a(f"""
        s_lshl_b32 s59, s58, 12
        s_add_u32 s59, s59, {KVF+2048}
        s_mov_b32 exec_lo, 0x10000000
        s_mov_b32 exec_hi, 0x10000000
        """)
        for r in range(8):
            a(f"v_mov_b32 v{P+r}, v15")
        a("s_mov_b32 exec_lo, 0xe0000000\ns_mov_b32 exec_hi, 0xe0000000")
        for r in range(8):
            a(f"v_mov_b32 v{P+r}, 0")
        a(f"""
        s_mov_b64 exec, -1
L_p1_e{j}_st:
        buffer_store_dwordx4 {vr(P)}, v2, {sr(SWS)}, s59 offen sc1
        buffer_store_dwordx4 {vr(P+4)}, v2, {sr(SWS)}, s59 offen offset:1024 sc1
        s_add_u32 s57, s57, 1
        """)
        P += 8
    a.stamp(4)
    a("s_waitcnt vmcnt(0)")
    a.stamp(5)
    a.bar("p1X")

def p1_dma_setup(a, first):
    a(f"""
    v_lshrrev_b32 v2, 3, v1
    v_mul_u32_u24 v2, 896, v2
    v_lshrrev_b32 v3, 4, v1
    v_and_b32 v9, 7, v1
    v_xor_b32 v3, v3, v9
    v_lshl_add_u32 v2, v3, 4, v2
    v_xor_b32 v3, 64, v2
    s_mul_i32 s56, s54, {32*896}
    s_lshl_b32 s57, s{SW3}, 12
    """)
    for u in range(3):
        a(f"""
        v_add_u32 v9, {64*u}, v1
        v_mul_u32_u24 v10, 43691, v9
        v_lshrrev_b32 v10, 19, v10
        v_mul_u32_u24 v11, 12, v10
        v_sub_u32 v11, v9, v11
        v_min_u32 v11, 10, v11
        v_mul_u32_u24 v10, 2688, v10
        v_lshl_add_u32 v{16+u}, v11, 4, v10
        """)
    a(f"""
    s_mul_i32 s58, s53, 168
    s_sub_u32 s58, s58, s55
    s_mul_i32 s59, s{SW3}, {16*2688}
    s_add_u32 s58, s58, s59
    s_mul_i32 s59, s{SW3}, 3072
    s_add_u32 s59, s59, 16384
    s_add_u32 s60, s6, {first}
    s_mul_i32 s46, s60, 9363
    s_lshr_b32 s46, s46, 16
    s_mul_i32 s46, s46, 7
    s_sub_u32 s46, s60, s46
    s_mov_b32 s47, {first*28672}
    s_waitcnt lgkmcnt(0)
    s_mov_b64 s[{SX}:{SX+1}], s[64:65]
    s_mov_b64 s[{SWQ}:{SWQ+1}], s[66:67]
    """)

def p1_adv(a):
    a(f"""
    s_add_u32 s46, s46, 1
    s_cmp_eq_u32 s46, 7
    s_cselect_b32 s46, 0, s46
    s_add_u32 s47, s47, 28672
    s_cmp_eq_u32 s47, {5*28672}
    s_cselect_b32 s47, 0, s47
    """)

def p1_issue(a):
    a(f"""
    s_lshl_b32 s60, s46, 7
    s_add_u32 s60, s60, s56
    s_add_u32 m0, s57, s47
    s_mul_i32 s61, s46, {4*16*2688}
    """)
    for q in range(4):
        a(f"buffer_load_dwordx4 v{2+(q&1)}, {sr(SX)}, s60 offen lds")
        if q < 3: a("s_add_u32 m0, m0, 1024\ns_add_u32 s60, s60, 7168")
    a(f"s_add_u32 m0, s59, s47\ns_add_u32 s61, s61, s58")
    for u in range(3):
        a(f"buffer_load_dwordx4 v{16+u}, {sr(SWQ)}, s61 offen lds")
        if u < 2: a("s_add_u32 m0, m0, 1024")
    p1_adv(a)

def p1_helper(a):
    XF = 96; CSA = 64; G = 68; SM = 76; SEL = 84; ONES = 88
    vm = VM()
    p1_dma_setup(a, 0)
    a("L_h1_il:")
    p1_issue(a)
    a(f"s_cmp_lt_u32 s47, {2*28672}\ns_cbranch_scc1 L_h1_il")
    p1_adv(a)
    vm.add("s0", 7); vm.add("s1", 7)
    common_setup(a)
    a.stamp(1)
    a(f"""
    s_cmp_lg_u32 s{SW}, 4
    s_cbranch_scc1 L_h_nononce
    s_cmp_lg_u32 s2, 0
    s_cbranch_scc1 L_h_nononce
    s_memrealtime s[{NON}:{NON+1}]
    s_waitcnt lgkmcnt(0)
    s_or_b32 s{NON+1}, s{NON+1}, 0x80000000
    v_mov_b32 v10, s{NON}
    v_mov_b32 v11, s{NON+1}
    v_mov_b32 v9, 0
    s_mov_b64 exec, 1
    buffer_store_dwordx2 v[10:11], v9, {sr(SDBG)}, 0 offen sc1
    s_mov_b64 exec, -1
L_h_nononce:
    s_mul_i32 s60, s{SW3}, 56
    v_add_u32 v8, s60, v8
    v_and_b32 v9, 15, v1
    v_lshrrev_b32 v10, 1, v9
    v_lshrrev_b32 v11, 4, v1
    v_xor_b32 v10, v10, v11
    v_lshlrev_b32 v10, 4, v10
    v_lshl_add_u32 v10, v9, 7, v10
    v_add_u32 v4, s57, v10
    v_xor_b32 v5, 64, v4
    """)
    for r in range(4):
        a(f"v_mov_b32 v{SEL+r}, 0\nv_mov_b32 v{ONES+r}, v15")
    a("s_mov_b32 exec_lo, 0x00020001\ns_mov_b32 exec_hi, 0x00020001")
    for r in range(4):
        a(f"v_mov_b32 v{SEL+r}, v15")
    a(f"s_mov_b64 exec, -1\ns_and_b32 s63, s{SW}, 1")
    def work(c):
        xf = XF + 32 * (c & 1); wf = xf + 16
        for i in range(4):
            th, kh = i & 1, i >> 1
            z = (c == 0 and kh == 0)
            a(f"v_mfma_f32_16x16x32_bf16 {vr(G+4*th)}, {vr(xf+4*i)}, {vr(xf+4*i)}, {'0' if z else vr(G+4*th)}")
            a(f"v_mfma_f32_16x16x32_bf16 {vr(SM+4*th)}, {vr(ONES)}, {vr(xf+4*i)}, {'0' if z else vr(SM+4*th)}")
            a(f"v_mfma_f32_16x16x32_bf16 {vr(CSA)}, {vr(SEL)}, {vr(wf+4*i)}, {'0' if c==0 and i==0 else vr(CSA)}")
    for c in range(7):
        w = vm.wait(f"s{c}")
        if w: a(w)
        a("s_waitcnt lgkmcnt(0)")
        if c in (0, 3, 6): a.stamp(2 + c // 3)
        a.bar(f"p1s{c}")
        if c > 0: rebase(a, c, (4, 5, 8))
        xf = XF + 32 * (c & 1); wf = xf + 16
        for i in range(4):
            a(f"ds_read_b128 {vr(xf+4*i)}, v{4+(i>>1)} offset:{(i&1)*2048}")
        for i in range(4):
            for u in range(2):
                a(f"ds_read_b64_tr_b16 v[{wf+4*i+2*u}:{wf+4*i+2*u+1}], v8 offset:{i*3072+u*768}")
        n = c + 3
        if n <= 6:
            a(f"s_cmp_lg_u32 s63, 0\ns_cbranch_scc1 L_h1_a{c}")
            p1_issue(a)
            a(f"L_h1_a{c}:")
        if c > 0: work(c - 1)
        if n <= 6:
            a(f"s_cmp_eq_u32 s63, 0\ns_cbranch_scc1 L_h1_b{c}")
            p1_issue(a)
            a(f"L_h1_b{c}:")
            vm.add(f"s{n}", 7)
    a("s_waitcnt lgkmcnt(0)")
    work(6)
    a(f"""
    s_lshl_b32 s60, s{SW3}, 8
    s_add_u32 s60, s60, {AUX1}
    v_lshl_add_u32 v9, v9, 2, s60
    s_lshl_b32 s60, s{SW3}, 7
    s_add_u32 s60, s60, {AUX1+1024}
    v_lshl_add_u32 v10, v12, 2, s60
    """)
    for r in range(1, 4):
        m = sum(1 << (20*g + r) for g in range(4))
        a(f"s_mov_b32 exec_lo, {m & 0xffffffff:#x}\ns_mov_b32 exec_hi, {m >> 32:#x}")
        a(f"v_mov_b32 v{G}, v{G+r}\nv_mov_b32 v{G+4}, v{G+4+r}")
    m = sum(15 << (20*g) for g in range(4))
    a(f"s_mov_b32 exec_lo, {m & 0xffffffff:#x}\ns_mov_b32 exec_hi, {m >> 32:#x}")
    for th in range(2):
        mn, sq = SM + 4*th, G + 4*th
        a(f"""
        v_mul_f32 v{mn}, {f2u(1.0/448):#x}, v{mn}
        v_mul_f32 v{sq}, {f2u(1.0/448):#x}, v{sq}
        v_fma_f32 v{sq}, -v{mn}, v{mn}, v{sq}
        v_max_f32 v{sq}, 0, v{sq}
        v_add_f32 v{sq}, {f2u(1e-5):#x}, v{sq}
        v_rsq_f32 v{sq}, v{sq}
        ds_write_b32 v9, v{mn} offset:{64*th}
        s_nop 0
        ds_write_b32 v9, v{sq} offset:{128+64*th}
        """)
    a(f"""
    s_mov_b64 exec, 0xffff
    ds_write_b32 v10, v{CSA}
    ds_write_b32 v10, v{CSA+1} offset:64
    s_mov_b64 exec, -1
    s_waitcnt lgkmcnt(0)
    """)
    a.bar("p1S")
    get_nonce(a, "h")
    a.bar("p1X")

def get_nonce(a, tag):
    a(f"""
    v_mov_b32 v9, 0
    s_mov_b32 s60, 0
L_{tag}_nl:
    buffer_load_dwordx2 v[10:11], v9, {sr(SDBG)}, 0 offen sc1
    s_add_u32 s60, s60, 1
    s_waitcnt vmcnt(0)
    v_readfirstlane_b32 s{NON}, v10
    v_readfirstlane_b32 s{NON+1}, v11
    s_cmp_gt_u32 s60, {POLL_MAX}
    s_cbranch_scc1 L_{tag}_gotnonce
    s_cmp_eq_u32 s{NON+1}, 0
    s_cbranch_scc1 L_{tag}_nl
L_{tag}_gotnonce:
    """)

def publish(a, tag, soff_code):
    a(f"""
    s_cmp_lg_u32 s{SW}, 4
    s_cbranch_scc1 L_pub_{tag}
    {soff_code}
    v_mov_b32 v10, s{NON}
    v_mov_b32 v11, s{NON+1}
    v_mov_b32 v9, 0
    s_mov_b64 exec, 1
    buffer_store_dwordx2 v[10:11], v9, {sr(SWS)}, s60 offen sc1
    s_mov_b64 exec, -1
L_pub_{tag}:
    """)

def poll(a, tag, vaddr, mask_lo, mask_hi=0):
    a(f"""
    s_mov_b32 exec_lo, {mask_lo:#x}
    s_mov_b32 exec_hi, {mask_hi:#x}
    s_mov_b32 s60, 0
L_poll_{tag}:
    buffer_load_dwordx2 v[10:11], v{vaddr}, {sr(SWS)}, 0 offen sc1
    s_add_u32 s60, s60, 1
    s_waitcnt vmcnt(0)
    v_cmp_ne_u64 vcc, s[{NON}:{NON+1}], v[10:11]
    s_cmp_gt_u32 s60, {POLL_MAX}
    s_cbranch_scc1 L_polld_{tag}
    s_cbranch_vccnz L_poll_{tag}
L_polld_{tag}:
    s_mov_b64 exec, -1
    """)

RREG = 106496
AUX2 = RREG + 49152 + 64
WOREG = 49152
SLOT = 8736
def p2_ids(a):
    a(f"""
    s_and_b32 s52, s2, 15                  ; h
    s_lshr_b32 s53, s2, 4                  ; qb
    """)

def p2_compute(a):
    Q = 16; O = 48; S = [112, 128]; P = 144; KV = 152
    p2_ids(a)
    a(f"""
    s_lshl_b32 s54, s52, 6                 ; h*64
    s_lshl_b32 s55, s{SW3}, 4
    s_add_u32 s55, s55, s54
    s_lshl_b32 s55, s55, 12
    s_add_u32 s55, s55, {KVF}
    s_add_u32 s{SKV}, s{SWS}, s55
    s_addc_u32 s{SKV+1}, s{SWS+1}, 0
    s_mov_b32 s{SKV+2}, 65536
    s_mov_b32 s{SKV+3}, 0x00020000
    s_lshl_b32 s55, s53, 2
    s_add_u32 s55, s55, s54                ; h*64 + qb*4
    s_lshl_b32 s56, s52, 8
    s_add_u32 s56, s56, {KN}
    v_lshlrev_b32 v3, 2, v1
    s_mov_b32 s62, 0                       ; pass
    """)
    a.bar("p2P")
    a.stamp(6)
    a(f"buffer_load_dword v5, v3, {sr(SWS)}, s56 offen sc1")
    for j in range(4):
        a(f"""
        s_add_u32 s57, s{SW3}, {j}
        s_and_b32 s57, s57, 3
        s_add_u32 s57, s57, s55
        s_lshl_b32 s57, s57, 11
        buffer_load_dwordx4 {vr(Q+8*j)}, v2, {sr(SWS)}, s57 offen sc1
        buffer_load_dwordx4 {vr(Q+8*j+4)}, v2, {sr(SWS)}, s57 offen offset:1024 sc1
        """)
    a("L_p2_restart:")
    for t in range(13):
        kt, f = divmod(t, 4)
        if f == 0: a(f"s_mov_b32 s57, {kt*4096}")
        a(f"buffer_load_dwordx4 {vr(KV+16*kt+4*f)}, v2, {sr(SKV)}, s57 offen offset:{f*1024} sc1")
    for r in range(64):
        a(f"v_mov_b32 v{O+r}, 0")
    for r in range(4):
        a(f"v_mov_b32 v{P+4+r}, 0\nv_mov_b32 v{KV+48+12+r}, 0")
    a(f"""
    s_cmp_lg_u32 s62, 0
    s_cbranch_scc1 L_p2_havem
    s_waitcnt vmcnt(13)
    v_max_f32_dpp v5, v5, v5 row_shr:1 row_mask:0xf bank_mask:0xf
    v_max_f32_dpp v5, v5, v5 row_shr:2 row_mask:0xf bank_mask:0xf
    v_max_f32_dpp v5, v5, v5 row_shr:4 row_mask:0xf bank_mask:0xf
    v_max_f32_dpp v5, v5, v5 row_shr:8 row_mask:0xf bank_mask:0xf
    v_max_f32_dpp v5, v5, v5 row_bcast:15 row_mask:0xa bank_mask:0xf
    v_max_f32_dpp v5, v5, v5 row_bcast:31 row_mask:0xc bank_mask:0xf
    v_sqrt_f32 v5, v5
    v_mul_f32 v5, {f2u(1.0+1.0/128):#x}, v5
    v_readlane_b32 s58, v5, 63
    s_mov_b32 exec_lo, 0
    """)
    for j in range(4):
        a(f"""
        v_lshlrev_b32 v6, 16, v{Q+8*j+6}
        v_mul_f32 v6, s58, v6
        v_add_u32 v6, 0x8000ffff, v6
        v_lshrrev_b32 v{Q+8*j+6}, 16, v6
        """)
    a("s_mov_b32 exec_lo, -1")
    a.bar("p2Y")
    a(f"""
L_p2_havem:
    s_waitcnt vmcnt(9)
    v_mfma_f32_32x32x16_bf16 {vr(S[0],16)}, {vr(KV)}, {vr(Q)}, 0
    v_mfma_f32_32x32x16_bf16 {vr(S[0],16)}, {vr(KV+4)}, {vr(Q+4)}, {vr(S[0],16)}
    s_mov_b32 s59, 0
    """)
    a.stamp(7)
    a("L_p2_loop:")
    for u in range(16):
        kt, qi = divmod(u, 4)
        ktn, qn = divmod((u + 1) % 16, 4)
        ktp, qp = divmod((u - 1) % 16, 4)
        Sc, Sn = S[u & 1], S[(u + 1) & 1]
        e = lambda r: f"v_exp_f32 v{Sc+r}, v{Sc+r}"
        c = lambda r: f"v_cvt_pk_bf16_f32 v{P+r}, v{Sc+2*r}, v{Sc+2*r+1}"
        A = f"v_mfma_f32_32x32x16_bf16 {vr(Sn,16)}, {vr(KV+16*ktn)}, {vr(Q+8*qn)}, 0"
        B = f"v_mfma_f32_32x32x16_bf16 {vr(O+16*qp,16)}, {vr(KV+16*ktp+12)}, {vr(P+4)}, {vr(O+16*qp,16)}"
        C = f"v_mfma_f32_32x32x16_bf16 {vr(Sn,16)}, {vr(KV+16*ktn+4)}, {vr(Q+8*qn+4)}, {vr(Sn,16)}"
        D = f"v_mfma_f32_32x32x16_bf16 {vr(O+16*qi,16)}, {vr(KV+16*kt+8)}, {vr(P)}, {vr(O+16*qi,16)}"
        if qi == 3: lb, lf = kt, 0
        else: lb, lf = (kt - 1) % 4, qi + 1
        L = f"buffer_load_dwordx4 {vr(KV+16*lb+4*lf)}, v2, {sr(SKV)}, s57 offen offset:{lf*1024} sc1"
        if qi == 3: a("s_waitcnt vmcnt(8)")
        a.emit(A, e(0), e(1), e(2), e(3), c(0), c(1), B, e(4), e(5), e(6), e(7), c(2), c(3), C, L)
        a.emit(e(8), e(9), e(10), e(11), c(4), c(5), D, e(12), e(13), e(14), e(15), c(6), c(7))
        if qi == 2: a("s_add_u32 s57, s57, 4096")
    a(f"""
    s_add_u32 s59, s59, 1
    s_cmp_lt_u32 s59, 4
    s_cbranch_scc1 L_p2_loop
    v_mfma_f32_32x32x16_bf16 {vr(O+48,16)}, {vr(KV+48+12)}, {vr(P+4)}, {vr(O+48,16)}
    """)
    a.stamp(8)
    for j in (1, 2, 3):
        a(f"""
        s_add_u32 s57, s{SW3}, {j}
        s_and_b32 s57, s57, 3
        s_mul_i32 s57, s57, 12288
        s_add_u32 s57, s57, {RREG + (j-1)*4096}
        v_add_u32 v6, s57, v2
        """)
        for q in range(4):
            a(f"ds_write_b128 v6, {vr(O+16*j+4*q)} offset:{q*1024}")
    a(f"""
    s_mul_i32 s57, s{SW3}, 12288
    s_add_u32 s57, s57, {RREG}
    v_add_u32 v6, s57, v2
    v_mov_b32 v9, {AUX2}
    s_waitcnt lgkmcnt(0)
    """)
    a.bar("p2R1")
    a.stamp(9)
    for q in range(12):
        a(f"ds_read_b128 {vr(O+16+4*q)}, v6 offset:{q*1024}")
    for j in range(3):
        a(f"s_waitcnt lgkmcnt({8-4*j})")
        for r in range(16):
            a(f"v_add_f32 v{O+r}, v{O+r}, v{O+16+16*j+r}")
    a(f"""
    v_mov_b32 v10, v{O+12}
    v_mov_b32 v11, v{O+12}
    v_permlane32_swap_b32 v10, v11          ; v11 = l
    v_mov_b32 v10, 0x1f800000
    v_cmp_nge_f32 vcc, v11, v10
    v_rcp_f32 v11, v11
    s_cmp_eq_u64 vcc, 0
    s_cbranch_scc1 L_p2_ok
    v_mov_b32 v10, 1
    ds_write_b32 v9, v10
L_p2_ok:
    """)
    for r in range(16):
        a(f"v_mul_f32 v{O+r}, v{O+r}, v11")
    for r in range(8):
        a(f"v_cvt_pk_bf16_f32 v{P+r}, v{O+2*r}, v{O+2*r+1}")
    a(f"""
    s_mul_i32 s57, s52, 7
    v_add_u32 v10, s57, v13                ; p0 = 7h + hf
    s_lshl_b32 s57, s53, 2
    s_add_u32 s57, s57, s{SW3}
    s_mul_i32 s57, s57, 28672
    s_add_u32 s57, s57, {OF}
    """)
    for i in range(4):
        a(f"""
        v_add_u32 v14, {2*i}, v10
        v_lshrrev_b32 v11, 1, v14
        v_lshlrev_b32 v11, 9, v11
        v_and_b32 v14, 1, v14
        v_lshl_add_u32 v11, v14, 3, v11
        v_lshl_add_u32 v11, v12, 4, v11
        """)
        if i == 3: a("s_mov_b32 exec_hi, 0")
        a(f"buffer_store_dwordx2 v[{P+2*i}:{P+2*i+1}], v11, {sr(SWS)}, s57 offen sc1")
    a("s_mov_b32 exec_hi, -1")
    a.stamp(10)
    a("s_waitcnt vmcnt(0) lgkmcnt(0)")
    a.bar("p2R2")
    a(f"""
    s_cmp_lg_u32 s62, 0
    s_cbranch_scc1 L_p2_done
    ds_read_b32 v10, v9
    s_waitcnt lgkmcnt(0)
    v_readfirstlane_b32 s57, v10
    s_cmp_eq_u32 s57, 0
    s_cbranch_scc1 L_p2_done
    s_mov_b32 s62, 1
    s_mov_b32 exec_lo, 0
    """)
    for j in range(4):
        a(f"v_mov_b32 v{Q+8*j+6}, 0")
    a("s_mov_b32 exec_lo, -1")
    for j in range(4):
        a(f"v_mov_b32 v{O+j}, 0xff800000")
    a(f"""
    s_mov_b32 s57, 0
L_p2_mx:
    buffer_load_dwordx4 {vr(KV)}, v2, {sr(SKV)}, s57 offen sc1
    buffer_load_dwordx4 {vr(KV+4)}, v2, {sr(SKV)}, s57 offen offset:1024 sc1
    s_waitcnt vmcnt(0)
    """)
    for j in range(4):
        a(f"""
        v_mfma_f32_32x32x16_bf16 {vr(S[0],16)}, {vr(KV)}, {vr(Q+8*j)}, 0
        v_mfma_f32_32x32x16_bf16 {vr(S[0],16)}, {vr(KV+4)}, {vr(Q+8*j+4)}, {vr(S[0],16)}
        """)
        for r in range(8):
            a(f"v_max3_f32 v{O+j}, v{S[0]+2*r}, v{S[0]+2*r+1}, v{O+j}")
    a(f"""
    s_add_u32 s57, s57, 4096
    s_cmp_lt_u32 s57, 65536
    s_cbranch_scc1 L_p2_mx
    """)
    for j in range(4):
        a(f"""
        v_mov_b32 v10, v{O+j}
        v_permlane32_swap_b32 v{O+j}, v10
        v_max_f32 v{O+j}, v{O+j}, v10
        s_add_u32 s57, s{SW3}, {j}
        s_and_b32 s57, s57, 3
        s_lshl_b32 s57, s57, 10
        s_add_u32 s57, s57, {RREG}
        v_add_u32 v{O+8+j}, s57, v3
        s_lshl_b32 s58, s{SW3}, 8
        v_add_u32 v10, s58, v{O+8+j}
        ds_write_b32 v10, v{O+j}
        """)
    a("s_waitcnt lgkmcnt(0)\ns_barrier")
    for j in range(4):
        for w in range(4):
            a(f"ds_read_b32 v{O+16+4*j+w}, v{O+8+j} offset:{256*w}")
    a("s_waitcnt lgkmcnt(0)")
    for j in range(4):
        b = O + 16 + 4*j
        a(f"""
        v_max3_f32 v10, v{b}, v{b+1}, v{b+2}
        v_max_f32 v10, v10, v{b+3}
        v_sub_f32 v10, 0, v10
        v_and_b32 v11, 0xffff0000, v10
        v_sub_f32 v14, v10, v11
        v_cvt_pk_bf16_f32 v10, v11, v14
        s_mov_b32 exec_lo, 0
        v_mov_b32 v{Q+8*j+6}, v10
        s_mov_b32 exec_lo, -1
        """)
    a("s_barrier\ns_branch L_p2_restart\nL_p2_done:")
    a.stamp(11)

def late_ids(a):
    a(f"""
    s_lshl_b32 s47, s5, 2
    s_and_b32 s46, s6, 3
    s_add_u32 s47, s47, s46                ; tb
    s_lshr_b32 s46, s6, 2                  ; fb
    s_and_b32 s56, s5, 1
    s_lshl_b32 s56, s56, 3
    s_and_b32 s57, s6, 7
    s_add_u32 s56, s56, s57                ; rb
    s_lshr_b32 s57, s5, 1
    s_lshl_b32 s57, s57, 2
    s_lshr_b32 s60, s6, 3
    s_add_u32 s57, s57, s60                ; cb
    """)

def gu_dma(a, n, tag, vm):
    a(f"""
    s_mov_b32 s61, 0
L_gu_{tag}:
    s_mov_b32 m0, s59
    s_add_u32 s59, s59, {SLOT}
    buffer_load_dwordx4 v20, {sr(SG)}, s58 offen lds
    s_add_u32 m0, m0, 4384
    s_add_u32 s63, s63, 1
    buffer_load_dwordx4 v20, {sr(SU)}, s58 offen lds
    s_add_u32 s58, s58, {16*3584}
    s_cmp_lt_u32 s63, 28
    s_cbranch_scc1 L_gu_{tag}_n
    s_mov_b32 s63, 0
    s_sub_u32 s58, s58, {28*16*3584}
L_gu_{tag}_n:
    s_add_u32 s61, s61, 1
    s_cmp_lt_u32 s61, {n}
    s_cbranch_scc1 L_gu_{tag}
    """)
    vm.add(tag, 2 * n)

def rot4(a, dst):
    a(f"""
    s_lshr_b32 s60, s6, 3
    s_lshl_b32 s60, s60, 1
    s_add_u32 s60, s60, s6
    s_and_b32 s60, s60, 7
    s_mul_i32 s{dst}, s60, 7
    s_lshr_b32 s{dst}, s{dst}, 1
    """)

def p2_helper(a, vm):
    publish(a, "A", f"s_lshl_b32 s60, s53, 7\ns_lshl_b32 s61, s52, 3\ns_add_u32 s60, s60, s61\ns_add_u32 s60, s60, {FA}")
    p2_ids(a)
    a(f"s_cmp_lg_u32 s{SW}, 4\ns_cbranch_scc1 L_h2_np")
    a(f"""
    s_add_u32 s60, s52, 16
    s_mul_i32 s60, s60, 43691
    s_lshr_b32 s60, s60, 17                ; cbK
    s_add_u32 s61, s52, 32
    s_mul_i32 s61, s61, 43691
    s_lshr_b32 s61, s61, 17                ; cbV
    s_mul_i32 s63, s52, 43691
    s_lshr_b32 s63, s63, 17                ; cbQ
    s_lshl_b32 s60, s60, 7
    s_lshl_b32 s61, s61, 7
    s_lshl_b32 s63, s63, 7
    s_lshl_b32 s59, s53, 3
    s_add_u32 s63, s63, s59
    v_and_b32 v16, 15, v1
    v_lshlrev_b32 v16, 3, v16
    v_add_u32 v17, s60, v16
    s_mov_b32 exec_lo, 0xffff0000
    v_add_u32 v17, s61, v16
    s_mov_b32 exec_lo, 0
    v_mov_b32 v17, s63
    s_mov_b32 exec_lo, -1
    v_add_u32 v17, {FA}, v17
    """)
    poll(a, "A", 17, 0xffffffff, 1)
    a("L_h2_np:")
    a.bar("p2P")
    late_ids(a)
    a(f"""
    v_mov_b32 v19, {AUX2}
    v_mov_b32 v10, 0
    ds_write_b32 v19, v10
    s_mov_b32 s62, 0
    v_lshlrev_b32 v2, 4, v1
    v_lshrrev_b32 v9, 3, v1
    v_mul_u32_u24 v9, 896, v9
    v_bfe_u32 v10, v1, 4, 1
    v_lshlrev_b32 v10, 2, v10
    v_and_b32 v11, 7, v1
    v_xor_b32 v10, v10, v11
    v_lshl_add_u32 v21, v10, 4, v9
    v_lshrrev_b32 v9, 4, v1
    v_mul_u32_u24 v9, {4*3584}, v9
    v_and_b32 v10, 15, v1
    v_lshl_add_u32 v20, v10, 4, v9
    """)
    a.bar("p2Y")
    if UPTO >= 5:
        a(f"""
        s_cmp_ge_u32 s6, 28
        s_cbranch_scc1 L_h2_nowd
        s_and_b32 s58, s6, 3
        s_lshl_b32 s58, s58, 2
        s_add_u32 s58, s58, s{SW3}
        s_mul_i32 s58, s58, {14*8*896}
        s_lshl_b32 s59, s46, 7
        s_add_u32 s58, s58, s59
        s_mov_b32 s61, 0
L_h2_wd:
        buffer_load_dwordx4 v[24:27], v21, {sr(SD)}, s58 offen
        s_add_u32 s58, s58, {8*896}
        s_add_u32 s61, s61, 1
        s_waitcnt vmcnt({PFW})
        s_cmp_lt_u32 s61, 14
        s_cbranch_scc1 L_h2_wd
L_h2_nowd:
        """)
    if UPTO >= 3:
        a(f"""
        s_cmp_ge_u32 s6, 28
        s_cbranch_scc1 L_h2_nowo
        s_mul_i32 s58, s{SW3}, {14*8*896}
        s_lshl_b32 s59, s46, 7
        s_add_u32 s58, s58, s59
        s_mul_i32 s59, s{SW3}, 14336
        s_add_u32 m0, s59, {WOREG}
        s_mov_b32 s61, 0
L_h2_wo:
        buffer_load_dwordx4 v21, {sr(SWO)}, s58 offen lds
        s_add_u32 m0, m0, 1024
        s_add_u32 s58, s58, {8*896}
        s_add_u32 s61, s61, 1
        s_waitcnt vmcnt({PFW})
        s_cmp_lt_u32 s61, 14
        s_cbranch_scc1 L_h2_wo
L_h2_nowo:
        """)
    if UPTO >= 4:
        rot4(a, 63)
        a(f"""
        s_lshl_b32 s58, s63, 4
        s_add_u32 s58, s58, s{SW3}
        s_mul_i32 s58, s58, 3584
        s_mul_i32 s59, s57, 224
        s_and_b32 s59, s59, 0xffffffc0
        s_add_u32 s58, s58, s59
        s_mul_i32 s59, s{SW3}, 1088
        """)
        gu_dma(a, 5, "g0", vm)
        a.stamp(7)
    a("s_waitcnt vmcnt(0) lgkmcnt(0)")
    vm.q = []
    a("L_h2_again:")
    a.bar("p2R1")
    a.bar("p2R2")
    a(f"""
    s_cmp_lg_u32 s62, 0
    s_cbranch_scc1 L_h2_done
    ds_read_b32 v10, v19
    s_waitcnt lgkmcnt(0)
    v_readfirstlane_b32 s60, v10
    s_cmp_eq_u32 s60, 0
    s_cbranch_scc1 L_h2_done
    s_mov_b32 s62, 1
    s_barrier
    s_barrier
    s_branch L_h2_again
L_h2_done:
    """)

def tr128_addr(a, dst, sft, sxh):
    a(f"""
    v_bfe_u32 v9, v1, 2, 2                 ; r
    v_lshl_add_u32 v10, v13, 3, v9         ; 8hf + r
    v_lshlrev_b32 v10, 7, v10
    v_lshrrev_b32 v9, 1, v9
    v_xor_b32 v9, s{sft}, v9
    v_lshl_add_u32 v10, v9, 6, v10         ; half ^ (r>>1)
    v_bfe_u32 v9, v1, 4, 1                 ; ch
    {f"v_xor_b32 v9, s{sxh}, v9" if sxh else ""}
    v_lshl_add_u32 v10, v9, 5, v10
    v_and_b32 v9, 1, v1
    v_lshl_add_u32 v10, v9, 4, v10
    v_bfe_u32 v9, v1, 1, 1
    v_lshl_add_u32 v{dst}, v9, 3, v10
    """)

def p3_compute(a):
    ACC = 16; AF = 64; BF = 32; XR = 176; T = 184
    late_ids(a)
    a(f"""
    s_cmp_ge_u32 s6, 28
    s_cbranch_scc1 L_p3_skipA
    s_and_b32 s52, s{SW3}, 1               ; tt_l
    s_lshr_b32 s53, s{SW3}, 1              ; ft_l
    s_lshl_b32 s54, s47, 1
    s_add_u32 s54, s54, s52                ; tt
    s_lshl_b32 s55, s46, 1
    s_add_u32 s55, s55, s53                ; ft
    v_mul_u32_u24 v3, 896, v12
    v_lshl_add_u32 v3, v13, 4, v3
    s_mul_i32 s60, s54, {32*896}
    s_lshl_b32 s61, s55, 6
    s_add_u32 s60, s60, s61
    buffer_load_dwordx4 {vr(XR)}, v3, {sr(SX)}, s60 offen
    buffer_load_dwordx4 {vr(XR+4)}, v3, {sr(SX)}, s60 offen offset:32
    """)
    tr128_addr(a, 4, 53, None)
    a(f"""
    s_lshl_b32 s60, s46, 13
    s_add_u32 s60, s60, {WOREG}
    v_add_u32 v4, s60, v4
    s_mul_i32 s60, s52, 28672
    s_add_u32 s60, s60, {RREG}
    v_add_u32 v5, s60, v2
    """)
    for g in range(7):
        if g > 0:
            a(f"""
            s_add_u32 s60, s46, {g}
            s_cmp_eq_u32 s60, 7
            s_cselect_b32 s60, {(8192 - 57344) & 0xffffffff:#x}, 8192
            v_add_u32 v4, s60, v4
            """.replace("s_cselect_b32 s60, 0xffff4000, 8192", "s_mov_b32 s60, 8192\ns_cselect_b32 s60, 0xffff4000, s60"))
        for q in range(4):
            for u in range(2):
                b = AF + 16*g + 4*q + 2*u
                a(f"ds_read_b64_tr_b16 v[{b}:{b+1}], v4 offset:{q*2048+u*512}")
        a("s_waitcnt lgkmcnt(4)")
    a("s_waitcnt lgkmcnt(0)\nL_p3_skipA:")
    a.bar("p3A")
    a.stamp(12)
    a("s_cmp_ge_u32 s6, 28\ns_cbranch_scc1 L_p3_skipB")
    a.bar("p3P")
    for st in range(4):
        a.bar(f"p3s{st}")
        if st == 0: a.stamp(13)
        for q in range(7):
            a(f"ds_read_b128 {vr(BF+4*q)}, v5 offset:{(7*st+q)*1024}")
        for q in range(7):
            p = 7*st + q
            a(f"s_waitcnt lgkmcnt({6-q})")
            a(f"v_mfma_f32_32x32x16_bf16 {vr(ACC,16)}, {vr(AF+4*p)}, {vr(BF+4*q)}, {'0' if p==0 else vr(ACC,16)}")
    a.stamp(14)
    a("s_waitcnt vmcnt(0)")
    for r in range(8):
        a(f"v_lshlrev_b32 v{T+2*r}, 16, v{XR+r}\nv_and_b32 v{T+2*r+1}, 0xffff0000, v{XR+r}")
    for r in range(16):
        a(f"v_add_f32 v{ACC+r}, v{ACC+r}, v{T+r}")
    for r in range(8):
        a(f"v_cvt_pk_bf16_f32 v{BF+r}, v{ACC+2*r}, v{ACC+2*r+1}")
    a(f"""
    s_mul_i32 s60, s54, 28672
    s_lshl_b32 s61, s55, 11
    s_add_u32 s60, s60, s61
    s_add_u32 s60, s60, {HF}
    buffer_store_dwordx4 {vr(BF)}, v2, {sr(SWS)}, s60 offen sc1
    buffer_store_dwordx4 {vr(BF+4)}, v2, {sr(SWS)}, s60 offen offset:1024 sc1
    v_mov_b32 v6, 0
    v_mov_b32 v7, 0
    """)
    for r in range(8):
        a(f"v_dot2c_f32_bf16 v6, v{BF+r}, v15\nv_dot2c_f32_bf16 v7, v{BF+r}, v{BF+r}")
    a(f"""
    v_mov_b32 v8, v6
    v_mov_b32 v9, v7
    v_permlane32_swap_b32 v6, v8
    v_permlane32_swap_b32 v7, v9
    v_add_f32 v6, v6, v8
    v_add_f32 v7, v7, v9
    s_mul_i32 s60, s54, 14
    s_add_u32 s60, s60, s55
    s_lshl_b32 s60, s60, 8
    s_add_u32 s60, s60, {ST}
    v_lshlrev_b32 v8, 3, v1
    s_mov_b32 exec_hi, 0
    buffer_store_dwordx2 v[6:7], v8, {sr(SWS)}, s60 offen sc1
    s_mov_b32 exec_hi, -1
    """)
    a.stamp(15)
    a("s_waitcnt vmcnt(0)\nL_p3_skipB:")
    a.bar("p3X")
    a.stamp(16)

def p3_helper(a, vm):
    publish(a, "B", f"s_lshl_b32 s60, s53, 7\ns_lshl_b32 s61, s52, 3\ns_add_u32 s60, s60, s61\ns_add_u32 s60, s60, {FB}")
    a.bar("p3A")
    if UPTO >= 4: gu_dma(a, 7, "g1", vm)
    a.stamp(12)
    a(f"""
    s_cmp_ge_u32 s6, 28
    s_cbranch_scc1 L_h3_skip
    s_lshr_b32 s60, s47, 1
    s_lshl_b32 s60, s60, 7
    s_add_u32 s60, s60, {FB}
    v_lshl_add_u32 v17, v1, 3, s60
    s_cmp_lg_u32 s{SW}, 4
    s_cbranch_scc1 L_h3_np
    """)
    poll(a, "B", 17, 0xffff)
    a("L_h3_np:")
    a.bar("p3P")
    a.stamp(13)
    a(f"""
    s_and_b32 s52, s{SW3}, 1
    s_lshr_b32 s53, s{SW3}, 1
    s_lshl_b32 s54, s47, 1
    s_add_u32 s54, s54, s52
    s_mul_i32 s54, s54, 28672
    s_add_u32 s54, s54, {OF}
    s_lshl_b32 s55, s46, 2
    s_add_u32 s55, s55, s53
    s_mul_i32 s60, s52, 28672
    s_lshl_b32 s61, s53, 10
    s_add_u32 s60, s60, s61
    s_add_u32 m0, s60, {RREG}
    s_mov_b32 s61, 0
L_h3_o:
    s_lshl_b32 s60, s55, 10
    s_add_u32 s60, s60, s54
    buffer_load_dwordx4 v2, {sr(SWS)}, s60 offen sc1 lds
    s_add_u32 m0, m0, 2048
    s_add_u32 s55, s55, 2
    s_cmp_lt_u32 s55, 28
    s_cbranch_scc1 L_h3_on
    s_sub_u32 s55, s55, 28
L_h3_on:
    s_add_u32 s61, s61, 1
    s_cmp_lt_u32 s61, 14
    s_cbranch_scc1 L_h3_o
    """)
    for st, n in enumerate((3, 6, 10, 13)):
        a(f"s_waitcnt vmcnt({13-n})")
        a.bar(f"p3s{st}")
    a("L_h3_skip:")
    a.bar("p3X")

NBW = 8
def p4_compute(a):
    ACC = 16; AF = 128; BF = 156; T = 188; OUT = 196; STT = 204
    RS, CC = 6, 7
    vm = VM()
    a(f"""
    s_lshl_b32 s54, s56, 2
    s_add_u32 s54, s54, s{SW3}             ; tt
    s_mul_i32 s55, s54, 28672
    s_add_u32 s55, s55, {HF}
    """)
    rot4(a, 58)
    a(f"""
    v_bfe_u32 v9, v1, 2, 2
    v_mul_u32_u24 v10, 1088, v9
    v_lshl_add_u32 v10, v13, 9, v10
    v_and_b32 v9, 1, v1
    v_lshl_add_u32 v10, v9, 4, v10
    v_bfe_u32 v9, v1, 4, 1
    v_lshl_add_u32 v10, v9, 3, v10
    v_bfe_u32 v9, v1, 1, 1
    v_mul_u32_u24 v9, 4384, v9
    v_add_u32 v10, v10, v9
    s_mul_i32 s60, s57, 224
    s_and_b32 s60, s60, 63
    v_add_u32 v4, s60, v10
    v_mul_u32_u24 v5, {7*256}, v13
    v_lshl_add_u32 v5, v12, 3, v5
    s_mul_i32 s59, s54, {14*256}
    s_add_u32 s59, s59, {ST}
    """)
    base = [0]
    def tr(p, j):
        L = []
        slot = p % 18
        off = slot * SLOT - base[0]
        if j == 0 and (off < 0 or off + SLOT > 65536):
            d = slot * SLOT - base[0]
            L.append(f"v_add_u32 v4, {d & 0xffffffff:#x}, v4")
            base[0] = slot * SLOT; off = 0
        for u in range(2):
            b = AF + 4*j + 2*u
            L.append(f"ds_read_b64_tr_b16 v[{b}:{b+1}], v4 offset:{off + u*256 + j*32}")
        return L
    for j in range(7): a.emit(*tr(0, j))
    a.bar("p4P")
    a.stamp(17)
    for q in range(7):
        a(f"buffer_load_dwordx2 v[{STT+2*q}:{STT+2*q+1}], v5, {sr(SWS)}, s59 offen offset:{q*256} sc1")
    vm.add("st", 7)
    def bload(p):
        vm.add(f"b{p}")
        return [f"s_lshl_b32 s60, s58, 10", "s_add_u32 s60, s60, s55",
                f"buffer_load_dwordx4 {vr(BF+4*(p%NBW))}, v2, {sr(SWS)}, s60 offen sc1",
                "s_add_u32 s58, s58, 1", "s_cmp_eq_u32 s58, 28", "s_cselect_b32 s58, 0, s58"]
    for p in range(NBW): a.emit(*bload(p))
    a(vm.wait("st"))
    for q in (1, 2, 3):
        a(f"v_add_f32 v{STT+2*q}, v{STT+2*q}, v{STT+2*q+6}\nv_add_f32 v{STT+2*q+1}, v{STT+2*q+1}, v{STT+2*q+7}")
    a(f"""
    v_add_f32 v{STT}, v{STT}, v{STT+2}
    v_add_f32 v{STT+1}, v{STT+1}, v{STT+3}
    v_add_f32 v{STT+4}, v{STT+4}, v{STT+6}
    v_add_f32 v{STT+5}, v{STT+5}, v{STT+7}
    v_add_f32 v{STT}, v{STT}, v{STT+4}
    v_add_f32 v{STT+1}, v{STT+1}, v{STT+5}
    v_mov_b32 v{STT+2}, v{STT}
    v_mov_b32 v{STT+3}, v{STT+1}
    v_permlane32_swap_b32 v{STT}, v{STT+2}
    v_permlane32_swap_b32 v{STT+1}, v{STT+3}
    v_add_f32 v{STT}, v{STT}, v{STT+2}
    v_add_f32 v{STT+1}, v{STT+1}, v{STT+3}
    v_mul_f32 v{STT}, {f2u(1.0/448):#x}, v{STT}
    v_mul_f32 v{STT+1}, {f2u(1.0/448):#x}, v{STT+1}
    v_fma_f32 v{STT+1}, -v{STT}, v{STT}, v{STT+1}
    v_max_f32 v{STT+1}, 0, v{STT+1}
    v_add_f32 v{STT+1}, {f2u(1e-5):#x}, v{STT+1}
    v_rsq_f32 v{RS}, v{STT+1}
    v_mul_f32 v{CC}, v{STT}, v{RS}
    v_sub_f32 v{CC}, 0, v{CC}
    """)
    def norm(p):
        f = BF + 4*(p % NBW)
        L = []
        for i in range(4):
            L += [f"v_lshlrev_b32 v{T+2*i}, 16, v{f+i}", f"v_and_b32 v{T+2*i+1}, 0xffff0000, v{f+i}"]
        for i in range(8):
            L.append(f"v_fma_f32 v{T+i}, v{T+i}, v{RS}, v{CC}")
        for i in range(4):
            L.append(f"v_cvt_pk_bf16_f32 v{f+i}, v{T+2*i}, v{T+2*i+1}")
        return L
    a(vm.wait("b0"))
    a.emit(*norm(0))
    a.stamp(18)
    for p in range(28):
        if p in (4, 10, 16, 20): a.bar(f"p4b{p}")
        nrm = norm(p + 1) if p < 27 else []
        for j in range(7):
            if j == 0: a("s_waitcnt lgkmcnt(6)")
            if j == 4: a(f"s_waitcnt lgkmcnt({8 if p < 27 else 0})")
            a(f"v_mfma_f32_32x32x16_bf16 {vr(ACC+16*j,16)}, {vr(AF+4*j)}, {vr(BF+4*(p%NBW))}, {'0' if p==0 else vr(ACC+16*j,16)}")
            if p < 27: a.emit(*tr(p + 1, j))
            if j == 0:
                if p >= 1 and p - 1 + NBW < 28: a.emit(*bload(p - 1 + NBW))
                if p < 27: a(vm.wait(f"b{p+1}"))
            else:
                k0 = [0, 4, 8, 11, 14, 17, 20]
                a.emit(*nrm[k0[j-1]:k0[j]])
    a.stamp(19)
    a.bar("p4E")
    a(f"""
    s_mul_i32 s60, s54, {112*1024}
    s_mul_i32 s61, s57, 7168
    s_add_u32 s60, s60, s61
    s_add_u32 s60, s60, {HH}
    """)
    for j in range(7):
        acc = ACC + 16*j; o = OUT + 4*(j & 1)
        for g in range(2):
            for c in range(4):
                a(f"v_max_f32 v{acc+8*g+c}, 0, v{acc+8*g+c}")
            for c in range(4):
                a(f"v_mul_f32 v{acc+8*g+c}, v{acc+8*g+c}, v{acc+8*g+4+c}")
            a(f"v_cvt_pk_bf16_f32 v{o+2*g}, v{acc+8*g}, v{acc+8*g+1}")
            a(f"v_cvt_pk_bf16_f32 v{o+2*g+1}, v{acc+8*g+2}, v{acc+8*g+3}")
        if j == 4: a("s_add_u32 s60, s60, 4096")
        a(f"buffer_store_dwordx4 {vr(o)}, v2, {sr(SWS)}, s60 offen offset:{(j%4)*1024} sc1")
    a.stamp(21)
    if UPTO >= 5: p5_pre(a, "c")
    a("s_waitcnt vmcnt(0)")
    a.bar("p4X")
    a.stamp(23)

B1 = 10 * SLOT
def wd_dma(a, n, tag, vm, dst_code):
    a(f"""
    s_cmp_ge_u32 s6, 28
    s_cbranch_scc1 L_wd_{tag}_skip
    {dst_code}
    s_mov_b32 s61, 0
L_wd_{tag}:
    s_mul_i32 s60, s58, {16*896}
    s_add_u32 s60, s60, s59
    buffer_load_dwordx4 v21, {sr(SD)}, s60 offen lds
    s_add_u32 m0, m0, 1024
    s_add_u32 s60, s60, {8*896}
    s_add_u32 s58, s58, 1
    buffer_load_dwordx4 v21, {sr(SD)}, s60 offen lds
    s_add_u32 m0, m0, 1024
    s_cmp_eq_u32 s58, 28
    s_cselect_b32 s58, 0, s58
    s_add_u32 s61, s61, 1
    s_cmp_lt_u32 s61, {n}
    s_cbranch_scc1 L_wd_{tag}
L_wd_{tag}_skip:
    """)
    vm.add(tag, 2 * n)

def p4_helper(a, vm):
    a("s_cmp_ge_u32 s6, 28\ns_cbranch_scc1 L_pub_C")
    publish(a, "C", f"""s_lshr_b32 s60, s47, 1
    s_lshl_b32 s60, s60, 7
    s_and_b32 s61, s47, 1
    s_mul_i32 s61, s61, 7
    s_add_u32 s61, s61, s46
    s_lshl_b32 s61, s61, 3
    s_add_u32 s60, s60, s61
    s_add_u32 s60, s60, {FC}""")
    gu_dma(a, 6, "g2", vm)
    a(f"""
    s_sub_u32 s59, s59, {18*SLOT}
    s_cmp_lg_u32 s{SW}, 4
    s_cbranch_scc1 L_h4_np
    s_lshl_b32 s60, s56, 7
    s_add_u32 s60, s60, {FC}
    v_lshl_add_u32 v17, v1, 3, s60
    """)
    a.stamp(16)
    poll(a, "C", 17, 0x3fff)
    a("L_h4_np:")
    a.bar("p4P")
    a(vm.wait("g1"))
    a.bar("p4b4")
    gu_dma(a, 4, "g3", vm)
    a(vm.wait("g2"))
    a.bar("p4b10")
    gu_dma(a, 6, "g4", vm)
    a(vm.wait("g3"))
    a.bar("p4b16")
    a(vm.wait("g4"))
    a.bar("p4b20")
    if UPTO >= 5:
        a(f"""
        s_lshl_b32 s58, s46, 2
        s_mul_i32 s59, s{SW3}, {28*16*896}
        s_lshl_b32 s60, s46, 7
        s_add_u32 s59, s59, s60
        """)
        wd_dma(a, 8, "w1", vm, f"s_lshl_b32 s60, s{SW3}, 14\ns_add_u32 m0, s60, {B1}")
        a("s_waitcnt vmcnt(0)")
        vm.q = []
    a.bar("p4E")
    if UPTO >= 5:
        wd_dma(a, 10, "w2", vm, f"s_mul_i32 m0, s{SW3}, 20480")
        p5_pre(a, "h")
    a.bar("p4X")

P5_ACC, P5_A1, P5_AF, P5_B, P5_HR = 24, 56, 120, 136, 248
def p5_pre(a, tag):
    a(f"""
    s_cmp_ge_u32 s6, 28
    s_cbranch_scc1 L_p5pre_{tag}
    s_lshr_b32 s52, s{SW3}, 1              ; kq>>1
    s_and_b32 s53, s{SW3}, 1               ; kq&1
    """)
    tr128_addr(a, 4, 52, 53)
    a(f"""
    v_xor_b32 v5, 64, v4
    s_lshl_b32 s60, s{SW3}, 14
    s_add_u32 s60, s60, {B1}
    v_add_u32 v6, s60, v4
    v_add_u32 v7, s60, v5
    """)
    for p in range(8):
        for f in range(2):
            for u in range(2):
                b = P5_A1 + 8*p + 4*f + 2*u
                a(f"ds_read_b64_tr_b16 v[{b}:{b+1}], v{6+f} offset:{p*2048+u*512}")
        if p % 2 == 1: a("s_waitcnt lgkmcnt(4)")
    a(f"s_waitcnt lgkmcnt(0)\nL_p5pre_{tag}:")

def p5_main(a, tag, vmpre):
    ACC, A1, AF, B, HR = P5_ACC, P5_A1, P5_AF, P5_B, P5_HR
    vm = VM()
    a(f"""
    s_lshr_b32 s52, s{SW}, 2               ; tt_l
    s_lshl_b32 s54, s47, 1
    s_add_u32 s54, s54, s52                ; tt
    s_mul_i32 s55, s54, {112*1024}
    s_mul_i32 s60, s{SW3}, 28672
    s_add_u32 s55, s55, s60
    s_add_u32 s55, s55, {HH}
    s_lshl_b32 s63, s46, 2
    s_add_u32 s63, s63, s{SW3}
    s_mul_i32 s60, s54, 28672
    s_lshl_b32 s61, s63, 10
    s_add_u32 s60, s60, s61
    s_add_u32 s60, s60, {HF}
    buffer_load_dwordx4 {vr(HR)}, v2, {sr(SWS)}, s60 offen sc1
    s_mul_i32 s60, s{SW3}, 20480
    v_add_u32 v6, s60, v4
    v_add_u32 v7, s60, v5
    s_lshr_b32 s60, s47, 1
    s_lshl_b32 s60, s60, 7
    s_add_u32 s60, s60, {FD}
    v_lshl_add_u32 v17, v1, 3, s60
    s_mov_b32 s53, s46
    """)
    if tag == "h":
        a(f"s_cmp_lg_u32 s{SW}, 4\ns_cbranch_scc1 L_h5_np")
        a.stamp(23)
        poll(a, "D" + tag, 17, 0xffff)
        a("L_h5_np:")
    a.bar("p5P")
    a.stamp(24)
    def bgrp(g):
        a(f"s_lshl_b32 s60, s53, 12\ns_add_u32 s60, s60, s55")
        for q in range(4):
            a(f"buffer_load_dwordx4 {vr(B+16*g+4*q)}, v2, {sr(SWS)}, s60 offen offset:{q*1024} sc1")
            vm.add(f"b{4*g+q}")
        a("s_add_u32 s53, s53, 1\ns_cmp_eq_u32 s53, 7\ns_cselect_b32 s53, 0, s53")
    def rd(p):
        L = []
        if p == 18: L += ["v_add_u32 v6, 81920, v6", "v_add_u32 v7, 81920, v7"]
        off = ((p - 8) % 10) * 2048
        for f in range(2):
            for u in range(2):
                b = AF + 8*(p & 1) + 4*f + 2*u
                L.append(f"ds_read_b64_tr_b16 v[{b}:{b+1}], v{6+f} offset:{off+u*512}")
        return L
    bgrp(0); bgrp(1); bgrp(2)
    for p in range(28):
        if p % 4 == 0 and p // 4 + 3 < 7: bgrp(p // 4 + 3)
        if p == 7: a.bar("p5W")
        if 8 <= p + 1 < 28: a.emit(*rd(p + 1))
        a(vm.wait(f"b{p}"))
        if p >= 8: a(f"s_waitcnt lgkmcnt({4 if p < 27 else 0})")
        for f in range(2):
            A = vr(A1 + 8*p + 4*f) if p < 8 else vr(AF + 8*(p & 1) + 4*f)
            a(f"v_mfma_f32_32x32x16_bf16 {vr(ACC+16*f,16)}, {A}, {vr(B+4*p)}, {'0' if p==0 else vr(ACC+16*f,16)}")
    a.stamp(25)
    a.bar("p5R0")
    for j in (1, 2, 3):
        a(f"""
        s_xor_b32 s60, s{SW}, {j}
        s_mul_i32 s60, s60, 6144
        v_add_u32 v8, s60, v2
        ds_write_b128 v8, {vr(ACC+8*j)} offset:{(j-1)*2048}
        ds_write_b128 v8, {vr(ACC+8*j+4)} offset:{(j-1)*2048+1024}
        """)
    a(f"""
    s_mul_i32 s60, s{SW}, 6144
    v_add_u32 v8, s60, v2
    v_mul_u32_u24 v3, 896, v12
    v_lshl_add_u32 v3, v13, 4, v3
    s_mul_i32 s60, s54, {32*896}
    s_lshl_b32 s61, s63, 5
    s_add_u32 s60, s60, s61
    """)
    for r in range(4):
        a(f"v_lshlrev_b32 v{A1+2*r}, 16, v{HR+r}\nv_and_b32 v{A1+2*r+1}, 0xffff0000, v{HR+r}")
    for r in range(8):
        a(f"v_add_f32 v{ACC+r}, v{ACC+r}, v{A1+r}")
    a("s_waitcnt lgkmcnt(0)")
    a.bar("p5R1")
    for q in range(6):
        a(f"ds_read_b128 {vr(B+4*q)}, v8 offset:{q*1024}")
    for j in range(3):
        a(f"s_waitcnt lgkmcnt({4-2*j})")
        for r in range(8):
            a(f"v_add_f32 v{ACC+r}, v{ACC+r}, v{B+8*j+r}")
    for r in range(4):
        a(f"v_cvt_pk_bf16_f32 v{A1+r}, v{ACC+2*r}, v{ACC+2*r+1}")
    a(f"buffer_store_dwordx4 {vr(A1)}, v3, {sr(SOUT)}, s60 offen")
    a.stamp(26)

def p5_compute(a):
    a("s_cmp_ge_u32 s6, 28\ns_cbranch_scc1 L_p5_skip_c")
    p5_main(a, "c", None)
    a("L_p5_skip_c:")

def p5_helper(a, vm):
    publish(a, "D", f"s_lshl_b32 s60, s56, 7\ns_lshl_b32 s61, s57, 3\ns_add_u32 s60, s60, s61\ns_add_u32 s60, s60, {FD}")
    wd_dma(a, 10, "w3", vm, f"s_mul_i32 s60, s{SW3}, 20480\ns_add_u32 m0, s60, 81920")
    a("s_cmp_ge_u32 s6, 28\ns_cbranch_scc1 L_p5_skip_h")
    p5_main(a, "h", vm)
    a("L_p5_skip_h:")

def build(path):
    a = Asm()
    prologue(a)
    C = Role("c"); H = Role("h")
    p1_compute(C); p1_helper(H)
    vm = VM()
    p2_compute(C); p2_helper(H, vm)
    if UPTO >= 3: p3_compute(C); p3_helper(H, vm)
    if UPTO >= 4: p4_compute(C); p4_helper(H, vm)
    if UPTO >= 5: p5_compute(C); p5_helper(H, vm)
    assert C.bars == H.bars, (C.bars, H.bars)
    XV = os.environ.get("XV", "")
    if "nodot" in XV: H.lines = [l for l in H.lines if not l.startswith("v_dot2c")]
    if "nohm" in XV: H.lines = [l for l in H.lines if not l.startswith("v_mfma")]
    if "nohds" in XV: H.lines = [l for l in H.lines if not (l.startswith("ds_read_b128") or l.startswith("ds_read_b64_tr"))]
    if "notr" in XV: C.lines = [l for l in C.lines if not l.startswith("ds_read_b64_tr")]
    a.lines += H.lines
    stamp_end(a)
    a("s_endpgm\nL_compute:")
    a.lines += C.lines
    stamp_end(a)
    a("L_end:\ns_endpgm")
    gen1.kernels.clear()
    gen1.DIAG = 0
    if UPTO < 5: gen1.gen_p0()
    gen1.kernels.append((KNAME, a.finish(True), 256, 256, 102, 256, 512, 163840))
    if UPTO < 3: gen1.gen_p3()
    if UPTO < 4: gen1.gen_p4()
    if UPTO < 5: gen1.gen_p5()
    gen1.write(path)

if __name__ == "__main__":
    build(sys.argv[1] if len(sys.argv) > 1 else f"cdna_kernels/{NAME}.s")
```

```python
import sys, math, os, struct
from asmlib import Asm

NAME = "sequential_preLN__softmax_full_mha__glu_gated_reglu__prompt"
KNAME = NAME + "_kernel"
E = lambda k, d: int(os.environ.get(k, d))
DIAG = E("DIAG", 0)
PFW = E("PFW", 3)
ROTG = E("ROTG", 2)
XV = os.environ.get("XV", "")
POLL_MAX = 40000

def f2u(x): return struct.unpack('<I', struct.pack('<f', x))[0]
def vr(b, n=4): return f"v[{b}:{b+n-1}]"
def sr(b): return f"s[{b}:{b+3}]"

QF, KVF, FL, OF, HF, ST, HH, TS = 0x000000, 0x200000, 0x600000, 0x700000, 0x900000, 0xB00000, 0xC00000, 0x4000000
WS_BYTES = 0x10000000
FA, FB, FC, FD, FT = FL, FL + 0x40000, FL + 0x48000, FL + 0x50000, FL + 0x60000
WGU = 0x1400000
SW, SW3 = 3, 4
SX, SWQ, SWO, SWS, SG, SU, SD, SOUT, SDBG = 8, 12, 16, 20, 24, 28, 32, 36, 40
NON, SKV = 44, 48
AUX1 = 161792
CS1, KN1, CSP, TSTG = AUX1 + 1024, AUX1 + 1536, 159744, 143360
TF = E('TF', 0)
SLOT = 7168 if TF else 8736
NSLOT = 20 if TF else 18
WOREG = 35072
GAP = WOREG + 57344
AUX2 = 97280
RREG = 98304
B1 = 8 * SLOT if TF else 10 * SLOT
NA5 = 19

class Role(Asm):
    def __init__(self, tag):
        super().__init__(); self.tag = tag; self.bars = []
    def bar(self, name):
        self.bars.append(name); self("s_barrier")
    def stamp(self, i):
        if DIAG:
            self(f"s_memtime s[100:101]\ns_waitcnt lgkmcnt(0)\ns_mov_b32 s{64+i}, s100")

class VM:
    def __init__(self): self.q = []
    def add(self, tag, n=1): self.q += [tag] * n
    def wait(self, tag):
        idx = [i for i, t in enumerate(self.q) if t == tag]
        if not idx: return ""
        n = len(self.q) - 1 - idx[-1]
        self.q = self.q[idx[-1] + 1:]
        assert n <= 63
        return f"s_waitcnt vmcnt({n})"

def stamp_end(a):
    if DIAG:
        a(f"""
        s_mov_b64 exec, -1
        s_waitcnt vmcnt(0) lgkmcnt(0)
        s_memtime s[100:101]
        s_memrealtime s[98:99]
        s_waitcnt lgkmcnt(0)
        s_mov_b32 s93, s100
        s_mov_b32 s94, s96
        s_mov_b32 s95, s98
        s_lshl_b32 s60, s2, 3
        s_add_u32 s60, s60, s{SW}
        s_lshl_b32 s60, s60, 7
        s_add_u32 s60, s60, {TS}
        v_mov_b32 v0, 0
        """)
        for i in range(32):
            a(f"v_mov_b32 v{4+i}, s{64+i}")
        a("s_mov_b64 exec, 1")
        for i in range(8):
            a(f"buffer_store_dwordx4 v[{4+4*i}:{7+4*i}], v0, {sr(SWS)}, s60 offen offset:{16*i}")

def setexec(a, m):
    a(f"s_mov_b32 exec_lo, {m & 0xffffffff:#x}\ns_mov_b32 exec_hi, {m >> 32:#x}")

def prologue(a):
    if DIAG:
        a("s_memrealtime s[96:97]\ns_memtime s[100:101]")
    a(f"""
    s_cmp_ge_u32 s2, 256
    s_cbranch_scc1 L_end
    s_load_dwordx16 s[64:79], s[0:1], 0
    s_load_dwordx4 s[80:83], s[0:1], 64
    s_getpc_b64 s[6:7]
    s_lshr_b32 s5, s2, 3
    s_and_b32 s5, s5, 7
    s_lshl_b32 s5, s5, 13
    v_lshl_add_u32 v1, v0, 4, s5
    v_min_u32 v1, L_end-{KNAME}-16, v1
    s_and_b32 s6, s6, 0xffffff00
    global_load_dwordx4 v[252:255], v1, s[6:7]
    v_lshrrev_b32 v1, 6, v0
    v_readfirstlane_b32 s{SW}, v1
    v_and_b32 v1, 63, v0                   ; lane
    s_and_b32 s5, s2, 7                    ; xcd
    s_lshr_b32 s6, s2, 3                   ; i
    s_and_b32 s{SW3}, s{SW}, 3
    s_lshr_b32 s52, s5, 1
    s_lshl_b32 s52, s52, 2
    s_and_b32 s53, s6, 3
    s_add_u32 s52, s52, s53                ; rb
    s_and_b32 s53, s5, 1
    s_lshl_b32 s53, s53, 3
    s_lshr_b32 s54, s6, 2
    s_add_u32 s53, s53, s54                ; cb
    s_lshl_b32 s54, s52, 2
    s_add_u32 s54, s54, s{SW3}             ; tt
    s_and_b32 s55, s53, 1
    s_lshl_b32 s55, s55, 3                 ; colshift
    s_mov_b32 s{SX+2}, {2048*896:#x}
    s_mov_b32 s{SX+3}, 0x00020000
    s_mov_b32 s{SWQ+2}, {448*2688:#x}
    s_mov_b32 s{SWQ+3}, 0x00020000
    v_lshrrev_b32 v2, 3, v1
    v_mul_u32_u24 v2, 896, v2
    v_lshrrev_b32 v3, 4, v1
    v_and_b32 v9, 7, v1
    v_xor_b32 v3, v3, v9
    v_lshl_add_u32 v2, v3, 4, v2
    v_xor_b32 v3, 64, v2
    s_mul_i32 s56, s54, {32*896}
    s_lshl_b32 s57, s{SW3}, 12
    """)
    for u in range(3):
        a(f"""
        v_add_u32 v9, {64*u}, v1
        v_mul_u32_u24 v10, 43691, v9
        v_lshrrev_b32 v10, 19, v10
        v_mul_u32_u24 v11, 12, v10
        v_sub_u32 v11, v9, v11
        v_min_u32 v11, 10, v11
        v_mul_u32_u24 v10, 2688, v10
        v_lshl_add_u32 v{16+u}, v11, 4, v10
        """)
    magic = (65536 + ROTG - 1) // ROTG
    assert all((i * magic) >> 16 == i // ROTG for i in range(32))
    a(f"""
    s_mul_i32 s58, s53, 168
    s_sub_u32 s58, s58, s55
    s_mul_i32 s59, s{SW3}, {16*2688}
    s_add_u32 s58, s58, s59
    s_mul_i32 s59, s{SW3}, 3072
    s_add_u32 s59, s59, 16384
    s_mul_i32 s46, s6, {magic}
    s_lshr_b32 s46, s46, 16
    s_mul_i32 s46, s46, {ROTG}
    s_sub_u32 s46, s6, s46                 ; i mod G
    s_mul_i32 s46, s46, {(7*256)//ROTG}
    s_lshr_b32 s46, s46, 8
    s_mov_b32 s47, 0
    s_waitcnt lgkmcnt(0)
    s_mov_b64 s[{SX}:{SX+1}], s[64:65]
    s_mov_b64 s[{SWQ}:{SWQ+1}], s[66:67]
    s_cmp_lt_u32 s{SW}, 4
    s_cbranch_scc1 L_compute
    """)

def common_setup(a):
    for d, nb in ((SWO, 448*896), (SWS, WS_BYTES), (SG, 448*3584), (SU, 448*3584), (SD, 1792*896), (SOUT, 2048*896), (SDBG, 256)):
        a(f"s_mov_b32 s{d+2}, {nb:#x}\ns_mov_b32 s{d+3}, 0x00020000")
    for d, src in ((SWO, 68), (SG, 72), (SU, 74), (SD, 76), (SOUT, 78), (SDBG, 80), (SWS, 82)):
        a(f"s_mov_b64 s[{d}:{d+1}], s[{src}:{src+1}]")
    if DIAG:
        for i in range(0, 32, 2):
            a(f"s_mov_b64 s[{64+i}:{65+i}], 0")
        a("s_mov_b32 s64, s100")
    a(f"""
    v_and_b32 v12, 31, v1                  ; t
    v_lshrrev_b32 v13, 5, v1               ; hf
    v_mov_b32 v15, 0x3f803f80
    """)

def p1_adv(a):
    a(f"""
    s_add_u32 s46, s46, 1
    s_cmp_eq_u32 s46, 7
    s_cselect_b32 s46, 0, s46
    s_add_u32 s47, s47, 28672
    s_cmp_eq_u32 s47, {5*28672}
    s_cselect_b32 s47, 0, s47
    """)

def p1_issue(a):
    a(f"""
    s_lshl_b32 s60, s46, 7
    s_add_u32 s60, s60, s56
    s_add_u32 m0, s57, s47
    s_mul_i32 s61, s46, {4*16*2688}
    """)
    for q in range(4):
        a(f"buffer_load_dwordx4 v{2+(q&1)}, {sr(SX)}, s60 offen lds")
        if q < 3: a("s_add_u32 m0, m0, 1024\ns_add_u32 s60, s60, 7168")
    a(f"s_add_u32 m0, s59, s47\ns_add_u32 s61, s61, s58")
    for u in range(3):
        a(f"buffer_load_dwordx4 v{16+u}, {sr(SWQ)}, s61 offen lds")
        if u < 2: a("s_add_u32 m0, m0, 1024")
    p1_adv(a)

def rebase_ops(c, regs):
    d = 28672 if c % 5 else -4 * 28672
    return [f"v_add_u32 v{r}, {d & 0xffffffff:#x}, v{r}" for r in regs]

def p1_compute(a):
    ACC = 16; WA = 64; XF = 100; CSA = 112; SEL = 124; WAD = 128
    common_setup(a)
    a(f"""
    v_bfe_u32 v14, v12, 1, 3
    v_xor_b32 v14, v14, v13
    v_lshlrev_b32 v14, 4, v14
    v_lshl_add_u32 v14, v12, 7, v14
    s_lshl_b32 s61, s{SW3}, 5
    v_xor_b32 v14, s61, v14
    v_add_u32 v4, s57, v14
    v_xor_b32 v5, 32, v4
    v_xor_b32 v6, 64, v4
    v_xor_b32 v7, 96, v4
    v_bfe_u32 v9, v1, 4, 1                 ; ch
    v_bfe_u32 v10, v1, 2, 2                ; r
    v_lshl_add_u32 v10, v13, 3, v10
    v_mul_u32_u24 v10, 192, v10
    v_lshl_add_u32 v10, v9, 5, v10
    v_and_b32 v11, 3, v1
    v_lshl_add_u32 v10, v11, 3, v10
    """)
    for i in range(4):
        a(f"""
        s_xor_b32 s61, s{SW3}, {i}
        s_mul_i32 s61, s61, 3072
        s_add_u32 s61, s61, s55
        s_add_u32 s61, s61, 16384
        v_add_u32 v{WAD+i}, s61, v10
        """)
    p1_adv(a); p1_adv(a)
    p1_issue(a)
    for r in range(4): a(f"v_mov_b32 v{SEL+r}, 0")
    setexec(a, 0x0002000100020001)
    for r in range(4): a(f"v_mov_b32 v{SEL+r}, v15")
    a(f"""
    s_mov_b64 exec, -1
    s_lshl_b32 s60, s{SW3}, 9
    s_add_u32 s60, s60, {CSP}
    v_lshl_add_u32 v132, v1, 2, s60
    v_lshlrev_b32 v2, 4, v1                ; lane*16
    s_lshl_b32 s56, s{SW3}, 8
    s_add_u32 s56, s56, {AUX1}
    v_lshl_add_u32 v133, v12, 2, s56
    v_lshl_add_u32 v134, v13, 4, s56
    v_lshlrev_b32 v135, 4, v13
    v_add_u32 v135, {CS1}, v135
    v_lshlrev_b32 v136, 2, v12
    v_add_u32 v136, {CS1}, v136
    v_mov_b32 v14, {KN1}
    s_mul_i32 s60, s53, 3
    """)
    for j in range(3):
        a(f"""
        s_add_u32 s61, s60, {j}
        s_and_b32 s62, s61, 15
        s_lshl_b32 s62, s62, 6
        s_add_u32 s62, s62, s54
        s_lshl_b32 s{57+j}, s62, 11
        s_lshl_b32 s62, s62, 12
        s_add_u32 s62, s62, {KVF}
        s_cmp_ge_u32 s61, 16
        s_cselect_b32 s{57+j}, s62, s{57+j}
        s_add_u32 s62, s62, 2048
        s_cmp_ge_u32 s61, 32
        s_cselect_b32 s{57+j}, s62, s{57+j}
        """)
    def reads(ks):
        c, i = divmod(ks, 4)
        pre = []
        if i == 0 and c in (2, 4, 5):
            d = {2: 2*28672, 4: 2*28672, 5: -4*28672}[c]
            pre = [f"v_add_u32 v{r}, {d & 0xffffffff:#x}, v{r}" for r in (4, 5, 6, 7, WAD, WAD+1, WAD+2, WAD+3)]
        so = 28672 if c in (1, 3, 6) else 0
        buf = WA + 12 * (ks % 3)
        L = [f"ds_read_b128 {vr(XF+4*(ks%3))}, v{4+i} offset:{so}"]
        for j in range(3):
            for u in range(2):
                L.append(f"ds_read_b64_tr_b16 v[{buf+4*j+2*u}:{buf+4*j+2*u+1}], v{WAD+i} offset:{so+u*768+j*56}")
        return pre, L
    a(f"""
    s_cmp_eq_u32 s53, 10
    s_cbranch_scc1 L_p1_v1
    s_cmp_gt_u32 s53, 10
    s_cbranch_scc1 L_p1_v2
    """)
    QS = f2u(28 ** -0.5 * math.log2(math.e))
    MEAN, RSTD, CS, P0 = 64, 80, 140, 204
    pk = lambda b: f"v[{b}:{b+1}]"
    def epilogue(types):
        n = 0
        if "Q" in types or "K" in types:
            a("ds_read_b32 v10, v133\nds_read_b32 v11, v133 offset:128"); n += 2
        for j in range(3):
            if types[j] != "V":
                for q in range(4): a(f"ds_read_b128 {vr(CS+16*j+4*q)}, v135 offset:{128*j+32*q}")
                n += 4
        if "V" in types:
            if n: a("s_waitcnt lgkmcnt(4)")
            for j in range(3):
                if types[j] == "V": a(f"ds_read_b32 v{100+2*j}, v136 offset:{128*j}")
            for q in range(4):
                a(f"ds_read_b128 {vr(MEAN+4*q)}, v134 offset:{32*q}\nds_read_b128 {vr(RSTD+4*q)}, v134 offset:{128+32*q}")
        for j in range(3):
            acc = ACC + 16*j; P = P0 + 8*j; t = types[j]
            if t == "V":
                a(f"""
                s_waitcnt lgkmcnt(0)
                v_sub_f32 v{100+2*j}, 0, v{100+2*j}
                v_mov_b32 v{101+2*j}, v{100+2*j}
                """)
                for r in range(0, 16, 2): a(f"v_pk_fma_f32 {pk(acc+r)}, {pk(MEAN+r)}, {pk(100+2*j)}, {pk(acc+r)}")
                for r in range(0, 16, 2): a(f"v_pk_mul_f32 {pk(acc+r)}, {pk(acc+r)}, {pk(RSTD+r)}")
                for r in range(8): a(f"v_cvt_pk_bf16_f32 v{P+r}, v{acc+2*r}, v{acc+2*r+1}")
                setexec(a, 0x1000000010000000)
                for r in range(8): a(f"v_mov_b32 v{P+r}, v15")
                setexec(a, 0xe0000000e0000000)
                for r in range(8): a(f"v_mov_b32 v{P+r}, 0")
                a(f"""
                s_mov_b64 exec, -1
                buffer_store_dwordx4 {vr(P)}, v2, {sr(SWS)}, s{57+j} offen sc1
                buffer_store_dwordx4 {vr(P+4)}, v2, {sr(SWS)}, s{57+j} offen offset:1024 sc1
                """)
                continue
            if j == 0: a("s_waitcnt lgkmcnt(8)" if "V" not in types else "s_waitcnt lgkmcnt(13)")
            if j == 0 or types[j-1] != t:
                a(f"""
                {f"v_mul_f32 v96, {QS:#x}, v11" if t == "Q" else "v_mov_b32 v96, v11"}
                v_mul_f32 v98, v10, v96
                v_sub_f32 v98, 0, v98
                v_mov_b32 v97, v96
                v_mov_b32 v99, v98
                """)
            for r in range(0, 16, 2): a(f"v_pk_mul_f32 {pk(acc+r)}, {pk(acc+r)}, v[96:97]")
            if j == 1: a("s_waitcnt lgkmcnt(0)")
            for r in range(0, 16, 2): a(f"v_pk_fma_f32 {pk(acc+r)}, {pk(CS+16*j+r)}, v[98:99], {pk(acc+r)}")
            for r in range(8): a(f"v_cvt_pk_bf16_f32 v{P+r}, v{acc+2*r}, v{acc+2*r+1}")
            a(f"""
            buffer_store_dwordx4 {vr(P)}, v2, {sr(SWS)}, s{57+j} offen sc1
            s_mov_b32 exec_lo, 0
            v_mov_b32 v{P+6}, 0
            v_mov_b32 v{P+7}, 0
            s_mov_b32 exec_lo, -1
            v_mov_b32 v8, 0
            v_mov_b32 v9, 0
            """)
            for r in range(8): a(f"v_dot2c_f32_bf16 v{8+(r&1)}, v{P+r}, v{P+r}")
            if t == "K":
                a(f"""
                s_mov_b32 exec_lo, 0
                v_mov_b32 v{P+6}, v15
                s_mov_b32 exec_lo, -1
                buffer_store_dwordx4 {vr(P+4)}, v2, {sr(SWS)}, s{57+j} offen offset:1024 sc1
                """)
            a(f"""
            v_add_f32 v8, v8, v9
            v_mov_b32 v9, v8
            v_permlane32_swap_b32 v8, v9
            v_add_f32 v8, v8, v9
            s_mov_b32 exec_lo, 0
            """)
            if t == "Q":
                a(f"""
                v_sqrt_f32 v8, v8
                v_mul_f32 v8, {f2u(1.0+1.0/128):#x}, v8
                v_add_u32 v8, 0xffff, v8
                v_lshrrev_b32 v{P+6}, 16, v8
                s_mov_b32 exec_lo, -1
                buffer_store_dwordx4 {vr(P+4)}, v2, {sr(SWS)}, s{57+j} offen offset:1024 sc1
                """)
            else:
                a(f"ds_max_u32 v14, v8 offset:{4*j}\ns_mov_b32 exec_lo, -1")
    bars0 = list(a.bars)
    for var, isv in enumerate(((0,0,0), (0,0,1), (1,1,1))):
        a.bars = list(bars0)
        a(f"L_p1_v{var}:")
        a.bar("p1s0")
        a.stamp(1)
        a.emit(*reads(0)[1]); a.emit(*reads(1)[1])
        for ks in range(28):
            if ks % 4 == 2 and ks < 26:
                if ks == 6: a("s_waitcnt vmcnt(0)")
                a.bar(f"p1s{ks//4+1}")
            pre, rd = reads(ks + 2) if ks < 26 else ([], [])
            buf = WA + 12 * (ks % 3)
            a.emit(*pre)
            if ks < 27: a(f"s_waitcnt lgkmcnt({7 if ks < 26 else 13})")
            for j in range(3):
                A, B = vr(buf + 4*j), vr(XF + 4*(ks % 3))
                if isv[j]: A, B = B, A
                C = "0" if ks == 0 else vr(ACC + 16*j, 16)
                a(f"v_mfma_f32_32x32x16_bf16 {vr(ACC+16*j,16)}, {A}, {B}, {C}")
                a.emit(*rd[[0,3,5][j]:[3,5,7][j]])
            if ks % 4 == 0:
                for j in range(3):
                    a(f"v_mfma_f32_16x16x32_bf16 {vr(CSA+4*j)}, {vr(SEL)}, {vr(buf+4*j)}, {'0' if ks == 0 else vr(CSA+4*j)}")
            if ks == 25:
                a("s_mov_b64 exec, 0xffff")
                for j in range(3):
                    a(f"ds_write_b32 v132, v{CSA+4*j} offset:{128*j}\nds_write_b32 v132, v{CSA+4*j+1} offset:{128*j+64}")
                a("s_mov_b64 exec, -1")
            if ks == 26:
                a("s_waitcnt lgkmcnt(0)")
                a.bar("p1C")
        a.stamp(2)
        if var == 0:
            a("s_cmp_lt_u32 s53, 5\ns_cbranch_scc1 L_p1_eQQQ\ns_cmp_eq_u32 s53, 5\ns_cbranch_scc1 L_p1_eQKK")
            eps = ("KKK", "QQQ", "QKK")
        else:
            eps = (("KKV",), ("VVV",))[var - 1]
        bars1 = list(a.bars)
        for ep in eps:
            a.bars = list(bars1)
            a(f"L_p1_e{ep}:")
            a.bar("p1S")
            a.stamp(3)
            epilogue(ep)
            if ep != "VVV": a("s_branch L_p1_done")
    a("L_p1_done:")
    a.stamp(4)

def p1_helper(a):
    XF = 96; G = 68; SM = 76; ONES = 88; SEL = 84; CSA = 64
    vm = VM()
    a("L_h1_il:")
    p1_issue(a)
    a(f"s_cmp_lt_u32 s47, {2*28672}\ns_cbranch_scc1 L_h1_il")
    p1_adv(a)
    vm.add("s0", 7); vm.add("s1", 7)
    common_setup(a)
    a.stamp(1)
    a(f"""
    s_cmp_lg_u32 s{SW}, 4
    s_cbranch_scc1 L_h_nononce
    s_cmp_lg_u32 s2, 0
    s_cbranch_scc1 L_h_nononce
    s_memrealtime s[{NON}:{NON+1}]
    s_waitcnt lgkmcnt(0)
    s_or_b32 s{NON+1}, s{NON+1}, 0x80000000
    v_mov_b32 v10, s{NON}
    v_mov_b32 v11, s{NON+1}
    v_mov_b32 v9, 0
    s_mov_b64 exec, 1
    buffer_store_dwordx2 v[10:11], v9, {sr(SDBG)}, 0 offen sc1
    s_mov_b64 exec, -1
L_h_nononce:
    v_and_b32 v9, 15, v1
    v_lshrrev_b32 v10, 1, v9
    v_lshrrev_b32 v11, 4, v1
    v_xor_b32 v10, v10, v11
    v_lshlrev_b32 v10, 4, v10
    v_lshl_add_u32 v10, v9, 7, v10
    v_add_u32 v4, s57, v10
    v_xor_b32 v5, 64, v4
    v_lshlrev_b32 v14, 2, v11
    v_add_u32 v14, {KN1}, v14
    v_mov_b32 v10, 0
    ds_write_b32 v14, v10
    s_and_b32 s63, s{SW}, 1
    s_lshl_b32 s60, s{SW3}, 7
    v_lshl_add_u32 v8, v12, 2, s60
    v_add_u32 v19, {CS1}, v8
    v_add_u32 v8, {CSP}, v8
    s_lshl_b32 s60, s{SW3}, 8
    s_add_u32 s60, s60, {AUX1}
    v_lshl_add_u32 v9, v9, 2, s60
    {"s_setprio 3" if E("HPRIO", 1) else ""}
    """)
    for r in range(4): a(f"v_mov_b32 v{ONES+r}, v15")
    STAG = E("STAG", 0)
    def work(c):
        xf = XF + 16 * (c & 1)
        for i in range(4):
            th, kh = i & 1, i >> 1
            z = (c == 0 and kh == 0)
            a(f"v_mfma_f32_16x16x32_bf16 {vr(G+4*th)}, {vr(xf+4*i)}, {vr(xf+4*i)}, {'0' if z else vr(G+4*th)}")
            a(f"v_mfma_f32_16x16x32_bf16 {vr(SM+4*th)}, {vr(ONES)}, {vr(xf+4*i)}, {'0' if z else vr(SM+4*th)}")
    for c in range(7):
        a(vm.wait(f"s{c}"))
        a("s_waitcnt lgkmcnt(0)")
        if c in (0, 3, 6): a.stamp(2 + c // 3)
        a.bar(f"p1s{c}")
        if c > 0: a.emit(*rebase_ops(c, (4, 5)))
        xf = XF + 16 * (c & 1)
        for i in range(4):
            a(f"ds_read_b128 {vr(xf+4*i)}, v{4+(i>>1)} offset:{(i&1)*2048}")
        n = c + 3
        if n <= 6:
            if STAG: a(f"s_cmp_lg_u32 s63, 0\ns_cbranch_scc1 L_h1_a{c}")
            p1_issue(a)
            a(f"L_h1_a{c}:")
        if c > 0: work(c - 1)
        if n <= 6:
            if STAG:
                a(f"s_cmp_eq_u32 s63, 0\ns_cbranch_scc1 L_h1_b{c}")
                p1_issue(a)
                a(f"L_h1_b{c}:")
            vm.add(f"s{n}", 7)
            if n == 6 and TF:
                a(f"""
                s_and_b32 s48, s5, 1
                s_lshl_b32 s48, s48, 3
                s_and_b32 s60, s6, 7
                s_add_u32 s48, s48, s60
                s_lshl_b32 s60, s{SW3}, 4
                s_add_u32 s48, s48, s60
                s_cmp_ge_u32 s48, 28
                s_cbranch_scc1 L_h1_notf
                s_lshr_b32 s49, s5, 1
                s_lshl_b32 s49, s49, 2
                s_lshr_b32 s60, s6, 3
                s_add_u32 s49, s49, s60            ; cb4
                s_mul_i32 s50, s48, {16*3584}
                s_mul_i32 s60, s49, 224
                s_and_b32 s61, s60, 63
                s_sub_u32 s60, s60, s61
                s_add_u32 s50, s50, s60
                s_lshl_b32 s51, s{SW3}, 13
                s_add_u32 s51, s51, {TSTG}
                s_add_u32 s61, s61, s51
                v_lshrrev_b32 v10, 4, v1
                v_mul_u32_u24 v10, {4*3584}, v10
                v_and_b32 v11, 15, v1
                v_lshl_add_u32 v20, v11, 4, v10
                v_bfe_u32 v10, v1, 2, 2
                v_lshlrev_b32 v10, 10, v10
                v_lshl_add_u32 v10, v13, 9, v10
                v_and_b32 v11, 1, v1
                v_lshl_add_u32 v10, v11, 4, v10
                v_bfe_u32 v11, v1, 4, 1
                v_lshl_add_u32 v10, v11, 3, v10
                v_bfe_u32 v11, v1, 1, 1
                v_lshl_add_u32 v10, v11, 12, v10
                v_add_u32 v6, s61, v10
                """)
                for i in range(4):
                    a(f"""
                    s_add_u32 m0, s51, {i*1024}
                    s_nop 0
                    buffer_load_dwordx4 v20, {sr(SG)}, s50 offen lds
                    s_add_u32 m0, s51, {i*1024+4096}
                    s_nop 0
                    buffer_load_dwordx4 v20, {sr(SU)}, s50 offen lds
                    s_add_u32 s50, s50, 3584
                    """)
                a("s_branch L_h1_tf\nL_h1_notf:")
                for i in range(8): a(f"buffer_load_dword v22, v1, {sr(SDBG)}, 0 offen offset:512")
                a("L_h1_tf:")
                vm.add("t", 8)
    a("s_waitcnt lgkmcnt(0)")
    work(6)
    for r in range(1, 4):
        setexec(a, sum(1 << (20*g + r) for g in range(4)))
        a(f"v_mov_b32 v{G}, v{G+r}\nv_mov_b32 v{G+4}, v{G+4+r}")
    setexec(a, sum(15 << (20*g) for g in range(4)))
    for th in range(2):
        mn, sq = SM + 4*th, G + 4*th
        a(f"""
        v_mul_f32 v{mn}, {f2u(1.0/448):#x}, v{mn}
        v_mul_f32 v{sq}, {f2u(1.0/448):#x}, v{sq}
        v_fma_f32 v{sq}, -v{mn}, v{mn}, v{sq}
        v_max_f32 v{sq}, 0, v{sq}
        v_add_f32 v{sq}, {f2u(1e-5):#x}, v{sq}
        v_rsq_f32 v{sq}, v{sq}
        ds_write_b32 v9, v{mn} offset:{64*th}
        s_nop 0
        ds_write_b32 v9, v{sq} offset:{128+64*th}
        """)
    a("s_mov_b64 exec, -1")
    a.bar("p1C")
    for w in range(4): a(f"ds_read_b32 v{CSA+w}, v8 offset:{512*w}")
    a(f"""
    s_waitcnt lgkmcnt(0)
    v_add_f32 v{CSA}, v{CSA}, v{CSA+1}
    v_add_f32 v{CSA+2}, v{CSA+2}, v{CSA+3}
    v_add_f32 v{CSA}, v{CSA}, v{CSA+2}
    ds_write_b32 v19, v{CSA}
    s_waitcnt lgkmcnt(0)
    s_setprio 0
    """)
    a.bar("p1S")
    a(f"""
    v_mov_b32 v9, 0
    s_mov_b32 s60, 0
L_h_nl:
    buffer_load_dwordx2 v[24:25], v9, {sr(SDBG)}, 0 offen sc1
    s_add_u32 s60, s60, 1
    s_waitcnt vmcnt(0)
    v_readfirstlane_b32 s{NON}, v24
    v_readfirstlane_b32 s{NON+1}, v25
    s_cmp_gt_u32 s60, {POLL_MAX}
    s_cbranch_scc1 L_h_gotnonce
    s_cmp_eq_u32 s{NON+1}, 0
    s_cbranch_scc1 L_h_nl
L_h_gotnonce:
    """)
    if TF:
        a("s_cmp_ge_u32 s48, 28\ns_cbranch_scc1 L_h1_notf2")
        for j in range(7):
            for u in range(2):
                a(f"ds_read_b64_tr_b16 v[{36+4*j+2*u}:{37+4*j+2*u}], v6 offset:{u*256+j*32}")
        a(f"""
        s_mul_i32 s50, s49, {28*SLOT}
        s_mul_i32 s60, s48, {SLOT}
        s_add_u32 s50, s50, s60
        s_add_u32 s50, s50, {WGU}
        s_add_u32 s51, s50, 4096
        v_lshlrev_b32 v2, 4, v1
        s_waitcnt lgkmcnt(0)
        """)
        if E("TST", 0) == 0: tstores(a)
        a("L_h1_notf2:")
    a(f"""
    s_mul_i32 s60, s53, 3
    v_lshrrev_b32 v9, 4, v1
    v_add_u32 v9, s60, v9                  ; p
    v_and_b32 v10, 15, v9                  ; h
    v_lshrrev_b32 v9, 4, v9                ; type
    v_lshlrev_b32 v9, 8, v9
    v_lshl_add_u32 v9, v10, 10, v9
    v_and_b32 v10, 15, v1
    v_lshl_add_u32 v18, v10, 14, v9
    s_lshl_b32 s62, s52, 4
    s_add_u32 s62, s62, {FA}
    v_mov_b32 v27, 0
    s_lshl_b32 s60, s2, 10
    s_add_u32 s60, s60, {FA+256}
    v_lshl_add_u32 v17, v1, 4, s60
    s_lshr_b32 s61, s2, 4
    s_lshl_b32 s61, s61, 4
    s_add_u32 s60, s60, s61
    s_sub_u32 s60, s60, 256
    s_mov_b32 exec_lo, 0
    v_mov_b32 v17, s60
    s_mov_b32 exec_lo, -1
    """)

def tstores(a):
    for j in range(7):
        a(f"buffer_store_dwordx4 {vr(36+4*j)}, v2, {sr(SWS)}, s{50 if j < 4 else 51} offen offset:{(j%4)*1024} sc1")

def publish(a, tag, code, mask):
    a(f"""
    s_cmp_lg_u32 s{SW}, 4
    s_cbranch_scc1 L_pub_{tag}
    {code}
    v_mov_b32 v10, s{NON}
    v_mov_b32 v11, s{NON+1}
    s_mov_b64 exec, {mask:#x}
    buffer_store_dwordx2 v[10:11], v9, {sr(SWS)}, s60 offen sc1
    s_mov_b64 exec, -1
L_pub_{tag}:
    """)

def pub14(r, slot, base):
    return f"""v_lshlrev_b32 v9, 7, v1
    s_lshl_b32 s60, s{r}, 11
    s_lshl_b32 s61, s{slot}, 3
    s_add_u32 s60, s60, s61
    s_add_u32 s60, s60, {base}"""

def poll(a, tag, vaddr, mask, wide=False, dst=10, pipe=False, backoff=0):
    n = 4 if wide else 2
    ld = lambda d: f"buffer_load_dwordx{n} {vr(d, n)}, v{vaddr}, {sr(SWS)}, 0 offen sc1"
    setexec(a, mask)
    if not pipe:
        a(f"""
        s_mov_b32 s60, 0
L_poll_{tag}:
        {ld(dst)}
        s_add_u32 s60, s60, 1
        s_waitcnt vmcnt(0)
        v_cmp_ne_u64 vcc, s[{NON}:{NON+1}], v[{dst}:{dst+1}]
        s_cmp_gt_u32 s60, {POLL_MAX}
        s_cbranch_scc1 L_polld_{tag}
        {f"s_cbranch_vccz L_polld_{tag}" if backoff else ""}
        {f"s_sleep {backoff}" if backoff else ""}
        s_cbranch_vccnz L_poll_{tag}
L_polld_{tag}:
        s_mov_b64 exec, -1
        """)
        return
    a(f"""
    s_mov_b32 s60, 0
    v_mov_b32 v{dst}, 0
    v_mov_b32 v{dst+1}, 0
L_poll_{tag}:
    {ld(dst)}
    s_add_u32 s60, s60, 1
    s_sleep 4
    s_waitcnt vmcnt(8)
    v_cmp_ne_u64 vcc, s[{NON}:{NON+1}], v[{dst}:{dst+1}]
    s_cmp_gt_u32 s60, {POLL_MAX}
    s_cbranch_scc1 L_polld_{tag}
    s_cbranch_vccnz L_poll_{tag}
L_polld_{tag}:
    s_mov_b64 exec, -1
    """)

def p2_ids(a):
    a("s_and_b32 s52, s2, 15\ns_lshr_b32 s53, s2, 4")

def late_ids(a):
    a(f"""
    s_lshl_b32 s47, s5, 2
    s_and_b32 s46, s6, 3
    s_add_u32 s47, s47, s46                ; tb
    s_lshr_b32 s46, s6, 2                  ; fb
    s_and_b32 s56, s5, 1
    s_lshl_b32 s56, s56, 3
    s_and_b32 s57, s6, 7
    s_add_u32 s56, s56, s57                ; rb
    s_lshr_b32 s57, s5, 1
    s_lshl_b32 s57, s57, 2
    s_lshr_b32 s60, s6, 3
    s_add_u32 s57, s57, s60                ; cb
    """)

def p2_compute(a):
    Q = 16; O = 48; S = [112, 128]; P = 144; KV = 152; RA = 216
    pk = lambda b: f"v[{b}:{b+1}]"
    p2_ids(a)
    a(f"""
    s_lshl_b32 s54, s52, 6                 ; h*64
    s_lshl_b32 s55, s{SW3}, 4
    s_add_u32 s55, s55, s54
    s_lshl_b32 s55, s55, 12
    s_add_u32 s55, s55, {KVF}
    s_add_u32 s{SKV}, s{SWS}, s55
    s_addc_u32 s{SKV+1}, s{SWS+1}, 0
    s_mov_b32 s{SKV+2}, 65536
    s_mov_b32 s{SKV+3}, 0x00020000
    s_lshl_b32 s55, s53, 2
    s_add_u32 s55, s55, s54                ; h*64 + qb*4
    v_lshlrev_b32 v3, 2, v1
    v_mov_b32 v9, {AUX2}
    s_mov_b32 s62, 0                       ; pass
    """)
    for j in range(4):
        a(f"""
        s_add_u32 s60, s{SW3}, {j+1}
        s_and_b32 s60, s60, 3
        s_add_u32 s{56+j}, s60, s55
        s_lshl_b32 s{56+j}, s{56+j}, 11
        s_mul_i32 s60, s60, 12288
        s_add_u32 s60, s60, {RREG + (j*4096 if j < 3 else 0)}
        v_add_u32 v{RA+j}, s60, v2
        """)
    a("s_waitcnt vmcnt(0) lgkmcnt(0)")
    a.stamp(5)
    a.bar("p1X")
    a("s_mov_b32 s63, s58")
    p3_addr(a)
    a(f"s_mov_b32 s58, s63\nv_mov_b32 v9, {AUX2}")
    def zero():
        for r in range(64): a(f"v_mov_b32 v{O+r}, 0")
        for r in range(4): a(f"v_mov_b32 v{P+4+r}, 0\nv_mov_b32 v{KV+48+12+r}, 0")
    zero()
    a.bar("p2P")
    a.stamp(6)
    def kvl(t):
        kt, f = divmod(t, 4)
        return f"buffer_load_dwordx4 {vr(KV+16*kt+4*f)}, v2, {sr(SKV)}, s61 offen offset:{f*1024} sc1"
    def ql(j):
        a(f"buffer_load_dwordx4 {vr(Q+8*j+4)}, v2, {sr(SWS)}, s{56+j} offen offset:1024 sc1")
        a(f"buffer_load_dwordx4 {vr(Q+8*j)}, v2, {sr(SWS)}, s{56+j} offen sc1")
    a(f"ds_read_b32 v5, v9 offset:4")
    for j in range(4): ql(j)
    a("L_p2_restart:")
    for t in range(13):
        if t == 0:
            KG = E("KVG", 4)
            a(f"s_and_b32 s61, s53, {KG-1}\ns_mul_i32 s61, s61, {65536//KG}")
        elif t % 4 == 0: a("s_add_u32 s61, s61, 4096\ns_and_b32 s61, s61, 0xffff")
        a(kvl(t))
    a(f"""
    s_cmp_lg_u32 s62, 0
    s_cbranch_scc1 L_p2_havem
    s_waitcnt vmcnt(13) lgkmcnt(0)
    s_mov_b32 exec_lo, 0
    """)
    for j in range(4): a(f"v_lshlrev_b32 v{S[1]+j}, 16, v{Q+8*j+6}")
    for j in range(4): a(f"v_mul_f32 v{S[1]+j}, v5, v{S[1]+j}")
    for j in range(4): a(f"v_add_u32 v{S[1]+j}, 0x8000ffff, v{S[1]+j}")
    for j in range(4): a(f"v_lshrrev_b32 v{Q+8*j+6}, 16, v{S[1]+j}")
    a("s_mov_b32 exec_lo, -1")
    a.bar("p2Y")
    a(f"""
L_p2_havem:
    s_waitcnt vmcnt({11 if E('WSPLIT', 1) else 9})
    v_mfma_f32_32x32x16_bf16 {vr(S[0],16)}, {vr(KV)}, {vr(Q)}, 0
    v_mfma_f32_32x32x16_bf16 {vr(S[0],16)}, {vr(KV+4)}, {vr(Q+4)}, {vr(S[0],16)}
    s_mov_b32 s63, 0
    """)
    a.stamp(7)
    def wr(j): return [f"ds_write_b128 v{RA+j}, {vr(O+16*j+4*q)} offset:{q*1024}" for q in range(4)]
    def body(last):
        nl = [0]
        for u in range(16):
            kt, qi = divmod(u, 4)
            ktn, qn = divmod((u + 1) % 16, 4)
            ktp, qp = divmod((u - 1) % 16, 4)
            Sc, Sn = S[u & 1], S[(u + 1) & 1]
            e = lambda r: f"v_exp_f32 v{Sc+r}, v{Sc+r}"
            c = lambda r: f"v_cvt_pk_bf16_f32 v{P+r}, v{Sc+2*r}, v{Sc+2*r+1}"
            A = f"v_mfma_f32_32x32x16_bf16 {vr(Sn,16)}, {vr(KV+16*ktn)}, {vr(Q+8*qn)}, 0"
            B = f"v_mfma_f32_32x32x16_bf16 {vr(O+16*qp,16)}, {vr(KV+16*ktp+12)}, {vr(P+4)}, {vr(O+16*qp,16)}"
            C = f"v_mfma_f32_32x32x16_bf16 {vr(Sn,16)}, {vr(KV+16*ktn+4)}, {vr(Q+8*qn+4)}, {vr(Sn,16)}"
            D = f"v_mfma_f32_32x32x16_bf16 {vr(O+16*qi,16)}, {vr(KV+16*kt+8)}, {vr(P)}, {vr(O+16*qi,16)}"
            if qi == 3: lb, lf = kt, 0
            else: lb, lf = (kt - 1) % 4, qi + 1
            L = f"buffer_load_dwordx4 {vr(KV+16*lb+4*lf)}, v2, {sr(SKV)}, s61 offen offset:{lf*1024} sc1"
            doload = not (last and u >= 3)
            sk = lambda upto: max(0, upto - 3) if last else 0
            W = ["", "", "", ""]
            if last and u == 8: a.bar("p2R0")
            if last and u in (14, 15): W = wr(u - 14)
            fin = last and u == 15
            if qi == 3 and not fin: a(f"s_waitcnt vmcnt({max(0, WK - sk(u))})")
            if not fin: a(A)
            a.emit(W[0], e(0), e(1), e(2), e(3), c(0), c(1))
            if qi == 1 and WSPLIT: a(f"s_waitcnt vmcnt({max(0, 10 - sk(u))})")
            a.emit(B, W[1], e(4), e(5), e(6), e(7), c(2), c(3))
            if not fin: a(C)
            if doload: a(L)
            a.emit(W[2], e(8), e(9), e(10), e(11), c(4), c(5))
            if qi == 0 and WSPLIT: a(f"s_waitcnt vmcnt({max(0, 11 - sk(u + 1))})")
            a.emit(D, W[3], e(12), e(13), e(14), e(15), c(6), c(7))
            if qi == 2 and not last: a("s_add_u32 s61, s61, 4096\ns_and_b32 s61, s61, 0xffff")
    WSPLIT = E("WSPLIT", 1)
    WK = 10 if WSPLIT else 8
    a("L_p2_loop:")
    body(False)
    a(f"""
    s_add_u32 s63, s63, 1
    s_cmp_lt_u32 s63, 3
    s_cbranch_scc1 L_p2_loop
    """)
    body(True)
    a(f"v_mfma_f32_32x32x16_bf16 {vr(O+48,16)}, {vr(KV+48+12)}, {vr(P+4)}, {vr(O+48,16)}")
    a.emit(*wr(2))
    a(f"""
    s_lshl_b32 s60, s53, 2
    s_add_u32 s60, s60, s{SW3}
    s_lshl_b32 s60, s60, 15
    s_lshl_b32 s61, s52, 11
    s_add_u32 s60, s60, s61
    s_add_u32 s60, s60, {OF}
    v_mov_b32 v6, 0x1f800000
    v_mov_b32 v7, 0x5f800000
    s_waitcnt lgkmcnt(0)
    """)
    a.stamp(8)
    a.bar("p2R1")
    a.stamp(9)
    OW = O + 48
    for q in range(12):
        a(f"ds_read_b128 {vr(O+4*q)}, v{RA+3} offset:{q*1024}")
    for j in range(3):
        a(f"s_waitcnt lgkmcnt({8-4*j})")
        for r in range(0, 16, 2):
            a(f"v_pk_add_f32 {pk(OW+r)}, {pk(OW+r)}, {pk(O+16*j+r)}")
    a(f"""
    v_mov_b32 v10, v{OW+12}
    v_mov_b32 v11, v{OW+12}
    v_permlane32_swap_b32 v10, v11          ; v11 = l
    v_rcp_f32 v10, v11
    v_cmp_nge_f32 vcc, v11, v6
    v_cmp_gt_f32 s[58:59], v11, v7
    v_mov_b32 v11, v10
    """)
    for r in range(0, 16, 2):
        a(f"v_pk_mul_f32 {pk(OW+r)}, {pk(OW+r)}, v[10:11]")
    for r in range(8):
        a(f"v_cvt_pk_bf16_f32 v{P+r}, v{OW+2*r}, v{OW+2*r+1}")
    a(f"""
    buffer_store_dwordx4 {vr(P)}, v2, {sr(SWS)}, s60 offen sc1
    s_mov_b32 exec_lo, 0
    v_mov_b32 v{P+6}, 0
    v_mov_b32 v{P+7}, 0
    s_mov_b32 exec_lo, -1
    buffer_store_dwordx4 {vr(P+4)}, v2, {sr(SWS)}, s60 offen offset:1024 sc1
    s_or_b64 vcc, vcc, s[58:59]
    s_cbranch_scc0 L_p2_ok
    v_mov_b32 v10, 1
    ds_write_b32 v9, v10
L_p2_ok:
    """)
    a.stamp(10)
    p3_pre(a)
    a("s_waitcnt vmcnt(0) lgkmcnt(0)")
    a.bar("p2R2")
    a(f"""
    s_cmp_lg_u32 s62, 0
    s_cbranch_scc1 L_p2_done
    ds_read_b32 v10, v9
    s_waitcnt lgkmcnt(0)
    v_readfirstlane_b32 s60, v10
    s_cmp_eq_u32 s60, 0
    s_cbranch_scc1 L_p2_done
    s_mov_b32 s62, 1
    s_mov_b32 exec_lo, 0
    """)
    for j in range(4): a(f"v_mov_b32 v{Q+8*j+6}, 0")
    a("s_mov_b32 exec_lo, -1")
    for j in range(4): a(f"v_mov_b32 v{O+j}, 0xff800000")
    a(f"""
    s_mov_b32 s61, 0
L_p2_mx:
    buffer_load_dwordx4 {vr(KV)}, v2, {sr(SKV)}, s61 offen sc1
    buffer_load_dwordx4 {vr(KV+4)}, v2, {sr(SKV)}, s61 offen offset:1024 sc1
    s_waitcnt vmcnt(0)
    """)
    for j in range(4):
        a(f"""
        v_mfma_f32_32x32x16_bf16 {vr(S[0],16)}, {vr(KV)}, {vr(Q+8*j)}, 0
        v_mfma_f32_32x32x16_bf16 {vr(S[0],16)}, {vr(KV+4)}, {vr(Q+8*j+4)}, {vr(S[0],16)}
        """)
        for r in range(8):
            a(f"v_max3_f32 v{O+j}, v{S[0]+2*r}, v{S[0]+2*r+1}, v{O+j}")
    a("s_add_u32 s61, s61, 4096\ns_cmp_lt_u32 s61, 65536\ns_cbranch_scc1 L_p2_mx")
    for j in range(4):
        a(f"""
        v_mov_b32 v10, v{O+j}
        v_permlane32_swap_b32 v{O+j}, v10
        v_max_f32 v{O+j}, v{O+j}, v10
        s_add_u32 s60, s{SW3}, {j+1}
        s_and_b32 s60, s60, 3
        s_lshl_b32 s60, s60, 10
        s_add_u32 s60, s60, {RREG}
        v_add_u32 v{O+8+j}, s60, v3
        s_lshl_b32 s61, s{SW3}, 8
        v_add_u32 v10, s61, v{O+8+j}
        ds_write_b32 v10, v{O+j}
        """)
    a("s_waitcnt lgkmcnt(0)\ns_barrier")
    for j in range(4):
        for w in range(4):
            a(f"ds_read_b32 v{O+16+4*j+w}, v{O+8+j} offset:{256*w}")
        a("s_waitcnt lgkmcnt(0)")
    for j in range(4):
        b = O + 16 + 4*j
        a(f"""
        v_max3_f32 v10, v{b}, v{b+1}, v{b+2}
        v_max_f32 v10, v10, v{b+3}
        v_sub_f32 v10, 0, v10
        v_and_b32 v11, 0xffff0000, v10
        v_sub_f32 v14, v10, v11
        v_cvt_pk_bf16_f32 v10, v11, v14
        s_mov_b32 exec_lo, 0
        v_mov_b32 v{Q+8*j+6}, v10
        s_mov_b32 exec_lo, -1
        """)
    zero()
    a("s_branch L_p2_restart\nL_p2_done:")
    a.stamp(11)

def gu_dma(a, n, tag, vm, thr=None):
    if not TF:
        for t in range(n):
            a(f"""
            s_mov_b32 m0, s59
            s_add_u32 s59, s59, {SLOT}
            buffer_load_dwordx4 v20, {sr(SG)}, s58 offen lds
            s_add_u32 m0, m0, 4384
            s_add_u32 s60, s58, {16*3584}
            buffer_load_dwordx4 v20, {sr(SU)}, s58 offen lds
            s_sub_u32 s61, s60, {28*16*3584}
            s_cmp_ge_u32 s60, {28*16*3584}
            s_cselect_b32 s58, s61, s60
            {f"s_waitcnt vmcnt({thr})" if thr is not None else ""}
            """)
        vm.add(tag, 2 * n)
        return
    n //= 4
    for t in range(n):
        a(f"""
        s_mul_i32 s60, s63, {4*SLOT}
        s_add_u32 s60, s60, s58
        s_mov_b32 m0, s59
        s_add_u32 s61, s60, 4096
        """)
        for q in range(4): a(f"buffer_load_dwordx4 v2, {sr(SWS)}, s60 offen offset:{q*1024} sc1 lds")
        a(f"s_add_u32 m0, m0, 4096\ns_add_u32 s59, s59, {4*SLOT}")
        for q in range(3): a(f"buffer_load_dwordx4 v2, {sr(SWS)}, s61 offen offset:{q*1024} sc1 lds")
        a("s_add_u32 s63, s63, 1\ns_cmp_eq_u32 s63, 7\ns_cselect_b32 s63, 0, s63")
    vm.add(tag, 7 * n)

def rot4(a, dst):
    a(f"""
    s_lshr_b32 s60, s6, 3
    s_lshl_b32 s60, s60, 1
    s_and_b32 s{dst}, s6, 7
    s_add_u32 s{dst}, s{dst}, s60
    s_cmp_ge_u32 s{dst}, 7
    s_cselect_b32 s60, 7, 0
    s_sub_u32 s{dst}, s{dst}, s60
    """)

def rot5(a, dst, add=0):
    a(f"""
    s_and_b32 s60, s6, 3
    s_mul_i32 s60, s60, {E('TBROT', 7)}
    s_lshl_b32 s{dst}, s46, 2
    s_add_u32 s{dst}, s{dst}, s60
    s_add_u32 s{dst}, s{dst}, {add}
    s_cmp_ge_u32 s{dst}, 28
    s_cselect_b32 s60, 28, 0
    s_sub_u32 s{dst}, s{dst}, s60
    s_cmp_ge_u32 s{dst}, 28
    s_cselect_b32 s60, 28, 0
    s_sub_u32 s{dst}, s{dst}, s60
    """)

def tr128_addr(a, dst, sft, sxh, hfshift):
    a(f"""
    v_bfe_u32 v9, v1, 2, 2                 ; r
    v_lshl_add_u32 v10, v13, {hfshift}, v9
    v_lshlrev_b32 v10, 7, v10
    v_lshrrev_b32 v9, 1, v9
    v_xor_b32 v9, s{sft}, v9
    v_lshl_add_u32 v10, v9, 6, v10
    v_bfe_u32 v9, v1, 4, 1                 ; ch
    {f"v_xor_b32 v9, s{sxh}, v9" if sxh else ""}
    v_lshl_add_u32 v10, v9, 5, v10
    v_and_b32 v9, 1, v1
    v_lshl_add_u32 v10, v9, 4, v10
    v_bfe_u32 v9, v1, 1, 1
    v_lshl_add_u32 v{dst}, v9, 3, v10
    """)

def wd_loop(a, n, tag, lds=True, throttle=False):
    ld = (lambda: f"buffer_load_dwordx4 v21, {sr(SD)}, s60 offen lds\ns_add_u32 m0, m0, 1024") if lds else (lambda: f"buffer_load_dwordx4 v[24:27], v21, {sr(SD)}, s60 offen")
    a(f"""
    s_mov_b32 s61, 0
L_wd_{tag}:
    s_mul_i32 s60, s54, {16*896}
    s_add_u32 s60, s60, s55
    {ld()}
    s_add_u32 s60, s60, {8*896}
    s_add_u32 s54, s54, 1
    {ld()}
    s_cmp_eq_u32 s54, 28
    s_cselect_b32 s54, 0, s54
    s_add_u32 s61, s61, 1
    {f"s_waitcnt vmcnt({PFW})" if throttle else ""}
    s_cmp_lt_u32 s61, {n}
    s_cbranch_scc1 L_wd_{tag}
    """)

A5H = 88
def p2_helper(a, vm):
    late_ids(a)
    a(f"""
    v_lshlrev_b32 v2, 4, v1
    v_lshrrev_b32 v9, 3, v1
    v_mul_u32_u24 v9, 896, v9
    v_bfe_u32 v10, v1, 4, 1
    v_lshlrev_b32 v10, 2, v10
    v_and_b32 v11, 7, v1
    v_xor_b32 v10, v10, v11
    v_lshl_add_u32 v21, v10, 4, v9
    v_lshrrev_b32 v9, 4, v1
    v_mul_u32_u24 v9, {4*3584}, v9
    v_and_b32 v10, 15, v1
    v_lshl_add_u32 v20, v10, 4, v9
    v_lshlrev_b32 v9, 3, v1
    v_mov_b32 v10, 0
    v_mov_b32 v11, 0
    v_add_u32 v9, {GAP}, v9
    ds_write_b64 v9, v[10:11]
    s_lshr_b32 s58, s{SW3}, 1
    s_and_b32 s59, s{SW3}, 1
    """)
    tr128_addr(a, 4, 58, 59, 3)
    rot5(a, 54)
    a(f"""
    s_lshl_b32 s60, s{SW3}, 14
    s_add_u32 s7, s60, {RREG}
    v_add_u32 v4, s7, v4
    v_xor_b32 v5, 64, v4
    s_mul_i32 s55, s{SW3}, {28*16*896}
    s_lshl_b32 s60, s46, 7
    s_add_u32 s55, s55, s60
    """)
    rot4(a, 63)
    if TF:
        a(f"""
        s_mul_i32 s59, s{SW3}, {SLOT}
        s_mul_i32 s58, s57, {28*SLOT}
        s_add_u32 s58, s58, s59
        s_add_u32 s58, s58, {WGU}
        """)
    else:
        a(f"""
        s_lshl_b32 s58, s63, 6
        s_add_u32 s58, s58, s{SW3}
        s_mul_i32 s58, s58, 3584
        s_mul_i32 s59, s57, 224
        s_and_b32 s59, s59, 0xffffffc0
        s_add_u32 s58, s58, s59
        s_mul_i32 s59, s{SW3}, 1088
        """)
    a(f"""
    s_mul_i32 s54, s54, {16*896}
    s_add_u32 s54, s54, s55
    s_add_u32 s49, s55, {28*16*896}
    s_mov_b32 s52, {"s48" if TF else "99"}
    """)
    lv = VM()
    def wd(p, dstbase, doff):
        a(f"""
        s_add_u32 m0, s{dstbase}, {doff}
        s_add_u32 s60, s54, {8*896}
        buffer_load_dwordx4 v21, {sr(SD)}, s54 offen lds
        s_add_u32 m0, m0, 1024
        s_add_u32 s54, s54, {16*896}
        buffer_load_dwordx4 v21, {sr(SD)}, s60 offen lds
        s_cmp_eq_u32 s54, s49
        s_cselect_b32 s54, s55, s54
        """)
        lv.add(f"w{p}", 2)
    p2_helper.wd = wd
    a.bar("p1X")
    a(f"""
    s_cmp_lg_u32 s{SW}, 4
    s_cbranch_scc1 L_h2_npub
    ds_read_b32 v26, v14
    s_mov_b32 exec_hi, 0xffff
    s_waitcnt lgkmcnt(0)
    buffer_store_dwordx4 v[24:27], v18, {sr(SWS)}, s62 offen sc1
    s_mov_b32 exec_hi, -1
L_h2_npub:
    """)
    EB = -1
    a(f"s_cmp_lg_u32 s{SW}, 4\ns_cbranch_scc1 L_h2_np")
    a.stamp(5)
    poll(a, "A", 17, 0x1ffffffff, wide=True, dst=28, pipe=(EB >= 0))
    a(f"""
    s_nop 4
    v_mov_b32 v32, v30
    v_max_u32_dpp v32, v32, v32 row_shr:1 row_mask:0xf bank_mask:0xf
    v_max_u32_dpp v32, v32, v32 row_shr:2 row_mask:0xf bank_mask:0xf
    v_max_u32_dpp v32, v32, v32 row_shr:4 row_mask:0xf bank_mask:0xf
    v_max_u32_dpp v32, v32, v32 row_shr:8 row_mask:0xf bank_mask:0xf
    v_sqrt_f32 v32, v32
    v_mov_b32 v9, {AUX2}
    v_mul_f32 v32, {f2u(1.0+1.0/128):#x}, v32
    v_mov_b32 v33, 0
    s_mov_b64 exec, 0x8000
    ds_write_b32 v9, v33
    ds_write_b32 v9, v32 offset:4
    s_mov_b64 exec, -1
    s_waitcnt lgkmcnt(0)
L_h2_np:
    """)
    a.bar("p2P")
    a.bar("p2Y")
    lv.q = []
    if TF and E("TST", 0) == 1:
        a("s_cmp_ge_u32 s52, 28\ns_cbranch_scc1 L_h2_notf2")
        tstores(a)
    a(f"""
L_h2_notf2:
    v_lshlrev_b32 v7, 12, v1
    s_lshl_b32 s53, s57, 8
    s_lshl_b32 s61, s52, 3
    s_add_u32 s53, s53, s61
    s_add_u32 s53, s53, {FT}
    """)
    def tflag(tag):
        a(f"""
        s_cmp_ge_u32 s52, 28
        s_cbranch_scc1 L_h2_nf{tag}
        s_mov_b64 exec, 0xffff
        buffer_store_dwordx2 v[24:25], v7, {sr(SWS)}, s53 offen sc1
        s_mov_b64 exec, -1
L_h2_nf{tag}:
        """)
    a("s_cmp_lt_u32 s6, 28\ns_cbranch_scc1 L_h2_act\ns_waitcnt vmcnt(0)")
    tflag("i")
    a("s_branch L_h2_nowo\nL_h2_act:")
    a.stamp(6)
    def aread(p):
        for f in range(2):
            for u in range(2):
                b = A5H + 8*p + 4*f + 2*u
                a(f"ds_read_b64_tr_b16 v[{b}:{b+1}], v{4+f} offset:{(p%8)*2048+u*512}")
    D = max(1, (PFW + 1) // 2)
    e0 = max(EB, 0)
    flagged = False
    for p in range(NA5 + D):
        if e0 <= p < NA5:
            if p >= 8: a("s_waitcnt lgkmcnt(8)")
            wd(p, 7, (p % 8) * 2048)
        if p == NA5:
            a(f"""
            s_mul_i32 s{SKV+2}, s{SW3}, {14*8*896}
            s_lshl_b32 s60, s46, 7
            s_add_u32 s{SKV+2}, s{SKV+2}, s60
            s_mul_i32 s{SKV+3}, s{SW3}, 14336
            s_add_u32 s{SKV+3}, s{SKV+3}, {WOREG}
            s_and_b32 s62, s6, 3
            s_mul_i32 s62, s62, 7
            s_lshr_b32 s62, s62, 1
            """)
        def wo(n):
            for _ in range(n):
                a(f"""
                s_lshl_b32 s60, s62, 10
                s_add_u32 m0, s60, s{SKV+3}
                s_mul_i32 s60, s62, {8*896}
                s_add_u32 s60, s60, s{SKV+2}
                buffer_load_dwordx4 v21, {sr(SWO)}, s60 offen lds
                s_add_u32 s62, s62, 1
                s_cmp_eq_u32 s62, 14
                s_cselect_b32 s62, 0, s62
                """)
                lv.add("wo")
        if p >= NA5: wo(2)
        q = p - D
        if q >= 0:
            w = lv.wait(f"w{q}")
            a(w)
            if w and not flagged:
                tflag("a"); flagged = True
            aread(q)
    a.stamp(9)
    for k in range(7 - D):
        wo(2)
        a(f"s_waitcnt vmcnt({2*D})")
    a.stamp(10)
    a(f"""
L_h2_nowo:
    s_lshl_b32 s60, s56, 4
    s_add_u32 s60, s60, s57
    s_lshl_b32 s60, s60, 8
    s_add_u32 s60, s60, {FT}
    v_lshl_add_u32 v17, v1, 3, s60
    """)
    if TF: poll(a, "T", 17, 0xfffffff, backoff=40)
    a.stamp(11)
    gu_dma(a, 4, "g0", vm, thr=PFW)
    p2_ids(a)
    a("s_mov_b32 s62, 0\ns_waitcnt lgkmcnt(0)")
    vm.q = []
    a.stamp(7)
    a("L_h2_again:")
    a.bar("p2R0")
    a("s_waitcnt vmcnt(0)")
    a.bar("p2R1")
    a.bar("p2R2")
    a(f"""
    s_cmp_lg_u32 s62, 0
    s_cbranch_scc1 L_h2_done
    v_mov_b32 v9, {AUX2}
    ds_read_b32 v10, v9
    s_waitcnt lgkmcnt(0)
    v_readfirstlane_b32 s60, v10
    s_cmp_eq_u32 s60, 0
    s_cbranch_scc1 L_h2_done
    s_mov_b32 s62, 1
    s_barrier
    s_branch L_h2_again
L_h2_done:
    """)

def p3_addr(a):
    a(f"s_lshr_b32 s58, s{SW3}, 1")
    tr128_addr(a, 220, 58, None, 2)
    a(f"""
    s_lshr_b32 s60, s6, 2
    s_mul_i32 s60, s60, {2*3584}
    s_add_u32 s60, s60, {WOREG}
    v_add_u32 v220, s60, v220
    """)

def p3_pre(a):
    AF = 64
    a(f"""
    s_cmp_ge_u32 s6, 28
    s_cbranch_scc1 L_p3_skipA
    s_lshr_b32 s58, s6, 2                  ; fb
    """)
    for g in range(8):
        if g >= 2:
            a(f"""
            s_cmp_ge_u32 s58, {8-g}
            s_cselect_b32 s59, {(-57344) & 0xffffffff:#x}, 0
            v_add_u32 v{221+(g&1)}, s59, v220
            """)
        for n in (2*g, 2*g+1):
            for f in range(2):
                for u in range(2):
                    b = AF + 8*n + 4*f + 2*u
                    a(f"ds_read_b64_tr_b16 v[{b}:{b+1}], v{220 if g < 2 else 221+(g&1)} offset:{n*3584+f*2048+u*1024}")
        a("s_waitcnt lgkmcnt(6)")
    a("L_p3_skipA:")

def p3_compute(a):
    ACC = 16; BF = 32; AF = 64; XR = 192; T = 200
    late_ids(a)
    a(f"""
    s_cmp_ge_u32 s6, 28
    s_cbranch_scc1 L_p3_skipB
    s_and_b32 s52, s{SW3}, 1               ; tt_l
    s_lshr_b32 s53, s{SW3}, 1              ; ft_l
    s_lshl_b32 s54, s47, 1
    s_add_u32 s54, s54, s52                ; tt
    s_lshl_b32 s55, s46, 1
    s_add_u32 s55, s55, s53                ; ft
    v_mul_u32_u24 v3, 896, v12
    v_lshl_add_u32 v3, v13, 4, v3
    s_mul_i32 s60, s54, {32*896}
    s_lshl_b32 s61, s55, 6
    s_add_u32 s60, s60, s61
    buffer_load_dwordx4 {vr(XR)}, v3, {sr(SX)}, s60 offen
    buffer_load_dwordx4 {vr(XR+4)}, v3, {sr(SX)}, s60 offen offset:32
    s_lshl_b32 s60, s52, 15
    s_add_u32 s60, s60, {RREG}
    v_add_u32 v5, s60, v2
    s_mul_i32 s58, s54, 28672
    s_lshl_b32 s61, s55, 11
    s_add_u32 s58, s58, s61
    s_add_u32 s58, s58, {HF}
    s_mul_i32 s59, s54, 14
    s_add_u32 s59, s59, s55
    s_lshl_b32 s59, s59, 8
    s_add_u32 s59, s59, {ST}
    v_lshlrev_b32 v14, 3, v1
    s_waitcnt vmcnt(0)
    """)
    for r in range(8):
        a(f"v_lshlrev_b32 v{ACC+2*r}, 16, v{XR+r}\nv_and_b32 v{ACC+2*r+1}, 0xffff0000, v{XR+r}")
    a("v_mov_b32 v6, 0\nv_mov_b32 v7, 0")
    a.bar("p3P")
    for st in range(4):
        a.bar(f"p3s{st}")
        if st == 0: a.stamp(13)
        for q in range(8):
            a(f"ds_read_b128 {vr(BF+4*q)}, v5 offset:{(8*st+q)*1024}")
        for q in range(8):
            p = 8*st + q
            a(f"s_waitcnt lgkmcnt({7-q})")
            a(f"v_mfma_f32_32x32x16_bf16 {vr(ACC,16)}, {vr(AF+4*p)}, {vr(BF+4*q)}, {vr(ACC,16)}")
    a.stamp(14)
    for r in range(8):
        a(f"v_cvt_pk_bf16_f32 v{T+r}, v{ACC+2*r}, v{ACC+2*r+1}")
    a(f"""
    buffer_store_dwordx4 {vr(T)}, v2, {sr(SWS)}, s58 offen sc1
    buffer_store_dwordx4 {vr(T+4)}, v2, {sr(SWS)}, s58 offen offset:1024 sc1
    """)
    for r in range(8):
        a(f"v_dot2c_f32_bf16 v6, v{T+r}, v15\nv_dot2c_f32_bf16 v7, v{T+r}, v{T+r}")
    a(f"""
    v_mov_b32 v8, v6
    v_mov_b32 v9, v7
    v_permlane32_swap_b32 v6, v8
    v_permlane32_swap_b32 v7, v9
    v_add_f32 v6, v6, v8
    v_add_f32 v7, v7, v9
    s_mov_b32 exec_hi, 0
    buffer_store_dwordx2 v[6:7], v14, {sr(SWS)}, s59 offen sc1
    s_mov_b32 exec_hi, -1
L_p3_skipB:
    """)
    a.stamp(15)

def p3_helper(a, vm):
    publish(a, "B", pub14(53, 52, FB), 0x7f7f)
    gu_dma(a, 8 if TF else 7, "g1", vm)
    a.stamp(12)
    a(f"""
    s_cmp_ge_u32 s6, 28
    s_cbranch_scc1 L_h3_skip
    s_and_b32 s52, s{SW3}, 1
    s_lshr_b32 s53, s{SW3}, 1
    s_lshl_b32 s62, s47, 1
    s_add_u32 s62, s62, s52
    s_lshl_b32 s62, s62, 15
    s_lshl_b32 s53, s53, 10
    s_add_u32 s62, s62, s53
    s_add_u32 s62, s62, {OF}
    s_lshl_b32 s52, s52, 15
    s_add_u32 s52, s52, s53
    s_add_u32 s52, s52, {RREG}             ; dst
    s_lshl_b32 s53, s46, 12
    s_cmp_lg_u32 s{SW}, 4
    s_cbranch_scc1 L_h3_np
    s_lshl_b32 s60, s47, 3
    s_add_u32 s60, s60, s46
    s_lshl_b32 s60, s60, 7
    s_add_u32 s60, s60, {FB}
    v_lshl_add_u32 v17, v1, 3, s60
    """)
    poll(a, "B", 17, 0xffff)
    a("L_h3_np:")
    a.bar("p3P")
    a.stamp(13)
    a(f"""
    s_mov_b32 m0, s52
    s_mov_b32 s61, 0
L_h3_o:
    s_add_u32 s60, s53, s62
    buffer_load_dwordx4 v2, {sr(SWS)}, s60 offen sc1 lds
    s_add_u32 m0, m0, 2048
    s_add_u32 s53, s53, 2048
    s_and_b32 s53, s53, 0x7fff
    s_add_u32 s61, s61, 1
    s_cmp_lt_u32 s61, 16
    s_cbranch_scc1 L_h3_o
    """)
    for st in range(4):
        a(f"s_waitcnt vmcnt({12-4*st})")
        a.bar(f"p3s{st}")
    a("L_h3_skip:")

NBW = 8
P4B = (3, 11, 19) if TF else (3, 10, 17, 20)
NR4 = 1 if TF else 2
def p4_compute(a):
    ACC = 16; AF = 128; BF = 156; T = 188; OUT = 196; STT = 204
    RS, CC = 6, 7
    vm = VM()
    a(f"""
    s_lshl_b32 s54, s56, 2
    s_add_u32 s54, s54, s{SW3}             ; tt
    s_mul_i32 s55, s54, 28672
    s_add_u32 s55, s55, {HF}
    s_add_u32 s53, s55, 28672              ; end
    """)
    rot4(a, 58)
    a(f"""
    s_lshl_b32 s58, s58, 12
    s_add_u32 s58, s58, s55
    """)
    if TF: a("v_mov_b32 v4, v2")
    else:
        a(f"""
        v_bfe_u32 v9, v1, 2, 2
        v_mul_u32_u24 v10, 1088, v9
        v_lshl_add_u32 v10, v13, 9, v10
        v_and_b32 v9, 1, v1
        v_lshl_add_u32 v10, v9, 4, v10
        v_bfe_u32 v9, v1, 4, 1
        v_lshl_add_u32 v10, v9, 3, v10
        v_bfe_u32 v9, v1, 1, 1
        v_mul_u32_u24 v9, 4384, v9
        s_mul_i32 s60, s57, 224
        s_and_b32 s60, s60, 63
        v_add3_u32 v4, v10, v9, s60
        """)
    a(f"""
    v_mul_u32_u24 v5, {7*256}, v13
    v_lshl_add_u32 v5, v12, 3, v5
    s_mul_i32 s59, s54, {14*256}
    s_add_u32 s59, s59, {ST}
    s_waitcnt vmcnt(0)
    """)
    a.bar("p3X")
    a.stamp(16)
    base = [0]
    def tr(p, j):
        L = []
        slot = p % NSLOT
        off = slot * SLOT - base[0]
        if j == 0 and (off < 0 or off + SLOT > 65536):
            L.append(f"v_add_u32 v4, {off & 0xffffffff:#x}, v4")
            base[0] = slot * SLOT; off = 0
        if TF: L.append(f"ds_read_b128 {vr(AF+4*j)}, v4 offset:{off + j*1024}")
        else:
            for u in range(2):
                b = AF + 4*j + 2*u
                L.append(f"ds_read_b64_tr_b16 v[{b}:{b+1}], v4 offset:{off + u*256 + j*32}")
        return L
    for j in range(7): a.emit(*tr(0, j))
    a.bar("p4P")
    a.stamp(17)
    def bload(p):
        vm.add(f"b{p}")
        L = [f"buffer_load_dwordx4 {vr(BF+4*(p%NBW))}, v2, {sr(SWS)}, s58 offen offset:{(p%4)*1024} sc1"]
        if p % 4 == 3: L += ["s_add_u32 s58, s58, 4096", "s_cmp_eq_u32 s58, s53", "s_cselect_b32 s58, s55, s58"]
        return L
    for q in range(7):
        a(f"buffer_load_dwordx2 v[{STT+2*q}:{STT+2*q+1}], v5, {sr(SWS)}, s59 offen offset:{q*256} sc1")
    vm.add("st", 7)
    for p in range(NBW): a.emit(*bload(p))
    a(vm.wait("st"))
    pk = lambda b: f"v[{b}:{b+1}]"
    a(f"""
    v_pk_add_f32 {pk(STT+2)}, {pk(STT+2)}, {pk(STT+8)}
    v_pk_add_f32 {pk(STT+4)}, {pk(STT+4)}, {pk(STT+10)}
    v_pk_add_f32 {pk(STT+6)}, {pk(STT+6)}, {pk(STT+12)}
    v_pk_add_f32 {pk(STT)}, {pk(STT)}, {pk(STT+2)}
    v_pk_add_f32 {pk(STT+4)}, {pk(STT+4)}, {pk(STT+6)}
    v_pk_add_f32 {pk(STT)}, {pk(STT)}, {pk(STT+4)}
    v_mov_b32 v{STT+2}, v{STT}
    v_mov_b32 v{STT+3}, v{STT+1}
    v_permlane32_swap_b32 v{STT}, v{STT+2}
    v_permlane32_swap_b32 v{STT+1}, v{STT+3}
    v_pk_add_f32 {pk(STT)}, {pk(STT)}, {pk(STT+2)}
    v_mul_f32 v{STT}, {f2u(1.0/448):#x}, v{STT}
    v_mul_f32 v{STT+1}, {f2u(1.0/448):#x}, v{STT+1}
    v_fma_f32 v{STT+1}, -v{STT}, v{STT}, v{STT+1}
    v_max_f32 v{STT+1}, 0, v{STT+1}
    v_add_f32 v{STT+1}, {f2u(1e-5):#x}, v{STT+1}
    v_rsq_f32 v{RS}, v{STT+1}
    v_mul_f32 v{CC}, v{STT}, v{RS}
    v_sub_f32 v{CC}, 0, v{CC}
    """)
    def norm(p):
        f = BF + 4*(p % NBW)
        L = []
        for i in range(4):
            L += [f"v_lshlrev_b32 v{T+2*i}, 16, v{f+i}", f"v_and_b32 v{T+2*i+1}, 0xffff0000, v{f+i}"]
        for i in range(8):
            L.append(f"v_fma_f32 v{T+i}, v{T+i}, v{RS}, v{CC}")
        for i in range(4):
            L.append(f"v_cvt_pk_bf16_f32 v{f+i}, v{T+2*i}, v{T+2*i+1}")
        return L
    a(vm.wait("b0"))
    a.emit(*norm(0))
    a.stamp(18)
    k0 = [0, 3, 7, 10, 13, 17, 20, 20]
    for p in range(28):
        if p in P4B: a.bar(f"p4b{p}")
        nrm = norm(p + 1) if p < 27 else []
        for j in range(7):
            if j == 0:
                w = vm.wait(f"b{p+1}") if p < 27 else ""
                a((w + f" lgkmcnt({3*NR4})") if w else f"s_waitcnt lgkmcnt({3*NR4})")
            if j == 4: a(f"s_waitcnt lgkmcnt({4*NR4 if p < 27 else 0})")
            a(f"v_mfma_f32_32x32x16_bf16 {vr(ACC+16*j,16)}, {vr(AF+4*j)}, {vr(BF+4*(p%NBW))}, {'0' if p==0 else vr(ACC+16*j,16)}")
            if p < 27:
                t = tr(p + 1, j)
                a.emit(*t)
            a.emit(*nrm[k0[j]:k0[j+1]])
            if j == 6 and p + NBW < 28: a.emit(*bload(p + NBW))
    a.stamp(19)
    a(f"""
    s_mul_i32 s60, s54, {112*1024}
    s_mul_i32 s61, s57, 7168
    s_add_u32 s60, s60, s61
    s_add_u32 s60, s60, {HH}
    """)
    for j in range(7):
        acc = ACC + 16*j; o = OUT + 4*(j & 1)
        for g in range(2):
            for c in range(4):
                a(f"v_max_f32 v{acc+8*g+c}, 0, v{acc+8*g+c}")
            for c in (0, 2):
                a(f"v_pk_mul_f32 {pk(acc+8*g+c)}, {pk(acc+8*g+c)}, {pk(acc+8*g+4+c)}")
            a(f"v_cvt_pk_bf16_f32 v{o+2*g}, v{acc+8*g}, v{acc+8*g+1}")
            a(f"v_cvt_pk_bf16_f32 v{o+2*g+1}, v{acc+8*g+2}, v{acc+8*g+3}")
        if j == 4: a("s_add_u32 s60, s60, 4096")
        a(f"buffer_store_dwordx4 {vr(o)}, v2, {sr(SWS)}, s60 offen offset:{(j%4)*1024} sc1")
    a.stamp(21)
    a("s_waitcnt vmcnt(0)")
    a.bar("p4X")
    a.stamp(23)

def p4_helper(a, vm):
    a.bar("p3X")
    a("s_cmp_ge_u32 s6, 28\ns_cbranch_scc1 L_pub_C")
    publish(a, "C", f"""v_lshlrev_b32 v9, 7, v1
    s_lshr_b32 s60, s47, 1
    s_lshl_b32 s60, s60, 11
    s_and_b32 s61, s47, 1
    s_mul_i32 s61, s61, 7
    s_add_u32 s61, s61, s46
    s_lshl_b32 s61, s61, 3
    s_add_u32 s60, s60, s61
    s_add_u32 s60, s60, {FC}""", 0xffff)
    a(f"""
    s_cmp_lg_u32 s{SW}, 4
    s_cbranch_scc1 L_h4_np
    s_lshl_b32 s60, s56, 4
    s_add_u32 s60, s60, s57
    s_lshl_b32 s60, s60, 7
    s_add_u32 s60, s60, {FC}
    v_lshl_add_u32 v17, v1, 3, s60
    """)
    a.stamp(16)
    poll(a, "C", 17, 0x3fff)
    a("L_h4_np:")
    a.bar("p4P")
    a(vm.wait("g1"))
    a.bar("p4b3")
    if TF:
        gu_dma(a, 8, "g2", vm)
        a(f"s_sub_u32 s59, s59, {NSLOT*SLOT}")
        a(vm.wait("g2"))
        a.bar("p4b11")
        gu_dma(a, 8, "g3", vm)
        a(vm.wait("g3"))
        a.bar("p4b19")
    else:
        gu_dma(a, 7, "g2", vm)
        a(f"s_sub_u32 s59, s59, {NSLOT*SLOT}")
        gu_dma(a, 3, "g3", vm)
        a(vm.wait("g2"))
        a.bar("p4b10")
        gu_dma(a, 7, "g4", vm)
        a(vm.wait("g3"))
        a.bar("p4b17")
        a(vm.wait("g4"))
        a.bar("p4b20")
    a(f"""
    s_cmp_ge_u32 s6, 28
    s_cbranch_scc1 L_h4_nowd
    s_mul_i32 s60, s{SW3}, {(28-NA5)*2048}
    s_add_u32 s7, s60, {B1}
    """)
    for p in range(28 - NA5): p2_helper.wd(p, 7, p * 2048)
    a("L_h4_nowd:\ns_waitcnt vmcnt(0)")
    vm.q = []
    a.bar("p4X")

def p5_main(a, tag):
    helper = tag == "h"
    ACC = 24
    NC = 28 - NA5
    AR = A5H
    AREA = NA5 * 2048
    GH = [3, 3, 3, 3, 3, 4]; GC = [2, 2, 2, 2, 1, 0]
    assert sum(GH) == NA5 and sum(GC) == NC
    vm = VM()
    pk = lambda b: f"v[{b}:{b+1}]"
    HR = 240 if helper else 16
    a(f"""
    s_lshr_b32 s52, s{SW}, 2
    s_lshl_b32 s54, s47, 1
    s_add_u32 s53, s54, s52
    s_lshl_b32 s63, s46, 2
    s_add_u32 s63, s63, s{SW3}
    s_mul_i32 s62, s53, 28672
    s_lshl_b32 s61, s63, 10
    s_add_u32 s62, s62, s61
    s_add_u32 s62, s62, {HF}
    buffer_load_dwordx4 {vr(HR)}, v2, {sr(SWS)}, s62 offen sc1
    v_mul_u32_u24 v3, 896, v12
    v_lshl_add_u32 v3, v13, 4, v3
    s_mul_i32 s62, s53, {32*896}
    s_lshl_b32 s61, s63, 5
    s_add_u32 s62, s62, s61
    s_mul_i32 s7, s{SW3}, {AREA}
    v_add_u32 v8, s7, v2
    """)
    if helper:
        a(f"""
        s_cmp_lg_u32 s{SW}, 4
        s_cbranch_scc1 L_h5_np
        s_lshl_b32 s60, s47, 3
        s_add_u32 s60, s60, s46
        s_lshl_b32 s60, s60, 7
        s_add_u32 s60, s60, {FD}
        v_lshl_add_u32 v17, v1, 3, s60
        """)
        a.stamp(23)
        poll(a, "D", 17, 0xffff)
        a("L_h5_np:")
    else:
        a(f"""
        s_mul_i32 s60, s{SW3}, 28672
        s_add_u32 s60, s60, {HH}
        s_mul_i32 s55, s54, {112*1024}
        s_add_u32 s55, s55, s60
        s_add_u32 s58, s55, {112*1024}
        """)
        rot5(a, 59, 0)
        rot5(a, 52, NA5)
        a(f"s_lshl_b32 s59, s59, 10\ns_lshl_b32 s52, s52, 10\ns_lshr_b32 s60, s{SW3}, 1\ns_and_b32 s61, s{SW3}, 1")
        tr128_addr(a, 4, 60, 61, 3)
        a(f"""
        s_mul_i32 s60, s{SW3}, {NC*2048}
        s_add_u32 s60, s60, {B1}
        v_xor_b32 v5, 64, v4
        v_add_u32 v4, s60, v4
        v_add_u32 v5, s60, v5
        """)
        for p in range(NC):
            for f in range(2):
                for u in range(2):
                    b = AR + 8*p + 4*f + 2*u
                    a(f"ds_read_b64_tr_b16 v[{b}:{b+1}], v{4+f} offset:{p*2048+u*512}")
            if p % 2 == 1: a("s_waitcnt lgkmcnt(4)")
        a("s_waitcnt lgkmcnt(0)\ns_mov_b32 m0, s7")
    a.bar("p5P")
    a.stamp(24)
    adv = lambda r: f"s_add_u32 s{r}, s{r}, 1024\ns_cmp_eq_u32 s{r}, 28672\ns_cselect_b32 s{r}, 0, s{r}"
    def mf(p, b0, b1):
        for tl, b in ((0, b0), (1, b1)):
            for f in range(2):
                acc = ACC + 32*tl + 16*f
                a(f"v_mfma_f32_32x32x16_bf16 {vr(acc,16)}, {vr(AR+8*p+4*f)}, {vr(b)}, {'0' if p==0 else vr(acc,16)}")
    T = 96
    def tail_addr():
        for j in range(1, 8):
            a(f"""
            s_xor_b32 s60, s{SW3}, {j & 3}
            s_mul_i32 s60, s60, {AREA}
            v_add_u32 v{T+8+j}, s60, v2
            """)
    def wr_part():
        o = 14336 if helper else 0
        for j in range(1, 8):
            a(f"ds_write_b128 v8, {vr(ACC+8*j)} offset:{o+(j-1)*2048}\nds_write_b128 v8, {vr(ACC+8*j+4)} offset:{o+(j-1)*2048+1024}")
        for r in range(4):
            a(f"v_lshlrev_b32 v{T+2*r}, 16, v{HR+r}\nv_and_b32 v{T+2*r+1}, 0xffff0000, v{HR+r}")
        for r in range(0, 8, 2):
            a(f"v_pk_add_f32 {pk(ACC+r)}, {pk(ACC+r)}, {pk(T+r)}")
    if helper:
        BB = [16, 248]
        rd = lambda p: a(f"ds_read_b128 {vr(BB[p&1])}, v8 offset:{p*2048}\nds_read_b128 {vr(BB[p&1]+4)}, v8 offset:{p*2048+1024}")
        p = 0
        for g, n in enumerate(GH):
            a.bar(f"p5g{g}")
            rd(p)
            for k in range(n):
                if k + 1 < n: rd(p + 1)
                a(f"s_waitcnt lgkmcnt({2 if k + 1 < n else 0})")
                mf(p, BB[p&1], BB[p&1]+4)
                p += 1
            if g == 4: tail_addr()
        a.stamp(25)
        a("s_waitcnt vmcnt(0)")
        wr_part()
    else:
        BR = AR + 8*NC
        pc = 0; done = 0
        for g in range(len(GH) + 1):
            if g < len(GH):
                for k in range(GH[g]):
                    a(f"""
                    s_add_u32 s60, s59, s58
                    s_add_u32 s61, s59, s55
                    buffer_load_dwordx4 v2, {sr(SWS)}, s60 offen sc1 lds
                    s_add_u32 m0, m0, 1024
                    {adv(59)}
                    buffer_load_dwordx4 v2, {sr(SWS)}, s61 offen sc1 lds
                    s_add_u32 m0, m0, 1024
                    """)
                    vm.add(f"h{g}", 2)
                for k in range(GC[g]):
                    a(f"""
                    s_add_u32 s60, s52, s55
                    s_add_u32 s61, s52, s58
                    buffer_load_dwordx4 {vr(BR+8*pc)}, v2, {sr(SWS)}, s60 offen sc1
                    buffer_load_dwordx4 {vr(BR+8*pc+4)}, v2, {sr(SWS)}, s61 offen sc1
                    {adv(52)}
                    """)
                    vm.add(f"c{g}", 2); pc += 1
            if g >= 1:
                a(vm.wait(f"h{g-1}"))
                a.bar(f"p5g{g-1}")
                if GC[g-1]:
                    a(vm.wait(f"c{g-1}"))
                    for k in range(GC[g-1]):
                        mf(done, BR+8*done, BR+8*done+4); done += 1
                    if done == NC:
                        a.stamp(25)
                        tail_addr()
                        wr_part()
    a("s_waitcnt lgkmcnt(0)")
    a.bar("p5R1")
    for j in range(1, 8):
        o = 14336 if (helper != (j >= 4)) else 0
        a(f"ds_read_b128 {vr(ACC+8*j)}, v{T+8+j} offset:{o+(j-1)*2048}\nds_read_b128 {vr(ACC+8*j+4)}, v{T+8+j} offset:{o+(j-1)*2048+1024}")
    for j in range(7):
        a(f"s_waitcnt lgkmcnt({12-2*j})")
        for r in range(0, 8, 2):
            a(f"v_pk_add_f32 {pk(ACC+r)}, {pk(ACC+r)}, {pk(ACC+8+8*j+r)}")
    for r in range(4):
        a(f"v_cvt_pk_bf16_f32 v{T+r}, v{ACC+2*r}, v{ACC+2*r+1}")
    a(f"buffer_store_dwordx4 {vr(T)}, v3, {sr(SOUT)}, s62 offen")
    a.stamp(26)

def p5_compute(a):
    a("s_cmp_ge_u32 s6, 28\ns_cbranch_scc1 L_p5_skip_c")
    p5_main(a, "c")
    a("L_p5_skip_c:")

def p5_helper(a):
    publish(a, "D", pub14(56, 57, FD), 0x7f7f)
    a("s_cmp_ge_u32 s6, 28\ns_cbranch_scc1 L_p5_skip_h")
    p5_main(a, "h")
    a("L_p5_skip_h:")

def build(path):
    a = Asm()
    prologue(a)
    C = Role("c"); H = Role("h"); vm = VM()
    p1_compute(C); p1_helper(H)
    p2_compute(C); p2_helper(H, vm)
    p3_compute(C); p3_helper(H, vm)
    p4_compute(C); p4_helper(H, vm)
    p5_compute(C); p5_helper(H)
    assert C.bars == H.bars, (C.bars, H.bars)
    if "nopf" in XV or "nohtr" in XV:
        i0 = H.lines.index("L_h2_act:"); i1 = H.lines.index("L_h2_nowo:")
        H.lines = [l for k, l in enumerate(H.lines) if not (i0 < k < i1 and (("nopf" in XV and l.startswith("buffer_load")) or ("nohtr" in XV and l.startswith("ds_read"))))]
    if "nostat" in XV: H.lines = [l for l in H.lines if not l.startswith("v_mfma_f32_16x16")]
    if "nocs" in XV: C.lines = [l for l in C.lines if not l.startswith("v_mfma_f32_16x16")]
    if "hprio" in XV:
        i0 = H.lines.index("L_h2_act:"); H.lines.insert(i0 + 1, "s_setprio 3")
    a.lines += H.lines
    stamp_end(a)
    a("s_endpgm\nL_compute:")
    a.lines += C.lines
    stamp_end(a)
    a("L_end:\ns_endpgm")
    body = a.finish(True)
    hdr = open(f"cdna_kernels/{NAME}.s.ref").read().split("; Override launch")[0]
    out = hdr + "; @launch grid=(256,1,1) block=(512,1,1) lds=163840\n"
    out += '.amdgcn_target "amdgcn-amd-amdhsa--gfx950"\n.text\n'
    out += f".globl {KNAME}\n.p2align 8\n.type {KNAME},@function\n{KNAME}:\n{body}\n"
    out += f""".section .rodata,"a"
.p2align 6
.amdhsa_kernel {KNAME}
  .amdhsa_next_free_vgpr 256
  .amdhsa_next_free_sgpr 102
  .amdhsa_accum_offset 256
  .amdhsa_group_segment_fixed_size 0
  .amdhsa_kernarg_size 80
  .amdhsa_user_sgpr_count 2
  .amdhsa_user_sgpr_kernarg_segment_ptr 1
  .amdhsa_system_sgpr_workgroup_id_x 1
.end_amdhsa_kernel
"""
    open(path, "w").write(out)

if __name__ == "__main__":
    build(sys.argv[1] if len(sys.argv) > 1 else f"cdna_kernels/{NAME}.s")
```

```python
import sys, math, os, struct
from asmlib import Asm

NAME = "sequential_preLN__softmax_full_mha__glu_gated_reglu__prompt"
KNAME = NAME + "_kernel"
E = lambda k, d: int(os.environ.get(k, d))
DIAG = E("DIAG", 0)
PFW = E("PFW", 3)
ROTG = E("ROTG", 2)
XV = os.environ.get("XV", "")
POLL_MAX = 40000

def f2u(x): return struct.unpack('<I', struct.pack('<f', x))[0]
def vr(b, n=4): return f"v[{b}:{b+n-1}]"
def sr(b): return f"s[{b}:{b+3}]"

QF, KVF, FL, OF, HF, ST, HH, TS = 0x000000, 0x200000, 0x600000, 0x700000, 0x900000, 0xB00000, 0xC00000, 0x4000000
WS_BYTES = 0x10000000
FA, FB, FC, FD, FT = FL, FL + 0x40000, FL + 0x48000, FL + 0x50000, FL + 0x60000
WGU = 0x1400000
SW, SW3 = 3, 4
SX, SWQ, SWO, SWS, SG, SU, SD, SOUT, SDBG = 8, 12, 16, 20, 24, 28, 32, 36, 40
NON, SKV = 44, 48
AUX1 = 161792
CS1, KN1, CSP, TSTG = AUX1 + 1024, AUX1 + 1536, 159744, 143360
TF = E('TF', 0)
SLOT = 7168 if TF else 8736
NSLOT = 20 if TF else 18
WOREG = 35072
GAP = WOREG + 57344
AUX2 = 97280
RREG = 98304
B1 = 8 * SLOT if TF else 10 * SLOT
NA5 = 19

class Role(Asm):
    def __init__(self, tag):
        super().__init__(); self.tag = tag; self.bars = []
    def bar(self, name):
        self.bars.append(name); self("s_barrier")
    def stamp(self, i):
        if DIAG:
            self(f"s_memtime s[100:101]\ns_waitcnt lgkmcnt(0)\ns_mov_b32 s{64+i}, s100")

class VM:
    def __init__(self): self.q = []
    def add(self, tag, n=1): self.q += [tag] * n
    def wait(self, tag):
        idx = [i for i, t in enumerate(self.q) if t == tag]
        if not idx: return ""
        n = len(self.q) - 1 - idx[-1]
        self.q = self.q[idx[-1] + 1:]
        assert n <= 63
        return f"s_waitcnt vmcnt({n})"

PROBE = E("PROBE", 0)
def probe(a):
    if PROBE:
        a(f"""
        s_cmp_lg_u32 s2, 8
        s_cbranch_scc1 L_probe_done
        s_waitcnt vmcnt(0) lgkmcnt(0)
        s_memrealtime s[98:99]
        s_waitcnt lgkmcnt(0)
        s_sub_u32 s98, s98, s96
        s_cmp_lt_u32 s98, {PROBE}
        s_cbranch_scc1 L_probe_done
        s_mov_b32 s60, 0
L_probe_l:
        s_sleep 127
        s_add_u32 s60, s60, 1
        s_cmp_lt_u32 s60, 40
        s_cbranch_scc1 L_probe_l
L_probe_done:
        """)

def stamp_end(a):
    if DIAG:
        a(f"""
        s_mov_b64 exec, -1
        s_waitcnt vmcnt(0) lgkmcnt(0)
        s_memtime s[100:101]
        s_memrealtime s[98:99]
        s_waitcnt lgkmcnt(0)
        s_mov_b32 s93, s100
        s_mov_b32 s94, s96
        s_mov_b32 s95, s98
        s_lshl_b32 s60, s2, 3
        s_add_u32 s60, s60, s{SW}
        s_lshl_b32 s60, s60, 7
        s_add_u32 s60, s60, {TS}
        v_mov_b32 v0, 0
        """)
        for i in range(32):
            a(f"v_mov_b32 v{4+i}, s{64+i}")
        a("s_mov_b64 exec, 1")
        for i in range(8):
            a(f"buffer_store_dwordx4 v[{4+4*i}:{7+4*i}], v0, {sr(SWS)}, s60 offen offset:{16*i}")

def setexec(a, m):
    a(f"s_mov_b32 exec_lo, {m & 0xffffffff:#x}\ns_mov_b32 exec_hi, {m >> 32:#x}")

def prologue(a):
    if PROBE: a("s_memrealtime s[96:97]")
    if DIAG:
        a("s_memrealtime s[96:97]\ns_memtime s[100:101]")
    a(f"""
    s_cmp_ge_u32 s2, 256
    s_cbranch_scc1 L_end
    s_load_dwordx16 s[64:79], s[0:1], 0
    s_load_dwordx4 s[80:83], s[0:1], 64
    s_getpc_b64 s[6:7]
    s_lshr_b32 s5, s2, 3
    s_and_b32 s5, s5, 7
    s_lshl_b32 s5, s5, 13
    v_lshl_add_u32 v1, v0, 4, s5
    v_min_u32 v1, L_end-{KNAME}-16, v1
    s_and_b32 s6, s6, 0xffffff00
    global_load_dwordx4 v[252:255], v1, s[6:7]
    v_lshrrev_b32 v1, 6, v0
    v_readfirstlane_b32 s{SW}, v1
    v_and_b32 v1, 63, v0                   ; lane
    s_and_b32 s5, s2, 7                    ; xcd
    s_lshr_b32 s6, s2, 3                   ; i
    s_and_b32 s{SW3}, s{SW}, 3
    s_lshr_b32 s52, s5, 1
    s_lshl_b32 s52, s52, 2
    s_and_b32 s53, s6, 3
    s_add_u32 s52, s52, s53                ; rb
    s_and_b32 s53, s5, 1
    s_lshl_b32 s53, s53, 3
    s_lshr_b32 s54, s6, 2
    s_add_u32 s53, s53, s54                ; cb
    s_lshl_b32 s54, s52, 2
    s_add_u32 s54, s54, s{SW3}             ; tt
    s_and_b32 s55, s53, 1
    s_lshl_b32 s55, s55, 3                 ; colshift
    s_mov_b32 s{SX+2}, {2048*896:#x}
    s_mov_b32 s{SX+3}, 0x00020000
    s_mov_b32 s{SWQ+2}, {448*2688:#x}
    s_mov_b32 s{SWQ+3}, 0x00020000
    v_lshrrev_b32 v2, 3, v1
    v_mul_u32_u24 v2, 896, v2
    v_lshrrev_b32 v3, 4, v1
    v_and_b32 v9, 7, v1
    v_xor_b32 v3, v3, v9
    v_lshl_add_u32 v2, v3, 4, v2
    v_xor_b32 v3, 64, v2
    s_mul_i32 s56, s54, {32*896}
    s_lshl_b32 s57, s{SW3}, 12
    """)
    for u in range(3):
        a(f"""
        v_add_u32 v9, {64*u}, v1
        v_mul_u32_u24 v10, 43691, v9
        v_lshrrev_b32 v10, 19, v10
        v_mul_u32_u24 v11, 12, v10
        v_sub_u32 v11, v9, v11
        v_min_u32 v11, 10, v11
        v_mul_u32_u24 v10, 2688, v10
        v_lshl_add_u32 v{16+u}, v11, 4, v10
        """)
    magic = (65536 + ROTG - 1) // ROTG
    assert all((i * magic) >> 16 == i // ROTG for i in range(32))
    a(f"""
    s_mul_i32 s58, s53, 168
    s_sub_u32 s58, s58, s55
    s_mul_i32 s59, s{SW3}, {16*2688}
    s_add_u32 s58, s58, s59
    s_mul_i32 s59, s{SW3}, 3072
    s_add_u32 s59, s59, 16384
    s_mul_i32 s46, s6, {magic}
    s_lshr_b32 s46, s46, 16
    s_mul_i32 s46, s46, {ROTG}
    s_sub_u32 s46, s6, s46                 ; i mod G
    s_mul_i32 s46, s46, {(7*256)//ROTG}
    s_lshr_b32 s46, s46, 8
    s_mov_b32 s47, 0
    s_waitcnt lgkmcnt(0)
    s_mov_b64 s[{SX}:{SX+1}], s[64:65]
    s_mov_b64 s[{SWQ}:{SWQ+1}], s[66:67]
    s_cmp_lt_u32 s{SW}, 4
    s_cbranch_scc1 L_compute
    """)

def common_setup(a):
    for d, nb in ((SWO, 448*896), (SWS, WS_BYTES), (SG, 448*3584), (SU, 448*3584), (SD, 1792*896), (SOUT, 2048*896), (SDBG, 256)):
        a(f"s_mov_b32 s{d+2}, {nb:#x}\ns_mov_b32 s{d+3}, 0x00020000")
    for d, src in ((SWO, 68), (SG, 72), (SU, 74), (SD, 76), (SOUT, 78), (SDBG, 80), (SWS, 82)):
        a(f"s_mov_b64 s[{d}:{d+1}], s[{src}:{src+1}]")
    if DIAG:
        for i in range(0, 32, 2):
            a(f"s_mov_b64 s[{64+i}:{65+i}], 0")
        a("s_mov_b32 s64, s100")
    a(f"""
    v_and_b32 v12, 31, v1                  ; t
    v_lshrrev_b32 v13, 5, v1               ; hf
    v_mov_b32 v15, 0x3f803f80
    """)

def p1_adv(a):
    a(f"""
    s_add_u32 s46, s46, 1
    s_cmp_eq_u32 s46, 7
    s_cselect_b32 s46, 0, s46
    s_add_u32 s47, s47, 28672
    s_cmp_eq_u32 s47, {5*28672}
    s_cselect_b32 s47, 0, s47
    """)

def p1_issue(a):
    a(f"""
    s_lshl_b32 s60, s46, 7
    s_add_u32 s60, s60, s56
    s_add_u32 m0, s57, s47
    s_mul_i32 s61, s46, {4*16*2688}
    """)
    for q in range(4):
        a(f"buffer_load_dwordx4 v{2+(q&1)}, {sr(SX)}, s60 offen lds")
        if q < 3: a("s_add_u32 m0, m0, 1024\ns_add_u32 s60, s60, 7168")
    a(f"s_add_u32 m0, s59, s47\ns_add_u32 s61, s61, s58")
    for u in range(3):
        a(f"buffer_load_dwordx4 v{16+u}, {sr(SWQ)}, s61 offen lds")
        if u < 2: a("s_add_u32 m0, m0, 1024")
    p1_adv(a)

def rebase_ops(c, regs):
    d = 28672 if c % 5 else -4 * 28672
    return [f"v_add_u32 v{r}, {d & 0xffffffff:#x}, v{r}" for r in regs]

def p1_compute(a):
    ACC = 16; WA = 64; XF = 100; CSA = 112; SEL = 124; WAD = 128
    common_setup(a)
    a(f"""
    v_bfe_u32 v14, v12, 1, 3
    v_xor_b32 v14, v14, v13
    v_lshlrev_b32 v14, 4, v14
    v_lshl_add_u32 v14, v12, 7, v14
    s_lshl_b32 s61, s{SW3}, 5
    v_xor_b32 v14, s61, v14
    v_add_u32 v4, s57, v14
    v_xor_b32 v5, 32, v4
    v_xor_b32 v6, 64, v4
    v_xor_b32 v7, 96, v4
    v_bfe_u32 v9, v1, 4, 1                 ; ch
    v_bfe_u32 v10, v1, 2, 2                ; r
    v_lshl_add_u32 v10, v13, 3, v10
    v_mul_u32_u24 v10, 192, v10
    v_lshl_add_u32 v10, v9, 5, v10
    v_and_b32 v11, 3, v1
    v_lshl_add_u32 v10, v11, 3, v10
    """)
    for i in range(4):
        a(f"""
        s_xor_b32 s61, s{SW3}, {i}
        s_mul_i32 s61, s61, 3072
        s_add_u32 s61, s61, s55
        s_add_u32 s61, s61, 16384
        v_add_u32 v{WAD+i}, s61, v10
        """)
    p1_adv(a); p1_adv(a)
    p1_issue(a)
    for r in range(4): a(f"v_mov_b32 v{SEL+r}, 0")
    setexec(a, 0x0002000100020001)
    for r in range(4): a(f"v_mov_b32 v{SEL+r}, v15")
    a(f"""
    s_mov_b64 exec, -1
    s_lshl_b32 s60, s{SW3}, 9
    s_add_u32 s60, s60, {CSP}
    v_lshl_add_u32 v132, v1, 2, s60
    v_lshlrev_b32 v2, 4, v1                ; lane*16
    s_lshl_b32 s56, s{SW3}, 8
    s_add_u32 s56, s56, {AUX1}
    v_lshl_add_u32 v133, v12, 2, s56
    v_lshl_add_u32 v134, v13, 4, s56
    v_lshlrev_b32 v135, 4, v13
    v_add_u32 v135, {CS1}, v135
    v_lshlrev_b32 v136, 2, v12
    v_add_u32 v136, {CS1}, v136
    v_mov_b32 v14, {KN1}
    s_mul_i32 s60, s53, 3
    """)
    for j in range(3):
        a(f"""
        s_add_u32 s61, s60, {j}
        s_and_b32 s62, s61, 15
        s_lshl_b32 s62, s62, 6
        s_add_u32 s62, s62, s54
        s_lshl_b32 s{57+j}, s62, 11
        s_lshl_b32 s62, s62, 12
        s_add_u32 s62, s62, {KVF}
        s_cmp_ge_u32 s61, 16
        s_cselect_b32 s{57+j}, s62, s{57+j}
        s_add_u32 s62, s62, 2048
        s_cmp_ge_u32 s61, 32
        s_cselect_b32 s{57+j}, s62, s{57+j}
        """)
    def reads(ks):
        c, i = divmod(ks, 4)
        pre = []
        if i == 0 and c in (2, 4, 5):
            d = {2: 2*28672, 4: 2*28672, 5: -4*28672}[c]
            pre = [f"v_add_u32 v{r}, {d & 0xffffffff:#x}, v{r}" for r in (4, 5, 6, 7, WAD, WAD+1, WAD+2, WAD+3)]
        so = 28672 if c in (1, 3, 6) else 0
        buf = WA + 12 * (ks % 3)
        L = [f"ds_read_b128 {vr(XF+4*(ks%3))}, v{4+i} offset:{so}"]
        for j in range(3):
            for u in range(2):
                L.append(f"ds_read_b64_tr_b16 v[{buf+4*j+2*u}:{buf+4*j+2*u+1}], v{WAD+i} offset:{so+u*768+j*56}")
        return pre, L
    a(f"""
    s_cmp_eq_u32 s53, 10
    s_cbranch_scc1 L_p1_v1
    s_cmp_gt_u32 s53, 10
    s_cbranch_scc1 L_p1_v2
    """)
    QS = f2u(28 ** -0.5 * math.log2(math.e))
    MEAN, RSTD, CS, P0 = 64, 80, 140, 204
    pk = lambda b: f"v[{b}:{b+1}]"
    def epilogue(types):
        n = 0
        if "Q" in types or "K" in types:
            a("ds_read_b32 v10, v133\nds_read_b32 v11, v133 offset:128"); n += 2
        for j in range(3):
            if types[j] != "V":
                for q in range(4): a(f"ds_read_b128 {vr(CS+16*j+4*q)}, v135 offset:{128*j+32*q}")
                n += 4
        if "V" in types:
            if n: a("s_waitcnt lgkmcnt(4)")
            for j in range(3):
                if types[j] == "V": a(f"ds_read_b32 v{100+2*j}, v136 offset:{128*j}")
            for q in range(4):
                a(f"ds_read_b128 {vr(MEAN+4*q)}, v134 offset:{32*q}\nds_read_b128 {vr(RSTD+4*q)}, v134 offset:{128+32*q}")
        for j in range(3):
            acc = ACC + 16*j; P = P0 + 8*j; t = types[j]
            if t == "V":
                a(f"""
                s_waitcnt lgkmcnt(0)
                v_sub_f32 v{100+2*j}, 0, v{100+2*j}
                v_mov_b32 v{101+2*j}, v{100+2*j}
                """)
                for r in range(0, 16, 2): a(f"v_pk_fma_f32 {pk(acc+r)}, {pk(MEAN+r)}, {pk(100+2*j)}, {pk(acc+r)}")
                for r in range(0, 16, 2): a(f"v_pk_mul_f32 {pk(acc+r)}, {pk(acc+r)}, {pk(RSTD+r)}")
                for r in range(8): a(f"v_cvt_pk_bf16_f32 v{P+r}, v{acc+2*r}, v{acc+2*r+1}")
                setexec(a, 0x1000000010000000)
                for r in range(8): a(f"v_mov_b32 v{P+r}, v15")
                setexec(a, 0xe0000000e0000000)
                for r in range(8): a(f"v_mov_b32 v{P+r}, 0")
                a(f"""
                s_mov_b64 exec, -1
                buffer_store_dwordx4 {vr(P)}, v2, {sr(SWS)}, s{57+j} offen sc1
                buffer_store_dwordx4 {vr(P+4)}, v2, {sr(SWS)}, s{57+j} offen offset:1024 sc1
                """)
                continue
            if j == 0: a("s_waitcnt lgkmcnt(8)" if "V" not in types else "s_waitcnt lgkmcnt(13)")
            if j == 0 or types[j-1] != t:
                a(f"""
                {f"v_mul_f32 v96, {QS:#x}, v11" if t == "Q" else "v_mov_b32 v96, v11"}
                v_mul_f32 v98, v10, v96
                v_sub_f32 v98, 0, v98
                v_mov_b32 v97, v96
                v_mov_b32 v99, v98
                """)
            for r in range(0, 16, 2): a(f"v_pk_mul_f32 {pk(acc+r)}, {pk(acc+r)}, v[96:97]")
            if j == 1: a("s_waitcnt lgkmcnt(0)")
            for r in range(0, 16, 2): a(f"v_pk_fma_f32 {pk(acc+r)}, {pk(CS+16*j+r)}, v[98:99], {pk(acc+r)}")
            for r in range(8): a(f"v_cvt_pk_bf16_f32 v{P+r}, v{acc+2*r}, v{acc+2*r+1}")
            a(f"""
            buffer_store_dwordx4 {vr(P)}, v2, {sr(SWS)}, s{57+j} offen sc1
            s_mov_b32 exec_lo, 0
            v_mov_b32 v{P+6}, 0
            v_mov_b32 v{P+7}, 0
            s_mov_b32 exec_lo, -1
            v_mov_b32 v8, 0
            v_mov_b32 v9, 0
            """)
            for r in range(8): a(f"v_dot2c_f32_bf16 v{8+(r&1)}, v{P+r}, v{P+r}")
            if t == "K":
                a(f"""
                s_mov_b32 exec_lo, 0
                v_mov_b32 v{P+6}, v15
                s_mov_b32 exec_lo, -1
                buffer_store_dwordx4 {vr(P+4)}, v2, {sr(SWS)}, s{57+j} offen offset:1024 sc1
                """)
            a(f"""
            v_add_f32 v8, v8, v9
            v_mov_b32 v9, v8
            v_permlane32_swap_b32 v8, v9
            v_add_f32 v8, v8, v9
            s_mov_b32 exec_lo, 0
            """)
            if t == "Q":
                a(f"""
                v_sqrt_f32 v8, v8
                v_mul_f32 v8, {f2u(1.0+1.0/128):#x}, v8
                v_add_u32 v8, 0xffff, v8
                v_lshrrev_b32 v{P+6}, 16, v8
                s_mov_b32 exec_lo, -1
                buffer_store_dwordx4 {vr(P+4)}, v2, {sr(SWS)}, s{57+j} offen offset:1024 sc1
                """)
            else:
                a(f"ds_max_u32 v14, v8 offset:{4*j}\ns_mov_b32 exec_lo, -1")
    bars0 = list(a.bars)
    for var, isv in enumerate(((0,0,0), (0,0,1), (1,1,1))):
        a.bars = list(bars0)
        a(f"L_p1_v{var}:")
        a.bar("p1s0")
        a.stamp(1)
        a.emit(*reads(0)[1]); a.emit(*reads(1)[1])
        for ks in range(28):
            if ks % 4 == 2 and ks < 26:
                if ks == 6: a("s_waitcnt vmcnt(0)")
                a.bar(f"p1s{ks//4+1}")
            pre, rd = reads(ks + 2) if ks < 26 else ([], [])
            buf = WA + 12 * (ks % 3)
            a.emit(*pre)
            if ks < 27: a(f"s_waitcnt lgkmcnt({7 if ks < 26 else 13})")
            for j in range(3):
                A, B = vr(buf + 4*j), vr(XF + 4*(ks % 3))
                if isv[j]: A, B = B, A
                C = "0" if ks == 0 else vr(ACC + 16*j, 16)
                a(f"v_mfma_f32_32x32x16_bf16 {vr(ACC+16*j,16)}, {A}, {B}, {C}")
                a.emit(*rd[[0,3,5][j]:[3,5,7][j]])
            if ks % 4 == 0:
                for j in range(3):
                    a(f"v_mfma_f32_16x16x32_bf16 {vr(CSA+4*j)}, {vr(SEL)}, {vr(buf+4*j)}, {'0' if ks == 0 else vr(CSA+4*j)}")
            if ks == 25:
                a("s_mov_b64 exec, 0xffff")
                for j in range(3):
                    a(f"ds_write_b32 v132, v{CSA+4*j} offset:{128*j}\nds_write_b32 v132, v{CSA+4*j+1} offset:{128*j+64}")
                a("s_mov_b64 exec, -1")
            if ks == 26:
                a("s_waitcnt lgkmcnt(0)")
                a.bar("p1C")
        a.stamp(2)
        if var == 0:
            a("s_cmp_lt_u32 s53, 5\ns_cbranch_scc1 L_p1_eQQQ\ns_cmp_eq_u32 s53, 5\ns_cbranch_scc1 L_p1_eQKK")
            eps = ("KKK", "QQQ", "QKK")
        else:
            eps = (("KKV",), ("VVV",))[var - 1]
        bars1 = list(a.bars)
        for ep in eps:
            a.bars = list(bars1)
            a(f"L_p1_e{ep}:")
            a.bar("p1S")
            a.stamp(3)
            epilogue(ep)
            if ep != "VVV": a("s_branch L_p1_done")
    a("L_p1_done:")
    a.stamp(4)

def p1_helper(a):
    XF = 96; G = 68; SM = 76; ONES = 88; SEL = 84; CSA = 64
    vm = VM()
    a("L_h1_il:")
    p1_issue(a)
    a(f"s_cmp_lt_u32 s47, {2*28672}\ns_cbranch_scc1 L_h1_il")
    p1_adv(a)
    vm.add("s0", 7); vm.add("s1", 7)
    common_setup(a)
    a.stamp(1)
    a(f"""
    s_cmp_lg_u32 s{SW}, 4
    s_cbranch_scc1 L_h_nononce
    s_cmp_lg_u32 s2, 0
    s_cbranch_scc1 L_h_nononce
    s_memrealtime s[{NON}:{NON+1}]
    s_waitcnt lgkmcnt(0)
    s_or_b32 s{NON+1}, s{NON+1}, 0x80000000
    v_mov_b32 v10, s{NON}
    v_mov_b32 v11, s{NON+1}
    v_mov_b32 v9, 0
    s_mov_b64 exec, 1
    buffer_store_dwordx2 v[10:11], v9, {sr(SDBG)}, 0 offen sc1
    s_mov_b64 exec, -1
L_h_nononce:
    v_and_b32 v9, 15, v1
    v_lshrrev_b32 v10, 1, v9
    v_lshrrev_b32 v11, 4, v1
    v_xor_b32 v10, v10, v11
    v_lshlrev_b32 v10, 4, v10
    v_lshl_add_u32 v10, v9, 7, v10
    v_add_u32 v4, s57, v10
    v_xor_b32 v5, 64, v4
    v_lshlrev_b32 v14, 2, v11
    v_add_u32 v14, {KN1}, v14
    v_mov_b32 v10, 0
    ds_write_b32 v14, v10
    s_and_b32 s63, s{SW}, 1
    s_lshl_b32 s60, s{SW3}, 7
    v_lshl_add_u32 v8, v12, 2, s60
    v_add_u32 v19, {CS1}, v8
    v_add_u32 v8, {CSP}, v8
    s_lshl_b32 s60, s{SW3}, 8
    s_add_u32 s60, s60, {AUX1}
    v_lshl_add_u32 v9, v9, 2, s60
    {"s_setprio 3" if E("HPRIO", 1) else ""}
    """)
    for r in range(4): a(f"v_mov_b32 v{ONES+r}, v15")
    STAG = E("STAG", 0)
    def work(c):
        xf = XF + 16 * (c & 1)
        for i in range(4):
            th, kh = i & 1, i >> 1
            z = (c == 0 and kh == 0)
            a(f"v_mfma_f32_16x16x32_bf16 {vr(G+4*th)}, {vr(xf+4*i)}, {vr(xf+4*i)}, {'0' if z else vr(G+4*th)}")
            a(f"v_mfma_f32_16x16x32_bf16 {vr(SM+4*th)}, {vr(ONES)}, {vr(xf+4*i)}, {'0' if z else vr(SM+4*th)}")
    for c in range(7):
        a(vm.wait(f"s{c}"))
        a("s_waitcnt lgkmcnt(0)")
        if c in (0, 3, 6): a.stamp(2 + c // 3)
        a.bar(f"p1s{c}")
        if c > 0: a.emit(*rebase_ops(c, (4, 5)))
        xf = XF + 16 * (c & 1)
        for i in range(4):
            a(f"ds_read_b128 {vr(xf+4*i)}, v{4+(i>>1)} offset:{(i&1)*2048}")
        n = c + 3
        if n <= 6:
            if STAG: a(f"s_cmp_lg_u32 s63, 0\ns_cbranch_scc1 L_h1_a{c}")
            p1_issue(a)
            a(f"L_h1_a{c}:")
        if c > 0: work(c - 1)
        if n <= 6:
            if STAG:
                a(f"s_cmp_eq_u32 s63, 0\ns_cbranch_scc1 L_h1_b{c}")
                p1_issue(a)
                a(f"L_h1_b{c}:")
            vm.add(f"s{n}", 7)
            if n == 6 and TF:
                a(f"""
                s_and_b32 s48, s5, 1
                s_lshl_b32 s48, s48, 3
                s_and_b32 s60, s6, 7
                s_add_u32 s48, s48, s60
                s_lshl_b32 s60, s{SW3}, 4
                s_add_u32 s48, s48, s60
                s_cmp_ge_u32 s48, 28
                s_cbranch_scc1 L_h1_notf
                s_lshr_b32 s49, s5, 1
                s_lshl_b32 s49, s49, 2
                s_lshr_b32 s60, s6, 3
                s_add_u32 s49, s49, s60            ; cb4
                s_mul_i32 s50, s48, {16*3584}
                s_mul_i32 s60, s49, 224
                s_and_b32 s61, s60, 63
                s_sub_u32 s60, s60, s61
                s_add_u32 s50, s50, s60
                s_lshl_b32 s51, s{SW3}, 13
                s_add_u32 s51, s51, {TSTG}
                s_add_u32 s61, s61, s51
                v_lshrrev_b32 v10, 4, v1
                v_mul_u32_u24 v10, {4*3584}, v10
                v_and_b32 v11, 15, v1
                v_lshl_add_u32 v20, v11, 4, v10
                v_bfe_u32 v10, v1, 2, 2
                v_lshlrev_b32 v10, 10, v10
                v_lshl_add_u32 v10, v13, 9, v10
                v_and_b32 v11, 1, v1
                v_lshl_add_u32 v10, v11, 4, v10
                v_bfe_u32 v11, v1, 4, 1
                v_lshl_add_u32 v10, v11, 3, v10
                v_bfe_u32 v11, v1, 1, 1
                v_lshl_add_u32 v10, v11, 12, v10
                v_add_u32 v6, s61, v10
                """)
                for i in range(4):
                    a(f"""
                    s_add_u32 m0, s51, {i*1024}
                    s_nop 0
                    buffer_load_dwordx4 v20, {sr(SG)}, s50 offen lds
                    s_add_u32 m0, s51, {i*1024+4096}
                    s_nop 0
                    buffer_load_dwordx4 v20, {sr(SU)}, s50 offen lds
                    s_add_u32 s50, s50, 3584
                    """)
                a("s_branch L_h1_tf\nL_h1_notf:")
                for i in range(8): a(f"buffer_load_dword v22, v1, {sr(SDBG)}, 0 offen offset:512")
                a("L_h1_tf:")
                vm.add("t", 8)
    a("s_waitcnt lgkmcnt(0)")
    work(6)
    for r in range(1, 4):
        setexec(a, sum(1 << (20*g + r) for g in range(4)))
        a(f"v_mov_b32 v{G}, v{G+r}\nv_mov_b32 v{G+4}, v{G+4+r}")
    setexec(a, sum(15 << (20*g) for g in range(4)))
    for th in range(2):
        mn, sq = SM + 4*th, G + 4*th
        a(f"""
        v_mul_f32 v{mn}, {f2u(1.0/448):#x}, v{mn}
        v_mul_f32 v{sq}, {f2u(1.0/448):#x}, v{sq}
        v_fma_f32 v{sq}, -v{mn}, v{mn}, v{sq}
        v_max_f32 v{sq}, 0, v{sq}
        v_add_f32 v{sq}, {f2u(1e-5):#x}, v{sq}
        v_rsq_f32 v{sq}, v{sq}
        ds_write_b32 v9, v{mn} offset:{64*th}
        s_nop 0
        ds_write_b32 v9, v{sq} offset:{128+64*th}
        """)
    a("s_mov_b64 exec, -1")
    a.bar("p1C")
    for w in range(4): a(f"ds_read_b32 v{CSA+w}, v8 offset:{512*w}")
    a(f"""
    s_waitcnt lgkmcnt(0)
    v_add_f32 v{CSA}, v{CSA}, v{CSA+1}
    v_add_f32 v{CSA+2}, v{CSA+2}, v{CSA+3}
    v_add_f32 v{CSA}, v{CSA}, v{CSA+2}
    ds_write_b32 v19, v{CSA}
    s_waitcnt lgkmcnt(0)
    s_setprio 0
    """)
    a.bar("p1S")
    a(f"""
    v_mov_b32 v9, 0
    s_mov_b32 s60, 0
L_h_nl:
    buffer_load_dwordx2 v[24:25], v9, {sr(SDBG)}, 0 offen sc1
    s_add_u32 s60, s60, 1
    s_waitcnt vmcnt(0)
    v_readfirstlane_b32 s{NON}, v24
    v_readfirstlane_b32 s{NON+1}, v25
    s_cmp_gt_u32 s60, {POLL_MAX}
    s_cbranch_scc1 L_h_gotnonce
    s_cmp_eq_u32 s{NON+1}, 0
    s_cbranch_scc1 L_h_nl
L_h_gotnonce:
    """)
    if TF:
        a("s_cmp_ge_u32 s48, 28\ns_cbranch_scc1 L_h1_notf2")
        for j in range(7):
            for u in range(2):
                a(f"ds_read_b64_tr_b16 v[{36+4*j+2*u}:{37+4*j+2*u}], v6 offset:{u*256+j*32}")
        a(f"""
        s_mul_i32 s50, s49, {28*SLOT}
        s_mul_i32 s60, s48, {SLOT}
        s_add_u32 s50, s50, s60
        s_add_u32 s50, s50, {WGU}
        s_add_u32 s51, s50, 4096
        v_lshlrev_b32 v2, 4, v1
        s_waitcnt lgkmcnt(0)
        """)
        if E("TST", 0) == 0: tstores(a)
        a("L_h1_notf2:")
    a(f"""
    s_mul_i32 s60, s53, 3
    v_lshrrev_b32 v9, 4, v1
    v_add_u32 v9, s60, v9                  ; p
    v_and_b32 v10, 15, v9                  ; h
    v_lshrrev_b32 v9, 4, v9                ; type
    v_lshlrev_b32 v9, 8, v9
    v_lshl_add_u32 v9, v10, 10, v9
    v_and_b32 v10, 15, v1
    v_lshl_add_u32 v18, v10, 14, v9
    s_lshl_b32 s62, s52, 4
    s_add_u32 s62, s62, {FA}
    v_mov_b32 v27, 0
    s_lshl_b32 s60, s2, 10
    s_add_u32 s60, s60, {FA+256}
    v_lshl_add_u32 v17, v1, 4, s60
    s_lshr_b32 s61, s2, 4
    s_lshl_b32 s61, s61, 4
    s_add_u32 s60, s60, s61
    s_sub_u32 s60, s60, 256
    s_mov_b32 exec_lo, 0
    v_mov_b32 v17, s60
    s_mov_b32 exec_lo, -1
    """)

def tstores(a):
    for j in range(7):
        a(f"buffer_store_dwordx4 {vr(36+4*j)}, v2, {sr(SWS)}, s{50 if j < 4 else 51} offen offset:{(j%4)*1024} sc1")

def publish(a, tag, code, mask):
    a(f"""
    s_cmp_lg_u32 s{SW}, 4
    s_cbranch_scc1 L_pub_{tag}
    {code}
    v_mov_b32 v10, s{NON}
    v_mov_b32 v11, s{NON+1}
    s_mov_b64 exec, {mask:#x}
    buffer_store_dwordx2 v[10:11], v9, {sr(SWS)}, s60 offen sc1
    s_mov_b64 exec, -1
L_pub_{tag}:
    """)

def pub14(r, slot, base):
    return f"""v_lshlrev_b32 v9, 7, v1
    s_lshl_b32 s60, s{r}, 11
    s_lshl_b32 s61, s{slot}, 3
    s_add_u32 s60, s60, s61
    s_add_u32 s60, s60, {base}"""

def poll(a, tag, vaddr, mask, wide=False, dst=10, pipe=False, backoff=0):
    n = 4 if wide else 2
    ld = lambda d: f"buffer_load_dwordx{n} {vr(d, n)}, v{vaddr}, {sr(SWS)}, 0 offen sc1"
    setexec(a, mask)
    if not pipe:
        a(f"""
        s_mov_b32 s60, 0
L_poll_{tag}:
        {ld(dst)}
        s_add_u32 s60, s60, 1
        s_waitcnt vmcnt(0)
        v_cmp_ne_u64 vcc, s[{NON}:{NON+1}], v[{dst}:{dst+1}]
        s_cmp_gt_u32 s60, {POLL_MAX}
        s_cbranch_scc1 L_polld_{tag}
        {f"s_cbranch_vccz L_polld_{tag}" if backoff else ""}
        {f"s_sleep {backoff}" if backoff else ""}
        s_cbranch_vccnz L_poll_{tag}
L_polld_{tag}:
        s_mov_b64 exec, -1
        """)
        return
    a(f"""
    s_mov_b32 s60, 0
    v_mov_b32 v{dst}, 0
    v_mov_b32 v{dst+1}, 0
L_poll_{tag}:
    {ld(dst)}
    s_add_u32 s60, s60, 1
    s_sleep 4
    s_waitcnt vmcnt(8)
    v_cmp_ne_u64 vcc, s[{NON}:{NON+1}], v[{dst}:{dst+1}]
    s_cmp_gt_u32 s60, {POLL_MAX}
    s_cbranch_scc1 L_polld_{tag}
    s_cbranch_vccnz L_poll_{tag}
L_polld_{tag}:
    s_mov_b64 exec, -1
    """)

def p2_ids(a):
    a("s_and_b32 s52, s2, 15\ns_lshr_b32 s53, s2, 4")

def late_ids(a):
    a(f"""
    s_lshl_b32 s47, s5, 2
    s_and_b32 s46, s6, 3
    s_add_u32 s47, s47, s46                ; tb
    s_lshr_b32 s46, s6, 2                  ; fb
    s_and_b32 s56, s5, 1
    s_lshl_b32 s56, s56, 3
    s_and_b32 s57, s6, 7
    s_add_u32 s56, s56, s57                ; rb
    s_lshr_b32 s57, s5, 1
    s_lshl_b32 s57, s57, 2
    s_lshr_b32 s60, s6, 3
    s_add_u32 s57, s57, s60                ; cb
    """)

def p2_compute(a):
    Q = 16; O = 48; S = [112, 128]; P = 144; KV = 152; RA = 216
    pk = lambda b: f"v[{b}:{b+1}]"
    p2_ids(a)
    a(f"""
    s_lshl_b32 s54, s52, 6                 ; h*64
    s_lshl_b32 s55, s{SW3}, 4
    s_add_u32 s55, s55, s54
    s_lshl_b32 s55, s55, 12
    s_add_u32 s55, s55, {KVF}
    s_add_u32 s{SKV}, s{SWS}, s55
    s_addc_u32 s{SKV+1}, s{SWS+1}, 0
    s_mov_b32 s{SKV+2}, 65536
    s_mov_b32 s{SKV+3}, 0x00020000
    s_lshl_b32 s55, s53, 2
    s_add_u32 s55, s55, s54                ; h*64 + qb*4
    v_lshlrev_b32 v3, 2, v1
    v_mov_b32 v9, {AUX2}
    s_mov_b32 s62, 0                       ; pass
    """)
    for j in range(4):
        a(f"""
        s_add_u32 s60, s{SW3}, {j+1}
        s_and_b32 s60, s60, 3
        s_add_u32 s{56+j}, s60, s55
        s_lshl_b32 s{56+j}, s{56+j}, 11
        s_mul_i32 s60, s60, 12288
        s_add_u32 s60, s60, {RREG + (j*4096 if j < 3 else 0)}
        v_add_u32 v{RA+j}, s60, v2
        """)
    a("s_waitcnt vmcnt(0) lgkmcnt(0)")
    a.stamp(5)
    a.bar("p1X")
    a("s_mov_b32 s63, s58")
    p3_addr(a)
    a(f"s_mov_b32 s58, s63\nv_mov_b32 v9, {AUX2}")
    def zero():
        for r in range(64): a(f"v_mov_b32 v{O+r}, 0")
        for r in range(4): a(f"v_mov_b32 v{P+4+r}, 0\nv_mov_b32 v{KV+48+12+r}, 0")
    zero()
    a.bar("p2P")
    a.stamp(6)
    def kvl(t):
        kt, f = divmod(t, 4)
        return f"buffer_load_dwordx4 {vr(KV+16*kt+4*f)}, v2, {sr(SKV)}, s61 offen offset:{f*1024} sc1"
    def ql(j):
        a(f"buffer_load_dwordx4 {vr(Q+8*j+4)}, v2, {sr(SWS)}, s{56+j} offen offset:1024 sc1")
        a(f"buffer_load_dwordx4 {vr(Q+8*j)}, v2, {sr(SWS)}, s{56+j} offen sc1")
    a(f"ds_read_b32 v5, v9 offset:4")
    for j in range(4): ql(j)
    a("L_p2_restart:")
    for t in range(13):
        if t == 0:
            KG = E("KVG", 4)
            a(f"s_and_b32 s61, s53, {KG-1}\ns_mul_i32 s61, s61, {65536//KG}")
        elif t % 4 == 0: a("s_add_u32 s61, s61, 4096\ns_and_b32 s61, s61, 0xffff")
        a(kvl(t))
    a(f"""
    s_cmp_lg_u32 s62, 0
    s_cbranch_scc1 L_p2_havem
    s_waitcnt vmcnt(13) lgkmcnt(0)
    s_mov_b32 exec_lo, 0
    """)
    for j in range(4): a(f"v_lshlrev_b32 v{S[1]+j}, 16, v{Q+8*j+6}")
    for j in range(4): a(f"v_mul_f32 v{S[1]+j}, v5, v{S[1]+j}")
    for j in range(4): a(f"v_add_u32 v{S[1]+j}, 0x8000ffff, v{S[1]+j}")
    for j in range(4): a(f"v_lshrrev_b32 v{Q+8*j+6}, 16, v{S[1]+j}")
    a("s_mov_b32 exec_lo, -1")
    a.bar("p2Y")
    a(f"""
L_p2_havem:
    s_waitcnt vmcnt({11 if E('WSPLIT', 1) else 9})
    v_mfma_f32_32x32x16_bf16 {vr(S[0],16)}, {vr(KV)}, {vr(Q)}, 0
    v_mfma_f32_32x32x16_bf16 {vr(S[0],16)}, {vr(KV+4)}, {vr(Q+4)}, {vr(S[0],16)}
    s_mov_b32 s63, 0
    """)
    a.stamp(7)
    def wr(j): return [f"ds_write_b128 v{RA+j}, {vr(O+16*j+4*q)} offset:{q*1024}" for q in range(4)]
    def body(last):
        nl = [0]
        for u in range(16):
            kt, qi = divmod(u, 4)
            ktn, qn = divmod((u + 1) % 16, 4)
            ktp, qp = divmod((u - 1) % 16, 4)
            Sc, Sn = S[u & 1], S[(u + 1) & 1]
            e = lambda r: f"v_exp_f32 v{Sc+r}, v{Sc+r}"
            c = lambda r: f"v_cvt_pk_bf16_f32 v{P+r}, v{Sc+2*r}, v{Sc+2*r+1}"
            A = f"v_mfma_f32_32x32x16_bf16 {vr(Sn,16)}, {vr(KV+16*ktn)}, {vr(Q+8*qn)}, 0"
            B = f"v_mfma_f32_32x32x16_bf16 {vr(O+16*qp,16)}, {vr(KV+16*ktp+12)}, {vr(P+4)}, {vr(O+16*qp,16)}"
            C = f"v_mfma_f32_32x32x16_bf16 {vr(Sn,16)}, {vr(KV+16*ktn+4)}, {vr(Q+8*qn+4)}, {vr(Sn,16)}"
            D = f"v_mfma_f32_32x32x16_bf16 {vr(O+16*qi,16)}, {vr(KV+16*kt+8)}, {vr(P)}, {vr(O+16*qi,16)}"
            if qi == 3: lb, lf = kt, 0
            else: lb, lf = (kt - 1) % 4, qi + 1
            L = f"buffer_load_dwordx4 {vr(KV+16*lb+4*lf)}, v2, {sr(SKV)}, s61 offen offset:{lf*1024} sc1"
            doload = not (last and u >= 3)
            sk = lambda upto: max(0, upto - 3) if last else 0
            W = ["", "", "", ""]
            if last and u == 8: a.bar("p2R0")
            if last and u in (14, 15): W = wr(u - 14)
            fin = last and u == 15
            if qi == 3 and not fin: a(f"s_waitcnt vmcnt({max(0, WK - sk(u))})")
            if not fin: a(A)
            a.emit(W[0], e(0), e(1), e(2), e(3), c(0), c(1))
            if qi == 1 and WSPLIT: a(f"s_waitcnt vmcnt({max(0, 10 - sk(u))})")
            a.emit(B, W[1], e(4), e(5), e(6), e(7), c(2), c(3))
            if not fin: a(C)
            if doload: a(L)
            a.emit(W[2], e(8), e(9), e(10), e(11), c(4), c(5))
            if qi == 0 and WSPLIT: a(f"s_waitcnt vmcnt({max(0, 11 - sk(u + 1))})")
            a.emit(D, W[3], e(12), e(13), e(14), e(15), c(6), c(7))
            if qi == 2 and not last: a("s_add_u32 s61, s61, 4096\ns_and_b32 s61, s61, 0xffff")
    WSPLIT = E("WSPLIT", 1)
    WK = 10 if WSPLIT else 8
    a("L_p2_loop:")
    body(False)
    a(f"""
    s_add_u32 s63, s63, 1
    s_cmp_lt_u32 s63, 3
    s_cbranch_scc1 L_p2_loop
    """)
    body(True)
    a(f"v_mfma_f32_32x32x16_bf16 {vr(O+48,16)}, {vr(KV+48+12)}, {vr(P+4)}, {vr(O+48,16)}")
    a.emit(*wr(2))
    a(f"""
    s_lshl_b32 s60, s53, 2
    s_add_u32 s60, s60, s{SW3}
    s_lshl_b32 s60, s60, 15
    s_lshl_b32 s61, s52, 11
    s_add_u32 s60, s60, s61
    s_add_u32 s60, s60, {OF}
    v_mov_b32 v6, 0x1f800000
    v_mov_b32 v7, 0x5f800000
    s_waitcnt lgkmcnt(0)
    """)
    a.stamp(8)
    a.bar("p2R1")
    a.stamp(9)
    OW = O + 48
    for q in range(12):
        a(f"ds_read_b128 {vr(O+4*q)}, v{RA+3} offset:{q*1024}")
    for j in range(3):
        a(f"s_waitcnt lgkmcnt({8-4*j})")
        for r in range(0, 16, 2):
            a(f"v_pk_add_f32 {pk(OW+r)}, {pk(OW+r)}, {pk(O+16*j+r)}")
    a(f"""
    v_mov_b32 v10, v{OW+12}
    v_mov_b32 v11, v{OW+12}
    v_permlane32_swap_b32 v10, v11          ; v11 = l
    v_rcp_f32 v10, v11
    v_cmp_nge_f32 vcc, v11, v6
    v_cmp_gt_f32 s[58:59], v11, v7
    v_mov_b32 v11, v10
    """)
    for r in range(0, 16, 2):
        a(f"v_pk_mul_f32 {pk(OW+r)}, {pk(OW+r)}, v[10:11]")
    for r in range(8):
        a(f"v_cvt_pk_bf16_f32 v{P+r}, v{OW+2*r}, v{OW+2*r+1}")
    a(f"""
    buffer_store_dwordx4 {vr(P)}, v2, {sr(SWS)}, s60 offen sc1
    s_mov_b32 exec_lo, 0
    v_mov_b32 v{P+6}, 0
    v_mov_b32 v{P+7}, 0
    s_mov_b32 exec_lo, -1
    buffer_store_dwordx4 {vr(P+4)}, v2, {sr(SWS)}, s60 offen offset:1024 sc1
    s_or_b64 vcc, vcc, s[58:59]
    s_cbranch_scc0 L_p2_ok
    v_mov_b32 v10, 1
    ds_write_b32 v9, v10
L_p2_ok:
    """)
    a.stamp(10)
    p3_pre(a)
    a("s_waitcnt vmcnt(0) lgkmcnt(0)")
    a.bar("p2R2")
    a(f"""
    s_cmp_lg_u32 s62, 0
    s_cbranch_scc1 L_p2_done
    ds_read_b32 v10, v9
    s_waitcnt lgkmcnt(0)
    v_readfirstlane_b32 s60, v10
    s_cmp_eq_u32 s60, 0
    s_cbranch_scc1 L_p2_done
    s_mov_b32 s62, 1
    s_mov_b32 exec_lo, 0
    """)
    for j in range(4): a(f"v_mov_b32 v{Q+8*j+6}, 0")
    a("s_mov_b32 exec_lo, -1")
    for j in range(4): a(f"v_mov_b32 v{O+j}, 0xff800000")
    a(f"""
    s_mov_b32 s61, 0
L_p2_mx:
    buffer_load_dwordx4 {vr(KV)}, v2, {sr(SKV)}, s61 offen sc1
    buffer_load_dwordx4 {vr(KV+4)}, v2, {sr(SKV)}, s61 offen offset:1024 sc1
    s_waitcnt vmcnt(0)
    """)
    for j in range(4):
        a(f"""
        v_mfma_f32_32x32x16_bf16 {vr(S[0],16)}, {vr(KV)}, {vr(Q+8*j)}, 0
        v_mfma_f32_32x32x16_bf16 {vr(S[0],16)}, {vr(KV+4)}, {vr(Q+8*j+4)}, {vr(S[0],16)}
        """)
        for r in range(8):
            a(f"v_max3_f32 v{O+j}, v{S[0]+2*r}, v{S[0]+2*r+1}, v{O+j}")
    a("s_add_u32 s61, s61, 4096\ns_cmp_lt_u32 s61, 65536\ns_cbranch_scc1 L_p2_mx")
    for j in range(4):
        a(f"""
        v_mov_b32 v10, v{O+j}
        v_permlane32_swap_b32 v{O+j}, v10
        v_max_f32 v{O+j}, v{O+j}, v10
        s_add_u32 s60, s{SW3}, {j+1}
        s_and_b32 s60, s60, 3
        s_lshl_b32 s60, s60, 10
        s_add_u32 s60, s60, {RREG}
        v_add_u32 v{O+8+j}, s60, v3
        s_lshl_b32 s61, s{SW3}, 8
        v_add_u32 v10, s61, v{O+8+j}
        ds_write_b32 v10, v{O+j}
        """)
    a("s_waitcnt lgkmcnt(0)\ns_barrier")
    for j in range(4):
        for w in range(4):
            a(f"ds_read_b32 v{O+16+4*j+w}, v{O+8+j} offset:{256*w}")
        a("s_waitcnt lgkmcnt(0)")
    for j in range(4):
        b = O + 16 + 4*j
        a(f"""
        v_max3_f32 v10, v{b}, v{b+1}, v{b+2}
        v_max_f32 v10, v10, v{b+3}
        v_sub_f32 v10, 0, v10
        v_and_b32 v11, 0xffff0000, v10
        v_sub_f32 v14, v10, v11
        v_cvt_pk_bf16_f32 v10, v11, v14
        s_mov_b32 exec_lo, 0
        v_mov_b32 v{Q+8*j+6}, v10
        s_mov_b32 exec_lo, -1
        """)
    zero()
    a("s_branch L_p2_restart\nL_p2_done:")
    a.stamp(11)

def gu_dma(a, n, tag, vm, thr=None):
    if not TF:
        for t in range(n):
            a(f"""
            s_mov_b32 m0, s59
            s_add_u32 s59, s59, {SLOT}
            buffer_load_dwordx4 v20, {sr(SG)}, s58 offen lds
            s_add_u32 m0, m0, 4384
            s_add_u32 s60, s58, {16*3584}
            buffer_load_dwordx4 v20, {sr(SU)}, s58 offen lds
            s_sub_u32 s61, s60, {28*16*3584}
            s_cmp_ge_u32 s60, {28*16*3584}
            s_cselect_b32 s58, s61, s60
            {f"s_waitcnt vmcnt({thr})" if thr is not None else ""}
            """)
        vm.add(tag, 2 * n)
        return
    n //= 4
    for t in range(n):
        a(f"""
        s_mul_i32 s60, s63, {4*SLOT}
        s_add_u32 s60, s60, s58
        s_mov_b32 m0, s59
        s_add_u32 s61, s60, 4096
        """)
        for q in range(4): a(f"buffer_load_dwordx4 v2, {sr(SWS)}, s60 offen offset:{q*1024} sc1 lds")
        a(f"s_add_u32 m0, m0, 4096\ns_add_u32 s59, s59, {4*SLOT}")
        for q in range(3): a(f"buffer_load_dwordx4 v2, {sr(SWS)}, s61 offen offset:{q*1024} sc1 lds")
        a("s_add_u32 s63, s63, 1\ns_cmp_eq_u32 s63, 7\ns_cselect_b32 s63, 0, s63")
    vm.add(tag, 7 * n)

def rot4(a, dst):
    a(f"""
    s_lshr_b32 s60, s6, 3
    s_lshl_b32 s60, s60, 1
    s_and_b32 s{dst}, s6, 7
    s_add_u32 s{dst}, s{dst}, s60
    s_cmp_ge_u32 s{dst}, 7
    s_cselect_b32 s60, 7, 0
    s_sub_u32 s{dst}, s{dst}, s60
    """)

def rot5(a, dst, add=0):
    a(f"""
    s_and_b32 s60, s6, 3
    s_mul_i32 s60, s60, {E('TBROT', 7)}
    s_lshl_b32 s{dst}, s46, 2
    s_add_u32 s{dst}, s{dst}, s60
    s_add_u32 s{dst}, s{dst}, {add}
    s_cmp_ge_u32 s{dst}, 28
    s_cselect_b32 s60, 28, 0
    s_sub_u32 s{dst}, s{dst}, s60
    s_cmp_ge_u32 s{dst}, 28
    s_cselect_b32 s60, 28, 0
    s_sub_u32 s{dst}, s{dst}, s60
    """)

def tr128_addr(a, dst, sft, sxh, hfshift):
    a(f"""
    v_bfe_u32 v9, v1, 2, 2                 ; r
    v_lshl_add_u32 v10, v13, {hfshift}, v9
    v_lshlrev_b32 v10, 7, v10
    v_lshrrev_b32 v9, 1, v9
    v_xor_b32 v9, s{sft}, v9
    v_lshl_add_u32 v10, v9, 6, v10
    v_bfe_u32 v9, v1, 4, 1                 ; ch
    {f"v_xor_b32 v9, s{sxh}, v9" if sxh else ""}
    v_lshl_add_u32 v10, v9, 5, v10
    v_and_b32 v9, 1, v1
    v_lshl_add_u32 v10, v9, 4, v10
    v_bfe_u32 v9, v1, 1, 1
    v_lshl_add_u32 v{dst}, v9, 3, v10
    """)

def wd_loop(a, n, tag, lds=True, throttle=False):
    ld = (lambda: f"buffer_load_dwordx4 v21, {sr(SD)}, s60 offen lds\ns_add_u32 m0, m0, 1024") if lds else (lambda: f"buffer_load_dwordx4 v[24:27], v21, {sr(SD)}, s60 offen")
    a(f"""
    s_mov_b32 s61, 0
L_wd_{tag}:
    s_mul_i32 s60, s54, {16*896}
    s_add_u32 s60, s60, s55
    {ld()}
    s_add_u32 s60, s60, {8*896}
    s_add_u32 s54, s54, 1
    {ld()}
    s_cmp_eq_u32 s54, 28
    s_cselect_b32 s54, 0, s54
    s_add_u32 s61, s61, 1
    {f"s_waitcnt vmcnt({PFW})" if throttle else ""}
    s_cmp_lt_u32 s61, {n}
    s_cbranch_scc1 L_wd_{tag}
    """)

A5H = 88
def p2_helper(a, vm):
    late_ids(a)
    a(f"""
    v_lshlrev_b32 v2, 4, v1
    v_lshrrev_b32 v9, 3, v1
    v_mul_u32_u24 v9, 896, v9
    v_bfe_u32 v10, v1, 4, 1
    v_lshlrev_b32 v10, 2, v10
    v_and_b32 v11, 7, v1
    v_xor_b32 v10, v10, v11
    v_lshl_add_u32 v21, v10, 4, v9
    v_lshrrev_b32 v9, 4, v1
    v_mul_u32_u24 v9, {4*3584}, v9
    v_and_b32 v10, 15, v1
    v_lshl_add_u32 v20, v10, 4, v9
    v_lshlrev_b32 v9, 3, v1
    v_mov_b32 v10, 0
    v_mov_b32 v11, 0
    v_add_u32 v9, {GAP}, v9
    ds_write_b64 v9, v[10:11]
    s_lshr_b32 s58, s{SW3}, 1
    s_and_b32 s59, s{SW3}, 1
    """)
    tr128_addr(a, 4, 58, 59, 3)
    rot5(a, 54)
    a(f"""
    s_lshl_b32 s60, s{SW3}, 14
    s_add_u32 s7, s60, {RREG}
    v_add_u32 v4, s7, v4
    v_xor_b32 v5, 64, v4
    s_mul_i32 s55, s{SW3}, {28*16*896}
    s_lshl_b32 s60, s46, 7
    s_add_u32 s55, s55, s60
    """)
    rot4(a, 63)
    if TF:
        a(f"""
        s_mul_i32 s59, s{SW3}, {SLOT}
        s_mul_i32 s58, s57, {28*SLOT}
        s_add_u32 s58, s58, s59
        s_add_u32 s58, s58, {WGU}
        """)
    else:
        a(f"""
        s_lshl_b32 s58, s63, 6
        s_add_u32 s58, s58, s{SW3}
        s_mul_i32 s58, s58, 3584
        s_mul_i32 s59, s57, 224
        s_and_b32 s59, s59, 0xffffffc0
        s_add_u32 s58, s58, s59
        s_mul_i32 s59, s{SW3}, 1088
        """)
    a(f"""
    s_mul_i32 s54, s54, {16*896}
    s_add_u32 s54, s54, s55
    s_add_u32 s49, s55, {28*16*896}
    s_mov_b32 s52, {"s48" if TF else "99"}
    """)
    lv = VM()
    def wd(p, dstbase, doff):
        a(f"""
        s_add_u32 m0, s{dstbase}, {doff}
        s_add_u32 s60, s54, {8*896}
        buffer_load_dwordx4 v21, {sr(SD)}, s54 offen lds
        s_add_u32 m0, m0, 1024
        s_add_u32 s54, s54, {16*896}
        buffer_load_dwordx4 v21, {sr(SD)}, s60 offen lds
        s_cmp_eq_u32 s54, s49
        s_cselect_b32 s54, s55, s54
        """)
        lv.add(f"w{p}", 2)
    p2_helper.wd = wd
    a.bar("p1X")
    a(f"""
    s_cmp_lg_u32 s{SW}, 4
    s_cbranch_scc1 L_h2_npub
    ds_read_b32 v26, v14
    s_mov_b32 exec_hi, 0xffff
    s_waitcnt lgkmcnt(0)
    buffer_store_dwordx4 v[24:27], v18, {sr(SWS)}, s62 offen sc1
    s_mov_b32 exec_hi, -1
L_h2_npub:
    """)
    EB = -1
    a(f"s_cmp_lg_u32 s{SW}, 4\ns_cbranch_scc1 L_h2_np")
    a.stamp(5)
    poll(a, "A", 17, 0x1ffffffff, wide=True, dst=28, pipe=(EB >= 0))
    a(f"""
    s_nop 4
    v_mov_b32 v32, v30
    v_max_u32_dpp v32, v32, v32 row_shr:1 row_mask:0xf bank_mask:0xf
    v_max_u32_dpp v32, v32, v32 row_shr:2 row_mask:0xf bank_mask:0xf
    v_max_u32_dpp v32, v32, v32 row_shr:4 row_mask:0xf bank_mask:0xf
    v_max_u32_dpp v32, v32, v32 row_shr:8 row_mask:0xf bank_mask:0xf
    v_sqrt_f32 v32, v32
    v_mov_b32 v9, {AUX2}
    v_mul_f32 v32, {f2u(1.0+1.0/128):#x}, v32
    v_mov_b32 v33, 0
    s_mov_b64 exec, 0x8000
    ds_write_b32 v9, v33
    ds_write_b32 v9, v32 offset:4
    s_mov_b64 exec, -1
    s_waitcnt lgkmcnt(0)
L_h2_np:
    """)
    a.bar("p2P")
    a.bar("p2Y")
    lv.q = []
    if TF and E("TST", 0) == 1:
        a("s_cmp_ge_u32 s52, 28\ns_cbranch_scc1 L_h2_notf2")
        tstores(a)
    a(f"""
L_h2_notf2:
    v_lshlrev_b32 v7, 12, v1
    s_lshl_b32 s53, s57, 8
    s_lshl_b32 s61, s52, 3
    s_add_u32 s53, s53, s61
    s_add_u32 s53, s53, {FT}
    """)
    def tflag(tag):
        a(f"""
        s_cmp_ge_u32 s52, 28
        s_cbranch_scc1 L_h2_nf{tag}
        s_mov_b64 exec, 0xffff
        buffer_store_dwordx2 v[24:25], v7, {sr(SWS)}, s53 offen sc1
        s_mov_b64 exec, -1
L_h2_nf{tag}:
        """)
    a("s_cmp_lt_u32 s6, 28\ns_cbranch_scc1 L_h2_act\ns_waitcnt vmcnt(0)")
    tflag("i")
    a("s_branch L_h2_nowo\nL_h2_act:")
    a.stamp(6)
    def aread(p):
        for f in range(2):
            for u in range(2):
                b = A5H + 8*p + 4*f + 2*u
                a(f"ds_read_b64_tr_b16 v[{b}:{b+1}], v{4+f} offset:{(p%8)*2048+u*512}")
    D = max(1, (PFW + 1) // 2)
    e0 = max(EB, 0)
    flagged = False
    for p in range(NA5 + D):
        if e0 <= p < NA5:
            if p >= 8: a("s_waitcnt lgkmcnt(8)")
            wd(p, 7, (p % 8) * 2048)
        if p == NA5:
            a(f"""
            s_mul_i32 s{SKV+2}, s{SW3}, {14*8*896}
            s_lshl_b32 s60, s46, 7
            s_add_u32 s{SKV+2}, s{SKV+2}, s60
            s_mul_i32 s{SKV+3}, s{SW3}, 14336
            s_add_u32 s{SKV+3}, s{SKV+3}, {WOREG}
            s_and_b32 s62, s6, 3
            s_mul_i32 s62, s62, 7
            s_lshr_b32 s62, s62, 1
            """)
        def wo(n):
            for _ in range(n):
                a(f"""
                s_lshl_b32 s60, s62, 10
                s_add_u32 m0, s60, s{SKV+3}
                s_mul_i32 s60, s62, {8*896}
                s_add_u32 s60, s60, s{SKV+2}
                buffer_load_dwordx4 v21, {sr(SWO)}, s60 offen lds
                s_add_u32 s62, s62, 1
                s_cmp_eq_u32 s62, 14
                s_cselect_b32 s62, 0, s62
                """)
                lv.add("wo")
        if p >= NA5: wo(2)
        q = p - D
        if q >= 0:
            w = lv.wait(f"w{q}")
            a(w)
            if w and not flagged:
                tflag("a"); flagged = True
            aread(q)
    a.stamp(9)
    for k in range(7 - D):
        wo(2)
        a(f"s_waitcnt vmcnt({2*D})")
    a.stamp(10)
    a(f"""
L_h2_nowo:
    s_lshl_b32 s60, s56, 4
    s_add_u32 s60, s60, s57
    s_lshl_b32 s60, s60, 8
    s_add_u32 s60, s60, {FT}
    v_lshl_add_u32 v17, v1, 3, s60
    """)
    if TF: poll(a, "T", 17, 0xfffffff, backoff=40)
    a.stamp(11)
    gu_dma(a, 4, "g0", vm, thr=PFW)
    p2_ids(a)
    a("s_mov_b32 s62, 0\ns_waitcnt lgkmcnt(0)")
    vm.q = []
    a.stamp(7)
    a("L_h2_again:")
    a.bar("p2R0")
    a("s_waitcnt vmcnt(0)")
    a.bar("p2R1")
    a.bar("p2R2")
    a(f"""
    s_cmp_lg_u32 s62, 0
    s_cbranch_scc1 L_h2_done
    v_mov_b32 v9, {AUX2}
    ds_read_b32 v10, v9
    s_waitcnt lgkmcnt(0)
    v_readfirstlane_b32 s60, v10
    s_cmp_eq_u32 s60, 0
    s_cbranch_scc1 L_h2_done
    s_mov_b32 s62, 1
    s_barrier
    s_branch L_h2_again
L_h2_done:
    """)

def p3_addr(a):
    a(f"s_lshr_b32 s58, s{SW3}, 1")
    tr128_addr(a, 220, 58, None, 2)
    a(f"""
    s_lshr_b32 s60, s6, 2
    s_mul_i32 s60, s60, {2*3584}
    s_add_u32 s60, s60, {WOREG}
    v_add_u32 v220, s60, v220
    """)

def p3_pre(a):
    AF = 64
    a(f"""
    s_cmp_ge_u32 s6, 28
    s_cbranch_scc1 L_p3_skipA
    s_lshr_b32 s58, s6, 2                  ; fb
    """)
    for g in range(8):
        if g >= 2:
            a(f"""
            s_cmp_ge_u32 s58, {8-g}
            s_cselect_b32 s59, {(-57344) & 0xffffffff:#x}, 0
            v_add_u32 v{221+(g&1)}, s59, v220
            """)
        for n in (2*g, 2*g+1):
            for f in range(2):
                for u in range(2):
                    b = AF + 8*n + 4*f + 2*u
                    a(f"ds_read_b64_tr_b16 v[{b}:{b+1}], v{220 if g < 2 else 221+(g&1)} offset:{n*3584+f*2048+u*1024}")
        a("s_waitcnt lgkmcnt(6)")
    a("L_p3_skipA:")

def p3_compute(a):
    ACC = 16; BF = 32; AF = 64; XR = 192; T = 200
    late_ids(a)
    a(f"""
    s_cmp_ge_u32 s6, 28
    s_cbranch_scc1 L_p3_skipB
    s_and_b32 s52, s{SW3}, 1               ; tt_l
    s_lshr_b32 s53, s{SW3}, 1              ; ft_l
    s_lshl_b32 s54, s47, 1
    s_add_u32 s54, s54, s52                ; tt
    s_lshl_b32 s55, s46, 1
    s_add_u32 s55, s55, s53                ; ft
    v_mul_u32_u24 v3, 896, v12
    v_lshl_add_u32 v3, v13, 4, v3
    s_mul_i32 s60, s54, {32*896}
    s_lshl_b32 s61, s55, 6
    s_add_u32 s60, s60, s61
    buffer_load_dwordx4 {vr(XR)}, v3, {sr(SX)}, s60 offen
    buffer_load_dwordx4 {vr(XR+4)}, v3, {sr(SX)}, s60 offen offset:32
    s_lshl_b32 s60, s52, 15
    s_add_u32 s60, s60, {RREG}
    v_add_u32 v5, s60, v2
    s_mul_i32 s58, s54, 28672
    s_lshl_b32 s61, s55, 11
    s_add_u32 s58, s58, s61
    s_add_u32 s58, s58, {HF}
    s_mul_i32 s59, s54, 14
    s_add_u32 s59, s59, s55
    s_lshl_b32 s59, s59, 8
    s_add_u32 s59, s59, {ST}
    v_lshlrev_b32 v14, 3, v1
    s_waitcnt vmcnt(0)
    """)
    for r in range(8):
        a(f"v_lshlrev_b32 v{ACC+2*r}, 16, v{XR+r}\nv_and_b32 v{ACC+2*r+1}, 0xffff0000, v{XR+r}")
    a("v_mov_b32 v6, 0\nv_mov_b32 v7, 0")
    a.bar("p3P")
    for st in range(4):
        a.bar(f"p3s{st}")
        if st == 0: a.stamp(13)
        for q in range(8):
            a(f"ds_read_b128 {vr(BF+4*q)}, v5 offset:{(8*st+q)*1024}")
        for q in range(8):
            p = 8*st + q
            a(f"s_waitcnt lgkmcnt({7-q})")
            a(f"v_mfma_f32_32x32x16_bf16 {vr(ACC,16)}, {vr(AF+4*p)}, {vr(BF+4*q)}, {vr(ACC,16)}")
    a.stamp(14)
    for r in range(8):
        a(f"v_cvt_pk_bf16_f32 v{T+r}, v{ACC+2*r}, v{ACC+2*r+1}")
    a(f"""
    buffer_store_dwordx4 {vr(T)}, v2, {sr(SWS)}, s58 offen sc1
    buffer_store_dwordx4 {vr(T+4)}, v2, {sr(SWS)}, s58 offen offset:1024 sc1
    """)
    for r in range(8):
        a(f"v_dot2c_f32_bf16 v6, v{T+r}, v15\nv_dot2c_f32_bf16 v7, v{T+r}, v{T+r}")
    a(f"""
    v_mov_b32 v8, v6
    v_mov_b32 v9, v7
    v_permlane32_swap_b32 v6, v8
    v_permlane32_swap_b32 v7, v9
    v_add_f32 v6, v6, v8
    v_add_f32 v7, v7, v9
    s_mov_b32 exec_hi, 0
    buffer_store_dwordx2 v[6:7], v14, {sr(SWS)}, s59 offen sc1
    s_mov_b32 exec_hi, -1
L_p3_skipB:
    """)
    a.stamp(15)

def p3_helper(a, vm):
    publish(a, "B", pub14(53, 52, FB), 0x7f7f)
    gu_dma(a, 8 if TF else 7, "g1", vm)
    a.stamp(12)
    a(f"""
    s_cmp_ge_u32 s6, 28
    s_cbranch_scc1 L_h3_skip
    s_and_b32 s52, s{SW3}, 1
    s_lshr_b32 s53, s{SW3}, 1
    s_lshl_b32 s62, s47, 1
    s_add_u32 s62, s62, s52
    s_lshl_b32 s62, s62, 15
    s_lshl_b32 s53, s53, 10
    s_add_u32 s62, s62, s53
    s_add_u32 s62, s62, {OF}
    s_lshl_b32 s52, s52, 15
    s_add_u32 s52, s52, s53
    s_add_u32 s52, s52, {RREG}             ; dst
    s_lshl_b32 s53, s46, 12
    s_cmp_lg_u32 s{SW}, 4
    s_cbranch_scc1 L_h3_np
    s_lshl_b32 s60, s47, 3
    s_add_u32 s60, s60, s46
    s_lshl_b32 s60, s60, 7
    s_add_u32 s60, s60, {FB}
    v_lshl_add_u32 v17, v1, 3, s60
    """)
    poll(a, "B", 17, 0xffff)
    a("L_h3_np:")
    a.bar("p3P")
    a.stamp(13)
    a(f"""
    s_mov_b32 m0, s52
    s_mov_b32 s61, 0
L_h3_o:
    s_add_u32 s60, s53, s62
    buffer_load_dwordx4 v2, {sr(SWS)}, s60 offen sc1 lds
    s_add_u32 m0, m0, 2048
    s_add_u32 s53, s53, 2048
    s_and_b32 s53, s53, 0x7fff
    s_add_u32 s61, s61, 1
    s_cmp_lt_u32 s61, 16
    s_cbranch_scc1 L_h3_o
    """)
    for st in range(4):
        a(f"s_waitcnt vmcnt({12-4*st})")
        a.bar(f"p3s{st}")
    a("L_h3_skip:")

NBW = 8
P4B = (3, 11, 19) if TF else (3, 10, 17, 20)
NR4 = 1 if TF else 2
def p4_compute(a):
    ACC = 16; AF = 128; BF = 156; T = 188; OUT = 196; STT = 204
    RS, CC = 6, 7
    vm = VM()
    a(f"""
    s_lshl_b32 s54, s56, 2
    s_add_u32 s54, s54, s{SW3}             ; tt
    s_mul_i32 s55, s54, 28672
    s_add_u32 s55, s55, {HF}
    s_add_u32 s53, s55, 28672              ; end
    """)
    rot4(a, 58)
    a(f"""
    s_lshl_b32 s58, s58, 12
    s_add_u32 s58, s58, s55
    """)
    if TF: a("v_mov_b32 v4, v2")
    else:
        a(f"""
        v_bfe_u32 v9, v1, 2, 2
        v_mul_u32_u24 v10, 1088, v9
        v_lshl_add_u32 v10, v13, 9, v10
        v_and_b32 v9, 1, v1
        v_lshl_add_u32 v10, v9, 4, v10
        v_bfe_u32 v9, v1, 4, 1
        v_lshl_add_u32 v10, v9, 3, v10
        v_bfe_u32 v9, v1, 1, 1
        v_mul_u32_u24 v9, 4384, v9
        s_mul_i32 s60, s57, 224
        s_and_b32 s60, s60, 63
        v_add3_u32 v4, v10, v9, s60
        """)
    a(f"""
    v_mul_u32_u24 v5, {7*256}, v13
    v_lshl_add_u32 v5, v12, 3, v5
    s_mul_i32 s59, s54, {14*256}
    s_add_u32 s59, s59, {ST}
    s_waitcnt vmcnt(0)
    """)
    a.bar("p3X")
    a.stamp(16)
    base = [0]
    def tr(p, j):
        L = []
        slot = p % NSLOT
        off = slot * SLOT - base[0]
        if j == 0 and (off < 0 or off + SLOT > 65536):
            L.append(f"v_add_u32 v4, {off & 0xffffffff:#x}, v4")
            base[0] = slot * SLOT; off = 0
        if TF: L.append(f"ds_read_b128 {vr(AF+4*j)}, v4 offset:{off + j*1024}")
        else:
            for u in range(2):
                b = AF + 4*j + 2*u
                L.append(f"ds_read_b64_tr_b16 v[{b}:{b+1}], v4 offset:{off + u*256 + j*32}")
        return L
    for j in range(7): a.emit(*tr(0, j))
    a.bar("p4P")
    a.stamp(17)
    def bload(p):
        vm.add(f"b{p}")
        L = [f"buffer_load_dwordx4 {vr(BF+4*(p%NBW))}, v2, {sr(SWS)}, s58 offen offset:{(p%4)*1024} sc1"]
        if p % 4 == 3: L += ["s_add_u32 s58, s58, 4096", "s_cmp_eq_u32 s58, s53", "s_cselect_b32 s58, s55, s58"]
        return L
    for q in range(7):
        a(f"buffer_load_dwordx2 v[{STT+2*q}:{STT+2*q+1}], v5, {sr(SWS)}, s59 offen offset:{q*256} sc1")
    vm.add("st", 7)
    for p in range(NBW): a.emit(*bload(p))
    a(vm.wait("st"))
    pk = lambda b: f"v[{b}:{b+1}]"
    a(f"""
    v_pk_add_f32 {pk(STT+2)}, {pk(STT+2)}, {pk(STT+8)}
    v_pk_add_f32 {pk(STT+4)}, {pk(STT+4)}, {pk(STT+10)}
    v_pk_add_f32 {pk(STT+6)}, {pk(STT+6)}, {pk(STT+12)}
    v_pk_add_f32 {pk(STT)}, {pk(STT)}, {pk(STT+2)}
    v_pk_add_f32 {pk(STT+4)}, {pk(STT+4)}, {pk(STT+6)}
    v_pk_add_f32 {pk(STT)}, {pk(STT)}, {pk(STT+4)}
    v_mov_b32 v{STT+2}, v{STT}
    v_mov_b32 v{STT+3}, v{STT+1}
    v_permlane32_swap_b32 v{STT}, v{STT+2}
    v_permlane32_swap_b32 v{STT+1}, v{STT+3}
    v_pk_add_f32 {pk(STT)}, {pk(STT)}, {pk(STT+2)}
    v_mul_f32 v{STT}, {f2u(1.0/448):#x}, v{STT}
    v_mul_f32 v{STT+1}, {f2u(1.0/448):#x}, v{STT+1}
    v_fma_f32 v{STT+1}, -v{STT}, v{STT}, v{STT+1}
    v_max_f32 v{STT+1}, 0, v{STT+1}
    v_add_f32 v{STT+1}, {f2u(1e-5):#x}, v{STT+1}
    v_rsq_f32 v{RS}, v{STT+1}
    v_mul_f32 v{CC}, v{STT}, v{RS}
    v_sub_f32 v{CC}, 0, v{CC}
    """)
    def norm(p):
        f = BF + 4*(p % NBW)
        L = []
        for i in range(4):
            L += [f"v_lshlrev_b32 v{T+2*i}, 16, v{f+i}", f"v_and_b32 v{T+2*i+1}, 0xffff0000, v{f+i}"]
        for i in range(8):
            L.append(f"v_fma_f32 v{T+i}, v{T+i}, v{RS}, v{CC}")
        for i in range(4):
            L.append(f"v_cvt_pk_bf16_f32 v{f+i}, v{T+2*i}, v{T+2*i+1}")
        return L
    a(vm.wait("b0"))
    a.emit(*norm(0))
    a.stamp(18)
    k0 = [0, 3, 7, 10, 13, 17, 20, 20]
    for p in range(28):
        if p in P4B: a.bar(f"p4b{p}")
        nrm = norm(p + 1) if p < 27 else []
        for j in range(7):
            if j == 0:
                w = vm.wait(f"b{p+1}") if p < 27 else ""
                a((w + f" lgkmcnt({3*NR4})") if w else f"s_waitcnt lgkmcnt({3*NR4})")
            if j == 4: a(f"s_waitcnt lgkmcnt({4*NR4 if p < 27 else 0})")
            a(f"v_mfma_f32_32x32x16_bf16 {vr(ACC+16*j,16)}, {vr(AF+4*j)}, {vr(BF+4*(p%NBW))}, {'0' if p==0 else vr(ACC+16*j,16)}")
            if p < 27:
                t = tr(p + 1, j)
                a.emit(*t)
            a.emit(*nrm[k0[j]:k0[j+1]])
            if j == 6 and p + NBW < 28: a.emit(*bload(p + NBW))
    a.stamp(19)
    a(f"""
    s_mul_i32 s60, s54, {112*1024}
    s_mul_i32 s61, s57, 7168
    s_add_u32 s60, s60, s61
    s_add_u32 s60, s60, {HH}
    """)
    for j in range(7):
        acc = ACC + 16*j; o = OUT + 4*(j & 1)
        for g in range(2):
            for c in range(4):
                a(f"v_max_f32 v{acc+8*g+c}, 0, v{acc+8*g+c}")
            for c in (0, 2):
                a(f"v_pk_mul_f32 {pk(acc+8*g+c)}, {pk(acc+8*g+c)}, {pk(acc+8*g+4+c)}")
            a(f"v_cvt_pk_bf16_f32 v{o+2*g}, v{acc+8*g}, v{acc+8*g+1}")
            a(f"v_cvt_pk_bf16_f32 v{o+2*g+1}, v{acc+8*g+2}, v{acc+8*g+3}")
        if j == 4: a("s_add_u32 s60, s60, 4096")
        a(f"buffer_store_dwordx4 {vr(o)}, v2, {sr(SWS)}, s60 offen offset:{(j%4)*1024} sc1")
    a.stamp(21)
    a("s_waitcnt vmcnt(0)")
    a.bar("p4X")
    a.stamp(23)

def p4_helper(a, vm):
    a.bar("p3X")
    a("s_cmp_ge_u32 s6, 28\ns_cbranch_scc1 L_pub_C")
    publish(a, "C", f"""v_lshlrev_b32 v9, 7, v1
    s_lshr_b32 s60, s47, 1
    s_lshl_b32 s60, s60, 11
    s_and_b32 s61, s47, 1
    s_mul_i32 s61, s61, 7
    s_add_u32 s61, s61, s46
    s_lshl_b32 s61, s61, 3
    s_add_u32 s60, s60, s61
    s_add_u32 s60, s60, {FC}""", 0xffff)
    a(f"""
    s_cmp_lg_u32 s{SW}, 4
    s_cbranch_scc1 L_h4_np
    s_lshl_b32 s60, s56, 4
    s_add_u32 s60, s60, s57
    s_lshl_b32 s60, s60, 7
    s_add_u32 s60, s60, {FC}
    v_lshl_add_u32 v17, v1, 3, s60
    """)
    a.stamp(16)
    poll(a, "C", 17, 0x3fff)
    a("L_h4_np:")
    a.bar("p4P")
    a(vm.wait("g1"))
    a.bar("p4b3")
    if TF:
        gu_dma(a, 8, "g2", vm)
        a(f"s_sub_u32 s59, s59, {NSLOT*SLOT}")
        a(vm.wait("g2"))
        a.bar("p4b11")
        gu_dma(a, 8, "g3", vm)
        a(vm.wait("g3"))
        a.bar("p4b19")
    else:
        gu_dma(a, 7, "g2", vm)
        a(f"s_sub_u32 s59, s59, {NSLOT*SLOT}")
        gu_dma(a, 3, "g3", vm)
        a(vm.wait("g2"))
        a.bar("p4b10")
        gu_dma(a, 7, "g4", vm)
        a(vm.wait("g3"))
        a.bar("p4b17")
        a(vm.wait("g4"))
        a.bar("p4b20")
    a(f"""
    s_cmp_ge_u32 s6, 28
    s_cbranch_scc1 L_h4_nowd
    s_mul_i32 s60, s{SW3}, {(28-NA5)*2048}
    s_add_u32 s7, s60, {B1}
    """)
    for p in range(28 - NA5): p2_helper.wd(p, 7, p * 2048)
    a("L_h4_nowd:\ns_waitcnt vmcnt(0)")
    vm.q = []
    a.bar("p4X")

def p5_main(a, tag):
    helper = tag == "h"
    ACC = 24
    NC = 28 - NA5
    AR = A5H
    AREA = NA5 * 2048
    GH = [3, 3, 3, 3, 3, 4]; GC = [2, 2, 2, 2, 1, 0]
    assert sum(GH) == NA5 and sum(GC) == NC
    vm = VM()
    pk = lambda b: f"v[{b}:{b+1}]"
    HR = 240 if helper else 16
    a(f"""
    s_lshr_b32 s52, s{SW}, 2
    s_lshl_b32 s54, s47, 1
    s_add_u32 s53, s54, s52
    s_lshl_b32 s63, s46, 2
    s_add_u32 s63, s63, s{SW3}
    s_mul_i32 s62, s53, 28672
    s_lshl_b32 s61, s63, 10
    s_add_u32 s62, s62, s61
    s_add_u32 s62, s62, {HF}
    buffer_load_dwordx4 {vr(HR)}, v2, {sr(SWS)}, s62 offen sc1
    v_mul_u32_u24 v3, 896, v12
    v_lshl_add_u32 v3, v13, 4, v3
    s_mul_i32 s62, s53, {32*896}
    s_lshl_b32 s61, s63, 5
    s_add_u32 s62, s62, s61
    s_mul_i32 s7, s{SW3}, {AREA}
    v_add_u32 v8, s7, v2
    """)
    if helper:
        a(f"""
        s_cmp_lg_u32 s{SW}, 4
        s_cbranch_scc1 L_h5_np
        s_lshl_b32 s60, s47, 3
        s_add_u32 s60, s60, s46
        s_lshl_b32 s60, s60, 7
        s_add_u32 s60, s60, {FD}
        v_lshl_add_u32 v17, v1, 3, s60
        """)
        a.stamp(23)
        poll(a, "D", 17, 0xffff)
        a("L_h5_np:")
    else:
        a(f"""
        s_mul_i32 s60, s{SW3}, 28672
        s_add_u32 s60, s60, {HH}
        s_mul_i32 s55, s54, {112*1024}
        s_add_u32 s55, s55, s60
        s_add_u32 s58, s55, {112*1024}
        """)
        rot5(a, 59, 0)
        rot5(a, 52, NA5)
        a(f"s_lshl_b32 s59, s59, 10\ns_lshl_b32 s52, s52, 10\ns_lshr_b32 s60, s{SW3}, 1\ns_and_b32 s61, s{SW3}, 1")
        tr128_addr(a, 4, 60, 61, 3)
        a(f"""
        s_mul_i32 s60, s{SW3}, {NC*2048}
        s_add_u32 s60, s60, {B1}
        v_xor_b32 v5, 64, v4
        v_add_u32 v4, s60, v4
        v_add_u32 v5, s60, v5
        """)
        for p in range(NC):
            for f in range(2):
                for u in range(2):
                    b = AR + 8*p + 4*f + 2*u
                    a(f"ds_read_b64_tr_b16 v[{b}:{b+1}], v{4+f} offset:{p*2048+u*512}")
            if p % 2 == 1: a("s_waitcnt lgkmcnt(4)")
        a("s_waitcnt lgkmcnt(0)\ns_mov_b32 m0, s7")
    a.bar("p5P")
    a.stamp(24)
    adv = lambda r: f"s_add_u32 s{r}, s{r}, 1024\ns_cmp_eq_u32 s{r}, 28672\ns_cselect_b32 s{r}, 0, s{r}"
    def mf(p, b0, b1):
        for tl, b in ((0, b0), (1, b1)):
            for f in range(2):
                acc = ACC + 32*tl + 16*f
                a(f"v_mfma_f32_32x32x16_bf16 {vr(acc,16)}, {vr(AR+8*p+4*f)}, {vr(b)}, {'0' if p==0 else vr(acc,16)}")
    T = 96
    def tail_addr():
        for j in range(1, 8):
            a(f"""
            s_xor_b32 s60, s{SW3}, {j & 3}
            s_mul_i32 s60, s60, {AREA}
            v_add_u32 v{T+8+j}, s60, v2
            """)
    def wr_part():
        o = 14336 if helper else 0
        for j in range(1, 8):
            a(f"ds_write_b128 v8, {vr(ACC+8*j)} offset:{o+(j-1)*2048}\nds_write_b128 v8, {vr(ACC+8*j+4)} offset:{o+(j-1)*2048+1024}")
        for r in range(4):
            a(f"v_lshlrev_b32 v{T+2*r}, 16, v{HR+r}\nv_and_b32 v{T+2*r+1}, 0xffff0000, v{HR+r}")
        for r in range(0, 8, 2):
            a(f"v_pk_add_f32 {pk(ACC+r)}, {pk(ACC+r)}, {pk(T+r)}")
    if helper:
        BB = [16, 248]
        rd = lambda p: a(f"ds_read_b128 {vr(BB[p&1])}, v8 offset:{p*2048}\nds_read_b128 {vr(BB[p&1]+4)}, v8 offset:{p*2048+1024}")
        p = 0
        for g, n in enumerate(GH):
            a.bar(f"p5g{g}")
            rd(p)
            for k in range(n):
                if k + 1 < n: rd(p + 1)
                a(f"s_waitcnt lgkmcnt({2 if k + 1 < n else 0})")
                mf(p, BB[p&1], BB[p&1]+4)
                p += 1
            if g == 4: tail_addr()
        a.stamp(25)
        a("s_waitcnt vmcnt(0)")
        wr_part()
    else:
        BR = AR + 8*NC
        pc = 0; done = 0
        for g in range(len(GH) + 1):
            if g < len(GH):
                for k in range(GH[g]):
                    a(f"""
                    s_add_u32 s60, s59, s58
                    s_add_u32 s61, s59, s55
                    buffer_load_dwordx4 v2, {sr(SWS)}, s60 offen sc1 lds
                    s_add_u32 m0, m0, 1024
                    {adv(59)}
                    buffer_load_dwordx4 v2, {sr(SWS)}, s61 offen sc1 lds
                    s_add_u32 m0, m0, 1024
                    """)
                    vm.add(f"h{g}", 2)
                for k in range(GC[g]):
                    a(f"""
                    s_add_u32 s60, s52, s55
                    s_add_u32 s61, s52, s58
                    buffer_load_dwordx4 {vr(BR+8*pc)}, v2, {sr(SWS)}, s60 offen sc1
                    buffer_load_dwordx4 {vr(BR+8*pc+4)}, v2, {sr(SWS)}, s61 offen sc1
                    {adv(52)}
                    """)
                    vm.add(f"c{g}", 2); pc += 1
            if g >= 1:
                a(vm.wait(f"h{g-1}"))
                a.bar(f"p5g{g-1}")
                if GC[g-1]:
                    a(vm.wait(f"c{g-1}"))
                    for k in range(GC[g-1]):
                        mf(done, BR+8*done, BR+8*done+4); done += 1
                    if done == NC:
                        a.stamp(25)
                        tail_addr()
                        wr_part()
    a("s_waitcnt lgkmcnt(0)")
    a.bar("p5R1")
    for j in range(1, 8):
        o = 14336 if (helper != (j >= 4)) else 0
        a(f"ds_read_b128 {vr(ACC+8*j)}, v{T+8+j} offset:{o+(j-1)*2048}\nds_read_b128 {vr(ACC+8*j+4)}, v{T+8+j} offset:{o+(j-1)*2048+1024}")
    for j in range(7):
        a(f"s_waitcnt lgkmcnt({12-2*j})")
        for r in range(0, 8, 2):
            a(f"v_pk_add_f32 {pk(ACC+r)}, {pk(ACC+r)}, {pk(ACC+8+8*j+r)}")
    for r in range(4):
        a(f"v_cvt_pk_bf16_f32 v{T+r}, v{ACC+2*r}, v{ACC+2*r+1}")
    a(f"buffer_store_dwordx4 {vr(T)}, v3, {sr(SOUT)}, s62 offen")
    a.stamp(26)

def p5_compute(a):
    a("s_cmp_ge_u32 s6, 28\ns_cbranch_scc1 L_p5_skip_c")
    p5_main(a, "c")
    a("L_p5_skip_c:")

def p5_helper(a):
    publish(a, "D", pub14(56, 57, FD), 0x7f7f)
    a("s_cmp_ge_u32 s6, 28\ns_cbranch_scc1 L_p5_skip_h")
    p5_main(a, "h")
    a("L_p5_skip_h:")

def build(path):
    a = Asm()
    prologue(a)
    C = Role("c"); H = Role("h"); vm = VM()
    p1_compute(C); p1_helper(H)
    p2_compute(C); p2_helper(H, vm)
    p3_compute(C); p3_helper(H, vm)
    p4_compute(C); p4_helper(H, vm)
    p5_compute(C); p5_helper(H)
    assert C.bars == H.bars, (C.bars, H.bars)
    if "nopf" in XV or "nohtr" in XV:
        i0 = H.lines.index("L_h2_act:"); i1 = H.lines.index("L_h2_nowo:")
        H.lines = [l for k, l in enumerate(H.lines) if not (i0 < k < i1 and (("nopf" in XV and l.startswith("buffer_load")) or ("nohtr" in XV and l.startswith("ds_read"))))]
    if "nostat" in XV: H.lines = [l for l in H.lines if not l.startswith("v_mfma_f32_16x16")]
    if "nocs" in XV: C.lines = [l for l in C.lines if not l.startswith("v_mfma_f32_16x16")]
    if "hprio" in XV:
        i0 = H.lines.index("L_h2_act:"); H.lines.insert(i0 + 1, "s_setprio 3")
    a.lines += H.lines
    stamp_end(a)
    a("s_endpgm\nL_compute:")
    a.lines += C.lines
    probe(a)
    stamp_end(a)
    a("L_end:\ns_endpgm")
    body = a.finish(True)
    hdr = open(f"cdna_kernels/{NAME}.s.ref").read().split("; Override launch")[0]
    out = hdr + "; @launch grid=(256,1,1) block=(512,1,1) lds=163840\n"
    out += '.amdgcn_target "amdgcn-amd-amdhsa--gfx950"\n.text\n'
    out += f".globl {KNAME}\n.p2align 8\n.type {KNAME},@function\n{KNAME}:\n{body}\n"
    out += f""".section .rodata,"a"
.p2align 6
.amdhsa_kernel {KNAME}
  .amdhsa_next_free_vgpr 256
  .amdhsa_next_free_sgpr 102
  .amdhsa_accum_offset 256
  .amdhsa_group_segment_fixed_size 0
  .amdhsa_kernarg_size 80
  .amdhsa_user_sgpr_count 2
  .amdhsa_user_sgpr_kernarg_segment_ptr 1
  .amdhsa_system_sgpr_workgroup_id_x 1
.end_amdhsa_kernel
"""
    open(path, "w").write(out)

if __name__ == "__main__":
    build(sys.argv[1] if len(sys.argv) > 1 else f"cdna_kernels/{NAME}.s")
```

```python
import sys, math, os, struct
from asmlib import Asm

NAME = "sequential_preLN__softmax_full_mha__glu_gated_reglu__prompt"
KNAME = NAME + "_kernel"
E = lambda k, d: int(os.environ.get(k, d))
DIAG = E("DIAG", 0)
PFW = E("PFW", 3)
ROTG = E("ROTG", 3)
XV = os.environ.get("XV", "")
POLL_MAX = 40000

def f2u(x): return struct.unpack('<I', struct.pack('<f', x))[0]
def vr(b, n=4): return f"v[{b}:{b+n-1}]"
def sr(b): return f"s[{b}:{b+3}]"

QF, KVF, FL, OF, HF, ST, HH, TS = 0x000000, 0x200000, 0x600000, 0x700000, 0x900000, 0xB00000, 0xC00000, 0x4000000
WS_BYTES = 0x10000000
FA, FB, FC, FD, FT = FL, FL + 0x40000, FL + 0x48000, FL + 0x50000, FL + 0x60000
WGU = 0x1400000
SW, SW3 = 3, 4
SX, SWQ, SWO, SWS, SG, SU, SD, SOUT, SDBG = 8, 12, 16, 20, 24, 28, 32, 36, 40
NON, SKV = 44, 48
AUX1 = 161792
CS1, KN1, CSP, TSTG = AUX1 + 1024, AUX1 + 1536, 159744, 143360
TF = E('TF', 0)
SLOT = 7168 if TF else 8736
NSLOT = 20 if TF else 18
WOREG = 35072
GAP = WOREG + 57344
AUX2 = 97280
RREG = 98304
B1 = 8 * SLOT if TF else 10 * SLOT
NA5 = 19

class Role(Asm):
    def __init__(self, tag):
        super().__init__(); self.tag = tag; self.bars = []
    def bar(self, name):
        self.bars.append(name); self("s_barrier")
    def stamp(self, i):
        if DIAG:
            self(f"s_memtime s[100:101]\ns_waitcnt lgkmcnt(0)\ns_mov_b32 s{64+i}, s100")

class VM:
    def __init__(self): self.q = []
    def add(self, tag, n=1): self.q += [tag] * n
    def wait(self, tag):
        idx = [i for i, t in enumerate(self.q) if t == tag]
        if not idx: return ""
        n = len(self.q) - 1 - idx[-1]
        self.q = self.q[idx[-1] + 1:]
        assert n <= 63
        return f"s_waitcnt vmcnt({n})"

PROBE = E("PROBE", 0)
def probe(a):
    if PROBE:
        a(f"""
        s_cmp_lg_u32 s2, 8
        s_cbranch_scc1 L_probe_done
        s_waitcnt vmcnt(0) lgkmcnt(0)
        s_memrealtime s[98:99]
        s_waitcnt lgkmcnt(0)
        s_sub_u32 s98, s98, s96
        s_cmp_lt_u32 s98, {PROBE}
        s_cbranch_scc1 L_probe_done
        s_mov_b32 s60, 0
L_probe_l:
        s_sleep 127
        s_add_u32 s60, s60, 1
        s_cmp_lt_u32 s60, 40
        s_cbranch_scc1 L_probe_l
L_probe_done:
        """)

def stamp_end(a):
    if DIAG:
        a(f"""
        s_mov_b64 exec, -1
        s_waitcnt vmcnt(0) lgkmcnt(0)
        s_memtime s[100:101]
        s_memrealtime s[98:99]
        s_waitcnt lgkmcnt(0)
        s_mov_b32 s93, s100
        s_mov_b32 s94, s96
        s_mov_b32 s95, s98
        s_lshl_b32 s60, s2, 3
        s_add_u32 s60, s60, s{SW}
        s_lshl_b32 s60, s60, 7
        s_add_u32 s60, s60, {TS}
        v_mov_b32 v0, 0
        """)
        for i in range(32):
            a(f"v_mov_b32 v{4+i}, s{64+i}")
        a("s_mov_b64 exec, 1")
        for i in range(8):
            a(f"buffer_store_dwordx4 v[{4+4*i}:{7+4*i}], v0, {sr(SWS)}, s60 offen offset:{16*i}")

def setexec(a, m):
    a(f"s_mov_b32 exec_lo, {m & 0xffffffff:#x}\ns_mov_b32 exec_hi, {m >> 32:#x}")

def prologue(a):
    if PROBE: a("s_memrealtime s[96:97]")
    if DIAG:
        a("s_memrealtime s[96:97]\ns_memtime s[100:101]")
    a(f"""
    s_cmp_ge_u32 s2, 256
    s_cbranch_scc1 L_end
    s_load_dwordx16 s[64:79], s[0:1], 0
    s_load_dwordx4 s[80:83], s[0:1], 64
    s_getpc_b64 s[6:7]
    s_lshr_b32 s5, s2, 3
    s_and_b32 s5, s5, 7
    s_lshl_b32 s5, s5, 13
    v_lshl_add_u32 v1, v0, 4, s5
    v_min_u32 v1, L_end-{KNAME}-16, v1
    s_and_b32 s6, s6, 0xffffff00
    global_load_dwordx4 v[252:255], v1, s[6:7]
    v_lshrrev_b32 v1, 6, v0
    v_readfirstlane_b32 s{SW}, v1
    v_and_b32 v1, 63, v0                   ; lane
    s_and_b32 s5, s2, 7                    ; xcd
    s_lshr_b32 s6, s2, 3                   ; i
    s_and_b32 s{SW3}, s{SW}, 3
    s_lshr_b32 s52, s5, 1
    s_lshl_b32 s52, s52, 2
    s_and_b32 s53, s6, 3
    s_add_u32 s52, s52, s53                ; rb
    s_and_b32 s53, s5, 1
    s_lshl_b32 s53, s53, 3
    s_lshr_b32 s54, s6, 2
    s_add_u32 s53, s53, s54                ; cb
    s_lshl_b32 s54, s52, 2
    s_add_u32 s54, s54, s{SW3}             ; tt
    s_and_b32 s55, s53, 1
    s_lshl_b32 s55, s55, 3                 ; colshift
    s_mov_b32 s{SX+2}, {2048*896:#x}
    s_mov_b32 s{SX+3}, 0x00020000
    s_mov_b32 s{SWQ+2}, {448*2688:#x}
    s_mov_b32 s{SWQ+3}, 0x00020000
    v_lshrrev_b32 v2, 3, v1
    v_mul_u32_u24 v2, 896, v2
    v_lshrrev_b32 v3, 4, v1
    v_and_b32 v9, 7, v1
    v_xor_b32 v3, v3, v9
    v_lshl_add_u32 v2, v3, 4, v2
    v_xor_b32 v3, 64, v2
    s_mul_i32 s56, s54, {32*896}
    s_lshl_b32 s57, s{SW3}, 12
    """)
    for u in range(3):
        a(f"""
        v_add_u32 v9, {64*u}, v1
        v_mul_u32_u24 v10, 43691, v9
        v_lshrrev_b32 v10, 19, v10
        v_mul_u32_u24 v11, 12, v10
        v_sub_u32 v11, v9, v11
        v_min_u32 v11, 10, v11
        v_mul_u32_u24 v10, 2688, v10
        v_lshl_add_u32 v{16+u}, v11, 4, v10
        """)
    magic = (65536 + ROTG - 1) // ROTG
    assert all((i * magic) >> 16 == i // ROTG for i in range(32))
    a(f"""
    s_mul_i32 s58, s53, 168
    s_sub_u32 s58, s58, s55
    s_mul_i32 s59, s{SW3}, {16*2688}
    s_add_u32 s58, s58, s59
    s_mul_i32 s59, s{SW3}, 3072
    s_add_u32 s59, s59, 16384
    s_mul_i32 s46, s6, {magic}
    s_lshr_b32 s46, s46, 16
    s_mul_i32 s46, s46, {ROTG}
    s_sub_u32 s46, s6, s46                 ; i mod G
    s_mul_i32 s46, s46, {(7*256)//ROTG}
    s_lshr_b32 s46, s46, 8                 ; first chunk
    s_mul_i32 s47, s5, {E("XR1", 1)}
    s_add_u32 s46, s46, s47
    s_mul_i32 s47, s46, 9363
    s_lshr_b32 s47, s47, 16
    s_mul_i32 s47, s47, 7
    s_sub_u32 s46, s46, s47
    s_mov_b32 s47, 0
    s_waitcnt lgkmcnt(0)
    s_mov_b64 s[{SX}:{SX+1}], s[64:65]
    s_mov_b64 s[{SWQ}:{SWQ+1}], s[66:67]
    s_cmp_lt_u32 s{SW}, 4
    s_cbranch_scc1 L_compute
    """)

def common_setup(a):
    for d, nb in ((SWO, 448*896), (SWS, WS_BYTES), (SG, 448*3584), (SU, 448*3584), (SD, 1792*896), (SOUT, 2048*896), (SDBG, 256)):
        a(f"s_mov_b32 s{d+2}, {nb:#x}\ns_mov_b32 s{d+3}, 0x00020000")
    for d, src in ((SWO, 68), (SG, 72), (SU, 74), (SD, 76), (SOUT, 78), (SDBG, 80), (SWS, 82)):
        a(f"s_mov_b64 s[{d}:{d+1}], s[{src}:{src+1}]")
    if DIAG:
        for i in range(0, 32, 2):
            a(f"s_mov_b64 s[{64+i}:{65+i}], 0")
        a("s_mov_b32 s64, s100")
    a(f"""
    v_and_b32 v12, 31, v1                  ; t
    v_lshrrev_b32 v13, 5, v1               ; hf
    v_mov_b32 v15, 0x3f803f80
    """)

def p1_adv(a):
    a(f"""
    s_add_u32 s46, s46, 1
    s_cmp_eq_u32 s46, 7
    s_cselect_b32 s46, 0, s46
    s_add_u32 s47, s47, 28672
    s_cmp_eq_u32 s47, {5*28672}
    s_cselect_b32 s47, 0, s47
    """)

def p1_issue(a):
    a(f"""
    s_lshl_b32 s60, s46, 7
    s_add_u32 s60, s60, s56
    s_add_u32 m0, s57, s47
    s_mul_i32 s61, s46, {4*16*2688}
    """)
    for q in range(4):
        a(f"buffer_load_dwordx4 v{2+(q&1)}, {sr(SX)}, s60 offen lds")
        if q < 3: a("s_add_u32 m0, m0, 1024\ns_add_u32 s60, s60, 7168")
    a(f"s_add_u32 m0, s59, s47\ns_add_u32 s61, s61, s58")
    for u in range(3):
        a(f"buffer_load_dwordx4 v{16+u}, {sr(SWQ)}, s61 offen lds")
        if u < 2: a("s_add_u32 m0, m0, 1024")
    p1_adv(a)

def rebase_ops(c, regs):
    d = 28672 if c % 5 else -4 * 28672
    return [f"v_add_u32 v{r}, {d & 0xffffffff:#x}, v{r}" for r in regs]

def p1_compute(a):
    ACC = 16; WA = 64; XF = 100; CSA = 112; SEL = 124; WAD = 128
    common_setup(a)
    a(f"""
    v_bfe_u32 v14, v12, 1, 3
    v_xor_b32 v14, v14, v13
    v_lshlrev_b32 v14, 4, v14
    v_lshl_add_u32 v14, v12, 7, v14
    s_lshl_b32 s61, s{SW3}, 5
    v_xor_b32 v14, s61, v14
    v_add_u32 v4, s57, v14
    v_xor_b32 v5, 32, v4
    v_xor_b32 v6, 64, v4
    v_xor_b32 v7, 96, v4
    v_bfe_u32 v9, v1, 4, 1                 ; ch
    v_bfe_u32 v10, v1, 2, 2                ; r
    v_lshl_add_u32 v10, v13, 3, v10
    v_mul_u32_u24 v10, 192, v10
    v_lshl_add_u32 v10, v9, 5, v10
    v_and_b32 v11, 3, v1
    v_lshl_add_u32 v10, v11, 3, v10
    """)
    for i in range(4):
        a(f"""
        s_xor_b32 s61, s{SW3}, {i}
        s_mul_i32 s61, s61, 3072
        s_add_u32 s61, s61, s55
        s_add_u32 s61, s61, 16384
        v_add_u32 v{WAD+i}, s61, v10
        """)
    p1_adv(a)
    if E('SCH1', 1) == 0: p1_adv(a)
    p1_issue(a)
    if E("FPRE", 1):
        a(f"""
        s_cmp_lg_u32 s{SW}, 0
        s_cbranch_scc1 L_p1_nofp
        s_lshl_b32 s60, s2, 10
        s_add_u32 s60, s60, {FA}
        v_lshl_add_u32 v9, v1, 7, s60
        s_lshl_b32 s60, s5, 2
        s_and_b32 s61, s6, 3
        s_add_u32 s60, s60, s61
        s_lshl_b32 s60, s60, 3
        s_lshr_b32 s61, s6, 2
        s_add_u32 s60, s60, s61
        s_lshl_b32 s60, s60, 7             ; (tb*8+fb)*128
        s_add_u32 s61, s60, {FB}
        v_writelane_b32 v9, s61, 6
        s_add_u32 s61, s60, {FD}
        v_writelane_b32 v9, s61, 7
        s_lshl_b32 s61, s2, 7
        s_add_u32 s61, s61, {FC}
        v_writelane_b32 v9, s61, 8
        s_mov_b64 exec, 0x1ff
        buffer_load_dword v251, v9, {sr(SWS)}, 0 offen sc1
        s_mov_b64 exec, -1
L_p1_nofp:
        """)
    for r in range(4): a(f"v_mov_b32 v{SEL+r}, 0")
    setexec(a, 0x0002000100020001)
    for r in range(4): a(f"v_mov_b32 v{SEL+r}, v15")
    a(f"""
    s_mov_b64 exec, -1
    s_lshl_b32 s60, s{SW3}, 9
    s_add_u32 s60, s60, {CSP}
    v_lshl_add_u32 v132, v1, 2, s60
    v_lshlrev_b32 v2, 4, v1                ; lane*16
    s_lshl_b32 s56, s{SW3}, 8
    s_add_u32 s56, s56, {AUX1}
    v_lshl_add_u32 v133, v12, 2, s56
    v_lshl_add_u32 v134, v13, 4, s56
    v_lshlrev_b32 v135, 4, v13
    v_add_u32 v135, {CS1}, v135
    v_lshlrev_b32 v136, 2, v12
    v_add_u32 v136, {CS1}, v136
    v_mov_b32 v14, {KN1}
    v_mov_b32 v228, -1
    v_mov_b32 v229, 0
    v_mov_b32 v230, 0
    v_mov_b32 v231, -1
    v_mov_b32 v232, 0
    s_mov_b32 exec_lo, 0
    v_mov_b32 v228, 0
    v_mov_b32 v229, v15                    ; K pad
    v_mov_b32 v230, 0xffff
    s_mov_b32 exec_lo, 0xf0000000
    s_mov_b32 exec_hi, 0xf0000000
    v_mov_b32 v231, 0                      ; V keep
    s_mov_b32 exec_lo, 0x10000000
    s_mov_b32 exec_hi, 0x10000000
    v_mov_b32 v232, v15
    s_mov_b64 exec, -1
    s_mul_i32 s60, s53, 3
    """)
    for j in range(3):
        a(f"""
        s_add_u32 s61, s60, {j}
        s_and_b32 s62, s61, 15
        s_lshl_b32 s62, s62, 6
        s_add_u32 s62, s62, s54
        s_lshl_b32 s{57+j}, s62, 11
        s_lshl_b32 s62, s62, 12
        s_add_u32 s62, s62, {KVF}
        s_cmp_ge_u32 s61, 16
        s_cselect_b32 s{57+j}, s62, s{57+j}
        s_add_u32 s62, s62, 2048
        s_cmp_ge_u32 s61, 32
        s_cselect_b32 s{57+j}, s62, s{57+j}
        """)
    def reads(ks):
        c, i = divmod(ks, 4)
        pre = []
        if i == 0 and c in (2, 4, 5):
            d = {2: 2*28672, 4: 2*28672, 5: -4*28672}[c]
            pre = [f"v_add_u32 v{r}, {d & 0xffffffff:#x}, v{r}" for r in (4, 5, 6, 7, WAD, WAD+1, WAD+2, WAD+3)]
        so = 28672 if c in (1, 3, 6) else 0
        buf = WA + 12 * (ks % 3)
        L = [f"ds_read_b128 {vr(XF+4*(ks%3))}, v{4+i} offset:{so}"]
        for j in range(3):
            for u in range(2):
                L.append(f"ds_read_b64_tr_b16 v[{buf+4*j+2*u}:{buf+4*j+2*u+1}], v{WAD+i} offset:{so+u*768+j*56}")
        return pre, L
    a(f"""
    s_cmp_eq_u32 s53, 10
    s_cbranch_scc1 L_p1_v1
    s_cmp_gt_u32 s53, 10
    s_cbranch_scc1 L_p1_v2
    """)
    QS = f2u(28 ** -0.5 * math.log2(math.e))
    MEAN, RSTD, CS, P0 = 64, 80, 140, 204
    pk = lambda b: f"v[{b}:{b+1}]"
    def epilogue(types):
        n = 0
        if "Q" in types or "K" in types:
            a("ds_read_b32 v10, v133\nds_read_b32 v11, v133 offset:128"); n += 2
        for j in range(3):
            if types[j] != "V":
                for q in range(4): a(f"ds_read_b128 {vr(CS+16*j+4*q)}, v135 offset:{128*j+32*q}")
                n += 4
        if "V" in types:
            if n: a("s_waitcnt lgkmcnt(4)")
            for j in range(3):
                if types[j] == "V": a(f"ds_read_b32 v{100+2*j}, v136 offset:{128*j}")
            for q in range(4):
                a(f"ds_read_b128 {vr(MEAN+4*q)}, v134 offset:{32*q}\nds_read_b128 {vr(RSTD+4*q)}, v134 offset:{128+32*q}")
        st = lambda j, h: f"buffer_store_dwordx4 {vr(P0+8*j+4*h)}, v2, {sr(SWS)}, s{57+j} offen offset:{1024*h} sc1"
        SC = {"Q": 188, "K": 196}
        if n:
            a(f"s_waitcnt lgkmcnt({12 if 'V' not in types else 13})")
            for t in sorted(set(types) - {"V"}):
                b = SC[t]
                a(f"""
                {f"v_mul_f32 v{b}, {QS:#x}, v11" if t == "Q" else f"v_mov_b32 v{b}, v11"}
                v_mul_f32 v{b+2}, -v10, v{b}
                v_mov_b32 v{b+1}, v{b}
                v_mov_b32 v{b+3}, v{b+2}
                """.replace("v_mul_f32 v%d, -v10" % (b+2), "v_mul_f32_e64 v%d, -v10" % (b+2)))
        carry = []
        for j in range(3):
            acc = ACC + 16*j; P = P0 + 8*j; t = types[j]
            S1 = []; S2 = []
            if t == "V":
                S1 += ["s_waitcnt lgkmcnt(0)", f"v_sub_f32 v{100+2*j}, 0, v{100+2*j}", f"v_mov_b32 v{101+2*j}, v{100+2*j}"]
                S1 += [f"v_pk_fma_f32 {pk(acc+r)}, {pk(MEAN+r)}, {pk(100+2*j)}, {pk(acc+r)}" for r in range(0, 16, 2)]
                S1 += [f"v_pk_mul_f32 {pk(acc+r)}, {pk(acc+r)}, {pk(RSTD+r)}" for r in range(0, 16, 2)]
                S1 += [f"v_cvt_pk_bf16_f32 v{P+r}, v{acc+2*r}, v{acc+2*r+1}" for r in range(8)]
                S1 += [f"v_and_or_b32 v{P+r}, v{P+r}, v231, v232" for r in range(4)] + [st(j, 0)]
                S1 += [f"v_and_or_b32 v{P+r}, v{P+r}, v231, v232" for r in range(4, 8)] + [st(j, 1)]
            else:
                b = SC[t]
                S1 += [f"v_pk_mul_f32 {pk(acc+r)}, {pk(acc+r)}, {pk(b)}" for r in range(0, 16, 2)]
                S1 += [f"s_waitcnt lgkmcnt({8 if 'V' not in types else 13})" if j == 0 else "s_waitcnt lgkmcnt(0)" if j == 1 else ""]
                S1 += [f"v_pk_fma_f32 {pk(acc+r)}, {pk(CS+16*j+r)}, {pk(b+2)}, {pk(acc+r)}" for r in range(0, 16, 2)]
                S1 += [f"v_cvt_pk_bf16_f32 v{P+r}, v{acc+2*r}, v{acc+2*r+1}" for r in range(4)] + [st(j, 0)]
                S1 += [f"v_cvt_pk_bf16_f32 v{P+r}, v{acc+2*r}, v{acc+2*r+1}" for r in range(4, 8)]
                S1 += [f"v_and_b32 v{P+7}, v{P+7}, v228"]
                if t == "K": S1 += [f"v_and_or_b32 v{P+6}, v{P+6}, v228, v229", st(j, 1)]
                else: S1 += [f"v_and_b32 v{P+6}, v{P+6}, v228"]
                n0, n1 = 234 + 2*j, 235 + 2*j
                S2 += [f"v_dot2_f32_bf16 v{n0}, v{P}, v{P}, 0", f"v_dot2_f32_bf16 v{n1}, v{P+1}, v{P+1}, 0"]
                S2 += [f"v_dot2_f32_bf16 v{n0+(r&1)}, v{P+r}, v{P+r}, v{n0+(r&1)}" for r in range(2, 8)]
                S2 += ["", "", f"v_add_f32 v{n0}, v{n0}, v{n1}", f"v_mov_b32 v{n1}, v{n0}", "", f"v_permlane32_swap_b32 v{n0}, v{n1}", f"v_add_f32 v{n0}, v{n0}, v{n1}"]
                if t == "Q":
                    S2 += [f"v_sqrt_f32 v{n0}, v{n0}", f"v_mul_f32 v{n0}, {f2u(1.0+1.0/128):#x}, v{n0}", f"v_add_u32 v{n0}, 0xffff, v{n0}",
                           f"v_lshrrev_b32 v{n0}, 16, v{n0}", f"v_and_or_b32 v{P+6}, v{n0}, v230, v{P+6}", st(j, 1)]
                else:
                    S2 += [f"ds_max_u32 v14, v{n0} offset:{4*j}"]
            for ins in S1:
                a(ins)
                if carry: a(carry.pop(0))
            a.emit(*carry); carry = S2
        a.emit(*carry)
    bars0 = list(a.bars)
    for var, isv in enumerate(((0,0,0), (0,0,1), (1,1,1))):
        a.bars = list(bars0)
        a(f"L_p1_v{var}:")
        a.bar("p1s0")
        a.stamp(1)
        a.emit(*reads(0)[1]); a.emit(*reads(1)[1])
        LATE = E("LATE1", 7)
        for ks in range(28):
            st_next = (ks + 2) // 4
            if ks % 4 == 2 and ks < 26 and st_next < LATE:
                if ks == (2 if E('SCH1', 1) else 6): a(f"s_waitcnt vmcnt({1 if E('FPRE', 1) else 0})" if False else "s_waitcnt vmcnt(0)")
                a.bar(f"p1s{st_next}")
            if ks % 4 == 0 and ks // 4 >= LATE:
                a.bar(f"p1s{ks//4}")
                pre, rd = reads(ks); a.emit(*pre); a.emit(*rd); a.emit(*reads(ks + 1)[1])
            ahead = ks < 26 and not (st_next >= LATE and st_next != ks // 4)
            pre, rd = reads(ks + 2) if ahead else ([], [])
            buf = WA + 12 * (ks % 3)
            a.emit(*pre)
            prev_ahead = (ks + 1 < 28) and not ((ks + 1) // 4 >= LATE and (ks + 1) // 4 != ks // 4)
            if ks < 27: a(f"s_waitcnt lgkmcnt({13 if ks == 26 else 7 if prev_ahead else 0})")
            for j in range(3):
                A, B = vr(buf + 4*j), vr(XF + 4*(ks % 3))
                if isv[j]: A, B = B, A
                C = "0" if ks == 0 else vr(ACC + 16*j, 16)
                a(f"v_mfma_f32_32x32x16_bf16 {vr(ACC+16*j,16)}, {A}, {B}, {C}")
                a.emit(*rd[[0,3,5][j]:[3,5,7][j]])
            if ks % 4 == 0:
                for j in range(3):
                    a(f"v_mfma_f32_16x16x32_bf16 {vr(CSA+4*j)}, {vr(SEL)}, {vr(buf+4*j)}, {'0' if ks == 0 else vr(CSA+4*j)}")
            if ks == 25:
                a("s_mov_b64 exec, 0xffff")
                for j in range(3):
                    a(f"ds_write_b32 v132, v{CSA+4*j} offset:{128*j}\nds_write_b32 v132, v{CSA+4*j+1} offset:{128*j+64}")
                a("s_mov_b64 exec, -1")
            if ks == 26:
                a("s_waitcnt lgkmcnt(0)")
                a.bar("p1C")
        a.stamp(2)
        if var == 0:
            a("s_cmp_lt_u32 s53, 5\ns_cbranch_scc1 L_p1_eQQQ\ns_cmp_eq_u32 s53, 5\ns_cbranch_scc1 L_p1_eQKK")
            eps = ("KKK", "QQQ", "QKK")
        else:
            eps = (("KKV",), ("VVV",))[var - 1]
        bars1 = list(a.bars)
        for ep in eps:
            a.bars = list(bars1)
            a(f"L_p1_e{ep}:")
            a.bar("p1S")
            a.stamp(3)
            epilogue(ep)
            if ep != "VVV": a("s_branch L_p1_done")
    a("L_p1_done:")
    a.stamp(4)

def p1_helper(a):
    XF = 96; G = 68; SM = 76; ONES = 88; SEL = 84; CSA = 64
    vm = VM()
    SCH = E("SCH1", 1)
    if SCH == 0:
        a("L_h1_il:")
        p1_issue(a)
        a(f"s_cmp_lt_u32 s47, {2*28672}\ns_cbranch_scc1 L_h1_il")
        p1_adv(a)
        vm.add("s0", 7); vm.add("s1", 7)
        sched = {0: [3], 1: [4], 2: [5], 3: [6]}
    else:
        p1_issue(a); p1_adv(a)
        vm.add("s0", 7)
        sched = [None, {0: [2], 1: [3, 4], 2: [5], 3: [6]}, {0: [2, 3], 1: [4], 2: [5], 3: [6]}, {0: [2], 1: [3], 2: [4, 5], 3: [6]}][SCH]
    common_setup(a)
    a.stamp(1)
    a(f"""
    s_cmp_lg_u32 s{SW}, 4
    s_cbranch_scc1 L_h_nononce
    s_cmp_lg_u32 s2, 0
    s_cbranch_scc1 L_h_nononce
    s_memrealtime s[{NON}:{NON+1}]
    s_waitcnt lgkmcnt(0)
    s_or_b32 s{NON+1}, s{NON+1}, 0x80000000
    v_mov_b32 v10, s{NON}
    v_mov_b32 v11, s{NON+1}
    v_mov_b32 v9, 0
    s_mov_b64 exec, 1
    buffer_store_dwordx2 v[10:11], v9, {sr(SDBG)}, 0 offen sc1
    s_mov_b64 exec, -1
L_h_nononce:
    v_and_b32 v9, 15, v1
    v_lshrrev_b32 v10, 1, v9
    v_lshrrev_b32 v11, 4, v1
    v_xor_b32 v10, v10, v11
    v_lshlrev_b32 v10, 4, v10
    v_lshl_add_u32 v10, v9, 7, v10
    v_add_u32 v4, s57, v10
    v_xor_b32 v5, 64, v4
    v_lshlrev_b32 v14, 2, v11
    v_add_u32 v14, {KN1}, v14
    v_mov_b32 v10, 0
    ds_write_b32 v14, v10
    s_and_b32 s63, s{SW}, 1
    s_lshl_b32 s60, s{SW3}, 7
    v_lshl_add_u32 v8, v12, 2, s60
    v_add_u32 v19, {CS1}, v8
    v_add_u32 v8, {CSP}, v8
    s_lshl_b32 s60, s{SW3}, 8
    s_add_u32 s60, s60, {AUX1}
    v_lshl_add_u32 v9, v9, 2, s60
    {"s_setprio 3" if E("HPRIO", 1) else ""}
    """)
    for r in range(4): a(f"v_mov_b32 v{ONES+r}, v15")
    STAG = E("STAG", 0)
    def work(c):
        xf = XF + 16 * (c & 1)
        for i in range(4):
            th, kh = i & 1, i >> 1
            z = (c == 0 and kh == 0)
            a(f"v_mfma_f32_16x16x32_bf16 {vr(G+4*th)}, {vr(xf+4*i)}, {vr(xf+4*i)}, {'0' if z else vr(G+4*th)}")
            a(f"v_mfma_f32_16x16x32_bf16 {vr(SM+4*th)}, {vr(ONES)}, {vr(xf+4*i)}, {'0' if z else vr(SM+4*th)}")
    for c in range(7):
        a(vm.wait(f"s{c}"))
        a("s_waitcnt lgkmcnt(0)")
        if c in (0, 3, 6): a.stamp(2 + c // 3)
        a.bar(f"p1s{c}")
        if c > 0: a.emit(*rebase_ops(c, (4, 5)))
        xf = XF + 16 * (c & 1)
        for i in range(4):
            a(f"ds_read_b128 {vr(xf+4*i)}, v{4+(i>>1)} offset:{(i&1)*2048}")
        for n in sched.get(c, []):
            p1_issue(a)
            vm.add(f"s{n}", 7)
        if 0 < c <= 4: work(c - 1)
        if c in (4, 5):
            a("s_waitcnt lgkmcnt(0)")
            work(c)
        n = c + 3
        if n <= 6:
            if n == 6 and TF:
                a(f"""
                s_and_b32 s48, s5, 1
                s_lshl_b32 s48, s48, 3
                s_and_b32 s60, s6, 7
                s_add_u32 s48, s48, s60
                s_lshl_b32 s60, s{SW3}, 4
                s_add_u32 s48, s48, s60
                s_cmp_ge_u32 s48, 28
                s_cbranch_scc1 L_h1_notf
                s_lshr_b32 s49, s5, 1
                s_lshl_b32 s49, s49, 2
                s_lshr_b32 s60, s6, 3
                s_add_u32 s49, s49, s60            ; cb4
                s_mul_i32 s50, s48, {16*3584}
                s_mul_i32 s60, s49, 224
                s_and_b32 s61, s60, 63
                s_sub_u32 s60, s60, s61
                s_add_u32 s50, s50, s60
                s_lshl_b32 s51, s{SW3}, 13
                s_add_u32 s51, s51, {TSTG}
                s_add_u32 s61, s61, s51
                v_lshrrev_b32 v10, 4, v1
                v_mul_u32_u24 v10, {4*3584}, v10
                v_and_b32 v11, 15, v1
                v_lshl_add_u32 v20, v11, 4, v10
                v_bfe_u32 v10, v1, 2, 2
                v_lshlrev_b32 v10, 10, v10
                v_lshl_add_u32 v10, v13, 9, v10
                v_and_b32 v11, 1, v1
                v_lshl_add_u32 v10, v11, 4, v10
                v_bfe_u32 v11, v1, 4, 1
                v_lshl_add_u32 v10, v11, 3, v10
                v_bfe_u32 v11, v1, 1, 1
                v_lshl_add_u32 v10, v11, 12, v10
                v_add_u32 v6, s61, v10
                """)
                for i in range(4):
                    a(f"""
                    s_add_u32 m0, s51, {i*1024}
                    s_nop 0
                    buffer_load_dwordx4 v20, {sr(SG)}, s50 offen lds
                    s_add_u32 m0, s51, {i*1024+4096}
                    s_nop 0
                    buffer_load_dwordx4 v20, {sr(SU)}, s50 offen lds
                    s_add_u32 s50, s50, 3584
                    """)
                a("s_branch L_h1_tf\nL_h1_notf:")
                for i in range(8): a(f"buffer_load_dword v22, v1, {sr(SDBG)}, 0 offen offset:512")
                a("L_h1_tf:")
                vm.add("t", 8)
    a("s_waitcnt lgkmcnt(0)")
    work(6)
    for r in range(1, 4):
        setexec(a, sum(1 << (20*g + r) for g in range(4)))
        a(f"v_mov_b32 v{G}, v{G+r}\nv_mov_b32 v{G+4}, v{G+4+r}")
    setexec(a, sum(15 << (20*g) for g in range(4)))
    for th in range(2):
        mn, sq = SM + 4*th, G + 4*th
        a(f"""
        v_mul_f32 v{mn}, {f2u(1.0/448):#x}, v{mn}
        v_mul_f32 v{sq}, {f2u(1.0/448):#x}, v{sq}
        v_fma_f32 v{sq}, -v{mn}, v{mn}, v{sq}
        v_max_f32 v{sq}, 0, v{sq}
        v_add_f32 v{sq}, {f2u(1e-5):#x}, v{sq}
        v_rsq_f32 v{sq}, v{sq}
        ds_write_b32 v9, v{mn} offset:{64*th}
        s_nop 0
        ds_write_b32 v9, v{sq} offset:{128+64*th}
        """)
    a("s_mov_b64 exec, -1")
    a.bar("p1C")
    for w in range(4): a(f"ds_read_b32 v{CSA+w}, v8 offset:{512*w}")
    a(f"""
    s_waitcnt lgkmcnt(0)
    v_add_f32 v{CSA}, v{CSA}, v{CSA+1}
    v_add_f32 v{CSA+2}, v{CSA+2}, v{CSA+3}
    v_add_f32 v{CSA}, v{CSA}, v{CSA+2}
    ds_write_b32 v19, v{CSA}
    s_waitcnt lgkmcnt(0)
    s_setprio 0
    """)
    a.bar("p1S")
    a(f"""
    v_mov_b32 v9, 0
    s_mov_b32 s60, 0
L_h_nl:
    buffer_load_dwordx2 v[24:25], v9, {sr(SDBG)}, 0 offen sc1
    s_add_u32 s60, s60, 1
    s_waitcnt vmcnt(0)
    v_readfirstlane_b32 s{NON}, v24
    v_readfirstlane_b32 s{NON+1}, v25
    s_cmp_gt_u32 s60, {POLL_MAX}
    s_cbranch_scc1 L_h_gotnonce
    s_cmp_eq_u32 s{NON+1}, 0
    s_cbranch_scc1 L_h_nl
L_h_gotnonce:
    """)
    if TF:
        a("s_cmp_ge_u32 s48, 28\ns_cbranch_scc1 L_h1_notf2")
        for j in range(7):
            for u in range(2):
                a(f"ds_read_b64_tr_b16 v[{36+4*j+2*u}:{37+4*j+2*u}], v6 offset:{u*256+j*32}")
        a(f"""
        s_mul_i32 s50, s49, {28*SLOT}
        s_mul_i32 s60, s48, {SLOT}
        s_add_u32 s50, s50, s60
        s_add_u32 s50, s50, {WGU}
        s_add_u32 s51, s50, 4096
        v_lshlrev_b32 v2, 4, v1
        s_waitcnt lgkmcnt(0)
        """)
        if E("TST", 0) == 0: tstores(a)
        a("L_h1_notf2:")
    a(f"""
    s_mul_i32 s60, s53, 3
    v_lshrrev_b32 v9, 4, v1
    v_add_u32 v9, s60, v9                  ; p
    v_and_b32 v10, 15, v9                  ; h
    v_lshrrev_b32 v9, 4, v9                ; type
    v_lshlrev_b32 v9, 8, v9
    v_lshl_add_u32 v9, v10, 10, v9
    v_and_b32 v10, 15, v1
    v_lshl_add_u32 v18, v10, 14, v9
    s_lshl_b32 s62, s52, 4
    s_add_u32 s62, s62, {FA}
    v_mov_b32 v27, 0
    s_lshl_b32 s60, s2, 10
    s_add_u32 s60, s60, {FA+256}
    v_lshl_add_u32 v17, v1, 4, s60
    s_lshr_b32 s61, s2, 4
    s_lshl_b32 s61, s61, 4
    s_add_u32 s60, s60, s61
    s_sub_u32 s60, s60, 256
    s_mov_b32 exec_lo, 0
    v_mov_b32 v17, s60
    s_mov_b32 exec_lo, -1
    """)

def tstores(a):
    for j in range(7):
        a(f"buffer_store_dwordx4 {vr(36+4*j)}, v2, {sr(SWS)}, s{50 if j < 4 else 51} offen offset:{(j%4)*1024} sc1")

def publish(a, tag, code, mask):
    a(f"""
    s_cmp_lg_u32 s{SW}, 4
    s_cbranch_scc1 L_pub_{tag}
    {code}
    v_mov_b32 v10, s{NON}
    v_mov_b32 v11, s{NON+1}
    s_mov_b64 exec, {mask:#x}
    buffer_store_dwordx2 v[10:11], v9, {sr(SWS)}, s60 offen sc1
    s_mov_b64 exec, -1
L_pub_{tag}:
    """)

def pub14(r, slot, base):
    return f"""v_lshlrev_b32 v9, 7, v1
    s_lshl_b32 s60, s{r}, 11
    s_lshl_b32 s61, s{slot}, 3
    s_add_u32 s60, s60, s61
    s_add_u32 s60, s60, {base}"""

def poll(a, tag, vaddr, mask, wide=False, dst=10, pipe=False, backoff=0):
    n = 4 if wide else 2
    ld = lambda d: f"buffer_load_dwordx{n} {vr(d, n)}, v{vaddr}, {sr(SWS)}, 0 offen sc1"
    setexec(a, mask)
    if not pipe:
        a(f"""
        s_mov_b32 s60, 0
L_poll_{tag}:
        {ld(dst)}
        s_add_u32 s60, s60, 1
        s_waitcnt vmcnt(0)
        v_cmp_ne_u64 vcc, s[{NON}:{NON+1}], v[{dst}:{dst+1}]
        s_cmp_gt_u32 s60, {POLL_MAX}
        s_cbranch_scc1 L_polld_{tag}
        {f"s_cbranch_vccz L_polld_{tag}" if backoff else ""}
        {f"s_sleep {backoff}" if backoff else ""}
        s_cbranch_vccnz L_poll_{tag}
L_polld_{tag}:
        s_mov_b64 exec, -1
        """)
        return
    a(f"""
    s_mov_b32 s60, 0
    v_mov_b32 v{dst}, 0
    v_mov_b32 v{dst+1}, 0
L_poll_{tag}:
    {ld(dst)}
    s_add_u32 s60, s60, 1
    s_sleep 4
    s_waitcnt vmcnt(8)
    v_cmp_ne_u64 vcc, s[{NON}:{NON+1}], v[{dst}:{dst+1}]
    s_cmp_gt_u32 s60, {POLL_MAX}
    s_cbranch_scc1 L_polld_{tag}
    s_cbranch_vccnz L_poll_{tag}
L_polld_{tag}:
    s_mov_b64 exec, -1
    """)

def p2_ids(a):
    a("s_and_b32 s52, s2, 15\ns_lshr_b32 s53, s2, 4")

def late_ids(a):
    a(f"""
    s_lshl_b32 s47, s5, 2
    s_and_b32 s46, s6, 3
    s_add_u32 s47, s47, s46                ; tb
    s_lshr_b32 s46, s6, 2                  ; fb
    s_and_b32 s56, s5, 1
    s_lshl_b32 s56, s56, 3
    s_and_b32 s57, s6, 7
    s_add_u32 s56, s56, s57                ; rb
    s_lshr_b32 s57, s5, 1
    s_lshl_b32 s57, s57, 2
    s_lshr_b32 s60, s6, 3
    s_add_u32 s57, s57, s60                ; cb
    """)

def p2_compute(a):
    Q = 16; O = 48; S = [112, 128]; P = 144; KV = 152; RA = 216
    pk = lambda b: f"v[{b}:{b+1}]"
    p2_ids(a)
    a(f"""
    s_lshl_b32 s54, s52, 6                 ; h*64
    s_lshl_b32 s55, s{SW3}, 4
    s_add_u32 s55, s55, s54
    s_lshl_b32 s55, s55, 12
    s_add_u32 s55, s55, {KVF}
    s_add_u32 s{SKV}, s{SWS}, s55
    s_addc_u32 s{SKV+1}, s{SWS+1}, 0
    s_mov_b32 s{SKV+2}, 65536
    s_mov_b32 s{SKV+3}, 0x00020000
    s_lshl_b32 s55, s53, 2
    s_add_u32 s55, s55, s54                ; h*64 + qb*4
    v_lshlrev_b32 v3, 2, v1
    v_mov_b32 v9, {AUX2}
    s_mov_b32 s62, 0                       ; pass
    """)
    for j in range(4):
        a(f"""
        s_add_u32 s60, s{SW3}, {j+1}
        s_and_b32 s60, s60, 3
        s_add_u32 s{56+j}, s60, s55
        s_lshl_b32 s{56+j}, s{56+j}, 11
        s_mul_i32 s60, s60, 12288
        s_add_u32 s60, s60, {RREG + (j*4096 if j < 3 else 0)}
        v_add_u32 v{RA+j}, s60, v2
        """)
    a("s_waitcnt vmcnt(0) lgkmcnt(0)")
    a.stamp(5)
    a.bar("p1X")
    a("s_mov_b32 s63, s58")
    p3_addr(a)
    a(f"s_mov_b32 s58, s63\nv_mov_b32 v9, {AUX2}")
    def zero():
        for r in range(64): a(f"v_mov_b32 v{O+r}, 0")
        for r in range(4): a(f"v_mov_b32 v{P+4+r}, 0\nv_mov_b32 v{KV+48+12+r}, 0")
    a.bar("p2P")
    a.stamp(6)
    def kvl(t):
        kt, f = divmod(t, 4)
        return f"buffer_load_dwordx4 {vr(KV+16*kt+4*f)}, v2, {sr(SKV)}, s61 offen offset:{f*1024} sc1"
    def ql(j):
        a(f"buffer_load_dwordx4 {vr(Q+8*j+4)}, v2, {sr(SWS)}, s{56+j} offen offset:1024 sc1")
        a(f"buffer_load_dwordx4 {vr(Q+8*j)}, v2, {sr(SWS)}, s{56+j} offen sc1")
    KG = E("KVG", 4)
    a(f"ds_read_b32 v5, v9 offset:4\ns_and_b32 s61, s53, {KG-1}\ns_mul_i32 s61, s61, {65536//KG}")
    ql(0); a(kvl(0)); a(kvl(1)); ql(1); a(kvl(2)); a(kvl(3)); ql(2); ql(3)
    NPRE = E("NPRE", 6)
    adv = "s_add_u32 s61, s61, 4096\ns_and_b32 s61, s61, 0xffff"
    for t in range(4, NPRE):
        if t % 4 == 0: a(adv)
        a(kvl(t))
    def patch(j):
        return ["s_mov_b32 exec_lo, 0", f"v_lshlrev_b32 v6, 16, v{Q+8*j+6}", "v_mul_f32 v6, v5, v6", "v_add_u32 v6, 0x8000ffff, v6",
                f"v_lshrrev_b32 v{Q+8*j+6}, 16, v6", "s_mov_b32 exec_lo, -1"]
    a(f"s_waitcnt vmcnt({6+NPRE}) lgkmcnt(0)")
    a.emit(*patch(0))
    a(f"""
    s_waitcnt vmcnt({4+NPRE})
    v_mfma_f32_32x32x16_bf16 {vr(S[0],16)}, {vr(KV)}, {vr(Q)}, 0
    v_mfma_f32_32x32x16_bf16 {vr(S[0],16)}, {vr(KV+4)}, {vr(Q+4)}, {vr(S[0],16)}
    s_waitcnt vmcnt({NPRE-4})
    """)
    for j in (1, 2, 3): a.emit(*patch(j))
    a("s_branch L_p2_first" if False else "")
    a.stamp(7)
    def wr(j): return [f"ds_write_b128 v{RA+j}, {vr(O+16*j+4*q)} offset:{q*1024}" for q in range(4)]
    adv = "s_add_u32 s61, s61, 4096\ns_and_b32 s61, s61, 0xffff"
    def body(kind):
        last = kind == "last"; first = kind == "first"
        vm = VM()
        if first:
            for t in range(4, NPRE): vm.add(f"t{t}")
            todo = list(range(NPRE, 29))
        else:
            for t in range(13): vm.add(f"t{t}")
            todo = list(range(13, 16 if last else 29))
        def ld():
            if not todo: return
            t = todo.pop(0)
            if t % 4 == 0: a(adv)
            a(f"buffer_load_dwordx4 {vr(KV+16*((t//4)%4)+4*(t%4))}, v2, {sr(SKV)}, s61 offen offset:{(t%4)*1024} sc1")
            vm.add(f"t{t}")
        for u in range(16):
            kt, qi = divmod(u, 4)
            ktn, qn = divmod((u + 1) % 16, 4)
            ktp, qp = divmod((u - 1) % 16, 4)
            Sc, Sn = S[u & 1], S[(u + 1) & 1]
            e = lambda r: f"v_exp_f32 v{Sc+r}, v{Sc+r}"
            c = lambda r: f"v_cvt_pk_bf16_f32 v{P+r}, v{Sc+2*r}, v{Sc+2*r+1}"
            A = f"v_mfma_f32_32x32x16_bf16 {vr(Sn,16)}, {vr(KV+16*ktn)}, {vr(Q+8*qn)}, 0"
            B = f"v_mfma_f32_32x32x16_bf16 {vr(O+16*qp,16)}, {vr(KV+16*ktp+12)}, {vr(P+4)}, {vr(O+16*qp,16)}"
            C = f"v_mfma_f32_32x32x16_bf16 {vr(Sn,16)}, {vr(KV+16*ktn+4)}, {vr(Q+8*qn+4)}, {vr(Sn,16)}"
            D = f"v_mfma_f32_32x32x16_bf16 {vr(O+16*qi,16)}, {vr(KV+16*kt+8)}, {vr(P)}, {'0' if first and kt == 0 else vr(O+16*qi,16)}"
            W = ["", "", "", ""]
            if last and u == 8: a.bar("p2R0")
            if first and u == 3: a.bar("p2Y")
            if last and u in (14, 15): W = wr(u - 14)
            fin = last and u == 15
            extra = lambda: first and todo and todo[0] < 13 + u
            if qi == 3 and not fin: a(vm.wait(f"t{4*(kt+1)+1}"))
            if not fin: a(A)
            if extra(): ld()
            a.emit(W[0], e(0), e(1), e(2), e(3), c(0), c(1))
            if qi == 1: a(vm.wait(f"t{4*kt+3}"))
            if not (first and u == 0): a(B)
            if extra(): ld()
            a.emit(W[1], e(4), e(5), e(6), e(7), c(2), c(3))
            if not fin: a(C)
            if todo and todo[0] <= 13 + u: ld()
            a.emit(W[2], e(8), e(9), e(10), e(11), c(4), c(5))
            if qi == 0: a(vm.wait(f"t{4*kt+2}"))
            a(D)
            if extra(): ld()
            a.emit(W[3], e(12), e(13), e(14), e(15), c(6), c(7))
        assert not todo
    a("L_p2_first:")
    body("first")
    a("s_mov_b32 s63, 0\nL_p2_loop:")
    body("mid")
    a(f"""
    s_add_u32 s63, s63, 1
    s_cmp_lt_u32 s63, 2
    s_cbranch_scc1 L_p2_loop
    """)
    body("last")
    a(f"v_mfma_f32_32x32x16_bf16 {vr(O+48,16)}, {vr(KV+48+12)}, {vr(P+4)}, {vr(O+48,16)}")
    a.emit(*wr(2))
    a(f"""
    s_lshl_b32 s60, s53, 2
    s_add_u32 s60, s60, s{SW3}
    s_lshl_b32 s60, s60, 15
    s_lshl_b32 s61, s52, 11
    s_add_u32 s60, s60, s61
    s_add_u32 s60, s60, {OF}
    v_mov_b32 v6, 0x1f800000
    v_mov_b32 v7, 0x5f800000
    s_waitcnt lgkmcnt(0)
    """)
    a.stamp(8)
    a.bar("p2R1")
    a.stamp(9)
    OW = O + 48
    for q in range(12):
        a(f"ds_read_b128 {vr(O+4*q)}, v{RA+3} offset:{q*1024}")
    for j in range(3):
        a(f"s_waitcnt lgkmcnt({8-4*j})")
        for r in range(0, 16, 2):
            a(f"v_pk_add_f32 {pk(OW+r)}, {pk(OW+r)}, {pk(O+16*j+r)}")
    a(f"""
    v_mov_b32 v10, v{OW+12}
    v_mov_b32 v11, v{OW+12}
    v_permlane32_swap_b32 v10, v11          ; v11 = l
    v_rcp_f32 v10, v11
    v_cmp_nge_f32 vcc, v11, v6
    v_cmp_gt_f32 s[58:59], v11, v7
    v_mov_b32 v11, v10
    """)
    for r in range(0, 16, 2):
        a(f"v_pk_mul_f32 {pk(OW+r)}, {pk(OW+r)}, v[10:11]")
    for r in range(8):
        a(f"v_cvt_pk_bf16_f32 v{P+r}, v{OW+2*r}, v{OW+2*r+1}")
    a(f"""
    buffer_store_dwordx4 {vr(P)}, v2, {sr(SWS)}, s60 offen sc1
    s_mov_b32 exec_lo, 0
    v_mov_b32 v{P+6}, 0
    v_mov_b32 v{P+7}, 0
    s_mov_b32 exec_lo, -1
    buffer_store_dwordx4 {vr(P+4)}, v2, {sr(SWS)}, s60 offen offset:1024 sc1
    s_or_b64 vcc, vcc, s[58:59]
    s_cbranch_scc0 L_p2_ok
    v_mov_b32 v10, 1
    ds_write_b32 v9, v10
L_p2_ok:
    """)
    a.stamp(10)
    p3_pre(a)
    a("s_waitcnt vmcnt(0) lgkmcnt(0)")
    a.bar("p2R2")
    a(f"""
    s_cmp_lg_u32 s62, 0
    s_cbranch_scc1 L_p2_done
    ds_read_b32 v10, v9
    s_waitcnt lgkmcnt(0)
    v_readfirstlane_b32 s60, v10
    s_cmp_eq_u32 s60, 0
    s_cbranch_scc1 L_p2_done
    s_mov_b32 s62, 1
    s_mov_b32 exec_lo, 0
    """)
    for j in range(4): a(f"v_mov_b32 v{Q+8*j+6}, 0")
    a("s_mov_b32 exec_lo, -1")
    for j in range(4): a(f"v_mov_b32 v{O+j}, 0xff800000")
    a(f"""
    s_mov_b32 s61, 0
L_p2_mx:
    buffer_load_dwordx4 {vr(KV)}, v2, {sr(SKV)}, s61 offen sc1
    buffer_load_dwordx4 {vr(KV+4)}, v2, {sr(SKV)}, s61 offen offset:1024 sc1
    s_waitcnt vmcnt(0)
    """)
    for j in range(4):
        a(f"""
        v_mfma_f32_32x32x16_bf16 {vr(S[0],16)}, {vr(KV)}, {vr(Q+8*j)}, 0
        v_mfma_f32_32x32x16_bf16 {vr(S[0],16)}, {vr(KV+4)}, {vr(Q+8*j+4)}, {vr(S[0],16)}
        """)
        for r in range(8):
            a(f"v_max3_f32 v{O+j}, v{S[0]+2*r}, v{S[0]+2*r+1}, v{O+j}")
    a("s_add_u32 s61, s61, 4096\ns_cmp_lt_u32 s61, 65536\ns_cbranch_scc1 L_p2_mx")
    for j in range(4):
        a(f"""
        v_mov_b32 v10, v{O+j}
        v_permlane32_swap_b32 v{O+j}, v10
        v_max_f32 v{O+j}, v{O+j}, v10
        s_add_u32 s60, s{SW3}, {j+1}
        s_and_b32 s60, s60, 3
        s_lshl_b32 s60, s60, 10
        s_add_u32 s60, s60, {RREG}
        v_add_u32 v{O+8+j}, s60, v3
        s_lshl_b32 s61, s{SW3}, 8
        v_add_u32 v10, s61, v{O+8+j}
        ds_write_b32 v10, v{O+j}
        """)
    a("s_waitcnt lgkmcnt(0)\ns_barrier")
    for j in range(4):
        for w in range(4):
            a(f"ds_read_b32 v{O+16+4*j+w}, v{O+8+j} offset:{256*w}")
        a("s_waitcnt lgkmcnt(0)")
    for j in range(4):
        b = O + 16 + 4*j
        a(f"""
        v_max3_f32 v10, v{b}, v{b+1}, v{b+2}
        v_max_f32 v10, v10, v{b+3}
        v_sub_f32 v10, 0, v10
        v_and_b32 v11, 0xffff0000, v10
        v_sub_f32 v14, v10, v11
        v_cvt_pk_bf16_f32 v10, v11, v14
        s_mov_b32 exec_lo, 0
        v_mov_b32 v{Q+8*j+6}, v10
        s_mov_b32 exec_lo, -1
        """)
    a(f"s_and_b32 s61, s53, {KG-1}\ns_mul_i32 s61, s61, {65536//KG}")
    for t in range(NPRE):
        if t and t % 4 == 0: a(adv)
        a(kvl(t))
    a(f"""
    s_waitcnt vmcnt(0)
    v_mfma_f32_32x32x16_bf16 {vr(S[0],16)}, {vr(KV)}, {vr(Q)}, 0
    v_mfma_f32_32x32x16_bf16 {vr(S[0],16)}, {vr(KV+4)}, {vr(Q+4)}, {vr(S[0],16)}
    s_nop 15
    s_branch L_p2_first
L_p2_done:
    """)
    a.stamp(11)

def gu_dma(a, n, tag, vm, thr=None):
    if not TF:
        for t in range(n):
            a(f"""
            s_mov_b32 m0, s59
            s_add_u32 s59, s59, {SLOT}
            buffer_load_dwordx4 v20, {sr(SG)}, s58 offen lds
            s_add_u32 m0, m0, 4384
            s_add_u32 s60, s58, {16*3584}
            buffer_load_dwordx4 v20, {sr(SU)}, s58 offen lds
            s_sub_u32 s61, s60, {28*16*3584}
            s_cmp_ge_u32 s60, {28*16*3584}
            s_cselect_b32 s58, s61, s60
            {f"s_waitcnt vmcnt({thr})" if thr is not None else ""}
            """)
        vm.add(tag, 2 * n)
        return
    n //= 4
    for t in range(n):
        a(f"""
        s_mul_i32 s60, s63, {4*SLOT}
        s_add_u32 s60, s60, s58
        s_mov_b32 m0, s59
        s_add_u32 s61, s60, 4096
        """)
        for q in range(4): a(f"buffer_load_dwordx4 v2, {sr(SWS)}, s60 offen offset:{q*1024} sc1 lds")
        a(f"s_add_u32 m0, m0, 4096\ns_add_u32 s59, s59, {4*SLOT}")
        for q in range(3): a(f"buffer_load_dwordx4 v2, {sr(SWS)}, s61 offen offset:{q*1024} sc1 lds")
        a("s_add_u32 s63, s63, 1\ns_cmp_eq_u32 s63, 7\ns_cselect_b32 s63, 0, s63")
    vm.add(tag, 7 * n)

def rot4(a, dst):
    a(f"""
    s_lshr_b32 s60, s6, 3
    s_lshl_b32 s60, s60, 1
    s_and_b32 s{dst}, s6, 7
    s_add_u32 s{dst}, s{dst}, s60
    s_cmp_ge_u32 s{dst}, 7
    s_cselect_b32 s60, 7, 0
    s_sub_u32 s{dst}, s{dst}, s60
    """)

def rot5(a, dst, add=0):
    a(f"""
    s_and_b32 s60, s6, 3
    s_mul_i32 s60, s60, {E('TBROT', 1)}
    s_lshl_b32 s{dst}, s46, 2
    s_add_u32 s{dst}, s{dst}, s60
    s_add_u32 s{dst}, s{dst}, {add}
    s_mul_i32 s60, s5, {E("XR5", 7)}
    s_lshr_b32 s60, s60, 1
    s_add_u32 s{dst}, s{dst}, s60
    s_cmp_ge_u32 s{dst}, 28
    s_cselect_b32 s60, 28, 0
    s_sub_u32 s{dst}, s{dst}, s60
    s_cmp_ge_u32 s{dst}, 28
    s_cselect_b32 s60, 28, 0
    s_sub_u32 s{dst}, s{dst}, s60
    s_cmp_ge_u32 s{dst}, 28
    s_cselect_b32 s60, 28, 0
    s_sub_u32 s{dst}, s{dst}, s60
    """)

def tr128_addr(a, dst, sft, sxh, hfshift):
    a(f"""
    v_bfe_u32 v9, v1, 2, 2                 ; r
    v_lshl_add_u32 v10, v13, {hfshift}, v9
    v_lshlrev_b32 v10, 7, v10
    v_lshrrev_b32 v9, 1, v9
    v_xor_b32 v9, s{sft}, v9
    v_lshl_add_u32 v10, v9, 6, v10
    v_bfe_u32 v9, v1, 4, 1                 ; ch
    {f"v_xor_b32 v9, s{sxh}, v9" if sxh else ""}
    v_lshl_add_u32 v10, v9, 5, v10
    v_and_b32 v9, 1, v1
    v_lshl_add_u32 v10, v9, 4, v10
    v_bfe_u32 v9, v1, 1, 1
    v_lshl_add_u32 v{dst}, v9, 3, v10
    """)

def wd_loop(a, n, tag, lds=True, throttle=False):
    ld = (lambda: f"buffer_load_dwordx4 v21, {sr(SD)}, s60 offen lds\ns_add_u32 m0, m0, 1024") if lds else (lambda: f"buffer_load_dwordx4 v[24:27], v21, {sr(SD)}, s60 offen")
    a(f"""
    s_mov_b32 s61, 0
L_wd_{tag}:
    s_mul_i32 s60, s54, {16*896}
    s_add_u32 s60, s60, s55
    {ld()}
    s_add_u32 s60, s60, {8*896}
    s_add_u32 s54, s54, 1
    {ld()}
    s_cmp_eq_u32 s54, 28
    s_cselect_b32 s54, 0, s54
    s_add_u32 s61, s61, 1
    {f"s_waitcnt vmcnt({PFW})" if throttle else ""}
    s_cmp_lt_u32 s61, {n}
    s_cbranch_scc1 L_wd_{tag}
    """)

A5H = 88
def p2_helper(a, vm):
    late_ids(a)
    a(f"""
    v_lshlrev_b32 v2, 4, v1
    v_lshrrev_b32 v9, 3, v1
    v_mul_u32_u24 v9, 896, v9
    v_bfe_u32 v10, v1, 4, 1
    v_lshlrev_b32 v10, 2, v10
    v_and_b32 v11, 7, v1
    v_xor_b32 v10, v10, v11
    v_lshl_add_u32 v21, v10, 4, v9
    v_lshrrev_b32 v9, 4, v1
    v_mul_u32_u24 v9, {4*3584}, v9
    v_and_b32 v10, 15, v1
    v_lshl_add_u32 v20, v10, 4, v9
    v_lshlrev_b32 v9, 3, v1
    v_mov_b32 v10, 0
    v_mov_b32 v11, 0
    v_add_u32 v9, {GAP}, v9
    ds_write_b64 v9, v[10:11]
    s_lshr_b32 s58, s{SW3}, 1
    s_and_b32 s59, s{SW3}, 1
    """)
    tr128_addr(a, 4, 58, 59, 3)
    rot5(a, 54)
    a(f"""
    s_lshl_b32 s60, s{SW3}, 14
    s_add_u32 s7, s60, {RREG}
    v_add_u32 v4, s7, v4
    v_xor_b32 v5, 64, v4
    s_mul_i32 s55, s{SW3}, {28*16*896}
    s_lshl_b32 s60, s46, 7
    s_add_u32 s55, s55, s60
    """)
    rot4(a, 63)
    if TF:
        a(f"""
        s_mul_i32 s59, s{SW3}, {SLOT}
        s_mul_i32 s58, s57, {28*SLOT}
        s_add_u32 s58, s58, s59
        s_add_u32 s58, s58, {WGU}
        """)
    else:
        a(f"""
        s_lshl_b32 s58, s63, 6
        s_add_u32 s58, s58, s{SW3}
        s_mul_i32 s58, s58, 3584
        s_mul_i32 s59, s57, 224
        s_and_b32 s59, s59, 0xffffffc0
        s_add_u32 s58, s58, s59
        s_mul_i32 s59, s{SW3}, 1088
        """)
    a(f"""
    s_mul_i32 s54, s54, {16*896}
    s_add_u32 s54, s54, s55
    s_add_u32 s49, s55, {28*16*896}
    s_mov_b32 s52, {"s48" if TF else "99"}
    """)
    lv = VM()
    def wd(p, dstbase, doff):
        a(f"""
        s_add_u32 m0, s{dstbase}, {doff}
        s_add_u32 s60, s54, {8*896}
        buffer_load_dwordx4 v21, {sr(SD)}, s54 offen lds
        s_add_u32 m0, m0, 1024
        s_add_u32 s54, s54, {16*896}
        buffer_load_dwordx4 v21, {sr(SD)}, s60 offen lds
        s_cmp_eq_u32 s54, s49
        s_cselect_b32 s54, s55, s54
        """)
        lv.add(f"w{p}", 2)
    p2_helper.wd = wd
    a.bar("p1X")
    a(f"""
    s_cmp_lg_u32 s{SW}, 4
    s_cbranch_scc1 L_h2_npub
    ds_read_b32 v26, v14
    s_mov_b32 exec_hi, 0xffff
    s_waitcnt lgkmcnt(0)
    buffer_store_dwordx4 v[24:27], v18, {sr(SWS)}, s62 offen sc1
    s_mov_b32 exec_hi, -1
L_h2_npub:
    """)
    EB = -1
    a(f"s_cmp_lg_u32 s{SW}, 4\ns_cbranch_scc1 L_h2_np")
    a.stamp(5)
    poll(a, "A", 17, 0x1ffffffff, wide=True, dst=28, pipe=(EB >= 0))
    a(f"""
    s_nop 4
    v_mov_b32 v32, v30
    v_max_u32_dpp v32, v32, v32 row_shr:1 row_mask:0xf bank_mask:0xf
    v_max_u32_dpp v32, v32, v32 row_shr:2 row_mask:0xf bank_mask:0xf
    v_max_u32_dpp v32, v32, v32 row_shr:4 row_mask:0xf bank_mask:0xf
    v_max_u32_dpp v32, v32, v32 row_shr:8 row_mask:0xf bank_mask:0xf
    v_sqrt_f32 v32, v32
    v_mov_b32 v9, {AUX2}
    v_mul_f32 v32, {f2u(1.0+1.0/128):#x}, v32
    v_mov_b32 v33, 0
    s_mov_b64 exec, 0x8000
    ds_write_b32 v9, v33
    ds_write_b32 v9, v32 offset:4
    s_mov_b64 exec, -1
    s_waitcnt lgkmcnt(0)
L_h2_np:
    """)
    a.bar("p2P")
    a.bar("p2Y")
    lv.q = []
    if TF and E("TST", 0) == 1:
        a("s_cmp_ge_u32 s52, 28\ns_cbranch_scc1 L_h2_notf2")
        tstores(a)
    a(f"""
L_h2_notf2:
    v_lshlrev_b32 v7, 12, v1
    s_lshl_b32 s53, s57, 8
    s_lshl_b32 s61, s52, 3
    s_add_u32 s53, s53, s61
    s_add_u32 s53, s53, {FT}
    """)
    def tflag(tag):
        a(f"""
        s_cmp_ge_u32 s52, 28
        s_cbranch_scc1 L_h2_nf{tag}
        s_mov_b64 exec, 0xffff
        buffer_store_dwordx2 v[24:25], v7, {sr(SWS)}, s53 offen sc1
        s_mov_b64 exec, -1
L_h2_nf{tag}:
        """)
    a("s_cmp_lt_u32 s6, 28\ns_cbranch_scc1 L_h2_act\ns_waitcnt vmcnt(0)")
    tflag("i")
    a("s_branch L_h2_nowo\nL_h2_act:")
    a.stamp(6)
    def aread(p):
        for f in range(2):
            for u in range(2):
                b = A5H + 8*p + 4*f + 2*u
                a(f"ds_read_b64_tr_b16 v[{b}:{b+1}], v{4+f} offset:{(p%8)*2048+u*512}")
    D = max(1, (PFW + 1) // 2)
    e0 = max(EB, 0)
    flagged = False
    for p in range(NA5 + D):
        if e0 <= p < NA5:
            if p >= 8: a("s_waitcnt lgkmcnt(8)")
            wd(p, 7, (p % 8) * 2048)
        if p == NA5:
            a(f"""
            s_mul_i32 s{SKV+2}, s{SW3}, {14*8*896}
            s_lshl_b32 s60, s46, 7
            s_add_u32 s{SKV+2}, s{SKV+2}, s60
            s_mul_i32 s{SKV+3}, s{SW3}, 14336
            s_add_u32 s{SKV+3}, s{SKV+3}, {WOREG}
            s_and_b32 s62, s6, 3
            s_mul_i32 s62, s62, 7
            s_lshr_b32 s62, s62, 1
            """)
        def wo(n):
            for _ in range(n):
                a(f"""
                s_lshl_b32 s60, s62, 10
                s_add_u32 m0, s60, s{SKV+3}
                s_mul_i32 s60, s62, {8*896}
                s_add_u32 s60, s60, s{SKV+2}
                buffer_load_dwordx4 v21, {sr(SWO)}, s60 offen lds
                s_add_u32 s62, s62, 1
                s_cmp_eq_u32 s62, 14
                s_cselect_b32 s62, 0, s62
                """)
                lv.add("wo")
        if p >= NA5: wo(2)
        q = p - D
        if q >= 0:
            w = lv.wait(f"w{q}")
            a(w)
            if w and not flagged:
                tflag("a"); flagged = True
            aread(q)
    a.stamp(9)
    for k in range(7 - D):
        wo(2)
        a(f"s_waitcnt vmcnt({2*D})")
    a.stamp(10)
    a(f"""
L_h2_nowo:
    s_lshl_b32 s60, s56, 4
    s_add_u32 s60, s60, s57
    s_lshl_b32 s60, s60, 8
    s_add_u32 s60, s60, {FT}
    v_lshl_add_u32 v17, v1, 3, s60
    """)
    if TF: poll(a, "T", 17, 0xfffffff, backoff=40)
    a.stamp(11)
    gu_dma(a, 4, "g0", vm, thr=PFW)
    p2_ids(a)
    a("s_mov_b32 s62, 0\ns_waitcnt lgkmcnt(0)")
    vm.q = []
    a.stamp(7)
    a("L_h2_again:")
    a.bar("p2R0")
    a("s_waitcnt vmcnt(0)")
    a.bar("p2R1")
    a.bar("p2R2")
    a(f"""
    s_cmp_lg_u32 s62, 0
    s_cbranch_scc1 L_h2_done
    v_mov_b32 v9, {AUX2}
    ds_read_b32 v10, v9
    s_waitcnt lgkmcnt(0)
    v_readfirstlane_b32 s60, v10
    s_cmp_eq_u32 s60, 0
    s_cbranch_scc1 L_h2_done
    s_mov_b32 s62, 1
    s_barrier
    s_barrier
    s_branch L_h2_again
L_h2_done:
    """)

def p3_addr(a):
    a(f"s_lshr_b32 s58, s{SW3}, 1")
    tr128_addr(a, 220, 58, None, 2)
    a(f"""
    s_lshr_b32 s60, s6, 2
    s_mul_i32 s60, s60, {2*3584}
    s_add_u32 s60, s60, {WOREG}
    v_add_u32 v220, s60, v220
    """)

def p3_pre(a):
    AF = 64
    a(f"""
    s_cmp_ge_u32 s6, 28
    s_cbranch_scc1 L_p3_skipA
    s_lshr_b32 s58, s6, 2                  ; fb
    """)
    for g in range(8):
        if g >= 2:
            a(f"""
            s_cmp_ge_u32 s58, {8-g}
            s_cselect_b32 s59, {(-57344) & 0xffffffff:#x}, 0
            v_add_u32 v{221+(g&1)}, s59, v220
            """)
        for n in (2*g, 2*g+1):
            for f in range(2):
                for u in range(2):
                    b = AF + 8*n + 4*f + 2*u
                    a(f"ds_read_b64_tr_b16 v[{b}:{b+1}], v{220 if g < 2 else 221+(g&1)} offset:{n*3584+f*2048+u*1024}")
        a("s_waitcnt lgkmcnt(6)")
    a("L_p3_skipA:")

def p3_compute(a):
    ACC = 16; BF = 32; AF = 64; XR = 192; T = 200
    late_ids(a)
    a(f"""
    s_cmp_ge_u32 s6, 28
    s_cbranch_scc1 L_p3_skipB
    s_and_b32 s52, s{SW3}, 1               ; tt_l
    s_lshr_b32 s53, s{SW3}, 1              ; ft_l
    s_lshl_b32 s54, s47, 1
    s_add_u32 s54, s54, s52                ; tt
    s_lshl_b32 s55, s46, 1
    s_add_u32 s55, s55, s53                ; ft
    v_mul_u32_u24 v3, 896, v12
    v_lshl_add_u32 v3, v13, 4, v3
    s_mul_i32 s60, s54, {32*896}
    s_lshl_b32 s61, s55, 6
    s_add_u32 s60, s60, s61
    buffer_load_dwordx4 {vr(XR)}, v3, {sr(SX)}, s60 offen
    buffer_load_dwordx4 {vr(XR+4)}, v3, {sr(SX)}, s60 offen offset:32
    s_lshl_b32 s60, s52, 15
    s_add_u32 s60, s60, {RREG}
    v_add_u32 v5, s60, v2
    s_mul_i32 s58, s54, 28672
    s_lshl_b32 s61, s55, 11
    s_add_u32 s58, s58, s61
    s_add_u32 s58, s58, {HF}
    s_mul_i32 s59, s54, 14
    s_add_u32 s59, s59, s55
    s_lshl_b32 s59, s59, 8
    s_add_u32 s59, s59, {ST}
    v_lshlrev_b32 v14, 3, v1
    s_waitcnt vmcnt(0)
    """)
    for r in range(8):
        a(f"v_lshlrev_b32 v{ACC+2*r}, 16, v{XR+r}\nv_and_b32 v{ACC+2*r+1}, 0xffff0000, v{XR+r}")
    a("v_mov_b32 v6, 0\nv_mov_b32 v7, 0")
    a.bar("p3P")
    for st in range(4):
        a.bar(f"p3s{st}")
        if st == 0: a.stamp(13)
        for q in range(8):
            a(f"ds_read_b128 {vr(BF+4*q)}, v5 offset:{(8*st+q)*1024}")
        for q in range(8):
            p = 8*st + q
            a(f"s_waitcnt lgkmcnt({7-q})")
            a(f"v_mfma_f32_32x32x16_bf16 {vr(ACC,16)}, {vr(AF+4*p)}, {vr(BF+4*q)}, {vr(ACC,16)}")
    a.stamp(14)
    for r in range(8):
        a(f"v_cvt_pk_bf16_f32 v{T+r}, v{ACC+2*r}, v{ACC+2*r+1}")
    a(f"""
    buffer_store_dwordx4 {vr(T)}, v2, {sr(SWS)}, s58 offen sc1
    buffer_store_dwordx4 {vr(T+4)}, v2, {sr(SWS)}, s58 offen offset:1024 sc1
    """)
    for r in range(8):
        a(f"v_dot2c_f32_bf16 v6, v{T+r}, v15\nv_dot2c_f32_bf16 v7, v{T+r}, v{T+r}")
    a(f"""
    v_mov_b32 v8, v6
    v_mov_b32 v9, v7
    v_permlane32_swap_b32 v6, v8
    v_permlane32_swap_b32 v7, v9
    v_add_f32 v6, v6, v8
    v_add_f32 v7, v7, v9
    s_mov_b32 exec_hi, 0
    buffer_store_dwordx2 v[6:7], v14, {sr(SWS)}, s59 offen sc1
    s_mov_b32 exec_hi, -1
L_p3_skipB:
    """)
    a.stamp(15)

def p3_helper(a, vm):
    publish(a, "B", pub14(53, 52, FB), 0x7f7f)
    gu_dma(a, 8 if TF else 7, "g1", vm)
    a.stamp(12)
    a(f"""
    s_cmp_ge_u32 s6, 28
    s_cbranch_scc1 L_h3_skip
    s_and_b32 s52, s{SW3}, 1
    s_lshr_b32 s53, s{SW3}, 1
    s_lshl_b32 s62, s47, 1
    s_add_u32 s62, s62, s52
    s_lshl_b32 s62, s62, 15
    s_lshl_b32 s53, s53, 10
    s_add_u32 s62, s62, s53
    s_add_u32 s62, s62, {OF}
    s_lshl_b32 s52, s52, 15
    s_add_u32 s52, s52, s53
    s_add_u32 s52, s52, {RREG}             ; dst
    s_lshl_b32 s53, s46, 12
    s_cmp_lg_u32 s{SW}, 4
    s_cbranch_scc1 L_h3_np
    s_lshl_b32 s60, s47, 3
    s_add_u32 s60, s60, s46
    s_lshl_b32 s60, s60, 7
    s_add_u32 s60, s60, {FB}
    v_lshl_add_u32 v17, v1, 3, s60
    """)
    poll(a, "B", 17, 0xffff)
    a("L_h3_np:")
    a.bar("p3P")
    a.stamp(13)
    a(f"""
    s_mov_b32 m0, s52
    s_mov_b32 s61, 0
L_h3_o:
    s_add_u32 s60, s53, s62
    buffer_load_dwordx4 v2, {sr(SWS)}, s60 offen sc1 lds
    s_add_u32 m0, m0, 2048
    s_add_u32 s53, s53, 2048
    s_and_b32 s53, s53, 0x7fff
    s_add_u32 s61, s61, 1
    s_cmp_lt_u32 s61, 16
    s_cbranch_scc1 L_h3_o
    """)
    for st in range(4):
        a(f"s_waitcnt vmcnt({12-4*st})")
        a.bar(f"p3s{st}")
    a("L_h3_skip:")

NBW = 8
P4B = (3, 11, 19) if TF else (3, 10, 17, 20)
NR4 = 1 if TF else 2
def p4_compute(a):
    ACC = 16; AF = 128; BF = 156; T = 188; OUT = 196; STT = 204
    RS, CC = 6, 7
    vm = VM()
    a(f"""
    s_lshl_b32 s54, s56, 2
    s_add_u32 s54, s54, s{SW3}             ; tt
    s_mul_i32 s55, s54, 28672
    s_add_u32 s55, s55, {HF}
    s_add_u32 s53, s55, 28672              ; end
    """)
    rot4(a, 58)
    a(f"""
    s_lshl_b32 s58, s58, 12
    s_add_u32 s58, s58, s55
    """)
    if TF: a("v_mov_b32 v4, v2")
    else:
        a(f"""
        v_bfe_u32 v9, v1, 2, 2
        v_mul_u32_u24 v10, 1088, v9
        v_lshl_add_u32 v10, v13, 9, v10
        v_and_b32 v9, 1, v1
        v_lshl_add_u32 v10, v9, 4, v10
        v_bfe_u32 v9, v1, 4, 1
        v_lshl_add_u32 v10, v9, 3, v10
        v_bfe_u32 v9, v1, 1, 1
        v_mul_u32_u24 v9, 4384, v9
        s_mul_i32 s60, s57, 224
        s_and_b32 s60, s60, 63
        v_add3_u32 v4, v10, v9, s60
        """)
    a(f"""
    v_mul_u32_u24 v5, {7*256}, v13
    v_lshl_add_u32 v5, v12, 3, v5
    s_mul_i32 s59, s54, {14*256}
    s_add_u32 s59, s59, {ST}
    s_waitcnt vmcnt(0)
    """)
    a.bar("p3X")
    a.stamp(16)
    base = [0]
    def tr(p, j):
        L = []
        slot = p % NSLOT
        off = slot * SLOT - base[0]
        if j == 0 and (off < 0 or off + SLOT > 65536):
            L.append(f"v_add_u32 v4, {off & 0xffffffff:#x}, v4")
            base[0] = slot * SLOT; off = 0
        if TF: L.append(f"ds_read_b128 {vr(AF+4*j)}, v4 offset:{off + j*1024}")
        else:
            for u in range(2):
                b = AF + 4*j + 2*u
                L.append(f"ds_read_b64_tr_b16 v[{b}:{b+1}], v4 offset:{off + u*256 + j*32}")
        return L
    for j in range(7): a.emit(*tr(0, j))
    a.bar("p4P")
    a.stamp(17)
    def bload(p):
        vm.add(f"b{p}")
        L = [f"buffer_load_dwordx4 {vr(BF+4*(p%NBW))}, v2, {sr(SWS)}, s58 offen offset:{(p%4)*1024} sc1"]
        if p % 4 == 3: L += ["s_add_u32 s58, s58, 4096", "s_cmp_eq_u32 s58, s53", "s_cselect_b32 s58, s55, s58"]
        return L
    for q in range(7):
        a(f"buffer_load_dwordx2 v[{STT+2*q}:{STT+2*q+1}], v5, {sr(SWS)}, s59 offen offset:{q*256} sc1")
    vm.add("st", 7)
    for p in range(NBW): a.emit(*bload(p))
    a(vm.wait("st"))
    pk = lambda b: f"v[{b}:{b+1}]"
    a(f"""
    v_pk_add_f32 {pk(STT+2)}, {pk(STT+2)}, {pk(STT+8)}
    v_pk_add_f32 {pk(STT+4)}, {pk(STT+4)}, {pk(STT+10)}
    v_pk_add_f32 {pk(STT+6)}, {pk(STT+6)}, {pk(STT+12)}
    v_pk_add_f32 {pk(STT)}, {pk(STT)}, {pk(STT+2)}
    v_pk_add_f32 {pk(STT+4)}, {pk(STT+4)}, {pk(STT+6)}
    v_pk_add_f32 {pk(STT)}, {pk(STT)}, {pk(STT+4)}
    v_mov_b32 v{STT+2}, v{STT}
    v_mov_b32 v{STT+3}, v{STT+1}
    v_permlane32_swap_b32 v{STT}, v{STT+2}
    v_permlane32_swap_b32 v{STT+1}, v{STT+3}
    v_pk_add_f32 {pk(STT)}, {pk(STT)}, {pk(STT+2)}
    v_mul_f32 v{STT}, {f2u(1.0/448):#x}, v{STT}
    v_mul_f32 v{STT+1}, {f2u(1.0/448):#x}, v{STT+1}
    v_fma_f32 v{STT+1}, -v{STT}, v{STT}, v{STT+1}
    v_max_f32 v{STT+1}, 0, v{STT+1}
    v_add_f32 v{STT+1}, {f2u(1e-5):#x}, v{STT+1}
    v_rsq_f32 v{RS}, v{STT+1}
    v_mul_f32 v{CC}, v{STT}, v{RS}
    v_sub_f32 v{CC}, 0, v{CC}
    """)
    def norm(p):
        f = BF + 4*(p % NBW)
        L = []
        for i in range(4):
            L += [f"v_lshlrev_b32 v{T+2*i}, 16, v{f+i}", f"v_and_b32 v{T+2*i+1}, 0xffff0000, v{f+i}"]
        for i in range(8):
            L.append(f"v_fma_f32 v{T+i}, v{T+i}, v{RS}, v{CC}")
        for i in range(4):
            L.append(f"v_cvt_pk_bf16_f32 v{f+i}, v{T+2*i}, v{T+2*i+1}")
        return L
    a(vm.wait("b0"))
    a.emit(*norm(0))
    a.stamp(18)
    k0 = [0, 3, 7, 10, 13, 17, 20, 20]
    for p in range(28):
        if p in P4B: a.bar(f"p4b{p}")
        nrm = norm(p + 1) if p < 27 else []
        for j in range(7):
            if j == 0:
                w = vm.wait(f"b{p+1}") if p < 27 else ""
                a((w + f" lgkmcnt({3*NR4})") if w else f"s_waitcnt lgkmcnt({3*NR4})")
            if j == 4: a(f"s_waitcnt lgkmcnt({4*NR4 if p < 27 else 0})")
            a(f"v_mfma_f32_32x32x16_bf16 {vr(ACC+16*j,16)}, {vr(AF+4*j)}, {vr(BF+4*(p%NBW))}, {'0' if p==0 else vr(ACC+16*j,16)}")
            if p < 27:
                t = tr(p + 1, j)
                a.emit(*t)
            a.emit(*nrm[k0[j]:k0[j+1]])
            if j == 6 and p + NBW < 28: a.emit(*bload(p + NBW))
    a.stamp(19)
    a(f"""
    s_mul_i32 s60, s54, {112*1024}
    s_mul_i32 s61, s57, 7168
    s_add_u32 s60, s60, s61
    s_add_u32 s60, s60, {HH}
    """)
    for j in range(7):
        acc = ACC + 16*j; o = OUT + 4*(j & 1)
        for g in range(2):
            for c in range(4):
                a(f"v_max_f32 v{acc+8*g+c}, 0, v{acc+8*g+c}")
            for c in (0, 2):
                a(f"v_pk_mul_f32 {pk(acc+8*g+c)}, {pk(acc+8*g+c)}, {pk(acc+8*g+4+c)}")
            a(f"v_cvt_pk_bf16_f32 v{o+2*g}, v{acc+8*g}, v{acc+8*g+1}")
            a(f"v_cvt_pk_bf16_f32 v{o+2*g+1}, v{acc+8*g+2}, v{acc+8*g+3}")
        if j == 4: a("s_add_u32 s60, s60, 4096")
        a(f"buffer_store_dwordx4 {vr(o)}, v2, {sr(SWS)}, s60 offen offset:{(j%4)*1024} sc1")
    a.stamp(21)
    a("s_waitcnt vmcnt(0)")
    a.bar("p4X")
    a.stamp(23)

def p4_helper(a, vm):
    a.bar("p3X")
    a("s_cmp_ge_u32 s6, 28\ns_cbranch_scc1 L_pub_C")
    publish(a, "C", f"""v_lshlrev_b32 v9, 7, v1
    s_lshr_b32 s60, s47, 1
    s_lshl_b32 s60, s60, 11
    s_and_b32 s61, s47, 1
    s_mul_i32 s61, s61, 7
    s_add_u32 s61, s61, s46
    s_lshl_b32 s61, s61, 3
    s_add_u32 s60, s60, s61
    s_add_u32 s60, s60, {FC}""", 0xffff)
    a(f"""
    s_cmp_lg_u32 s{SW}, 4
    s_cbranch_scc1 L_h4_np
    s_lshl_b32 s60, s56, 4
    s_add_u32 s60, s60, s57
    s_lshl_b32 s60, s60, 7
    s_add_u32 s60, s60, {FC}
    v_lshl_add_u32 v17, v1, 3, s60
    """)
    a.stamp(16)
    poll(a, "C", 17, 0x3fff)
    a("L_h4_np:")
    a.bar("p4P")
    a(vm.wait("g1"))
    a.bar("p4b3")
    if TF:
        gu_dma(a, 8, "g2", vm)
        a(f"s_sub_u32 s59, s59, {NSLOT*SLOT}")
        a(vm.wait("g2"))
        a.bar("p4b11")
        gu_dma(a, 8, "g3", vm)
        a(vm.wait("g3"))
        a.bar("p4b19")
    else:
        gu_dma(a, 7, "g2", vm)
        a(f"s_sub_u32 s59, s59, {NSLOT*SLOT}")
        gu_dma(a, 3, "g3", vm)
        a(vm.wait("g2"))
        a.bar("p4b10")
        gu_dma(a, 7, "g4", vm)
        a(vm.wait("g3"))
        a.bar("p4b17")
        a(vm.wait("g4"))
        a.bar("p4b20")
    a(f"""
    s_cmp_ge_u32 s6, 28
    s_cbranch_scc1 L_h4_nowd
    s_mul_i32 s60, s{SW3}, {(28-NA5)*2048}
    s_add_u32 s7, s60, {B1}
    """)
    for p in range(28 - NA5): p2_helper.wd(p, 7, p * 2048)
    a("L_h4_nowd:\ns_waitcnt vmcnt(0)")
    vm.q = []
    a.bar("p4X")

def p5_main(a, tag):
    helper = tag == "h"
    ACC = 24
    NC = 28 - NA5
    AR = A5H
    AREA = NA5 * 2048
    vm = VM()
    pk = lambda b: f"v[{b}:{b+1}]"
    HR = 240 if helper else 16
    a(f"""
    s_lshr_b32 s52, s{SW}, 2
    s_lshl_b32 s54, s47, 1
    s_add_u32 s53, s54, s52
    s_lshl_b32 s63, s46, 2
    s_add_u32 s63, s63, s{SW3}
    s_mul_i32 s62, s53, 28672
    s_lshl_b32 s61, s63, 10
    s_add_u32 s62, s62, s61
    s_add_u32 s62, s62, {HF}
    buffer_load_dwordx4 {vr(HR)}, v2, {sr(SWS)}, s62 offen sc1
    v_mul_u32_u24 v3, 896, v12
    v_lshl_add_u32 v3, v13, 4, v3
    s_mul_i32 s62, s53, {32*896}
    s_lshl_b32 s61, s63, 5
    s_add_u32 s62, s62, s61
    s_mul_i32 s7, s{SW3}, {AREA}
    v_add_u32 v8, s7, v2
    """)
    if helper:
        a(f"""
        s_cmp_lg_u32 s{SW}, 4
        s_cbranch_scc1 L_h5_np
        s_lshl_b32 s60, s47, 3
        s_add_u32 s60, s60, s46
        s_lshl_b32 s60, s60, 7
        s_add_u32 s60, s60, {FD}
        v_lshl_add_u32 v17, v1, 3, s60
        """)
        a.stamp(23)
        poll(a, "D", 17, 0xffff)
        a("L_h5_np:")
    else:
        a(f"""
        s_mul_i32 s60, s{SW3}, 28672
        s_add_u32 s60, s60, {HH}
        s_mul_i32 s55, s54, {112*1024}
        s_add_u32 s55, s55, s60
        s_add_u32 s58, s55, {112*1024}
        """)
        rot5(a, 59, 0)
        rot5(a, 52, NA5)
        a(f"s_lshl_b32 s59, s59, 10\ns_lshl_b32 s52, s52, 10\ns_lshr_b32 s60, s{SW3}, 1\ns_and_b32 s61, s{SW3}, 1")
        tr128_addr(a, 4, 60, 61, 3)
        a(f"""
        s_mul_i32 s60, s{SW3}, {NC*2048}
        s_add_u32 s60, s60, {B1}
        v_xor_b32 v5, 64, v4
        v_add_u32 v4, s60, v4
        v_add_u32 v5, s60, v5
        """)
        for p in range(NC):
            for f in range(2):
                for u in range(2):
                    b = AR + 8*p + 4*f + 2*u
                    a(f"ds_read_b64_tr_b16 v[{b}:{b+1}], v{4+f} offset:{p*2048+u*512}")
            if p % 2 == 1: a("s_waitcnt lgkmcnt(4)")
        a("s_waitcnt lgkmcnt(0)\ns_mov_b32 m0, s7")
    a.bar("p5P")
    a.stamp(24)
    adv = lambda r: f"s_add_u32 s{r}, s{r}, 1024\ns_cmp_eq_u32 s{r}, 28672\ns_cselect_b32 s{r}, 0, s{r}"
    def mf(p, b0, b1):
        for tl, b in ((0, b0), (1, b1)):
            for f in range(2):
                acc = ACC + 32*tl + 16*f
                a(f"v_mfma_f32_32x32x16_bf16 {vr(acc,16)}, {vr(AR+8*p+4*f)}, {vr(b)}, {'0' if p==0 else vr(acc,16)}")
    T = 96 if helper else 232
    def tail_addr():
        for j in range(1, 8):
            a(f"""
            s_xor_b32 s60, s{SW3}, {j & 3}
            s_mul_i32 s60, s60, {AREA}
            v_add_u32 v{T+8+j}, s60, v2
            """)
    def wr_part():
        o = 14336 if helper else 0
        for j in range(1, 8):
            a(f"ds_write_b128 v8, {vr(ACC+8*j)} offset:{o+(j-1)*2048}\nds_write_b128 v8, {vr(ACC+8*j+4)} offset:{o+(j-1)*2048+1024}")
        for r in range(4):
            a(f"v_lshlrev_b32 v{T+2*r}, 16, v{HR+r}\nv_and_b32 v{T+2*r+1}, 0xffff0000, v{HR+r}")
        for r in range(0, 8, 2):
            a(f"v_pk_add_f32 {pk(ACC+r)}, {pk(ACC+r)}, {pk(T+r)}")
    def unpack_hr():
        for r in range(4):
            a(f"v_lshlrev_b32 v{T+2*r}, 16, v{HR+r}\nv_and_b32 v{T+2*r+1}, 0xffff0000, v{HR+r}")
    def last_group(ps, breg, wait, o):
        pend = []
        n = len(ps)
        for tl, f in ((1, 1), (1, 0), (0, 1), (0, 0)):
            acc = ACC + 32*tl + 16*f
            for k, p in enumerate(ps):
                wait(tl, f, k)
                a(f"v_mfma_f32_32x32x16_bf16 {vr(acc,16)}, {vr(AR+8*p+4*f)}, {vr(breg(k, tl))}, {vr(acc,16)}")
                if len(pend) > 4 or (pend and tl == 0 and k >= n - 2):
                    a(pend.pop(0)); a(pend.pop(0))
            j0 = 4*tl + 2*f
            for j in (j0, j0 + 1):
                if j: pend += [f"ds_write_b128 v8, {vr(ACC+8*j)} offset:{o+(j-1)*2048}", f"ds_write_b128 v8, {vr(ACC+8*j+4)} offset:{o+(j-1)*2048+1024}"]
        a.stamp(25)
        a.emit(*pend)
        for r in range(0, 8, 2):
            a(f"v_pk_add_f32 {pk(ACC+r)}, {pk(ACC+r)}, {pk(T+r)}")
    GH = [[2, 3, 3, 3, 4, 4], [2, 2, 3, 4, 4, 4], [3, 4, 4, 4, 4]][E('G5', 1)]
    if helper:
        BB = [16, 248]
        rd = lambda p: a(f"ds_read_b128 {vr(BB[p&1])}, v8 offset:{p*2048}\nds_read_b128 {vr(BB[p&1]+4)}, v8 offset:{p*2048+1024}")
        p = 0
        for g, n in enumerate(GH):
            a.bar(f"p5g{g}")
            rd(p)
            for k in range(n):
                if k + 1 < n: rd(p + 1)
                a(f"s_waitcnt lgkmcnt({2 if k + 1 < n else 0})")
                mf(p, BB[p&1], BB[p&1]+4)
                p += 1
            if g == 2:
                tail_addr()
        a.stamp(25)
        a("s_waitcnt vmcnt(0)")
        wr_part()
    else:
        BR = AR + 8*NC
        items = [("h", g) for g in range(len(GH))] + [("c", 0), ("c", 1), ("c", 2)]
        pc = [0]
        def issue(it):
            if it[0] == "h":
                for k in range(GH[it[1]]):
                    a(f"""
                    s_add_u32 s60, s59, s58
                    s_add_u32 s61, s59, s55
                    buffer_load_dwordx4 v2, {sr(SWS)}, s60 offen sc1 lds
                    s_add_u32 m0, m0, 1024
                    {adv(59)}
                    buffer_load_dwordx4 v2, {sr(SWS)}, s61 offen sc1 lds
                    s_add_u32 m0, m0, 1024
                    """)
                    vm.add(f"h{it[1]}", 2)
            else:
                for k in range(3):
                    a(f"""
                    s_add_u32 s60, s52, s55
                    s_add_u32 s61, s52, s58
                    buffer_load_dwordx4 {vr(BR+8*pc[0])}, v2, {sr(SWS)}, s60 offen sc1
                    buffer_load_dwordx4 {vr(BR+8*pc[0]+4)}, v2, {sr(SWS)}, s61 offen sc1
                    {adv(52)}
                    """)
                    vm.add(f"c{pc[0]}", 2); pc[0] += 1
        LA = E('LA5', 2)
        for it in items[:LA]: issue(it)
        nxt = LA
        for g in range(len(GH)):
            a(vm.wait(f"h{g}"))
            a.bar(f"p5g{g}")
            if nxt < len(items): issue(items[nxt]); nxt += 1
        while nxt < len(items): issue(items[nxt]); nxt += 1
        tail_addr(); unpack_hr()
        NL = 3
        for p in range(NC - NL):
            a(vm.wait(f"c{p}"))
            mf(p, BR+8*p, BR+8*p+4)
        ps = list(range(NC - NL, NC))
        last_group(ps, lambda k, tl: BR + 8*ps[k] + 4*tl, lambda tl, f, k: a(vm.wait(f"c{ps[k]}")), 0)
    a("s_waitcnt lgkmcnt(0)")
    a.bar("p5R1")
    for j in range(1, 8):
        o = 14336 if (helper != (j >= 4)) else 0
        a(f"ds_read_b128 {vr(ACC+8*j)}, v{T+8+j} offset:{o+(j-1)*2048}\nds_read_b128 {vr(ACC+8*j+4)}, v{T+8+j} offset:{o+(j-1)*2048+1024}")
    for j in range(7):
        a(f"s_waitcnt lgkmcnt({12-2*j})")
        for r in range(0, 8, 2):
            a(f"v_pk_add_f32 {pk(ACC+r)}, {pk(ACC+r)}, {pk(ACC+8+8*j+r)}")
    for r in range(4):
        a(f"v_cvt_pk_bf16_f32 v{T+r}, v{ACC+2*r}, v{ACC+2*r+1}")
    a(f"buffer_store_dwordx4 {vr(T)}, v3, {sr(SOUT)}, s62 offen")
    a.stamp(26)

def p5_compute(a):
    a("s_cmp_ge_u32 s6, 28\ns_cbranch_scc1 L_p5_skip_c")
    p5_main(a, "c")
    a("L_p5_skip_c:")

def p5_helper(a):
    publish(a, "D", pub14(56, 57, FD), 0x7f7f)
    a("s_cmp_ge_u32 s6, 28\ns_cbranch_scc1 L_p5_skip_h")
    p5_main(a, "h")
    a("L_p5_skip_h:")

def build(path):
    a = Asm()
    prologue(a)
    C = Role("c"); H = Role("h"); vm = VM()
    p1_compute(C); p1_helper(H)
    p2_compute(C); p2_helper(H, vm)
    p3_compute(C); p3_helper(H, vm)
    p4_compute(C); p4_helper(H, vm)
    p5_compute(C); p5_helper(H)
    assert C.bars == H.bars, (C.bars, H.bars)
    if "nopf" in XV or "nohtr" in XV:
        i0 = H.lines.index("L_h2_act:"); i1 = H.lines.index("L_h2_nowo:")
        H.lines = [l for k, l in enumerate(H.lines) if not (i0 < k < i1 and (("nopf" in XV and l.startswith("buffer_load")) or ("nohtr" in XV and l.startswith("ds_read"))))]
    if "nostat" in XV: H.lines = [l for l in H.lines if not l.startswith("v_mfma_f32_16x16")]
    if "nocs" in XV: C.lines = [l for l in C.lines if not l.startswith("v_mfma_f32_16x16")]
    if "hprio" in XV:
        i0 = H.lines.index("L_h2_act:"); H.lines.insert(i0 + 1, "s_setprio 3")
    a.lines += H.lines
    stamp_end(a)
    a("s_endpgm\nL_compute:")
    a.lines += C.lines
    probe(a)
    stamp_end(a)
    a("L_end:\ns_endpgm")
    body = a.finish(True)
    hdr = open(f"cdna_kernels/{NAME}.s.ref").read().split("; Override launch")[0]
    out = hdr + "; @launch grid=(256,1,1) block=(512,1,1) lds=163840\n"
    out += '.amdgcn_target "amdgcn-amd-amdhsa--gfx950"\n.text\n'
    out += f".globl {KNAME}\n.p2align 8\n.type {KNAME},@function\n{KNAME}:\n{body}\n"
    out += f""".section .rodata,"a"
.p2align 6
.amdhsa_kernel {KNAME}
  .amdhsa_next_free_vgpr 256
  .amdhsa_next_free_sgpr 102
  .amdhsa_accum_offset 256
  .amdhsa_group_segment_fixed_size 0
  .amdhsa_kernarg_size 80
  .amdhsa_user_sgpr_count 2
  .amdhsa_user_sgpr_kernarg_segment_ptr 1
  .amdhsa_system_sgpr_workgroup_id_x 1
.end_amdhsa_kernel
"""
    open(path, "w").write(out)

if __name__ == "__main__":
    build(sys.argv[1] if len(sys.argv) > 1 else f"cdna_kernels/{NAME}.s")
```

```python
import sys, math, os, struct
from asmlib import Asm

NAME = "sequential_preLN__softmax_full_mha__glu_gated_reglu__prompt"
KNAME = NAME + "_kernel"
E = lambda k, d: int(os.environ.get(k, d))
DIAG = E("DIAG", 0)
PFW = E("PFW", 3)
ROTG = E("ROTG", 3)
XV = os.environ.get("XV", "")
POLL_MAX = 40000

def f2u(x): return struct.unpack('<I', struct.pack('<f', x))[0]
def vr(b, n=4): return f"v[{b}:{b+n-1}]"
def sr(b): return f"s[{b}:{b+3}]"

QF, KVF, FL, OF, HF, ST, HH, TS = 0x000000, 0x200000, 0x600000, 0x700000, 0x900000, 0xB00000, 0xC00000, 0x4000000
WS_BYTES = 0x10000000
FA, FB, FC, FD, FT = FL, FL + 0x40000, FL + 0x48000, FL + 0x50000, FL + 0x60000
WGU = 0x1400000
SW, SW3 = 3, 4
SX, SWQ, SWO, SWS, SG, SU, SD, SOUT, SDBG = 8, 12, 16, 20, 24, 28, 32, 36, 40
NON, SKV = 44, 48
AUX1 = 161792
CS1, KN1, CSP, TSTG = AUX1 + 1024, AUX1 + 1536, 159744, 143360
TF = E('TF', 0)
SLOT = 7168 if TF else 8736
NSLOT = 20 if TF else 18
WOREG = 35072
GAP = WOREG + 57344
AUX2 = 97280
RREG = 98304
B1 = 8 * SLOT if TF else 10 * SLOT
NA5 = 19

class Role(Asm):
    def __init__(self, tag):
        super().__init__(); self.tag = tag; self.bars = []
    def bar(self, name):
        self.bars.append(name); self("s_barrier")
    def stamp(self, i):
        if DIAG:
            self(f"s_memtime s[100:101]\ns_waitcnt lgkmcnt(0)\ns_mov_b32 s{64+i}, s100")

class VM:
    def __init__(self): self.q = []
    def add(self, tag, n=1): self.q += [tag] * n
    def wait(self, tag):
        idx = [i for i, t in enumerate(self.q) if t == tag]
        if not idx: return ""
        n = len(self.q) - 1 - idx[-1]
        self.q = self.q[idx[-1] + 1:]
        assert n <= 63
        return f"s_waitcnt vmcnt({n})"

PROBE = E("PROBE", 0)
def probe(a):
    if PROBE:
        a(f"""
        s_cmp_lg_u32 s2, 8
        s_cbranch_scc1 L_probe_done
        s_waitcnt vmcnt(0) lgkmcnt(0)
        s_memrealtime s[98:99]
        s_waitcnt lgkmcnt(0)
        s_sub_u32 s98, s98, s96
        s_cmp_lt_u32 s98, {PROBE}
        s_cbranch_scc1 L_probe_done
        s_mov_b32 s60, 0
L_probe_l:
        s_sleep 127
        s_add_u32 s60, s60, 1
        s_cmp_lt_u32 s60, 40
        s_cbranch_scc1 L_probe_l
L_probe_done:
        """)

def stamp_end(a):
    if DIAG:
        a(f"""
        s_mov_b64 exec, -1
        s_waitcnt vmcnt(0) lgkmcnt(0)
        s_memtime s[100:101]
        s_memrealtime s[98:99]
        s_waitcnt lgkmcnt(0)
        s_mov_b32 s93, s100
        s_mov_b32 s94, s96
        s_mov_b32 s95, s98
        s_lshl_b32 s60, s2, 3
        s_add_u32 s60, s60, s{SW}
        s_lshl_b32 s60, s60, 7
        s_add_u32 s60, s60, {TS}
        v_mov_b32 v0, 0
        """)
        for i in range(32):
            a(f"v_mov_b32 v{4+i}, s{64+i}")
        a("s_mov_b64 exec, 1")
        for i in range(8):
            a(f"buffer_store_dwordx4 v[{4+4*i}:{7+4*i}], v0, {sr(SWS)}, s60 offen offset:{16*i}")

DRY = E("DRY", 0)
def dry_call(a, tag, n, save=()):
    for k, r in enumerate(save): a(f"s_mov_b32 s{84+k + (0 if not DIAG else 18)}, s{r}" if False else f"s_mov_b32 s{(7, 61)[k]}, s{r}")
    a("s_mov_b64 exec, 0")
    for k in range(n):
        a(f"s_cmp_eq_u32 s{SW3}, {k}\ns_cbranch_scc1 L_dry{tag}_{k}")
    a(f"L_dry{tag}_ret:\ns_mov_b64 exec, -1\ns_nop 15")
    for k, r in enumerate(save): a(f"s_mov_b32 s{r}, s{(7, 61)[k]}")

def setexec(a, m):
    a(f"s_mov_b32 exec_lo, {m & 0xffffffff:#x}\ns_mov_b32 exec_hi, {m >> 32:#x}")

def prologue(a):
    if PROBE: a("s_memrealtime s[96:97]")
    if DIAG:
        a("s_memrealtime s[96:97]\ns_memtime s[100:101]")
    a(f"""
    s_cmp_ge_u32 s2, 256
    s_cbranch_scc1 L_end
    s_load_dwordx16 s[64:79], s[0:1], 0
    s_load_dwordx4 s[80:83], s[0:1], 64
    s_getpc_b64 s[6:7]
    s_lshr_b32 s5, s2, 3
    s_and_b32 s5, s5, 7
    s_lshl_b32 s5, s5, 13
    v_lshl_add_u32 v1, v0, 4, s5
    v_min_u32 v1, L_end-{KNAME}-16, v1
    s_and_b32 s6, s6, 0xffffff00
    global_load_dwordx4 v[252:255], v1, s[6:7]
    v_lshrrev_b32 v1, 6, v0
    v_readfirstlane_b32 s{SW}, v1
    v_and_b32 v1, 63, v0                   ; lane
    s_and_b32 s5, s2, 7                    ; xcd
    s_lshr_b32 s6, s2, 3                   ; i
    s_and_b32 s{SW3}, s{SW}, 3
    s_lshr_b32 s52, s5, 1
    s_lshl_b32 s52, s52, 2
    s_and_b32 s53, s6, 3
    s_add_u32 s52, s52, s53                ; rb
    s_and_b32 s53, s5, 1
    s_lshl_b32 s53, s53, 3
    s_lshr_b32 s54, s6, 2
    s_add_u32 s53, s53, s54                ; cb
    s_lshl_b32 s54, s52, 2
    s_add_u32 s54, s54, s{SW3}             ; tt
    s_and_b32 s55, s53, 1
    s_lshl_b32 s55, s55, 3                 ; colshift
    s_mov_b32 s{SX+2}, {2048*896:#x}
    s_mov_b32 s{SX+3}, 0x00020000
    s_mov_b32 s{SWQ+2}, {448*2688:#x}
    s_mov_b32 s{SWQ+3}, 0x00020000
    v_lshrrev_b32 v2, 3, v1
    v_mul_u32_u24 v2, 896, v2
    v_lshrrev_b32 v3, 4, v1
    v_and_b32 v9, 7, v1
    v_xor_b32 v3, v3, v9
    v_lshl_add_u32 v2, v3, 4, v2
    v_xor_b32 v3, 64, v2
    s_mul_i32 s56, s54, {32*896}
    s_lshl_b32 s57, s{SW3}, 12
    """)
    for u in range(3):
        a(f"""
        v_add_u32 v9, {64*u}, v1
        v_mul_u32_u24 v10, 43691, v9
        v_lshrrev_b32 v10, 19, v10
        v_mul_u32_u24 v11, 12, v10
        v_sub_u32 v11, v9, v11
        v_min_u32 v11, 10, v11
        v_mul_u32_u24 v10, 2688, v10
        v_lshl_add_u32 v{16+u}, v11, 4, v10
        """)
    magic = (65536 + ROTG - 1) // ROTG
    assert all((i * magic) >> 16 == i // ROTG for i in range(32))
    a(f"""
    s_mul_i32 s58, s53, 168
    s_sub_u32 s58, s58, s55
    s_mul_i32 s59, s{SW3}, {16*2688}
    s_add_u32 s58, s58, s59
    s_mul_i32 s59, s{SW3}, 3072
    s_add_u32 s59, s59, 16384
    s_mul_i32 s46, s6, {magic}
    s_lshr_b32 s46, s46, 16
    s_mul_i32 s46, s46, {ROTG}
    s_sub_u32 s46, s6, s46                 ; i mod G
    s_mul_i32 s46, s46, {(7*256)//ROTG}
    s_lshr_b32 s46, s46, 8                 ; first chunk
    s_mul_i32 s47, s5, {E("XR1", 1)}
    s_add_u32 s46, s46, s47
    s_mul_i32 s47, s46, 9363
    s_lshr_b32 s47, s47, 16
    s_mul_i32 s47, s47, 7
    s_sub_u32 s46, s46, s47
    s_mov_b32 s47, 0
    s_waitcnt lgkmcnt(0)
    s_mov_b64 s[{SX}:{SX+1}], s[64:65]
    s_mov_b64 s[{SWQ}:{SWQ+1}], s[66:67]
    s_cmp_lt_u32 s{SW}, 4
    s_cbranch_scc1 L_compute
    """)

def common_setup(a):
    for d, nb in ((SWO, 448*896), (SWS, WS_BYTES), (SG, 448*3584), (SU, 448*3584), (SD, 1792*896), (SOUT, 2048*896), (SDBG, 256)):
        a(f"s_mov_b32 s{d+2}, {nb:#x}\ns_mov_b32 s{d+3}, 0x00020000")
    for d, src in ((SWO, 68), (SG, 72), (SU, 74), (SD, 76), (SOUT, 78), (SDBG, 80), (SWS, 82)):
        a(f"s_mov_b64 s[{d}:{d+1}], s[{src}:{src+1}]")
    if DIAG:
        for i in range(0, 32, 2):
            a(f"s_mov_b64 s[{64+i}:{65+i}], 0")
        a("s_mov_b32 s64, s100")
    a(f"""
    v_and_b32 v12, 31, v1                  ; t
    v_lshrrev_b32 v13, 5, v1               ; hf
    v_mov_b32 v15, 0x3f803f80
    """)

def p1_adv(a):
    a(f"""
    s_add_u32 s46, s46, 1
    s_cmp_eq_u32 s46, 7
    s_cselect_b32 s46, 0, s46
    s_add_u32 s47, s47, 28672
    s_cmp_eq_u32 s47, {5*28672}
    s_cselect_b32 s47, 0, s47
    """)

def p1_issue(a):
    a(f"""
    s_lshl_b32 s60, s46, 7
    s_add_u32 s60, s60, s56
    s_add_u32 m0, s57, s47
    s_mul_i32 s61, s46, {4*16*2688}
    """)
    for q in range(4):
        a(f"buffer_load_dwordx4 v{2+(q&1)}, {sr(SX)}, s60 offen lds")
        if q < 3: a("s_add_u32 m0, m0, 1024\ns_add_u32 s60, s60, 7168")
    a(f"s_add_u32 m0, s59, s47\ns_add_u32 s61, s61, s58")
    for u in range(3):
        a(f"buffer_load_dwordx4 v{16+u}, {sr(SWQ)}, s61 offen lds")
        if u < 2: a("s_add_u32 m0, m0, 1024")
    p1_adv(a)

def rebase_ops(c, regs):
    d = 28672 if c % 5 else -4 * 28672
    return [f"v_add_u32 v{r}, {d & 0xffffffff:#x}, v{r}" for r in regs]

def p1_compute(a):
    ACC = 16; WA = 64; XF = 100; CSA = 112; SEL = 124; WAD = 128
    common_setup(a)
    a(f"""
    v_bfe_u32 v14, v12, 1, 3
    v_xor_b32 v14, v14, v13
    v_lshlrev_b32 v14, 4, v14
    v_lshl_add_u32 v14, v12, 7, v14
    s_lshl_b32 s61, s{SW3}, 5
    v_xor_b32 v14, s61, v14
    v_add_u32 v4, s57, v14
    v_xor_b32 v5, 32, v4
    v_xor_b32 v6, 64, v4
    v_xor_b32 v7, 96, v4
    v_bfe_u32 v9, v1, 4, 1                 ; ch
    v_bfe_u32 v10, v1, 2, 2                ; r
    v_lshl_add_u32 v10, v13, 3, v10
    v_mul_u32_u24 v10, 192, v10
    v_lshl_add_u32 v10, v9, 5, v10
    v_and_b32 v11, 3, v1
    v_lshl_add_u32 v10, v11, 3, v10
    """)
    for i in range(4):
        a(f"""
        s_xor_b32 s61, s{SW3}, {i}
        s_mul_i32 s61, s61, 3072
        s_add_u32 s61, s61, s55
        s_add_u32 s61, s61, 16384
        v_add_u32 v{WAD+i}, s61, v10
        """)
    p1_adv(a)
    if E('SCH1', 1) == 0: p1_adv(a)
    p1_issue(a)
    if E("FPRE", 1):
        a(f"""
        s_cmp_lg_u32 s{SW}, 0
        s_cbranch_scc1 L_p1_nofp
        s_lshl_b32 s60, s2, 10
        s_add_u32 s60, s60, {FA}
        v_lshl_add_u32 v9, v1, 7, s60
        s_lshl_b32 s60, s5, 2
        s_and_b32 s61, s6, 3
        s_add_u32 s60, s60, s61
        s_lshl_b32 s60, s60, 3
        s_lshr_b32 s61, s6, 2
        s_add_u32 s60, s60, s61
        s_lshl_b32 s60, s60, 7             ; (tb*8+fb)*128
        s_add_u32 s61, s60, {FB}
        v_writelane_b32 v9, s61, 6
        s_add_u32 s61, s60, {FD}
        v_writelane_b32 v9, s61, 7
        s_lshl_b32 s61, s2, 7
        s_add_u32 s61, s61, {FC}
        v_writelane_b32 v9, s61, 8
        s_mov_b64 exec, 0x1ff
        buffer_load_dword v251, v9, {sr(SWS)}, 0 offen sc1
        s_mov_b64 exec, -1
L_p1_nofp:
        """)
    for r in range(4): a(f"v_mov_b32 v{SEL+r}, 0")
    setexec(a, 0x0002000100020001)
    for r in range(4): a(f"v_mov_b32 v{SEL+r}, v15")
    a(f"""
    s_mov_b64 exec, -1
    s_lshl_b32 s60, s{SW3}, 9
    s_add_u32 s60, s60, {CSP}
    v_lshl_add_u32 v132, v1, 2, s60
    v_lshlrev_b32 v2, 4, v1                ; lane*16
    s_lshl_b32 s56, s{SW3}, 8
    s_add_u32 s56, s56, {AUX1}
    v_lshl_add_u32 v133, v12, 2, s56
    v_lshl_add_u32 v134, v13, 4, s56
    v_lshlrev_b32 v135, 4, v13
    v_add_u32 v135, {CS1}, v135
    v_lshlrev_b32 v136, 2, v12
    v_add_u32 v136, {CS1}, v136
    v_mov_b32 v14, {KN1}
    v_mov_b32 v228, -1
    v_mov_b32 v229, 0
    v_mov_b32 v230, 0
    v_mov_b32 v231, -1
    v_mov_b32 v232, 0
    s_mov_b32 exec_lo, 0
    v_mov_b32 v228, 0
    v_mov_b32 v229, v15                    ; K pad
    v_mov_b32 v230, 0xffff
    s_mov_b32 exec_lo, 0xf0000000
    s_mov_b32 exec_hi, 0xf0000000
    v_mov_b32 v231, 0                      ; V keep
    s_mov_b32 exec_lo, 0x10000000
    s_mov_b32 exec_hi, 0x10000000
    v_mov_b32 v232, v15
    s_mov_b64 exec, -1
    s_mul_i32 s60, s53, 3
    """)
    for j in range(3):
        a(f"""
        s_add_u32 s61, s60, {j}
        s_and_b32 s62, s61, 15
        s_lshl_b32 s62, s62, 6
        s_add_u32 s62, s62, s54
        s_lshl_b32 s{57+j}, s62, 11
        s_lshl_b32 s62, s62, 12
        s_add_u32 s62, s62, {KVF}
        s_cmp_ge_u32 s61, 16
        s_cselect_b32 s{57+j}, s62, s{57+j}
        s_add_u32 s62, s62, 2048
        s_cmp_ge_u32 s61, 32
        s_cselect_b32 s{57+j}, s62, s{57+j}
        """)
    def reads(ks):
        c, i = divmod(ks, 4)
        pre = []
        if i == 0 and c in (2, 4, 5):
            d = {2: 2*28672, 4: 2*28672, 5: -4*28672}[c]
            pre = [f"v_add_u32 v{r}, {d & 0xffffffff:#x}, v{r}" for r in (4, 5, 6, 7, WAD, WAD+1, WAD+2, WAD+3)]
        so = 28672 if c in (1, 3, 6) else 0
        buf = WA + 12 * (ks % 3)
        L = [f"ds_read_b128 {vr(XF+4*(ks%3))}, v{4+i} offset:{so}"]
        for j in range(3):
            for u in range(2):
                L.append(f"ds_read_b64_tr_b16 v[{buf+4*j+2*u}:{buf+4*j+2*u+1}], v{WAD+i} offset:{so+u*768+j*56}")
        return pre, L
    a(f"""
    s_cmp_eq_u32 s53, 10
    s_cbranch_scc1 L_p1_v1
    s_cmp_gt_u32 s53, 10
    s_cbranch_scc1 L_p1_v2
    """)
    QS = f2u(28 ** -0.5 * math.log2(math.e))
    MEAN, RSTD, CS, P0 = 64, 80, 140, 204
    pk = lambda b: f"v[{b}:{b+1}]"
    def epilogue(types):
        n = 0
        if "Q" in types or "K" in types:
            a("ds_read_b32 v10, v133\nds_read_b32 v11, v133 offset:128"); n += 2
        for j in range(3):
            if types[j] != "V":
                for q in range(4): a(f"ds_read_b128 {vr(CS+16*j+4*q)}, v135 offset:{128*j+32*q}")
                n += 4
        if "V" in types:
            if n: a("s_waitcnt lgkmcnt(4)")
            for j in range(3):
                if types[j] == "V": a(f"ds_read_b32 v{100+2*j}, v136 offset:{128*j}")
            for q in range(4):
                a(f"ds_read_b128 {vr(MEAN+4*q)}, v134 offset:{32*q}\nds_read_b128 {vr(RSTD+4*q)}, v134 offset:{128+32*q}")
        st = lambda j, h: f"buffer_store_dwordx4 {vr(P0+8*j+4*h)}, v2, {sr(SWS)}, s{57+j} offen offset:{1024*h} sc1"
        SC = {"Q": 188, "K": 196}
        if n:
            a(f"s_waitcnt lgkmcnt({12 if 'V' not in types else 13})")
            for t in sorted(set(types) - {"V"}):
                b = SC[t]
                a(f"""
                {f"v_mul_f32 v{b}, {QS:#x}, v11" if t == "Q" else f"v_mov_b32 v{b}, v11"}
                v_mul_f32 v{b+2}, -v10, v{b}
                v_mov_b32 v{b+1}, v{b}
                v_mov_b32 v{b+3}, v{b+2}
                """.replace("v_mul_f32 v%d, -v10" % (b+2), "v_mul_f32_e64 v%d, -v10" % (b+2)))
        carry = []
        for j in range(3):
            acc = ACC + 16*j; P = P0 + 8*j; t = types[j]
            S1 = []; S2 = []
            if t == "V":
                S1 += ["s_waitcnt lgkmcnt(0)", f"v_sub_f32 v{100+2*j}, 0, v{100+2*j}", f"v_mov_b32 v{101+2*j}, v{100+2*j}"]
                S1 += [f"v_pk_fma_f32 {pk(acc+r)}, {pk(MEAN+r)}, {pk(100+2*j)}, {pk(acc+r)}" for r in range(0, 16, 2)]
                S1 += [f"v_pk_mul_f32 {pk(acc+r)}, {pk(acc+r)}, {pk(RSTD+r)}" for r in range(0, 16, 2)]
                S1 += [f"v_cvt_pk_bf16_f32 v{P+r}, v{acc+2*r}, v{acc+2*r+1}" for r in range(8)]
                S1 += [f"v_and_or_b32 v{P+r}, v{P+r}, v231, v232" for r in range(4)] + [st(j, 0)]
                S1 += [f"v_and_or_b32 v{P+r}, v{P+r}, v231, v232" for r in range(4, 8)] + [st(j, 1)]
            else:
                b = SC[t]
                S1 += [f"v_pk_mul_f32 {pk(acc+r)}, {pk(acc+r)}, {pk(b)}" for r in range(0, 16, 2)]
                S1 += [f"s_waitcnt lgkmcnt({8 if 'V' not in types else 13})" if j == 0 else "s_waitcnt lgkmcnt(0)" if j == 1 else ""]
                S1 += [f"v_pk_fma_f32 {pk(acc+r)}, {pk(CS+16*j+r)}, {pk(b+2)}, {pk(acc+r)}" for r in range(0, 16, 2)]
                S1 += [f"v_cvt_pk_bf16_f32 v{P+r}, v{acc+2*r}, v{acc+2*r+1}" for r in range(4)] + [st(j, 0)]
                S1 += [f"v_cvt_pk_bf16_f32 v{P+r}, v{acc+2*r}, v{acc+2*r+1}" for r in range(4, 8)]
                S1 += [f"v_and_b32 v{P+7}, v{P+7}, v228"]
                if t == "K": S1 += [f"v_and_or_b32 v{P+6}, v{P+6}, v228, v229", st(j, 1)]
                else: S1 += [f"v_and_b32 v{P+6}, v{P+6}, v228"]
                n0, n1 = 234 + 2*j, 235 + 2*j
                S2 += [f"v_dot2_f32_bf16 v{n0}, v{P}, v{P}, 0", f"v_dot2_f32_bf16 v{n1}, v{P+1}, v{P+1}, 0"]
                S2 += [f"v_dot2_f32_bf16 v{n0+(r&1)}, v{P+r}, v{P+r}, v{n0+(r&1)}" for r in range(2, 8)]
                S2 += ["", "", f"v_add_f32 v{n0}, v{n0}, v{n1}", f"v_mov_b32 v{n1}, v{n0}", "", f"v_permlane32_swap_b32 v{n0}, v{n1}", f"v_add_f32 v{n0}, v{n0}, v{n1}"]
                if t == "Q":
                    S2 += [f"v_sqrt_f32 v{n0}, v{n0}", f"v_mul_f32 v{n0}, {f2u(1.0+1.0/128):#x}, v{n0}", f"v_add_u32 v{n0}, 0xffff, v{n0}",
                           f"v_lshrrev_b32 v{n0}, 16, v{n0}", f"v_and_or_b32 v{P+6}, v{n0}, v230, v{P+6}", st(j, 1)]
                else:
                    S2 += [f"ds_max_u32 v14, v{n0} offset:{4*j}"]
            for ins in S1:
                a(ins)
                if carry: a(carry.pop(0))
            a.emit(*carry); carry = S2
        a.emit(*carry)
    bars0 = list(a.bars)
    for var, isv in enumerate(((0,0,0), (0,0,1), (1,1,1))):
        a.bars = list(bars0)
        a(f"L_p1_v{var}:")
        a.bar("p1s0")
        a.stamp(1)
        a.emit(*reads(0)[1]); a.emit(*reads(1)[1])
        LATE = E("LATE1", 7)
        for ks in range(28):
            st_next = (ks + 2) // 4
            if ks % 4 == 2 and ks < 26 and st_next < LATE:
                if ks == (2 if E('SCH1', 1) else 6): a(f"s_waitcnt vmcnt({1 if E('FPRE', 1) else 0})" if False else "s_waitcnt vmcnt(0)")
                a.bar(f"p1s{st_next}")
            if ks % 4 == 0 and ks // 4 >= LATE:
                a.bar(f"p1s{ks//4}")
                pre, rd = reads(ks); a.emit(*pre); a.emit(*rd); a.emit(*reads(ks + 1)[1])
            ahead = ks < 26 and not (st_next >= LATE and st_next != ks // 4)
            pre, rd = reads(ks + 2) if ahead else ([], [])
            buf = WA + 12 * (ks % 3)
            a.emit(*pre)
            prev_ahead = (ks + 1 < 28) and not ((ks + 1) // 4 >= LATE and (ks + 1) // 4 != ks // 4)
            if ks < 27: a(f"s_waitcnt lgkmcnt({13 if ks == 26 else 7 if prev_ahead else 0})")
            for j in range(3):
                A, B = vr(buf + 4*j), vr(XF + 4*(ks % 3))
                if isv[j]: A, B = B, A
                C = "0" if ks == 0 else vr(ACC + 16*j, 16)
                a(f"v_mfma_f32_32x32x16_bf16 {vr(ACC+16*j,16)}, {A}, {B}, {C}")
                a.emit(*rd[[0,3,5][j]:[3,5,7][j]])
            if ks % 4 == 0:
                for j in range(3):
                    a(f"v_mfma_f32_16x16x32_bf16 {vr(CSA+4*j)}, {vr(SEL)}, {vr(buf+4*j)}, {'0' if ks == 0 else vr(CSA+4*j)}")
            if ks == 25:
                a("s_mov_b64 exec, 0xffff")
                for j in range(3):
                    a(f"ds_write_b32 v132, v{CSA+4*j} offset:{128*j}\nds_write_b32 v132, v{CSA+4*j+1} offset:{128*j+64}")
                a("s_mov_b64 exec, -1")
            if ks == 26:
                a("s_waitcnt lgkmcnt(0)")
                a.bar("p1C")
        a.stamp(2)
        if var == 0:
            a("s_cmp_lt_u32 s53, 5\ns_cbranch_scc1 L_p1_eQQQ\ns_cmp_eq_u32 s53, 5\ns_cbranch_scc1 L_p1_eQKK")
            eps = ("KKK", "QQQ", "QKK")
        else:
            eps = (("KKV",), ("VVV",))[var - 1]
        bars1 = list(a.bars)
        for ep in eps:
            a.bars = list(bars1)
            a(f"L_p1_e{ep}:")
            a.bar("p1S")
            a.stamp(3)
            epilogue(ep)
            if ep != "VVV": a("s_branch L_p1_done")
    a("L_p1_done:")
    a.stamp(4)

def p1_helper(a):
    XF = 96; G = 68; SM = 76; ONES = 88; SEL = 84; CSA = 64
    vm = VM()
    SCH = E("SCH1", 1)
    if SCH == 0:
        a("L_h1_il:")
        p1_issue(a)
        a(f"s_cmp_lt_u32 s47, {2*28672}\ns_cbranch_scc1 L_h1_il")
        p1_adv(a)
        vm.add("s0", 7); vm.add("s1", 7)
        sched = {0: [3], 1: [4], 2: [5], 3: [6]}
    else:
        p1_issue(a); p1_adv(a)
        vm.add("s0", 7)
        sched = [None, {0: [2], 1: [3, 4], 2: [5], 3: [6]}, {0: [2, 3], 1: [4], 2: [5], 3: [6]}, {0: [2], 1: [3], 2: [4, 5], 3: [6]}][SCH]
    common_setup(a)
    a.stamp(1)
    a(f"""
    s_cmp_lg_u32 s{SW}, 4
    s_cbranch_scc1 L_h_nononce
    s_cmp_lg_u32 s2, 0
    s_cbranch_scc1 L_h_nononce
    s_memrealtime s[{NON}:{NON+1}]
    s_waitcnt lgkmcnt(0)
    s_or_b32 s{NON+1}, s{NON+1}, 0x80000000
    v_mov_b32 v10, s{NON}
    v_mov_b32 v11, s{NON+1}
    v_mov_b32 v9, 0
    s_mov_b64 exec, 1
    buffer_store_dwordx2 v[10:11], v9, {sr(SDBG)}, 0 offen sc1
    s_mov_b64 exec, -1
L_h_nononce:
    v_and_b32 v9, 15, v1
    v_lshrrev_b32 v10, 1, v9
    v_lshrrev_b32 v11, 4, v1
    v_xor_b32 v10, v10, v11
    v_lshlrev_b32 v10, 4, v10
    v_lshl_add_u32 v10, v9, 7, v10
    v_add_u32 v4, s57, v10
    v_xor_b32 v5, 64, v4
    v_lshlrev_b32 v14, 2, v11
    v_add_u32 v14, {KN1}, v14
    v_mov_b32 v10, 0
    ds_write_b32 v14, v10
    s_and_b32 s63, s{SW}, 1
    s_lshl_b32 s60, s{SW3}, 7
    v_lshl_add_u32 v8, v12, 2, s60
    v_add_u32 v19, {CS1}, v8
    v_add_u32 v8, {CSP}, v8
    s_lshl_b32 s60, s{SW3}, 8
    s_add_u32 s60, s60, {AUX1}
    v_lshl_add_u32 v9, v9, 2, s60
    {"s_setprio 3" if E("HPRIO", 1) else ""}
    """)
    for r in range(4): a(f"v_mov_b32 v{ONES+r}, v15")
    STAG = E("STAG", 0)
    def work(c):
        xf = XF + 16 * (c & 1)
        for i in range(4):
            th, kh = i & 1, i >> 1
            z = (c == 0 and kh == 0)
            a(f"v_mfma_f32_16x16x32_bf16 {vr(G+4*th)}, {vr(xf+4*i)}, {vr(xf+4*i)}, {'0' if z else vr(G+4*th)}")
            a(f"v_mfma_f32_16x16x32_bf16 {vr(SM+4*th)}, {vr(ONES)}, {vr(xf+4*i)}, {'0' if z else vr(SM+4*th)}")
    for c in range(7):
        a(vm.wait(f"s{c}"))
        a("s_waitcnt lgkmcnt(0)")
        if c in (0, 3, 6): a.stamp(2 + c // 3)
        a.bar(f"p1s{c}")
        if c > 0: a.emit(*rebase_ops(c, (4, 5)))
        xf = XF + 16 * (c & 1)
        for i in range(4):
            a(f"ds_read_b128 {vr(xf+4*i)}, v{4+(i>>1)} offset:{(i&1)*2048}")
        for n in sched.get(c, []):
            p1_issue(a)
            vm.add(f"s{n}", 7)
        if 0 < c <= 4: work(c - 1)
        if c in (4, 5):
            a("s_waitcnt lgkmcnt(0)")
            work(c)
        n = c + 3
        if n <= 6:
            if n == 6 and TF:
                a(f"""
                s_and_b32 s48, s5, 1
                s_lshl_b32 s48, s48, 3
                s_and_b32 s60, s6, 7
                s_add_u32 s48, s48, s60
                s_lshl_b32 s60, s{SW3}, 4
                s_add_u32 s48, s48, s60
                s_cmp_ge_u32 s48, 28
                s_cbranch_scc1 L_h1_notf
                s_lshr_b32 s49, s5, 1
                s_lshl_b32 s49, s49, 2
                s_lshr_b32 s60, s6, 3
                s_add_u32 s49, s49, s60            ; cb4
                s_mul_i32 s50, s48, {16*3584}
                s_mul_i32 s60, s49, 224
                s_and_b32 s61, s60, 63
                s_sub_u32 s60, s60, s61
                s_add_u32 s50, s50, s60
                s_lshl_b32 s51, s{SW3}, 13
                s_add_u32 s51, s51, {TSTG}
                s_add_u32 s61, s61, s51
                v_lshrrev_b32 v10, 4, v1
                v_mul_u32_u24 v10, {4*3584}, v10
                v_and_b32 v11, 15, v1
                v_lshl_add_u32 v20, v11, 4, v10
                v_bfe_u32 v10, v1, 2, 2
                v_lshlrev_b32 v10, 10, v10
                v_lshl_add_u32 v10, v13, 9, v10
                v_and_b32 v11, 1, v1
                v_lshl_add_u32 v10, v11, 4, v10
                v_bfe_u32 v11, v1, 4, 1
                v_lshl_add_u32 v10, v11, 3, v10
                v_bfe_u32 v11, v1, 1, 1
                v_lshl_add_u32 v10, v11, 12, v10
                v_add_u32 v6, s61, v10
                """)
                for i in range(4):
                    a(f"""
                    s_add_u32 m0, s51, {i*1024}
                    s_nop 0
                    buffer_load_dwordx4 v20, {sr(SG)}, s50 offen lds
                    s_add_u32 m0, s51, {i*1024+4096}
                    s_nop 0
                    buffer_load_dwordx4 v20, {sr(SU)}, s50 offen lds
                    s_add_u32 s50, s50, 3584
                    """)
                a("s_branch L_h1_tf\nL_h1_notf:")
                for i in range(8): a(f"buffer_load_dword v22, v1, {sr(SDBG)}, 0 offen offset:512")
                a("L_h1_tf:")
                vm.add("t", 8)
    a("s_waitcnt lgkmcnt(0)")
    work(6)
    for r in range(1, 4):
        setexec(a, sum(1 << (20*g + r) for g in range(4)))
        a(f"v_mov_b32 v{G}, v{G+r}\nv_mov_b32 v{G+4}, v{G+4+r}")
    setexec(a, sum(15 << (20*g) for g in range(4)))
    for th in range(2):
        mn, sq = SM + 4*th, G + 4*th
        a(f"""
        v_mul_f32 v{mn}, {f2u(1.0/448):#x}, v{mn}
        v_mul_f32 v{sq}, {f2u(1.0/448):#x}, v{sq}
        v_fma_f32 v{sq}, -v{mn}, v{mn}, v{sq}
        v_max_f32 v{sq}, 0, v{sq}
        v_add_f32 v{sq}, {f2u(1e-5):#x}, v{sq}
        v_rsq_f32 v{sq}, v{sq}
        ds_write_b32 v9, v{mn} offset:{64*th}
        s_nop 0
        ds_write_b32 v9, v{sq} offset:{128+64*th}
        """)
    a("s_mov_b64 exec, -1")
    a.bar("p1C")
    for w in range(4): a(f"ds_read_b32 v{CSA+w}, v8 offset:{512*w}")
    a(f"""
    s_waitcnt lgkmcnt(0)
    v_add_f32 v{CSA}, v{CSA}, v{CSA+1}
    v_add_f32 v{CSA+2}, v{CSA+2}, v{CSA+3}
    v_add_f32 v{CSA}, v{CSA}, v{CSA+2}
    ds_write_b32 v19, v{CSA}
    s_waitcnt lgkmcnt(0)
    s_setprio 0
    """)
    a.bar("p1S")
    a(f"""
    v_mov_b32 v9, 0
    s_mov_b32 s60, 0
L_h_nl:
    buffer_load_dwordx2 v[24:25], v9, {sr(SDBG)}, 0 offen sc1
    s_add_u32 s60, s60, 1
    s_waitcnt vmcnt(0)
    v_readfirstlane_b32 s{NON}, v24
    v_readfirstlane_b32 s{NON+1}, v25
    s_cmp_gt_u32 s60, {POLL_MAX}
    s_cbranch_scc1 L_h_gotnonce
    s_cmp_eq_u32 s{NON+1}, 0
    s_cbranch_scc1 L_h_nl
L_h_gotnonce:
    """)
    if TF:
        a("s_cmp_ge_u32 s48, 28\ns_cbranch_scc1 L_h1_notf2")
        for j in range(7):
            for u in range(2):
                a(f"ds_read_b64_tr_b16 v[{36+4*j+2*u}:{37+4*j+2*u}], v6 offset:{u*256+j*32}")
        a(f"""
        s_mul_i32 s50, s49, {28*SLOT}
        s_mul_i32 s60, s48, {SLOT}
        s_add_u32 s50, s50, s60
        s_add_u32 s50, s50, {WGU}
        s_add_u32 s51, s50, 4096
        v_lshlrev_b32 v2, 4, v1
        s_waitcnt lgkmcnt(0)
        """)
        if E("TST", 0) == 0: tstores(a)
        a("L_h1_notf2:")
    a(f"""
    s_mul_i32 s60, s53, 3
    v_lshrrev_b32 v9, 4, v1
    v_add_u32 v9, s60, v9                  ; p
    v_and_b32 v10, 15, v9                  ; h
    v_lshrrev_b32 v9, 4, v9                ; type
    v_lshlrev_b32 v9, 8, v9
    v_lshl_add_u32 v9, v10, 10, v9
    v_and_b32 v10, 15, v1
    v_lshl_add_u32 v18, v10, 14, v9
    s_lshl_b32 s62, s52, 4
    s_add_u32 s62, s62, {FA}
    v_mov_b32 v27, 0
    s_lshl_b32 s60, s2, 10
    s_add_u32 s60, s60, {FA+256}
    v_lshl_add_u32 v17, v1, 4, s60
    s_lshr_b32 s61, s2, 4
    s_lshl_b32 s61, s61, 4
    s_add_u32 s60, s60, s61
    s_sub_u32 s60, s60, 256
    s_mov_b32 exec_lo, 0
    v_mov_b32 v17, s60
    s_mov_b32 exec_lo, -1
    """)

def tstores(a):
    for j in range(7):
        a(f"buffer_store_dwordx4 {vr(36+4*j)}, v2, {sr(SWS)}, s{50 if j < 4 else 51} offen offset:{(j%4)*1024} sc1")

def publish(a, tag, code, mask):
    a(f"""
    s_cmp_lg_u32 s{SW}, 4
    s_cbranch_scc1 L_pub_{tag}
    {code}
    v_mov_b32 v10, s{NON}
    v_mov_b32 v11, s{NON+1}
    s_mov_b64 exec, {mask:#x}
    buffer_store_dwordx2 v[10:11], v9, {sr(SWS)}, s60 offen sc1
    s_mov_b64 exec, -1
L_pub_{tag}:
    """)

def pub14(r, slot, base):
    return f"""v_lshlrev_b32 v9, 7, v1
    s_lshl_b32 s60, s{r}, 11
    s_lshl_b32 s61, s{slot}, 3
    s_add_u32 s60, s60, s61
    s_add_u32 s60, s60, {base}"""

def poll(a, tag, vaddr, mask, wide=False, dst=10, pipe=False, backoff=0):
    n = 4 if wide else 2
    ld = lambda d: f"buffer_load_dwordx{n} {vr(d, n)}, v{vaddr}, {sr(SWS)}, 0 offen sc1"
    setexec(a, mask)
    if not pipe:
        a(f"""
        s_mov_b32 s60, 0
L_poll_{tag}:
        {ld(dst)}
        s_add_u32 s60, s60, 1
        s_waitcnt vmcnt(0)
        v_cmp_ne_u64 vcc, s[{NON}:{NON+1}], v[{dst}:{dst+1}]
        s_cmp_gt_u32 s60, {POLL_MAX}
        s_cbranch_scc1 L_polld_{tag}
        {f"s_cbranch_vccz L_polld_{tag}" if backoff else ""}
        {f"s_sleep {backoff}" if backoff else ""}
        s_cbranch_vccnz L_poll_{tag}
L_polld_{tag}:
        s_mov_b64 exec, -1
        """)
        return
    a(f"""
    s_mov_b32 s60, 0
    v_mov_b32 v{dst}, 0
    v_mov_b32 v{dst+1}, 0
L_poll_{tag}:
    {ld(dst)}
    s_add_u32 s60, s60, 1
    s_sleep 4
    s_waitcnt vmcnt(8)
    v_cmp_ne_u64 vcc, s[{NON}:{NON+1}], v[{dst}:{dst+1}]
    s_cmp_gt_u32 s60, {POLL_MAX}
    s_cbranch_scc1 L_polld_{tag}
    s_cbranch_vccnz L_poll_{tag}
L_polld_{tag}:
    s_mov_b64 exec, -1
    """)

def p2_ids(a):
    a("s_and_b32 s52, s2, 15\ns_lshr_b32 s53, s2, 4")

def late_ids(a):
    a(f"""
    s_lshl_b32 s47, s5, 2
    s_and_b32 s46, s6, 3
    s_add_u32 s47, s47, s46                ; tb
    s_lshr_b32 s46, s6, 2                  ; fb
    s_and_b32 s56, s5, 1
    s_lshl_b32 s56, s56, 3
    s_and_b32 s57, s6, 7
    s_add_u32 s56, s56, s57                ; rb
    s_lshr_b32 s57, s5, 1
    s_lshl_b32 s57, s57, 2
    s_lshr_b32 s60, s6, 3
    s_add_u32 s57, s57, s60                ; cb
    """)

def p2_compute(a):
    Q = 16; O = 48; S = [112, 128]; P = 144; KV = 152; RA = 216
    pk = lambda b: f"v[{b}:{b+1}]"
    p2_ids(a)
    a(f"""
    s_lshl_b32 s54, s52, 6                 ; h*64
    s_lshl_b32 s55, s{SW3}, 4
    s_add_u32 s55, s55, s54
    s_lshl_b32 s55, s55, 12
    s_add_u32 s55, s55, {KVF}
    s_add_u32 s{SKV}, s{SWS}, s55
    s_addc_u32 s{SKV+1}, s{SWS+1}, 0
    s_mov_b32 s{SKV+2}, 65536
    s_mov_b32 s{SKV+3}, 0x00020000
    s_lshl_b32 s55, s53, 2
    s_add_u32 s55, s55, s54                ; h*64 + qb*4
    v_lshlrev_b32 v3, 2, v1
    v_mov_b32 v9, {AUX2}
    s_mov_b32 s62, 0                       ; pass
    """)
    for j in range(4):
        a(f"""
        s_add_u32 s60, s{SW3}, {j+1}
        s_and_b32 s60, s60, 3
        s_add_u32 s{56+j}, s60, s55
        s_lshl_b32 s{56+j}, s{56+j}, 11
        s_mul_i32 s60, s60, 12288
        s_add_u32 s60, s60, {RREG + (j*4096 if j < 3 else 0)}
        v_add_u32 v{RA+j}, s60, v2
        """)
    a("s_waitcnt vmcnt(0) lgkmcnt(0)")
    a.stamp(5)
    a.bar("p1X")
    a("s_mov_b32 s63, s58")
    p3_addr(a)
    a(f"s_mov_b32 s58, s63\nv_mov_b32 v9, {AUX2}")
    def zero():
        for r in range(64): a(f"v_mov_b32 v{O+r}, 0")
        for r in range(4): a(f"v_mov_b32 v{P+4+r}, 0\nv_mov_b32 v{KV+48+12+r}, 0")
    if DRY & 2:
        a("s_mov_b32 s61, 0")
        dry_call(a, "2", 4)
    a.bar("p2P")
    a.stamp(6)
    def kvl(t):
        kt, f = divmod(t, 4)
        return f"buffer_load_dwordx4 {vr(KV+16*kt+4*f)}, v2, {sr(SKV)}, s61 offen offset:{f*1024} sc1"
    def ql(j):
        a(f"buffer_load_dwordx4 {vr(Q+8*j+4)}, v2, {sr(SWS)}, s{56+j} offen offset:1024 sc1")
        a(f"buffer_load_dwordx4 {vr(Q+8*j)}, v2, {sr(SWS)}, s{56+j} offen sc1")
    KG = E("KVG", 4)
    a(f"ds_read_b32 v5, v9 offset:4\ns_and_b32 s61, s53, {KG-1}\ns_mul_i32 s61, s61, {65536//KG}")
    ql(0); a(kvl(0)); a(kvl(1)); ql(1); a(kvl(2)); a(kvl(3)); ql(2); ql(3)
    NPRE = E("NPRE", 6)
    adv = "s_add_u32 s61, s61, 4096\ns_and_b32 s61, s61, 0xffff"
    for t in range(4, NPRE):
        if t % 4 == 0: a(adv)
        a(kvl(t))
    def patch(j):
        return ["s_mov_b32 exec_lo, 0", f"v_lshlrev_b32 v6, 16, v{Q+8*j+6}", "v_mul_f32 v6, v5, v6", "v_add_u32 v6, 0x8000ffff, v6",
                f"v_lshrrev_b32 v{Q+8*j+6}, 16, v6", "s_mov_b32 exec_lo, -1"]
    a(f"s_waitcnt vmcnt({6+NPRE}) lgkmcnt(0)")
    a.emit(*patch(0))
    a(f"""
    s_waitcnt vmcnt({4+NPRE})
    v_mfma_f32_32x32x16_bf16 {vr(S[0],16)}, {vr(KV)}, {vr(Q)}, 0
    v_mfma_f32_32x32x16_bf16 {vr(S[0],16)}, {vr(KV+4)}, {vr(Q+4)}, {vr(S[0],16)}
    s_waitcnt vmcnt({NPRE-4})
    """)
    for j in (1, 2, 3): a.emit(*patch(j))
    a("s_branch L_p2_first" if False else "")
    a.stamp(7)
    def wr(j): return [f"ds_write_b128 v{RA+j}, {vr(O+16*j+4*q)} offset:{q*1024}" for q in range(4)]
    adv = "s_add_u32 s61, s61, 4096\ns_and_b32 s61, s61, 0xffff"
    def body(kind):
        last = kind == "last"; first = kind == "first"
        vm = VM()
        if first:
            for t in range(4, NPRE): vm.add(f"t{t}")
            todo = list(range(NPRE, 29))
        else:
            for t in range(13): vm.add(f"t{t}")
            todo = list(range(13, 16 if last else 29))
        def ld():
            if not todo: return
            t = todo.pop(0)
            if t % 4 == 0: a(adv)
            a(f"buffer_load_dwordx4 {vr(KV+16*((t//4)%4)+4*(t%4))}, v2, {sr(SKV)}, s61 offen offset:{(t%4)*1024} sc1")
            vm.add(f"t{t}")
        for u in range(16):
            kt, qi = divmod(u, 4)
            ktn, qn = divmod((u + 1) % 16, 4)
            ktp, qp = divmod((u - 1) % 16, 4)
            Sc, Sn = S[u & 1], S[(u + 1) & 1]
            e = lambda r: f"v_exp_f32 v{Sc+r}, v{Sc+r}"
            c = lambda r: f"v_cvt_pk_bf16_f32 v{P+r}, v{Sc+2*r}, v{Sc+2*r+1}"
            A = f"v_mfma_f32_32x32x16_bf16 {vr(Sn,16)}, {vr(KV+16*ktn)}, {vr(Q+8*qn)}, 0"
            B = f"v_mfma_f32_32x32x16_bf16 {vr(O+16*qp,16)}, {vr(KV+16*ktp+12)}, {vr(P+4)}, {vr(O+16*qp,16)}"
            C = f"v_mfma_f32_32x32x16_bf16 {vr(Sn,16)}, {vr(KV+16*ktn+4)}, {vr(Q+8*qn+4)}, {vr(Sn,16)}"
            D = f"v_mfma_f32_32x32x16_bf16 {vr(O+16*qi,16)}, {vr(KV+16*kt+8)}, {vr(P)}, {'0' if first and kt == 0 else vr(O+16*qi,16)}"
            W = ["", "", "", ""]
            gi = {"first": 0, "mid": 16, "last": 32}[kind] + u
            if DRY & 2 and gi % 12 == 0:
                if gi: a("s_cbranch_execz L_dry2_ret")
                a(f"L_dry2_{gi//12}:")
            if (last and u == 8) or (first and u == 3):
                if DRY & 2: a(f"s_cbranch_execz L_dry2s{gi}")
                a.bar("p2R0" if last else "p2Y")
                if DRY & 2: a(f"L_dry2s{gi}:")
            if last and u in (14, 15): W = wr(u - 14)
            fin = last and u == 15
            extra = lambda: first and todo and todo[0] < 13 + u
            if qi == 3 and not fin: a(vm.wait(f"t{4*(kt+1)+1}"))
            if not fin: a(A)
            if extra(): ld()
            a.emit(W[0], e(0), e(1), e(2), e(3), c(0), c(1))
            if qi == 1: a(vm.wait(f"t{4*kt+3}"))
            if not (first and u == 0): a(B)
            if extra(): ld()
            a.emit(W[1], e(4), e(5), e(6), e(7), c(2), c(3))
            if not fin: a(C)
            if todo and todo[0] <= 13 + u: ld()
            a.emit(W[2], e(8), e(9), e(10), e(11), c(4), c(5))
            if qi == 0: a(vm.wait(f"t{4*kt+2}"))
            a(D)
            if extra(): ld()
            a.emit(W[3], e(12), e(13), e(14), e(15), c(6), c(7))
        assert not todo
    a("L_p2_first:")
    body("first")
    a("s_mov_b32 s63, 0\nL_p2_loop:")
    body("mid")
    a(f"""
    s_add_u32 s63, s63, 1
    s_cmp_lt_u32 s63, 2
    {"s_cbranch_execz L_p2_lastb" if DRY & 2 else ""}
    s_cbranch_scc1 L_p2_loop
L_p2_lastb:
    """)
    body("last")
    a(f"v_mfma_f32_32x32x16_bf16 {vr(O+48,16)}, {vr(KV+48+12)}, {vr(P+4)}, {vr(O+48,16)}")
    a.emit(*wr(2))
    if DRY & 2: a("s_cbranch_execz L_dry2_ret")
    a(f"""
    s_lshl_b32 s60, s53, 2
    s_add_u32 s60, s60, s{SW3}
    s_lshl_b32 s60, s60, 15
    s_lshl_b32 s61, s52, 11
    s_add_u32 s60, s60, s61
    s_add_u32 s60, s60, {OF}
    v_mov_b32 v6, 0x1f800000
    v_mov_b32 v7, 0x5f800000
    s_waitcnt lgkmcnt(0)
    """)
    a.stamp(8)
    a.bar("p2R1")
    a.stamp(9)
    OW = O + 48
    for q in range(12):
        a(f"ds_read_b128 {vr(O+4*q)}, v{RA+3} offset:{q*1024}")
    for j in range(3):
        a(f"s_waitcnt lgkmcnt({8-4*j})")
        for r in range(0, 16, 2):
            a(f"v_pk_add_f32 {pk(OW+r)}, {pk(OW+r)}, {pk(O+16*j+r)}")
    a(f"""
    v_mov_b32 v10, v{OW+12}
    v_mov_b32 v11, v{OW+12}
    v_permlane32_swap_b32 v10, v11          ; v11 = l
    v_rcp_f32 v10, v11
    v_cmp_nge_f32 vcc, v11, v6
    v_cmp_gt_f32 s[58:59], v11, v7
    v_mov_b32 v11, v10
    """)
    for r in range(0, 16, 2):
        a(f"v_pk_mul_f32 {pk(OW+r)}, {pk(OW+r)}, v[10:11]")
    for r in range(8):
        a(f"v_cvt_pk_bf16_f32 v{P+r}, v{OW+2*r}, v{OW+2*r+1}")
    a(f"""
    buffer_store_dwordx4 {vr(P)}, v2, {sr(SWS)}, s60 offen sc1
    s_mov_b32 exec_lo, 0
    v_mov_b32 v{P+6}, 0
    v_mov_b32 v{P+7}, 0
    s_mov_b32 exec_lo, -1
    buffer_store_dwordx4 {vr(P+4)}, v2, {sr(SWS)}, s60 offen offset:1024 sc1
    s_or_b64 vcc, vcc, s[58:59]
    s_cbranch_scc0 L_p2_ok
    v_mov_b32 v10, 1
    ds_write_b32 v9, v10
L_p2_ok:
    """)
    a.stamp(10)
    p3_pre(a)
    a("s_waitcnt vmcnt(0) lgkmcnt(0)")
    a.bar("p2R2")
    a(f"""
    s_cmp_lg_u32 s62, 0
    s_cbranch_scc1 L_p2_done
    ds_read_b32 v10, v9
    s_waitcnt lgkmcnt(0)
    v_readfirstlane_b32 s60, v10
    s_cmp_eq_u32 s60, 0
    s_cbranch_scc1 L_p2_done
    s_mov_b32 s62, 1
    s_mov_b32 exec_lo, 0
    """)
    for j in range(4): a(f"v_mov_b32 v{Q+8*j+6}, 0")
    a("s_mov_b32 exec_lo, -1")
    for j in range(4): a(f"v_mov_b32 v{O+j}, 0xff800000")
    a(f"""
    s_mov_b32 s61, 0
L_p2_mx:
    buffer_load_dwordx4 {vr(KV)}, v2, {sr(SKV)}, s61 offen sc1
    buffer_load_dwordx4 {vr(KV+4)}, v2, {sr(SKV)}, s61 offen offset:1024 sc1
    s_waitcnt vmcnt(0)
    """)
    for j in range(4):
        a(f"""
        v_mfma_f32_32x32x16_bf16 {vr(S[0],16)}, {vr(KV)}, {vr(Q+8*j)}, 0
        v_mfma_f32_32x32x16_bf16 {vr(S[0],16)}, {vr(KV+4)}, {vr(Q+8*j+4)}, {vr(S[0],16)}
        """)
        for r in range(8):
            a(f"v_max3_f32 v{O+j}, v{S[0]+2*r}, v{S[0]+2*r+1}, v{O+j}")
    a("s_add_u32 s61, s61, 4096\ns_cmp_lt_u32 s61, 65536\ns_cbranch_scc1 L_p2_mx")
    for j in range(4):
        a(f"""
        v_mov_b32 v10, v{O+j}
        v_permlane32_swap_b32 v{O+j}, v10
        v_max_f32 v{O+j}, v{O+j}, v10
        s_add_u32 s60, s{SW3}, {j+1}
        s_and_b32 s60, s60, 3
        s_lshl_b32 s60, s60, 10
        s_add_u32 s60, s60, {RREG}
        v_add_u32 v{O+8+j}, s60, v3
        s_lshl_b32 s61, s{SW3}, 8
        v_add_u32 v10, s61, v{O+8+j}
        ds_write_b32 v10, v{O+j}
        """)
    a("s_waitcnt lgkmcnt(0)\ns_barrier")
    for j in range(4):
        for w in range(4):
            a(f"ds_read_b32 v{O+16+4*j+w}, v{O+8+j} offset:{256*w}")
        a("s_waitcnt lgkmcnt(0)")
    for j in range(4):
        b = O + 16 + 4*j
        a(f"""
        v_max3_f32 v10, v{b}, v{b+1}, v{b+2}
        v_max_f32 v10, v10, v{b+3}
        v_sub_f32 v10, 0, v10
        v_and_b32 v11, 0xffff0000, v10
        v_sub_f32 v14, v10, v11
        v_cvt_pk_bf16_f32 v10, v11, v14
        s_mov_b32 exec_lo, 0
        v_mov_b32 v{Q+8*j+6}, v10
        s_mov_b32 exec_lo, -1
        """)
    a(f"s_and_b32 s61, s53, {KG-1}\ns_mul_i32 s61, s61, {65536//KG}")
    for t in range(NPRE):
        if t and t % 4 == 0: a(adv)
        a(kvl(t))
    a(f"""
    s_waitcnt vmcnt(0)
    v_mfma_f32_32x32x16_bf16 {vr(S[0],16)}, {vr(KV)}, {vr(Q)}, 0
    v_mfma_f32_32x32x16_bf16 {vr(S[0],16)}, {vr(KV+4)}, {vr(Q+4)}, {vr(S[0],16)}
    s_nop 15
    s_branch L_p2_first
L_p2_done:
    """)
    a.stamp(11)

def gu_dma(a, n, tag, vm, thr=None):
    if not TF:
        for t in range(n):
            a(f"""
            s_mov_b32 m0, s59
            s_add_u32 s59, s59, {SLOT}
            buffer_load_dwordx4 v20, {sr(SG)}, s58 offen lds
            s_add_u32 m0, m0, 4384
            s_add_u32 s60, s58, {16*3584}
            buffer_load_dwordx4 v20, {sr(SU)}, s58 offen lds
            s_sub_u32 s61, s60, {28*16*3584}
            s_cmp_ge_u32 s60, {28*16*3584}
            s_cselect_b32 s58, s61, s60
            {f"s_waitcnt vmcnt({thr})" if thr is not None else ""}
            """)
        vm.add(tag, 2 * n)
        return
    n //= 4
    for t in range(n):
        a(f"""
        s_mul_i32 s60, s63, {4*SLOT}
        s_add_u32 s60, s60, s58
        s_mov_b32 m0, s59
        s_add_u32 s61, s60, 4096
        """)
        for q in range(4): a(f"buffer_load_dwordx4 v2, {sr(SWS)}, s60 offen offset:{q*1024} sc1 lds")
        a(f"s_add_u32 m0, m0, 4096\ns_add_u32 s59, s59, {4*SLOT}")
        for q in range(3): a(f"buffer_load_dwordx4 v2, {sr(SWS)}, s61 offen offset:{q*1024} sc1 lds")
        a("s_add_u32 s63, s63, 1\ns_cmp_eq_u32 s63, 7\ns_cselect_b32 s63, 0, s63")
    vm.add(tag, 7 * n)

def rot4(a, dst):
    a(f"""
    s_lshr_b32 s60, s6, 3
    s_lshl_b32 s60, s60, 1
    s_and_b32 s{dst}, s6, 7
    s_add_u32 s{dst}, s{dst}, s60
    s_cmp_ge_u32 s{dst}, 7
    s_cselect_b32 s60, 7, 0
    s_sub_u32 s{dst}, s{dst}, s60
    """)

def rot5(a, dst, add=0):
    a(f"""
    s_and_b32 s60, s6, 3
    s_mul_i32 s60, s60, {E('TBROT', 1)}
    s_lshl_b32 s{dst}, s46, 2
    s_add_u32 s{dst}, s{dst}, s60
    s_add_u32 s{dst}, s{dst}, {add}
    s_mul_i32 s60, s5, {E("XR5", 7)}
    s_lshr_b32 s60, s60, 1
    s_add_u32 s{dst}, s{dst}, s60
    s_cmp_ge_u32 s{dst}, 28
    s_cselect_b32 s60, 28, 0
    s_sub_u32 s{dst}, s{dst}, s60
    s_cmp_ge_u32 s{dst}, 28
    s_cselect_b32 s60, 28, 0
    s_sub_u32 s{dst}, s{dst}, s60
    s_cmp_ge_u32 s{dst}, 28
    s_cselect_b32 s60, 28, 0
    s_sub_u32 s{dst}, s{dst}, s60
    """)

def tr128_addr(a, dst, sft, sxh, hfshift):
    a(f"""
    v_bfe_u32 v9, v1, 2, 2                 ; r
    v_lshl_add_u32 v10, v13, {hfshift}, v9
    v_lshlrev_b32 v10, 7, v10
    v_lshrrev_b32 v9, 1, v9
    v_xor_b32 v9, s{sft}, v9
    v_lshl_add_u32 v10, v9, 6, v10
    v_bfe_u32 v9, v1, 4, 1                 ; ch
    {f"v_xor_b32 v9, s{sxh}, v9" if sxh else ""}
    v_lshl_add_u32 v10, v9, 5, v10
    v_and_b32 v9, 1, v1
    v_lshl_add_u32 v10, v9, 4, v10
    v_bfe_u32 v9, v1, 1, 1
    v_lshl_add_u32 v{dst}, v9, 3, v10
    """)

def wd_loop(a, n, tag, lds=True, throttle=False):
    ld = (lambda: f"buffer_load_dwordx4 v21, {sr(SD)}, s60 offen lds\ns_add_u32 m0, m0, 1024") if lds else (lambda: f"buffer_load_dwordx4 v[24:27], v21, {sr(SD)}, s60 offen")
    a(f"""
    s_mov_b32 s61, 0
L_wd_{tag}:
    s_mul_i32 s60, s54, {16*896}
    s_add_u32 s60, s60, s55
    {ld()}
    s_add_u32 s60, s60, {8*896}
    s_add_u32 s54, s54, 1
    {ld()}
    s_cmp_eq_u32 s54, 28
    s_cselect_b32 s54, 0, s54
    s_add_u32 s61, s61, 1
    {f"s_waitcnt vmcnt({PFW})" if throttle else ""}
    s_cmp_lt_u32 s61, {n}
    s_cbranch_scc1 L_wd_{tag}
    """)

A5H = 88
def p2_helper(a, vm):
    late_ids(a)
    a(f"""
    v_lshlrev_b32 v2, 4, v1
    v_lshrrev_b32 v9, 3, v1
    v_mul_u32_u24 v9, 896, v9
    v_bfe_u32 v10, v1, 4, 1
    v_lshlrev_b32 v10, 2, v10
    v_and_b32 v11, 7, v1
    v_xor_b32 v10, v10, v11
    v_lshl_add_u32 v21, v10, 4, v9
    v_lshrrev_b32 v9, 4, v1
    v_mul_u32_u24 v9, {4*3584}, v9
    v_and_b32 v10, 15, v1
    v_lshl_add_u32 v20, v10, 4, v9
    v_lshlrev_b32 v9, 3, v1
    v_mov_b32 v10, 0
    v_mov_b32 v11, 0
    v_add_u32 v9, {GAP}, v9
    ds_write_b64 v9, v[10:11]
    s_lshr_b32 s58, s{SW3}, 1
    s_and_b32 s59, s{SW3}, 1
    """)
    tr128_addr(a, 4, 58, 59, 3)
    rot5(a, 54)
    a(f"""
    s_lshl_b32 s60, s{SW3}, 14
    s_add_u32 s7, s60, {RREG}
    v_add_u32 v4, s7, v4
    v_xor_b32 v5, 64, v4
    s_mul_i32 s55, s{SW3}, {28*16*896}
    s_lshl_b32 s60, s46, 7
    s_add_u32 s55, s55, s60
    """)
    rot4(a, 63)
    if TF:
        a(f"""
        s_mul_i32 s59, s{SW3}, {SLOT}
        s_mul_i32 s58, s57, {28*SLOT}
        s_add_u32 s58, s58, s59
        s_add_u32 s58, s58, {WGU}
        """)
    else:
        a(f"""
        s_lshl_b32 s58, s63, 6
        s_add_u32 s58, s58, s{SW3}
        s_mul_i32 s58, s58, 3584
        s_mul_i32 s59, s57, 224
        s_and_b32 s59, s59, 0xffffffc0
        s_add_u32 s58, s58, s59
        s_mul_i32 s59, s{SW3}, 1088
        """)
    a(f"""
    s_mul_i32 s54, s54, {16*896}
    s_add_u32 s54, s54, s55
    s_add_u32 s49, s55, {28*16*896}
    s_mov_b32 s52, {"s48" if TF else "99"}
    """)
    lv = VM()
    def wd(p, dstbase, doff):
        a(f"""
        s_add_u32 m0, s{dstbase}, {doff}
        s_add_u32 s60, s54, {8*896}
        buffer_load_dwordx4 v21, {sr(SD)}, s54 offen lds
        s_add_u32 m0, m0, 1024
        s_add_u32 s54, s54, {16*896}
        buffer_load_dwordx4 v21, {sr(SD)}, s60 offen lds
        s_cmp_eq_u32 s54, s49
        s_cselect_b32 s54, s55, s54
        """)
        lv.add(f"w{p}", 2)
    p2_helper.wd = wd
    a.bar("p1X")
    a(f"""
    s_cmp_lg_u32 s{SW}, 4
    s_cbranch_scc1 L_h2_npub
    ds_read_b32 v26, v14
    s_mov_b32 exec_hi, 0xffff
    s_waitcnt lgkmcnt(0)
    buffer_store_dwordx4 v[24:27], v18, {sr(SWS)}, s62 offen sc1
    s_mov_b32 exec_hi, -1
L_h2_npub:
    """)
    EB = -1
    a(f"s_cmp_lg_u32 s{SW}, 4\ns_cbranch_scc1 L_h2_np")
    a.stamp(5)
    poll(a, "A", 17, 0x1ffffffff, wide=True, dst=28, pipe=(EB >= 0))
    a(f"""
    s_nop 4
    v_mov_b32 v32, v30
    v_max_u32_dpp v32, v32, v32 row_shr:1 row_mask:0xf bank_mask:0xf
    v_max_u32_dpp v32, v32, v32 row_shr:2 row_mask:0xf bank_mask:0xf
    v_max_u32_dpp v32, v32, v32 row_shr:4 row_mask:0xf bank_mask:0xf
    v_max_u32_dpp v32, v32, v32 row_shr:8 row_mask:0xf bank_mask:0xf
    v_sqrt_f32 v32, v32
    v_mov_b32 v9, {AUX2}
    v_mul_f32 v32, {f2u(1.0+1.0/128):#x}, v32
    v_mov_b32 v33, 0
    s_mov_b64 exec, 0x8000
    ds_write_b32 v9, v33
    ds_write_b32 v9, v32 offset:4
    s_mov_b64 exec, -1
    s_waitcnt lgkmcnt(0)
L_h2_np:
    """)
    a.bar("p2P")
    a.bar("p2Y")
    lv.q = []
    if TF and E("TST", 0) == 1:
        a("s_cmp_ge_u32 s52, 28\ns_cbranch_scc1 L_h2_notf2")
        tstores(a)
    a(f"""
L_h2_notf2:
    v_lshlrev_b32 v7, 12, v1
    s_lshl_b32 s53, s57, 8
    s_lshl_b32 s61, s52, 3
    s_add_u32 s53, s53, s61
    s_add_u32 s53, s53, {FT}
    """)
    def tflag(tag):
        a(f"""
        s_cmp_ge_u32 s52, 28
        s_cbranch_scc1 L_h2_nf{tag}
        s_mov_b64 exec, 0xffff
        buffer_store_dwordx2 v[24:25], v7, {sr(SWS)}, s53 offen sc1
        s_mov_b64 exec, -1
L_h2_nf{tag}:
        """)
    a("s_cmp_lt_u32 s6, 28\ns_cbranch_scc1 L_h2_act\ns_waitcnt vmcnt(0)")
    tflag("i")
    a("s_branch L_h2_nowo\nL_h2_act:")
    a.stamp(6)
    def aread(p):
        for f in range(2):
            for u in range(2):
                b = A5H + 8*p + 4*f + 2*u
                a(f"ds_read_b64_tr_b16 v[{b}:{b+1}], v{4+f} offset:{(p%8)*2048+u*512}")
    D = max(1, (PFW + 1) // 2)
    e0 = max(EB, 0)
    flagged = False
    for p in range(NA5 + D):
        if e0 <= p < NA5:
            if p >= 8: a("s_waitcnt lgkmcnt(8)")
            wd(p, 7, (p % 8) * 2048)
        if p == NA5:
            a(f"""
            s_mul_i32 s{SKV+2}, s{SW3}, {14*8*896}
            s_lshl_b32 s60, s46, 7
            s_add_u32 s{SKV+2}, s{SKV+2}, s60
            s_mul_i32 s{SKV+3}, s{SW3}, 14336
            s_add_u32 s{SKV+3}, s{SKV+3}, {WOREG}
            s_and_b32 s62, s6, 3
            s_mul_i32 s62, s62, 7
            s_lshr_b32 s62, s62, 1
            """)
        def wo(n):
            for _ in range(n):
                a(f"""
                s_lshl_b32 s60, s62, 10
                s_add_u32 m0, s60, s{SKV+3}
                s_mul_i32 s60, s62, {8*896}
                s_add_u32 s60, s60, s{SKV+2}
                buffer_load_dwordx4 v21, {sr(SWO)}, s60 offen lds
                s_add_u32 s62, s62, 1
                s_cmp_eq_u32 s62, 14
                s_cselect_b32 s62, 0, s62
                """)
                lv.add("wo")
        if p >= NA5: wo(2)
        q = p - D
        if q >= 0:
            w = lv.wait(f"w{q}")
            a(w)
            if w and not flagged:
                tflag("a"); flagged = True
            aread(q)
    a.stamp(9)
    for k in range(7 - D):
        wo(2)
        a(f"s_waitcnt vmcnt({2*D})")
    a.stamp(10)
    a(f"""
L_h2_nowo:
    s_lshl_b32 s60, s56, 4
    s_add_u32 s60, s60, s57
    s_lshl_b32 s60, s60, 8
    s_add_u32 s60, s60, {FT}
    v_lshl_add_u32 v17, v1, 3, s60
    """)
    if TF: poll(a, "T", 17, 0xfffffff, backoff=40)
    a.stamp(11)
    gu_dma(a, 4, "g0", vm, thr=PFW)
    p2_ids(a)
    WPRE = E("WPRE", 0)
    if WPRE & 1:
        a(f"""
        v_lshlrev_b32 v9, 7, v1
        s_lshl_b32 s60, s56, 2
        s_add_u32 s60, s60, s{SW3}
        s_mul_i32 s60, s60, {112*1024}
        s_mul_i32 s61, s57, 7168
        s_add_u32 s60, s60, s61
        s_add_u32 s60, s60, {HH}
        s_mov_b32 exec_hi, 0xffffff
        buffer_load_dword v22, v9, {sr(SWS)}, s60 offen sc1
        s_mov_b32 exec_hi, -1
        """)
    if WPRE & 2:
        a(f"""
        v_lshlrev_b32 v9, 7, v1
        s_lshl_b32 s60, s53, 2
        s_add_u32 s60, s60, s{SW3}
        s_lshl_b32 s60, s60, 15
        s_lshl_b32 s61, s52, 11
        s_add_u32 s60, s60, s61
        s_add_u32 s60, s60, {OF}
        s_mov_b64 exec, 0xffff
        buffer_load_dword v22, v9, {sr(SWS)}, s60 offen sc1
        s_cmp_ge_u32 s6, 28
        s_cbranch_scc1 L_h2_nowp
        s_and_b32 s60, s{SW3}, 1
        s_lshl_b32 s61, s47, 1
        s_add_u32 s60, s60, s61                ; tt
        s_mul_i32 s60, s60, 14
        s_lshr_b32 s61, s{SW3}, 1
        s_add_u32 s60, s60, s61
        s_lshl_b32 s61, s46, 1
        s_add_u32 s60, s60, s61
        s_lshl_b32 s61, s60, 11
        s_add_u32 s61, s61, {HF}
        buffer_load_dword v23, v9, {sr(SWS)}, s61 offen sc1
        s_lshl_b32 s61, s60, 8
        s_add_u32 s61, s61, {ST}
        s_mov_b64 exec, 3
        buffer_load_dword v22, v9, {sr(SWS)}, s61 offen sc1
L_h2_nowp:
        s_mov_b64 exec, -1
        """)
    a("s_mov_b32 s62, 0\ns_waitcnt lgkmcnt(0)")
    vm.q = []
    a.stamp(7)
    a("L_h2_again:")
    a.bar("p2R0")
    a("s_waitcnt vmcnt(0)")
    a.bar("p2R1")
    a.bar("p2R2")
    a(f"""
    s_cmp_lg_u32 s62, 0
    s_cbranch_scc1 L_h2_done
    v_mov_b32 v9, {AUX2}
    ds_read_b32 v10, v9
    s_waitcnt lgkmcnt(0)
    v_readfirstlane_b32 s60, v10
    s_cmp_eq_u32 s60, 0
    s_cbranch_scc1 L_h2_done
    s_mov_b32 s62, 1
    s_barrier
    s_barrier
    s_branch L_h2_again
L_h2_done:
    """)

def p3_addr(a):
    a(f"s_lshr_b32 s58, s{SW3}, 1")
    tr128_addr(a, 220, 58, None, 2)
    a(f"""
    s_lshr_b32 s60, s6, 2
    s_mul_i32 s60, s60, {2*3584}
    s_add_u32 s60, s60, {WOREG}
    v_add_u32 v220, s60, v220
    """)

def p3_pre(a):
    AF = 64
    a(f"""
    s_cmp_ge_u32 s6, 28
    s_cbranch_scc1 L_p3_skipA
    s_lshr_b32 s58, s6, 2                  ; fb
    """)
    for g in range(8):
        if g >= 2:
            a(f"""
            s_cmp_ge_u32 s58, {8-g}
            s_cselect_b32 s59, {(-57344) & 0xffffffff:#x}, 0
            v_add_u32 v{221+(g&1)}, s59, v220
            """)
        for n in (2*g, 2*g+1):
            for f in range(2):
                for u in range(2):
                    b = AF + 8*n + 4*f + 2*u
                    a(f"ds_read_b64_tr_b16 v[{b}:{b+1}], v{220 if g < 2 else 221+(g&1)} offset:{n*3584+f*2048+u*1024}")
        a("s_waitcnt lgkmcnt(6)")
    a("L_p3_skipA:")

def p3_compute(a):
    ACC = 16; BF = 32; AF = 64; XR = 192; T = 200
    late_ids(a)
    a(f"""
    s_cmp_ge_u32 s6, 28
    s_cbranch_scc1 L_p3_skipB
    s_and_b32 s52, s{SW3}, 1               ; tt_l
    s_lshr_b32 s53, s{SW3}, 1              ; ft_l
    s_lshl_b32 s54, s47, 1
    s_add_u32 s54, s54, s52                ; tt
    s_lshl_b32 s55, s46, 1
    s_add_u32 s55, s55, s53                ; ft
    v_mul_u32_u24 v3, 896, v12
    v_lshl_add_u32 v3, v13, 4, v3
    s_mul_i32 s60, s54, {32*896}
    s_lshl_b32 s61, s55, 6
    s_add_u32 s60, s60, s61
    buffer_load_dwordx4 {vr(XR)}, v3, {sr(SX)}, s60 offen
    buffer_load_dwordx4 {vr(XR+4)}, v3, {sr(SX)}, s60 offen offset:32
    s_lshl_b32 s60, s52, 15
    s_add_u32 s60, s60, {RREG}
    v_add_u32 v5, s60, v2
    s_mul_i32 s58, s54, 28672
    s_lshl_b32 s61, s55, 11
    s_add_u32 s58, s58, s61
    s_add_u32 s58, s58, {HF}
    s_mul_i32 s59, s54, 14
    s_add_u32 s59, s59, s55
    s_lshl_b32 s59, s59, 8
    s_add_u32 s59, s59, {ST}
    v_lshlrev_b32 v14, 3, v1
    s_waitcnt vmcnt(0)
    """)
    for r in range(8):
        a(f"v_lshlrev_b32 v{ACC+2*r}, 16, v{XR+r}\nv_and_b32 v{ACC+2*r+1}, 0xffff0000, v{XR+r}")
    a("v_mov_b32 v6, 0\nv_mov_b32 v7, 0")
    a.bar("p3P")
    for st in range(4):
        a.bar(f"p3s{st}")
        if st == 0: a.stamp(13)
        for q in range(8):
            a(f"ds_read_b128 {vr(BF+4*q)}, v5 offset:{(8*st+q)*1024}")
        for q in range(8):
            p = 8*st + q
            a(f"s_waitcnt lgkmcnt({7-q})")
            a(f"v_mfma_f32_32x32x16_bf16 {vr(ACC,16)}, {vr(AF+4*p)}, {vr(BF+4*q)}, {vr(ACC,16)}")
    a.stamp(14)
    for r in range(8):
        a(f"v_cvt_pk_bf16_f32 v{T+r}, v{ACC+2*r}, v{ACC+2*r+1}")
    a(f"""
    buffer_store_dwordx4 {vr(T)}, v2, {sr(SWS)}, s58 offen sc1
    buffer_store_dwordx4 {vr(T+4)}, v2, {sr(SWS)}, s58 offen offset:1024 sc1
    """)
    for r in range(8):
        a(f"v_dot2c_f32_bf16 v6, v{T+r}, v15\nv_dot2c_f32_bf16 v7, v{T+r}, v{T+r}")
    a(f"""
    v_mov_b32 v8, v6
    v_mov_b32 v9, v7
    v_permlane32_swap_b32 v6, v8
    v_permlane32_swap_b32 v7, v9
    v_add_f32 v6, v6, v8
    v_add_f32 v7, v7, v9
    s_mov_b32 exec_hi, 0
    buffer_store_dwordx2 v[6:7], v14, {sr(SWS)}, s59 offen sc1
    s_mov_b32 exec_hi, -1
L_p3_skipB:
    """)
    a.stamp(15)

def p3_helper(a, vm):
    if E("PR4", 0): a("s_setprio 3")
    publish(a, "B", pub14(53, 52, FB), 0x7f7f)
    gu_dma(a, 8 if TF else 7, "g1", vm)
    a.stamp(12)
    a(f"""
    s_cmp_ge_u32 s6, 28
    s_cbranch_scc1 L_h3_skip
    s_and_b32 s52, s{SW3}, 1
    s_lshr_b32 s53, s{SW3}, 1
    s_lshl_b32 s62, s47, 1
    s_add_u32 s62, s62, s52
    s_lshl_b32 s62, s62, 15
    s_lshl_b32 s53, s53, 10
    s_add_u32 s62, s62, s53
    s_add_u32 s62, s62, {OF}
    s_lshl_b32 s52, s52, 15
    s_add_u32 s52, s52, s53
    s_add_u32 s52, s52, {RREG}             ; dst
    s_lshl_b32 s53, s46, 12
    s_cmp_lg_u32 s{SW}, 4
    s_cbranch_scc1 L_h3_np
    s_lshl_b32 s60, s47, 3
    s_add_u32 s60, s60, s46
    s_lshl_b32 s60, s60, 7
    s_add_u32 s60, s60, {FB}
    v_lshl_add_u32 v17, v1, 3, s60
    """)
    poll(a, "B", 17, 0xffff)
    a("L_h3_np:")
    a.bar("p3P")
    a.stamp(13)
    a(f"""
    s_mov_b32 m0, s52
    s_mov_b32 s61, 0
L_h3_o:
    s_add_u32 s60, s53, s62
    buffer_load_dwordx4 v2, {sr(SWS)}, s60 offen sc1 lds
    s_add_u32 m0, m0, 2048
    s_add_u32 s53, s53, 2048
    s_and_b32 s53, s53, 0x7fff
    s_add_u32 s61, s61, 1
    s_cmp_lt_u32 s61, 16
    s_cbranch_scc1 L_h3_o
    """)
    for st in range(4):
        a(f"s_waitcnt vmcnt({12-4*st})")
        a.bar(f"p3s{st}")
    a("L_h3_skip:")

NBW = E('NBW', 12)
SCH4 = E('SCH4', 0)
P4B = [(3, 10, 17, 20), (3, 7, 10, 17, 18), (10, 17, 21)][SCH4]
NR4 = 1 if TF else 2
def p4_compute(a):
    ACC = 16; AF = 128; T = 156; OUT = 164; STT = 172; BF = 188
    RS, CC = 6, 7
    vm = VM()
    a(f"""
    s_lshl_b32 s54, s56, 2
    s_add_u32 s54, s54, s{SW3}             ; tt
    s_mul_i32 s55, s54, 28672
    s_add_u32 s55, s55, {HF}
    s_add_u32 s53, s55, 28672              ; end
    """)
    rot4(a, 58)
    a(f"""
    s_lshl_b32 s58, s58, 12
    s_add_u32 s58, s58, s55
    """)
    if TF: a("v_mov_b32 v4, v2")
    else:
        a(f"""
        v_bfe_u32 v9, v1, 2, 2
        v_mul_u32_u24 v10, 1088, v9
        v_lshl_add_u32 v10, v13, 9, v10
        v_and_b32 v9, 1, v1
        v_lshl_add_u32 v10, v9, 4, v10
        v_bfe_u32 v9, v1, 4, 1
        v_lshl_add_u32 v10, v9, 3, v10
        v_bfe_u32 v9, v1, 1, 1
        v_mul_u32_u24 v9, 4384, v9
        s_mul_i32 s60, s57, 224
        s_and_b32 s60, s60, 63
        v_add3_u32 v4, v10, v9, s60
        """)
    a(f"""
    v_mov_b32 v8, 0xffff0000
    v_mul_u32_u24 v5, {7*256}, v13
    v_lshl_add_u32 v5, v12, 3, v5
    s_mul_i32 s59, s54, {14*256}
    s_add_u32 s59, s59, {ST}
    s_mul_i32 s62, s54, {112*1024}
    s_mul_i32 s61, s57, 7168
    s_add_u32 s62, s62, s61
    s_add_u32 s62, s62, {HH}
    s_add_u32 s63, s62, 4096
    s_waitcnt vmcnt(0)
    """)
    a.bar("p3X")
    a.stamp(16)
    base = [0]
    def tr(p, j):
        L = []
        slot = p % NSLOT
        off = slot * SLOT - base[0]
        if j == 0 and (off < 0 or off + SLOT > 65536):
            L.append(f"v_add_u32 v4, {off & 0xffffffff:#x}, v4")
            base[0] = slot * SLOT; off = 0
        if TF: L.append(f"ds_read_b128 {vr(AF+4*j)}, v4 offset:{off + j*1024}")
        else:
            for u in range(2):
                b = AF + 4*j + 2*u
                L.append(f"ds_read_b64_tr_b16 v[{b}:{b+1}], v4 offset:{off + u*256 + j*32}")
        return L
    if DRY & 1: dry_call(a, "4", 4, save=(58,))
    for j in range(7): a.emit(*tr(0, j))
    a.bar("p4P")
    a.stamp(17)
    def bload(p):
        vm.add(f"b{p}")
        L = [f"buffer_load_dwordx4 {vr(BF+4*(p%NBW))}, v2, {sr(SWS)}, s58 offen offset:{(p%4)*1024} sc1"]
        if p % 4 == 3: L += ["s_add_u32 s58, s58, 4096", "s_cmp_eq_u32 s58, s53", "s_cselect_b32 s58, s55, s58"]
        return L
    for q in range(7):
        a(f"buffer_load_dwordx2 v[{STT+2*q}:{STT+2*q+1}], v5, {sr(SWS)}, s59 offen offset:{q*256} sc1")
    vm.add("st", 7)
    for p in range(8): a.emit(*bload(p))
    nb = [8]
    if SCH4 == 1: a.bar("p4Q")
    a(vm.wait("st"))
    pk = lambda b: f"v[{b}:{b+1}]"
    a(f"""
    v_pk_add_f32 {pk(STT+2)}, {pk(STT+2)}, {pk(STT+8)}
    v_pk_add_f32 {pk(STT+4)}, {pk(STT+4)}, {pk(STT+10)}
    v_pk_add_f32 {pk(STT+6)}, {pk(STT+6)}, {pk(STT+12)}
    v_pk_add_f32 {pk(STT)}, {pk(STT)}, {pk(STT+2)}
    v_pk_add_f32 {pk(STT+4)}, {pk(STT+4)}, {pk(STT+6)}
    v_pk_add_f32 {pk(STT)}, {pk(STT)}, {pk(STT+4)}
    v_mov_b32 v{STT+2}, v{STT}
    v_mov_b32 v{STT+3}, v{STT+1}
    v_permlane32_swap_b32 v{STT}, v{STT+2}
    v_permlane32_swap_b32 v{STT+1}, v{STT+3}
    v_pk_add_f32 {pk(STT)}, {pk(STT)}, {pk(STT+2)}
    v_mul_f32 v{STT}, {f2u(1.0/448):#x}, v{STT}
    v_mul_f32 v{STT+1}, {f2u(1.0/448):#x}, v{STT+1}
    v_fma_f32 v{STT+1}, -v{STT}, v{STT}, v{STT+1}
    v_max_f32 v{STT+1}, 0, v{STT+1}
    v_add_f32 v{STT+1}, {f2u(1e-5):#x}, v{STT+1}
    v_rsq_f32 v{RS}, v{STT+1}
    v_mul_f32 v{CC}, v{STT}, v{RS}
    v_sub_f32 v{CC}, 0, v{CC}
    """)
    def norm(p):
        f = BF + 4*(p % NBW)
        L = []
        for i in range(4):
            L += [f"v_lshlrev_b32 v{T+2*i}, 16, v{f+i}", f"v_and_b32 v{T+2*i+1}, v8, v{f+i}"]
        for i in range(8):
            L.append(f"v_fma_f32 v{T+i}, v{T+i}, v{RS}, v{CC}")
        for i in range(4):
            L.append(f"v_cvt_pk_bf16_f32 v{f+i}, v{T+2*i}, v{T+2*i+1}")
        return L
    a(vm.wait("b0"))
    a.emit(*norm(0))
    a.stamp(18)
    NT = E("NT4", 3)
    PT = 28 - NT
    seq = [(p, j) for p in range(PT) for j in range(7)] + [(p, j) for j in range(7) for p in range(PT, 28)]
    N = len(seq)
    def rd(i):
        p, j = seq[i]
        L = []
        off = (p % NSLOT) * SLOT - base[0]
        force = NT > 1 and i == 7 * PT and ((27 % NSLOT) + 1) * SLOT - base[0] > 65536
        if off < 0 or off + SLOT > 65536 or force:
            L.append(f"v_add_u32 v4, {off & 0xffffffff:#x}, v4")
            base[0] = (p % NSLOT) * SLOT; off = 0
        r = AF + 4 * (i % 7)
        if TF: L.append(f"ds_read_b128 {vr(r)}, v4 offset:{off + j*1024}")
        else: L += [f"ds_read_b64_tr_b16 v[{r+2*u}:{r+2*u+1}], v4 offset:{off + u*256 + j*32}" for u in range(2)]
        return L
    def epi(j):
        acc = ACC + 16*j; o = OUT + 4*(j & 1)
        L = []
        for g in range(2):
            L += [f"v_max_f32 v{acc+8*g+c}, 0, v{acc+8*g+c}" for c in range(4)]
            L += [f"v_mul_f32 v{acc+8*g+c}, v{acc+8*g+c}, v{acc+8*g+4+c}" for c in range(4)]
            L += [f"v_cvt_pk_bf16_f32 v{o+2*g}, v{acc+8*g}, v{acc+8*g+1}", f"v_cvt_pk_bf16_f32 v{o+2*g+1}, v{acc+8*g+2}, v{acc+8*g+3}"]
        L.append(f"buffer_store_dwordx4 {vr(o)}, v2, {sr(SWS)}, s{62 if j < 4 else 63} offen offset:{(j%4)*1024} sc1")
        return L
    fill = []
    nn = [1]
    normed = {0}
    def need_norm(upto):
        while nn[0] <= upto and nn[0] < 28:
            fill.append(("w", nn[0])); fill.extend(norm(nn[0])); fill.append(("d", nn[0])); nn[0] += 1
    def pop(k):
        while fill and k > 0:
            x = fill.pop(0)
            if isinstance(x, tuple):
                if x[0] == "w": a(vm.wait(f"b{x[1]}"))
                else: normed.add(x[1])
            else:
                a(x); k -= 1
                if x.startswith("buffer_store"): vm.add("st")
        while fill and isinstance(fill[0], tuple) and fill[0][0] == "d":
            normed.add(fill.pop(0)[1])
    FAST = PT - (NT - 1) * 20 // 8 - 1
    for i, (p, j) in enumerate(seq):
        kmaj = i < 7 * PT
        if kmaj and j == 0:
            if "p4st" in XV and p in (3, 7, 10, 17): a.stamp({3: 1, 7: 3, 10: 5, 17: 9}[p])
            CUT = {0: 0, 7: 1, 14: 2, 21: 3}
            if DRY & 1:
                if p in CUT and p: a("s_cbranch_execz L_dry4_ret")
                elif p in P4B: a(f"s_cbranch_execz L_dry4s{p}")
            if p in P4B: a.bar(f"p4b{p}")
            if DRY & 1:
                if p in CUT: a(f"L_dry4_{CUT[p]}:")
                elif p in P4B: a(f"L_dry4s{p}:")
            if "p4st" in XV and p in (3, 7, 10, 13, 18, 22): a.stamp({3: 2, 7: 4, 10: 6, 13: 8, 18: 10, 22: 12}[p])
            need_norm(p + 1 if p < FAST else 27)
        while p not in normed: pop(1)
        if i % 7 in (0, 4):
            last_needed = i + (3 if i % 7 == 0 else 2)
            a(f"s_waitcnt lgkmcnt({max(0, min(N - 1, i + 6) - last_needed) * NR4})")
        a(f"v_mfma_f32_32x32x16_bf16 {vr(ACC+16*j,16)}, {vr(AF+4*(i%7))}, {vr(BF+4*(p%NBW))}, {'0' if p==0 else vr(ACC+16*j,16)}")
        if i + 7 < N: a.emit(*rd(i + 7))
        if kmaj:
            pop(4 if p >= FAST else (3, 4, 3, 3, 4, 3, 0)[j])
            if j in (3, 6) and nb[0] < 28 and nb[0] <= p + NBW - (1 if j == 3 else 0):
                a.emit(*bload(nb[0])); nb[0] += 1
        else:
            if p == PT + min(1, NT - 1) and j >= 1: fill.extend(epi(j - 1))
            pop(-(-21 // NT))
    a.stamp(19)
    pop(999)
    a.emit(*epi(6))
    if DRY & 1: a("s_cbranch_execz L_dry4_ret")
    a.stamp(21)
    a("s_waitcnt vmcnt(0)")
    a.bar("p4X")
    a.stamp(23)

def p4_helper(a, vm):
    a.bar("p3X")
    a("s_cmp_ge_u32 s6, 28\ns_cbranch_scc1 L_pub_C")
    publish(a, "C", f"""v_lshlrev_b32 v9, 7, v1
    s_lshr_b32 s60, s47, 1
    s_lshl_b32 s60, s60, 11
    s_and_b32 s61, s47, 1
    s_mul_i32 s61, s61, 7
    s_add_u32 s61, s61, s46
    s_lshl_b32 s61, s61, 3
    s_add_u32 s60, s60, s61
    s_add_u32 s60, s60, {FC}""", 0xffff)
    a(f"""
    s_cmp_lg_u32 s{SW}, 4
    s_cbranch_scc1 L_h4_np
    s_lshl_b32 s60, s56, 4
    s_add_u32 s60, s60, s57
    s_lshl_b32 s60, s60, 7
    s_add_u32 s60, s60, {FC}
    v_lshl_add_u32 v17, v1, 3, s60
    """)
    a.stamp(16)
    poll(a, "C", 17, 0x3fff)
    a("L_h4_np:")
    if SCH4 == 2: a(vm.wait("g1"))
    a.bar("p4P")
    assert not TF
    if SCH4 == 1:
        a.bar("p4Q")
        gu_dma(a, 7, "g2", vm)
        a(f"s_sub_u32 s59, s59, {NSLOT*SLOT}")
        a(vm.wait("g1"))
        a.bar("p4b3")
        gu_dma(a, 3, "g3", vm)
        a.bar("p4b7")
        gu_dma(a, 4, "g4", vm)
        a(vm.wait("g2"))
        a.bar("p4b10")
        gu_dma(a, 3, "g5", vm)
        a(vm.wait("g5"))
        a.bar("p4b17")
        a.bar("p4b18")
    elif SCH4 == 0:
        a(vm.wait("g1"))
        a.bar("p4b3")
        gu_dma(a, 7, "g2", vm)
        a(f"s_sub_u32 s59, s59, {NSLOT*SLOT}")
        gu_dma(a, 3, "g3", vm)
        a(vm.wait("g2"))
        a.bar("p4b10")
        gu_dma(a, 7, "g4", vm)
        a(vm.wait("g3"))
        a.bar("p4b17")
        a(vm.wait("g4"))
        a.bar("p4b20")
    else:
        gu_dma(a, 7, "g2", vm, thr=4)
        a(f"s_sub_u32 s59, s59, {NSLOT*SLOT}")
        a(vm.wait("g2"))
        a.bar("p4b10")
        gu_dma(a, 4, "g3", vm)
        gu_dma(a, 6, "g4", vm)
        a(vm.wait("g3"))
        a.bar("p4b17")
        a(vm.wait("g4"))
        a.bar("p4b21")
    a(f"""
    s_cmp_ge_u32 s6, 28
    s_cbranch_scc1 L_h4_nowd
    s_mul_i32 s60, s{SW3}, {(28-NA5)*2048}
    s_add_u32 s7, s60, {B1}
    """)
    for p in range(28 - NA5): p2_helper.wd(p, 7, p * 2048)
    a("L_h4_nowd:\ns_waitcnt vmcnt(0)")
    vm.q = []
    a.bar("p4X")

def p5_main(a, tag):
    helper = tag == "h"
    ACC = 24
    NC = 28 - NA5
    AR = A5H
    AREA = NA5 * 2048
    vm = VM()
    pk = lambda b: f"v[{b}:{b+1}]"
    HR = 240 if helper else 16
    a(f"""
    s_lshr_b32 s52, s{SW}, 2
    s_lshl_b32 s54, s47, 1
    s_add_u32 s53, s54, s52
    s_lshl_b32 s63, s46, 2
    s_add_u32 s63, s63, s{SW3}
    s_mul_i32 s62, s53, 28672
    s_lshl_b32 s61, s63, 10
    s_add_u32 s62, s62, s61
    s_add_u32 s62, s62, {HF}
    buffer_load_dwordx4 {vr(HR)}, v2, {sr(SWS)}, s62 offen sc1
    v_mul_u32_u24 v3, 896, v12
    v_lshl_add_u32 v3, v13, 4, v3
    s_mul_i32 s62, s53, {32*896}
    s_lshl_b32 s61, s63, 5
    s_add_u32 s62, s62, s61
    s_mul_i32 s7, s{SW3}, {AREA}
    v_add_u32 v8, s7, v2
    """)
    if helper:
        a(f"""
        s_cmp_lg_u32 s{SW}, 4
        s_cbranch_scc1 L_h5_np
        s_lshl_b32 s60, s47, 3
        s_add_u32 s60, s60, s46
        s_lshl_b32 s60, s60, 7
        s_add_u32 s60, s60, {FD}
        v_lshl_add_u32 v17, v1, 3, s60
        """)
        a.stamp(23)
        poll(a, "D", 17, 0xffff)
        a("L_h5_np:")
    else:
        a(f"""
        s_mul_i32 s60, s{SW3}, 28672
        s_add_u32 s60, s60, {HH}
        s_mul_i32 s55, s54, {112*1024}
        s_add_u32 s55, s55, s60
        s_add_u32 s58, s55, {112*1024}
        """)
        rot5(a, 59, 0)
        rot5(a, 52, NA5)
        a(f"s_lshl_b32 s59, s59, 10\ns_lshl_b32 s52, s52, 10\ns_lshr_b32 s60, s{SW3}, 1\ns_and_b32 s61, s{SW3}, 1")
        tr128_addr(a, 4, 60, 61, 3)
        a(f"""
        s_mul_i32 s60, s{SW3}, {NC*2048}
        s_add_u32 s60, s60, {B1}
        v_xor_b32 v5, 64, v4
        v_add_u32 v4, s60, v4
        v_add_u32 v5, s60, v5
        """)
        for p in range(NC):
            for f in range(2):
                for u in range(2):
                    b = AR + 8*p + 4*f + 2*u
                    a(f"ds_read_b64_tr_b16 v[{b}:{b+1}], v{4+f} offset:{p*2048+u*512}")
            if p % 2 == 1: a("s_waitcnt lgkmcnt(4)")
        a("s_waitcnt lgkmcnt(0)\ns_mov_b32 m0, s7")
    a(f"s_setprio {3 if (E('PR5', 0) == (2 if helper else 1)) else 0}")
    a.bar("p5P")
    a.stamp(24)
    adv = lambda r: f"s_add_u32 s{r}, s{r}, 1024\ns_cmp_eq_u32 s{r}, 28672\ns_cselect_b32 s{r}, 0, s{r}"
    def mf(p, b0, b1):
        for tl, b in ((0, b0), (1, b1)):
            for f in range(2):
                acc = ACC + 32*tl + 16*f
                a(f"v_mfma_f32_32x32x16_bf16 {vr(acc,16)}, {vr(AR+8*p+4*f)}, {vr(b)}, {'0' if p==0 else vr(acc,16)}")
    T = 96 if helper else 232
    def tail_addr():
        for j in range(1, 8):
            a(f"""
            s_xor_b32 s60, s{SW3}, {j & 3}
            s_mul_i32 s60, s60, {AREA}
            v_add_u32 v{T+8+j}, s60, v2
            """)
    def wr_part():
        o = 14336 if helper else 0
        for j in range(1, 8):
            a(f"ds_write_b128 v8, {vr(ACC+8*j)} offset:{o+(j-1)*2048}\nds_write_b128 v8, {vr(ACC+8*j+4)} offset:{o+(j-1)*2048+1024}")
        for r in range(4):
            a(f"v_lshlrev_b32 v{T+2*r}, 16, v{HR+r}\nv_and_b32 v{T+2*r+1}, 0xffff0000, v{HR+r}")
        for r in range(0, 8, 2):
            a(f"v_pk_add_f32 {pk(ACC+r)}, {pk(ACC+r)}, {pk(T+r)}")
    def unpack_hr():
        for r in range(4):
            a(f"v_lshlrev_b32 v{T+2*r}, 16, v{HR+r}\nv_and_b32 v{T+2*r+1}, 0xffff0000, v{HR+r}")
    def last_group(ps, breg, wait, o):
        pend = []
        n = len(ps)
        for tl, f in ((1, 1), (1, 0), (0, 1), (0, 0)):
            acc = ACC + 32*tl + 16*f
            for k, p in enumerate(ps):
                wait(tl, f, k)
                a(f"v_mfma_f32_32x32x16_bf16 {vr(acc,16)}, {vr(AR+8*p+4*f)}, {vr(breg(k, tl))}, {vr(acc,16)}")
                if len(pend) > 4 or (pend and tl == 0 and k >= n - 2):
                    a(pend.pop(0)); a(pend.pop(0))
            j0 = 4*tl + 2*f
            for j in (j0, j0 + 1):
                if j: pend += [f"ds_write_b128 v8, {vr(ACC+8*j)} offset:{o+(j-1)*2048}", f"ds_write_b128 v8, {vr(ACC+8*j+4)} offset:{o+(j-1)*2048+1024}"]
        a.stamp(25)
        a.emit(*pend)
        for r in range(0, 8, 2):
            a(f"v_pk_add_f32 {pk(ACC+r)}, {pk(ACC+r)}, {pk(T+r)}")
    GH = [[2, 3, 3, 3, 4, 4], [2, 2, 3, 4, 4, 4], [3, 4, 4, 4, 4]][E('G5', 1)]
    if helper:
        BB = [16, 248]
        rd = lambda p: a(f"ds_read_b128 {vr(BB[p&1])}, v8 offset:{p*2048}\nds_read_b128 {vr(BB[p&1]+4)}, v8 offset:{p*2048+1024}")
        p = 0
        for g, n in enumerate(GH):
            a.bar(f"p5g{g}")
            rd(p)
            for k in range(n):
                if k + 1 < n: rd(p + 1)
                a(f"s_waitcnt lgkmcnt({2 if k + 1 < n else 0})")
                mf(p, BB[p&1], BB[p&1]+4)
                p += 1
            if g == 2:
                tail_addr()
        a.stamp(25)
        a("s_waitcnt vmcnt(0)")
        wr_part()
    else:
        BR = AR + 8*NC
        items = [("h", g) for g in range(len(GH))] + [("c", 0), ("c", 1), ("c", 2)]
        pc = [0]
        def issue(it):
            if it[0] == "h":
                for k in range(GH[it[1]]):
                    a(f"""
                    s_add_u32 s60, s59, s58
                    s_add_u32 s61, s59, s55
                    buffer_load_dwordx4 v2, {sr(SWS)}, s60 offen sc1 lds
                    s_add_u32 m0, m0, 1024
                    {adv(59)}
                    buffer_load_dwordx4 v2, {sr(SWS)}, s61 offen sc1 lds
                    s_add_u32 m0, m0, 1024
                    """)
                    vm.add(f"h{it[1]}", 2)
            else:
                for k in range(3):
                    a(f"""
                    s_add_u32 s60, s52, s55
                    s_add_u32 s61, s52, s58
                    buffer_load_dwordx4 {vr(BR+8*pc[0])}, v2, {sr(SWS)}, s60 offen sc1
                    buffer_load_dwordx4 {vr(BR+8*pc[0]+4)}, v2, {sr(SWS)}, s61 offen sc1
                    {adv(52)}
                    """)
                    vm.add(f"c{pc[0]}", 2); pc[0] += 1
        LA = E('LA5', 2)
        for it in items[:LA]: issue(it)
        nxt = LA
        for g in range(len(GH)):
            a(vm.wait(f"h{g}"))
            a.bar(f"p5g{g}")
            if nxt < len(items): issue(items[nxt]); nxt += 1
        while nxt < len(items): issue(items[nxt]); nxt += 1
        tail_addr(); unpack_hr()
        NL = 3
        for p in range(NC - NL):
            a(vm.wait(f"c{p}"))
            mf(p, BR+8*p, BR+8*p+4)
        ps = list(range(NC - NL, NC))
        last_group(ps, lambda k, tl: BR + 8*ps[k] + 4*tl, lambda tl, f, k: a(vm.wait(f"c{ps[k]}")), 0)
    a("s_waitcnt lgkmcnt(0)")
    a.bar("p5R1")
    for j in range(1, 8):
        o = 14336 if (helper != (j >= 4)) else 0
        a(f"ds_read_b128 {vr(ACC+8*j)}, v{T+8+j} offset:{o+(j-1)*2048}\nds_read_b128 {vr(ACC+8*j+4)}, v{T+8+j} offset:{o+(j-1)*2048+1024}")
    for j in range(7):
        a(f"s_waitcnt lgkmcnt({12-2*j})")
        for r in range(0, 8, 2):
            a(f"v_pk_add_f32 {pk(ACC+r)}, {pk(ACC+r)}, {pk(ACC+8+8*j+r)}")
    for r in range(4):
        a(f"v_cvt_pk_bf16_f32 v{T+r}, v{ACC+2*r}, v{ACC+2*r+1}")
    a(f"buffer_store_dwordx4 {vr(T)}, v3, {sr(SOUT)}, s62 offen {os.environ.get('OUTF', '')}")
    a.stamp(26)

def p5_compute(a):
    a("s_cmp_ge_u32 s6, 28\ns_cbranch_scc1 L_p5_skip_c")
    p5_main(a, "c")
    a("L_p5_skip_c:")

def p5_helper(a):
    publish(a, "D", pub14(56, 57, FD), 0x7f7f)
    a("s_cmp_ge_u32 s6, 28\ns_cbranch_scc1 L_p5_skip_h")
    p5_main(a, "h")
    a("L_p5_skip_h:")

def build(path):
    a = Asm()
    prologue(a)
    C = Role("c"); H = Role("h"); vm = VM()
    p1_compute(C); p1_helper(H)
    p2_compute(C); p2_helper(H, vm)
    p3_compute(C); p3_helper(H, vm)
    p4_compute(C); p4_helper(H, vm)
    p5_compute(C); p5_helper(H)
    assert C.bars == H.bars, (C.bars, H.bars)
    if "nopf" in XV or "nohtr" in XV:
        i0 = H.lines.index("L_h2_act:"); i1 = H.lines.index("L_h2_nowo:")
        H.lines = [l for k, l in enumerate(H.lines) if not (i0 < k < i1 and (("nopf" in XV and l.startswith("buffer_load")) or ("nohtr" in XV and l.startswith("ds_read"))))]
    if "nodma4" in XV:
        i0 = max(k for k, l in enumerate(H.lines) if l.startswith("L_h4_np")); i1 = H.lines.index("L_h4_nowd:")
        H.lines = [l for k, l in enumerate(H.lines) if not (i0 < k < i1 and l.startswith("buffer_load"))]
    if "c4" in XV:
        i0 = max(k for k, l in enumerate(C.lines) if l.startswith("v_rsq_f32")) + 30; i1 = max(k for k, l in enumerate(C.lines) if l.startswith("v_max_f32 v16, 0"))
        def drop(l):
            if "nobl" in XV and (l.startswith("buffer_load") or l.startswith("s_waitcnt vmcnt")): return True
            if "nonorm" in XV and (l.startswith("v_lshlrev_b32 v1") or l.startswith("v_and_b32 v1") or l.startswith("v_fma_f32 v1") or l.startswith("v_cvt_pk")): return True
            if "notr" in XV and l.startswith("ds_read_b64_tr"): return True
            return False
        C.lines = [l for k, l in enumerate(C.lines) if not (i0 < k < i1 and drop(l))]
    if "nostat" in XV: H.lines = [l for l in H.lines if not l.startswith("v_mfma_f32_16x16")]
    if "nocs" in XV: C.lines = [l for l in C.lines if not l.startswith("v_mfma_f32_16x16")]
    if "hprio" in XV:
        i0 = H.lines.index("L_h2_act:"); H.lines.insert(i0 + 1, "s_setprio 3")
    a.lines += H.lines
    stamp_end(a)
    a("s_endpgm\nL_compute:")
    a.lines += C.lines
    probe(a)
    stamp_end(a)
    a("L_end:\ns_endpgm")
    body = a.finish(True)
    hdr = open(f"cdna_kernels/{NAME}.s.ref").read().split("; Override launch")[0]
    out = hdr + "; @launch grid=(256,1,1) block=(512,1,1) lds=163840\n"
    out += '.amdgcn_target "amdgcn-amd-amdhsa--gfx950"\n.text\n'
    out += f".globl {KNAME}\n.p2align 8\n.type {KNAME},@function\n{KNAME}:\n{body}\n"
    out += f""".section .rodata,"a"
.p2align 6
.amdhsa_kernel {KNAME}
  .amdhsa_next_free_vgpr 256
  .amdhsa_next_free_sgpr 102
  .amdhsa_accum_offset 256
  .amdhsa_group_segment_fixed_size 0
  .amdhsa_kernarg_size 80
  .amdhsa_user_sgpr_count 2
  .amdhsa_user_sgpr_kernarg_segment_ptr 1
  .amdhsa_system_sgpr_workgroup_id_x 1
.end_amdhsa_kernel
"""
    open(path, "w").write(out)

if __name__ == "__main__":
    build(sys.argv[1] if len(sys.argv) > 1 else f"cdna_kernels/{NAME}.s")
```

```python
import sys, math, os, struct
from asmlib import Asm

NAME = "sequential_preLN__softmax_full_mha__glu_gated_reglu__prompt"
KNAME = NAME + "_kernel"
E = lambda k, d: int(os.environ.get(k, d))
DIAG = E("DIAG", 0)
PFW = E("PFW", 3)
ROTG = E("ROTG", 3)
XV = os.environ.get("XV", "")
POLL_MAX = 40000

def f2u(x): return struct.unpack('<I', struct.pack('<f', x))[0]
def vr(b, n=4): return f"v[{b}:{b+n-1}]"
def sr(b): return f"s[{b}:{b+3}]"

QF, KVF, FL, OF, HF, ST, HH, TS = 0x000000, 0x200000, 0x600000, 0x700000, 0x900000, 0xB00000, 0xC00000, 0x4000000
WS_BYTES = 0x10000000
FA, FB, FC, FD, FT = FL, FL + 0x40000, FL + 0x48000, FL + 0x50000, FL + 0x60000
WGU = 0x1400000
SW, SW3 = 3, 4
SX, SWQ, SWO, SWS, SG, SU, SD, SOUT, SDBG = 8, 12, 16, 20, 24, 28, 32, 36, 40
NON, SKV = 44, 48
AUX1 = 161792
CS1, KN1, CSP, TSTG = AUX1 + 1024, AUX1 + 1536, 159744, 143360
TF = E('TF', 0)
SLOT = 7168 if TF else 8736
NSLOT = 20 if TF else 18
WOREG = 35072
GAP = WOREG + 57344
AUX2 = 97280
RREG = 98304
B1 = 8 * SLOT if TF else 10 * SLOT
NA5 = 19

PROBE2 = E('PROBE2', 0)
class Role(Asm):
    def __init__(self, tag):
        super().__init__(); self.tag = tag; self.bars = []
    def bar(self, name):
        self.bars.append(name); self("s_barrier")
    def stamp(self, i):
        if PROBE2 == i and self.tag == "c":
            self("s_memrealtime s[94:95]\ns_waitcnt lgkmcnt(0)")
        if DIAG:
            self(f"s_memtime s[100:101]\ns_waitcnt lgkmcnt(0)\ns_mov_b32 s{64+i}, s100")

class VM:
    def __init__(self): self.q = []
    def add(self, tag, n=1): self.q += [tag] * n
    def wait(self, tag):
        idx = [i for i, t in enumerate(self.q) if t == tag]
        if not idx: return ""
        n = len(self.q) - 1 - idx[-1]
        self.q = self.q[idx[-1] + 1:]
        assert n <= 63
        return f"s_waitcnt vmcnt({n})"

PROBE = E("PROBE", 0)
def probe(a):
    if PROBE2:
        a(f"""
        s_cmp_lg_u32 s2, {E('PWG', 8)}
        s_cbranch_scc1 L_probe_done
        s_waitcnt vmcnt(0) lgkmcnt(0)
        s_memrealtime s[98:99]
        s_waitcnt lgkmcnt(0)
        s_sub_u32 s94, s94, s96
        s_mul_i32 s94, s94, 10
        s_min_u32 s94, s94, 100000
L_probe_l:
        s_sleep 8
        s_memrealtime s[92:93]
        s_waitcnt lgkmcnt(0)
        s_sub_u32 s92, s92, s98
        s_cmp_lt_u32 s92, s94
        s_cbranch_scc1 L_probe_l
L_probe_done:
        """)
    if PROBE:
        a(f"""
        s_cmp_lg_u32 s2, 8
        s_cbranch_scc1 L_probe_done
        s_waitcnt vmcnt(0) lgkmcnt(0)
        s_memrealtime s[98:99]
        s_waitcnt lgkmcnt(0)
        s_sub_u32 s98, s98, s96
        s_cmp_lt_u32 s98, {PROBE}
        s_cbranch_scc1 L_probe_done
        s_mov_b32 s60, 0
L_probe_l:
        s_sleep 127
        s_add_u32 s60, s60, 1
        s_cmp_lt_u32 s60, 40
        s_cbranch_scc1 L_probe_l
L_probe_done:
        """)

def stamp_end(a):
    if DIAG:
        a(f"""
        s_mov_b64 exec, -1
        s_waitcnt vmcnt(0) lgkmcnt(0)
        s_memtime s[100:101]
        s_memrealtime s[98:99]
        s_waitcnt lgkmcnt(0)
        s_mov_b32 s93, s100
        s_mov_b32 s94, s96
        s_mov_b32 s95, s98
        s_lshl_b32 s60, s2, 3
        s_add_u32 s60, s60, s{SW}
        s_lshl_b32 s60, s60, 7
        s_add_u32 s60, s60, {TS}
        v_mov_b32 v0, 0
        """)
        for i in range(32):
            a(f"v_mov_b32 v{4+i}, s{64+i}")
        a("s_mov_b64 exec, 1")
        for i in range(8):
            a(f"buffer_store_dwordx4 v[{4+4*i}:{7+4*i}], v0, {sr(SWS)}, s60 offen offset:{16*i}")

DRY = E("DRY", 0)
def dry_call(a, tag, n, save=()):
    for k, r in enumerate(save): a(f"s_mov_b32 s{84+k + (0 if not DIAG else 18)}, s{r}" if False else f"s_mov_b32 s{(7, 61)[k]}, s{r}")
    a("s_mov_b64 exec, 0")
    for k in range(n):
        a(f"s_cmp_eq_u32 s{SW3}, {k}\ns_cbranch_scc1 L_dry{tag}_{k}")
    a(f"L_dry{tag}_ret:\ns_mov_b64 exec, -1\ns_nop 15")
    for k, r in enumerate(save): a(f"s_mov_b32 s{r}, s{(7, 61)[k]}")

def setexec(a, m):
    a(f"s_mov_b32 exec_lo, {m & 0xffffffff:#x}\ns_mov_b32 exec_hi, {m >> 32:#x}")

def prologue(a):
    if PROBE or PROBE2: a("s_memrealtime s[96:97]")
    if DIAG:
        a("s_memrealtime s[96:97]\ns_memtime s[100:101]")
    a(f"""
    s_cmp_ge_u32 s2, 256
    s_cbranch_scc1 L_end
    s_load_dwordx16 s[64:79], s[0:1], 0
    s_load_dwordx4 s[80:83], s[0:1], 64
    s_getpc_b64 s[6:7]
    s_lshr_b32 s5, s2, 3
    s_and_b32 s5, s5, 7
    s_lshl_b32 s5, s5, 13
    v_lshl_add_u32 v1, v0, 4, s5
    v_min_u32 v1, L_end-{KNAME}-16, v1
    s_and_b32 s6, s6, 0xffffff00
    global_load_dwordx4 v[252:255], v1, s[6:7]
    v_lshrrev_b32 v1, 6, v0
    v_readfirstlane_b32 s{SW}, v1
    v_and_b32 v1, 63, v0                   ; lane
    s_and_b32 s5, s2, 7                    ; xcd
    s_lshr_b32 s6, s2, 3                   ; i
    s_and_b32 s{SW3}, s{SW}, 3
    s_lshr_b32 s52, s5, 1
    s_lshl_b32 s52, s52, 2
    s_and_b32 s53, s6, 3
    s_add_u32 s52, s52, s53                ; rb
    s_and_b32 s53, s5, 1
    s_lshl_b32 s53, s53, 3
    s_lshr_b32 s54, s6, 2
    s_add_u32 s53, s53, s54                ; cb
    s_lshl_b32 s54, s52, 2
    s_add_u32 s54, s54, s{SW3}             ; tt
    s_and_b32 s55, s53, 1
    s_lshl_b32 s55, s55, 3                 ; colshift
    s_mov_b32 s{SX+2}, {2048*896:#x}
    s_mov_b32 s{SX+3}, 0x00020000
    s_mov_b32 s{SWQ+2}, {448*2688:#x}
    s_mov_b32 s{SWQ+3}, 0x00020000
    v_lshrrev_b32 v2, 3, v1
    v_mul_u32_u24 v2, 896, v2
    v_lshrrev_b32 v3, 4, v1
    v_and_b32 v9, 7, v1
    v_xor_b32 v3, v3, v9
    v_lshl_add_u32 v2, v3, 4, v2
    v_xor_b32 v3, 64, v2
    s_mul_i32 s56, s54, {32*896}
    s_lshl_b32 s57, s{SW3}, 12
    """)
    for u in range(3):
        a(f"""
        v_add_u32 v9, {64*u}, v1
        v_mul_u32_u24 v10, 43691, v9
        v_lshrrev_b32 v10, 19, v10
        v_mul_u32_u24 v11, 12, v10
        v_sub_u32 v11, v9, v11
        v_min_u32 v11, 10, v11
        v_mul_u32_u24 v10, 2688, v10
        v_lshl_add_u32 v{16+u}, v11, 4, v10
        """)
    magic = (65536 + ROTG - 1) // ROTG
    assert all((i * magic) >> 16 == i // ROTG for i in range(32))
    a(f"""
    s_mul_i32 s58, s53, 168
    s_sub_u32 s58, s58, s55
    s_mul_i32 s59, s{SW3}, {16*2688}
    s_add_u32 s58, s58, s59
    s_mul_i32 s59, s{SW3}, 3072
    s_add_u32 s59, s59, 16384
    s_mul_i32 s46, s6, {magic}
    s_lshr_b32 s46, s46, 16
    s_mul_i32 s46, s46, {ROTG}
    s_sub_u32 s46, s6, s46                 ; i mod G
    s_mul_i32 s46, s46, {(7*256)//ROTG}
    s_lshr_b32 s46, s46, 8                 ; first chunk
    s_mul_i32 s47, s5, {E("XR1", 1)}
    s_add_u32 s46, s46, s47
    s_mul_i32 s47, s46, 9363
    s_lshr_b32 s47, s47, 16
    s_mul_i32 s47, s47, 7
    s_sub_u32 s46, s46, s47
    s_mov_b32 s47, 0
    s_waitcnt lgkmcnt(0)
    s_mov_b64 s[{SX}:{SX+1}], s[64:65]
    s_mov_b64 s[{SWQ}:{SWQ+1}], s[66:67]
    s_cmp_lt_u32 s{SW}, 4
    s_cbranch_scc1 L_compute
    """)

def common_setup(a):
    for d, nb in ((SWO, 448*896), (SWS, WS_BYTES), (SG, 448*3584), (SU, 448*3584), (SD, 1792*896), (SOUT, 2048*896), (SDBG, 256)):
        a(f"s_mov_b32 s{d+2}, {nb:#x}\ns_mov_b32 s{d+3}, 0x00020000")
    for d, src in ((SWO, 68), (SG, 72), (SU, 74), (SD, 76), (SOUT, 78), (SDBG, 80), (SWS, 82)):
        a(f"s_mov_b64 s[{d}:{d+1}], s[{src}:{src+1}]")
    if DIAG:
        for i in range(0, 32, 2):
            a(f"s_mov_b64 s[{64+i}:{65+i}], 0")
        a("s_mov_b32 s64, s100")
    a(f"""
    v_and_b32 v12, 31, v1                  ; t
    v_lshrrev_b32 v13, 5, v1               ; hf
    v_mov_b32 v15, 0x3f803f80
    """)

def p1_adv(a):
    a(f"""
    s_add_u32 s46, s46, 1
    s_cmp_eq_u32 s46, 7
    s_cselect_b32 s46, 0, s46
    s_add_u32 s47, s47, 28672
    s_cmp_eq_u32 s47, {5*28672}
    s_cselect_b32 s47, 0, s47
    """)

def p1_issue(a):
    a(f"""
    s_lshl_b32 s60, s46, 7
    s_add_u32 s60, s60, s56
    s_add_u32 m0, s57, s47
    s_mul_i32 s61, s46, {4*16*2688}
    """)
    for q in range(4):
        a(f"buffer_load_dwordx4 v{2+(q&1)}, {sr(SX)}, s60 offen lds")
        if q < 3: a("s_add_u32 m0, m0, 1024\ns_add_u32 s60, s60, 7168")
    a(f"s_add_u32 m0, s59, s47\ns_add_u32 s61, s61, s58")
    for u in range(3):
        a(f"buffer_load_dwordx4 v{16+u}, {sr(SWQ)}, s61 offen lds")
        if u < 2: a("s_add_u32 m0, m0, 1024")
    p1_adv(a)

def rebase_ops(c, regs):
    d = 28672 if c % 5 else -4 * 28672
    return [f"v_add_u32 v{r}, {d & 0xffffffff:#x}, v{r}" for r in regs]

def p1_compute(a):
    ACC = 16; WA = 64; XF = 100; CSA = 112; SEL = 124; WAD = 128
    common_setup(a)
    a(f"""
    v_bfe_u32 v14, v12, 1, 3
    v_xor_b32 v14, v14, v13
    v_lshlrev_b32 v14, 4, v14
    v_lshl_add_u32 v14, v12, 7, v14
    s_lshl_b32 s61, s{SW3}, 5
    v_xor_b32 v14, s61, v14
    v_add_u32 v4, s57, v14
    v_xor_b32 v5, 32, v4
    v_xor_b32 v6, 64, v4
    v_xor_b32 v7, 96, v4
    v_bfe_u32 v9, v1, 4, 1                 ; ch
    v_bfe_u32 v10, v1, 2, 2                ; r
    v_lshl_add_u32 v10, v13, 3, v10
    v_mul_u32_u24 v10, 192, v10
    v_lshl_add_u32 v10, v9, 5, v10
    v_and_b32 v11, 3, v1
    v_lshl_add_u32 v10, v11, 3, v10
    """)
    for i in range(4):
        a(f"""
        s_xor_b32 s61, s{SW3}, {i}
        s_mul_i32 s61, s61, 3072
        s_add_u32 s61, s61, s55
        s_add_u32 s61, s61, 16384
        v_add_u32 v{WAD+i}, s61, v10
        """)
    p1_adv(a)
    if E('SCH1', 1) == 0: p1_adv(a)
    p1_issue(a)
    if E("FPRE", 1):
        a(f"""
        s_cmp_lg_u32 s{SW}, 0
        s_cbranch_scc1 L_p1_nofp
        s_lshl_b32 s60, s2, 10
        s_add_u32 s60, s60, {FA}
        v_lshl_add_u32 v9, v1, 7, s60
        s_lshl_b32 s60, s5, 2
        s_and_b32 s61, s6, 3
        s_add_u32 s60, s60, s61
        s_lshl_b32 s60, s60, 3
        s_lshr_b32 s61, s6, 2
        s_add_u32 s60, s60, s61
        s_lshl_b32 s60, s60, 7             ; (tb*8+fb)*128
        s_add_u32 s61, s60, {FB}
        v_writelane_b32 v9, s61, 6
        s_add_u32 s61, s60, {FD}
        v_writelane_b32 v9, s61, 7
        s_lshl_b32 s61, s2, 7
        s_add_u32 s61, s61, {FC}
        v_writelane_b32 v9, s61, 8
        s_mov_b64 exec, 0x1ff
        buffer_load_dword v251, v9, {sr(SWS)}, 0 offen sc1
        s_mov_b64 exec, -1
L_p1_nofp:
        """)
    for r in range(4): a(f"v_mov_b32 v{SEL+r}, 0")
    setexec(a, 0x0002000100020001)
    for r in range(4): a(f"v_mov_b32 v{SEL+r}, v15")
    a(f"""
    s_mov_b64 exec, -1
    s_lshl_b32 s60, s{SW3}, 9
    s_add_u32 s60, s60, {CSP}
    v_lshl_add_u32 v132, v1, 2, s60
    v_lshlrev_b32 v2, 4, v1                ; lane*16
    s_lshl_b32 s56, s{SW3}, 8
    s_add_u32 s56, s56, {AUX1}
    v_lshl_add_u32 v133, v12, 2, s56
    v_lshl_add_u32 v134, v13, 4, s56
    v_lshlrev_b32 v135, 4, v13
    v_add_u32 v135, {CS1}, v135
    v_lshlrev_b32 v136, 2, v12
    v_add_u32 v136, {CS1}, v136
    v_mov_b32 v14, {KN1}
    v_mov_b32 v228, -1
    v_mov_b32 v229, 0
    v_mov_b32 v230, 0
    v_mov_b32 v231, -1
    v_mov_b32 v232, 0
    s_mov_b32 exec_lo, 0
    v_mov_b32 v228, 0
    v_mov_b32 v229, v15                    ; K pad
    v_mov_b32 v230, 0xffff
    s_mov_b32 exec_lo, 0xf0000000
    s_mov_b32 exec_hi, 0xf0000000
    v_mov_b32 v231, 0                      ; V keep
    s_mov_b32 exec_lo, 0x10000000
    s_mov_b32 exec_hi, 0x10000000
    v_mov_b32 v232, v15
    s_mov_b64 exec, -1
    s_mul_i32 s60, s53, 3
    """)
    for j in range(3):
        a(f"""
        s_add_u32 s61, s60, {j}
        s_and_b32 s62, s61, 15
        s_lshl_b32 s62, s62, 6
        s_add_u32 s62, s62, s54
        s_lshl_b32 s{57+j}, s62, 11
        s_lshl_b32 s62, s62, 12
        s_add_u32 s62, s62, {KVF}
        s_cmp_ge_u32 s61, 16
        s_cselect_b32 s{57+j}, s62, s{57+j}
        s_add_u32 s62, s62, 2048
        s_cmp_ge_u32 s61, 32
        s_cselect_b32 s{57+j}, s62, s{57+j}
        """)
    def reads(ks):
        c, i = divmod(ks, 4)
        pre = []
        if i == 0 and c in (2, 4, 5):
            d = {2: 2*28672, 4: 2*28672, 5: -4*28672}[c]
            pre = [f"v_add_u32 v{r}, {d & 0xffffffff:#x}, v{r}" for r in (4, 5, 6, 7, WAD, WAD+1, WAD+2, WAD+3)]
        so = 28672 if c in (1, 3, 6) else 0
        buf = WA + 12 * (ks % 3)
        L = [f"ds_read_b128 {vr(XF+4*(ks%3))}, v{4+i} offset:{so}"]
        for j in range(3):
            for u in range(2):
                L.append(f"ds_read_b64_tr_b16 v[{buf+4*j+2*u}:{buf+4*j+2*u+1}], v{WAD+i} offset:{so+u*768+j*56}")
        return pre, L
    a(f"""
    s_cmp_eq_u32 s53, 10
    s_cbranch_scc1 L_p1_v1
    s_cmp_gt_u32 s53, 10
    s_cbranch_scc1 L_p1_v2
    """)
    QS = f2u(28 ** -0.5 * math.log2(math.e))
    MEAN, RSTD, CS, P0 = 64, 80, 140, 204
    pk = lambda b: f"v[{b}:{b+1}]"
    def epilogue(types):
        n = 0
        if "Q" in types or "K" in types:
            a("ds_read_b32 v10, v133\nds_read_b32 v11, v133 offset:128"); n += 2
        for j in range(3):
            if types[j] != "V":
                for q in range(4): a(f"ds_read_b128 {vr(CS+16*j+4*q)}, v135 offset:{128*j+32*q}")
                n += 4
        if "V" in types:
            if n: a("s_waitcnt lgkmcnt(4)")
            for j in range(3):
                if types[j] == "V": a(f"ds_read_b32 v{100+2*j}, v136 offset:{128*j}")
            for q in range(4):
                a(f"ds_read_b128 {vr(MEAN+4*q)}, v134 offset:{32*q}\nds_read_b128 {vr(RSTD+4*q)}, v134 offset:{128+32*q}")
        st = lambda j, h: f"buffer_store_dwordx4 {vr(P0+8*j+4*h)}, v2, {sr(SWS)}, s{57+j} offen offset:{1024*h} sc1"
        SC = {"Q": 188, "K": 196}
        if n:
            a(f"s_waitcnt lgkmcnt({12 if 'V' not in types else 13})")
            for t in sorted(set(types) - {"V"}):
                b = SC[t]
                a(f"""
                {f"v_mul_f32 v{b}, {QS:#x}, v11" if t == "Q" else f"v_mov_b32 v{b}, v11"}
                v_mul_f32 v{b+2}, -v10, v{b}
                v_mov_b32 v{b+1}, v{b}
                v_mov_b32 v{b+3}, v{b+2}
                """.replace("v_mul_f32 v%d, -v10" % (b+2), "v_mul_f32_e64 v%d, -v10" % (b+2)))
        carry = []
        for j in range(3):
            acc = ACC + 16*j; P = P0 + 8*j; t = types[j]
            S1 = []; S2 = []
            if t == "V":
                S1 += ["s_waitcnt lgkmcnt(0)", f"v_sub_f32 v{100+2*j}, 0, v{100+2*j}", f"v_mov_b32 v{101+2*j}, v{100+2*j}"]
                S1 += [f"v_pk_fma_f32 {pk(acc+r)}, {pk(MEAN+r)}, {pk(100+2*j)}, {pk(acc+r)}" for r in range(0, 16, 2)]
                S1 += [f"v_pk_mul_f32 {pk(acc+r)}, {pk(acc+r)}, {pk(RSTD+r)}" for r in range(0, 16, 2)]
                S1 += [f"v_cvt_pk_bf16_f32 v{P+r}, v{acc+2*r}, v{acc+2*r+1}" for r in range(8)]
                S1 += [f"v_and_or_b32 v{P+r}, v{P+r}, v231, v232" for r in range(4)] + [st(j, 0)]
                S1 += [f"v_and_or_b32 v{P+r}, v{P+r}, v231, v232" for r in range(4, 8)] + [st(j, 1)]
            else:
                b = SC[t]
                S1 += [f"v_pk_mul_f32 {pk(acc+r)}, {pk(acc+r)}, {pk(b)}" for r in range(0, 16, 2)]
                S1 += [f"s_waitcnt lgkmcnt({8 if 'V' not in types else 13})" if j == 0 else "s_waitcnt lgkmcnt(0)" if j == 1 else ""]
                S1 += [f"v_pk_fma_f32 {pk(acc+r)}, {pk(CS+16*j+r)}, {pk(b+2)}, {pk(acc+r)}" for r in range(0, 16, 2)]
                S1 += [f"v_cvt_pk_bf16_f32 v{P+r}, v{acc+2*r}, v{acc+2*r+1}" for r in range(4)] + [st(j, 0)]
                S1 += [f"v_cvt_pk_bf16_f32 v{P+r}, v{acc+2*r}, v{acc+2*r+1}" for r in range(4, 8)]
                S1 += [f"v_and_b32 v{P+7}, v{P+7}, v228"]
                if t == "K": S1 += [f"v_and_or_b32 v{P+6}, v{P+6}, v228, v229", st(j, 1)]
                else: S1 += [f"v_and_b32 v{P+6}, v{P+6}, v228"]
                n0, n1 = 234 + 2*j, 235 + 2*j
                S2 += [f"v_dot2_f32_bf16 v{n0}, v{P}, v{P}, 0", f"v_dot2_f32_bf16 v{n1}, v{P+1}, v{P+1}, 0"]
                S2 += [f"v_dot2_f32_bf16 v{n0+(r&1)}, v{P+r}, v{P+r}, v{n0+(r&1)}" for r in range(2, 8)]
                S2 += ["", "", f"v_add_f32 v{n0}, v{n0}, v{n1}", f"v_mov_b32 v{n1}, v{n0}", "", f"v_permlane32_swap_b32 v{n0}, v{n1}", f"v_add_f32 v{n0}, v{n0}, v{n1}"]
                if t == "Q":
                    S2 += [f"v_sqrt_f32 v{n0}, v{n0}", f"v_mul_f32 v{n0}, {f2u(1.0+1.0/128):#x}, v{n0}", f"v_add_u32 v{n0}, 0xffff, v{n0}",
                           f"v_lshrrev_b32 v{n0}, 16, v{n0}", f"v_and_or_b32 v{P+6}, v{n0}, v230, v{P+6}", st(j, 1)]
                else:
                    S2 += [f"ds_max_u32 v14, v{n0} offset:{4*j}"]
            for ins in S1:
                a(ins)
                if carry: a(carry.pop(0))
            a.emit(*carry); carry = S2
        a.emit(*carry)
    bars0 = list(a.bars)
    for var, isv in enumerate(((0,0,0), (0,0,1), (1,1,1))):
        a.bars = list(bars0)
        a(f"L_p1_v{var}:")
        a.bar("p1s0")
        a.stamp(1)
        a.emit(*reads(0)[1]); a.emit(*reads(1)[1])
        LATE = E("LATE1", 7)
        for ks in range(28):
            st_next = (ks + 2) // 4
            if ks % 4 == 2 and ks < 26 and st_next < LATE:
                if ks == (2 if E('SCH1', 1) else 6): a(f"s_waitcnt vmcnt({1 if E('FPRE', 1) else 0})" if False else "s_waitcnt vmcnt(0)")
                a.bar(f"p1s{st_next}")
            if ks % 4 == 0 and ks // 4 >= LATE:
                a.bar(f"p1s{ks//4}")
                pre, rd = reads(ks); a.emit(*pre); a.emit(*rd); a.emit(*reads(ks + 1)[1])
            ahead = ks < 26 and not (st_next >= LATE and st_next != ks // 4)
            pre, rd = reads(ks + 2) if ahead else ([], [])
            buf = WA + 12 * (ks % 3)
            a.emit(*pre)
            prev_ahead = (ks + 1 < 28) and not ((ks + 1) // 4 >= LATE and (ks + 1) // 4 != ks // 4)
            if ks < 27: a(f"s_waitcnt lgkmcnt({13 if ks == 26 else 7 if prev_ahead else 0})")
            for j in range(3):
                A, B = vr(buf + 4*j), vr(XF + 4*(ks % 3))
                if isv[j]: A, B = B, A
                C = "0" if ks == 0 else vr(ACC + 16*j, 16)
                a(f"v_mfma_f32_32x32x16_bf16 {vr(ACC+16*j,16)}, {A}, {B}, {C}")
                a.emit(*rd[[0,3,5][j]:[3,5,7][j]])
            if ks % 4 == 0:
                for j in range(3):
                    a(f"v_mfma_f32_16x16x32_bf16 {vr(CSA+4*j)}, {vr(SEL)}, {vr(buf+4*j)}, {'0' if ks == 0 else vr(CSA+4*j)}")
            if ks == 25:
                a("s_mov_b64 exec, 0xffff")
                for j in range(3):
                    a(f"ds_write_b32 v132, v{CSA+4*j} offset:{128*j}\nds_write_b32 v132, v{CSA+4*j+1} offset:{128*j+64}")
                a("s_mov_b64 exec, -1")
            if ks == 26:
                a("s_waitcnt lgkmcnt(0)")
                a.bar("p1C")
        a.stamp(2)
        if var == 0:
            a("s_cmp_lt_u32 s53, 5\ns_cbranch_scc1 L_p1_eQQQ\ns_cmp_eq_u32 s53, 5\ns_cbranch_scc1 L_p1_eQKK")
            eps = ("KKK", "QQQ", "QKK")
        else:
            eps = (("KKV",), ("VVV",))[var - 1]
        bars1 = list(a.bars)
        for ep in eps:
            a.bars = list(bars1)
            a(f"L_p1_e{ep}:")
            a.bar("p1S")
            a.stamp(3)
            epilogue(ep)
            if ep != "VVV": a("s_branch L_p1_done")
    a("L_p1_done:")
    a.stamp(4)

def p1_helper(a):
    XF = 96; G = 68; SM = 76; ONES = 88; SEL = 84; CSA = 64
    vm = VM()
    SCH = E("SCH1", 1)
    if SCH == 0:
        a("L_h1_il:")
        p1_issue(a)
        a(f"s_cmp_lt_u32 s47, {2*28672}\ns_cbranch_scc1 L_h1_il")
        p1_adv(a)
        vm.add("s0", 7); vm.add("s1", 7)
        sched = {0: [3], 1: [4], 2: [5], 3: [6]}
    else:
        p1_issue(a); p1_adv(a)
        vm.add("s0", 7)
        sched = [None, {0: [2], 1: [3, 4], 2: [5], 3: [6]}, {0: [2, 3], 1: [4], 2: [5], 3: [6]}, {0: [2], 1: [3], 2: [4, 5], 3: [6]}][SCH]
    common_setup(a)
    a.stamp(1)
    a(f"""
    s_cmp_lg_u32 s{SW}, 4
    s_cbranch_scc1 L_h_nononce
    s_cmp_lg_u32 s2, 0
    s_cbranch_scc1 L_h_nononce
    s_memrealtime s[{NON}:{NON+1}]
    s_waitcnt lgkmcnt(0)
    s_or_b32 s{NON+1}, s{NON+1}, 0x80000000
    v_mov_b32 v10, s{NON}
    v_mov_b32 v11, s{NON+1}
    v_mov_b32 v9, 0
    s_mov_b64 exec, 1
    buffer_store_dwordx2 v[10:11], v9, {sr(SDBG)}, 0 offen sc1
    s_mov_b64 exec, -1
L_h_nononce:
    v_and_b32 v9, 15, v1
    v_lshrrev_b32 v10, 1, v9
    v_lshrrev_b32 v11, 4, v1
    v_xor_b32 v10, v10, v11
    v_lshlrev_b32 v10, 4, v10
    v_lshl_add_u32 v10, v9, 7, v10
    v_add_u32 v4, s57, v10
    v_xor_b32 v5, 64, v4
    v_lshlrev_b32 v14, 2, v11
    v_add_u32 v14, {KN1}, v14
    v_mov_b32 v10, 0
    ds_write_b32 v14, v10
    s_and_b32 s63, s{SW}, 1
    s_lshl_b32 s60, s{SW3}, 7
    v_lshl_add_u32 v8, v12, 2, s60
    v_add_u32 v19, {CS1}, v8
    v_add_u32 v8, {CSP}, v8
    s_lshl_b32 s60, s{SW3}, 8
    s_add_u32 s60, s60, {AUX1}
    v_lshl_add_u32 v9, v9, 2, s60
    {"s_setprio 3" if E("HPRIO", 1) else ""}
    """)
    for r in range(4): a(f"v_mov_b32 v{ONES+r}, v15")
    STAG = E("STAG", 0)
    def work(c):
        xf = XF + 16 * (c & 1)
        for i in range(4):
            th, kh = i & 1, i >> 1
            z = (c == 0 and kh == 0)
            a(f"v_mfma_f32_16x16x32_bf16 {vr(G+4*th)}, {vr(xf+4*i)}, {vr(xf+4*i)}, {'0' if z else vr(G+4*th)}")
            a(f"v_mfma_f32_16x16x32_bf16 {vr(SM+4*th)}, {vr(ONES)}, {vr(xf+4*i)}, {'0' if z else vr(SM+4*th)}")
    for c in range(7):
        a(vm.wait(f"s{c}"))
        a("s_waitcnt lgkmcnt(0)")
        if c in (0, 3, 6): a.stamp(2 + c // 3)
        a.bar(f"p1s{c}")
        if c > 0: a.emit(*rebase_ops(c, (4, 5)))
        xf = XF + 16 * (c & 1)
        for i in range(4):
            a(f"ds_read_b128 {vr(xf+4*i)}, v{4+(i>>1)} offset:{(i&1)*2048}")
        for n in sched.get(c, []):
            p1_issue(a)
            vm.add(f"s{n}", 7)
        if 0 < c <= 4: work(c - 1)
        if c in (4, 5):
            a("s_waitcnt lgkmcnt(0)")
            work(c)
        n = c + 3
        if n <= 6:
            if n == 6 and TF:
                a(f"""
                s_and_b32 s48, s5, 1
                s_lshl_b32 s48, s48, 3
                s_and_b32 s60, s6, 7
                s_add_u32 s48, s48, s60
                s_lshl_b32 s60, s{SW3}, 4
                s_add_u32 s48, s48, s60
                s_cmp_ge_u32 s48, 28
                s_cbranch_scc1 L_h1_notf
                s_lshr_b32 s49, s5, 1
                s_lshl_b32 s49, s49, 2
                s_lshr_b32 s60, s6, 3
                s_add_u32 s49, s49, s60            ; cb4
                s_mul_i32 s50, s48, {16*3584}
                s_mul_i32 s60, s49, 224
                s_and_b32 s61, s60, 63
                s_sub_u32 s60, s60, s61
                s_add_u32 s50, s50, s60
                s_lshl_b32 s51, s{SW3}, 13
                s_add_u32 s51, s51, {TSTG}
                s_add_u32 s61, s61, s51
                v_lshrrev_b32 v10, 4, v1
                v_mul_u32_u24 v10, {4*3584}, v10
                v_and_b32 v11, 15, v1
                v_lshl_add_u32 v20, v11, 4, v10
                v_bfe_u32 v10, v1, 2, 2
                v_lshlrev_b32 v10, 10, v10
                v_lshl_add_u32 v10, v13, 9, v10
                v_and_b32 v11, 1, v1
                v_lshl_add_u32 v10, v11, 4, v10
                v_bfe_u32 v11, v1, 4, 1
                v_lshl_add_u32 v10, v11, 3, v10
                v_bfe_u32 v11, v1, 1, 1
                v_lshl_add_u32 v10, v11, 12, v10
                v_add_u32 v6, s61, v10
                """)
                for i in range(4):
                    a(f"""
                    s_add_u32 m0, s51, {i*1024}
                    s_nop 0
                    buffer_load_dwordx4 v20, {sr(SG)}, s50 offen lds
                    s_add_u32 m0, s51, {i*1024+4096}
                    s_nop 0
                    buffer_load_dwordx4 v20, {sr(SU)}, s50 offen lds
                    s_add_u32 s50, s50, 3584
                    """)
                a("s_branch L_h1_tf\nL_h1_notf:")
                for i in range(8): a(f"buffer_load_dword v22, v1, {sr(SDBG)}, 0 offen offset:512")
                a("L_h1_tf:")
                vm.add("t", 8)
    a("s_waitcnt lgkmcnt(0)")
    work(6)
    for r in range(1, 4):
        setexec(a, sum(1 << (20*g + r) for g in range(4)))
        a(f"v_mov_b32 v{G}, v{G+r}\nv_mov_b32 v{G+4}, v{G+4+r}")
    setexec(a, sum(15 << (20*g) for g in range(4)))
    for th in range(2):
        mn, sq = SM + 4*th, G + 4*th
        a(f"""
        v_mul_f32 v{mn}, {f2u(1.0/448):#x}, v{mn}
        v_mul_f32 v{sq}, {f2u(1.0/448):#x}, v{sq}
        v_fma_f32 v{sq}, -v{mn}, v{mn}, v{sq}
        v_max_f32 v{sq}, 0, v{sq}
        v_add_f32 v{sq}, {f2u(1e-5):#x}, v{sq}
        v_rsq_f32 v{sq}, v{sq}
        ds_write_b32 v9, v{mn} offset:{64*th}
        s_nop 0
        ds_write_b32 v9, v{sq} offset:{128+64*th}
        """)
    a("s_mov_b64 exec, -1")
    a.bar("p1C")
    for w in range(4): a(f"ds_read_b32 v{CSA+w}, v8 offset:{512*w}")
    a(f"""
    s_waitcnt lgkmcnt(0)
    v_add_f32 v{CSA}, v{CSA}, v{CSA+1}
    v_add_f32 v{CSA+2}, v{CSA+2}, v{CSA+3}
    v_add_f32 v{CSA}, v{CSA}, v{CSA+2}
    ds_write_b32 v19, v{CSA}
    s_waitcnt lgkmcnt(0)
    s_setprio 0
    """)
    a.bar("p1S")
    a(f"""
    v_mov_b32 v9, 0
    s_mov_b32 s60, 0
L_h_nl:
    buffer_load_dwordx2 v[24:25], v9, {sr(SDBG)}, 0 offen sc1
    s_add_u32 s60, s60, 1
    s_waitcnt vmcnt(0)
    v_readfirstlane_b32 s{NON}, v24
    v_readfirstlane_b32 s{NON+1}, v25
    s_cmp_gt_u32 s60, {POLL_MAX}
    s_cbranch_scc1 L_h_gotnonce
    s_cmp_eq_u32 s{NON+1}, 0
    s_cbranch_scc1 L_h_nl
L_h_gotnonce:
    """)
    if TF:
        a("s_cmp_ge_u32 s48, 28\ns_cbranch_scc1 L_h1_notf2")
        for j in range(7):
            for u in range(2):
                a(f"ds_read_b64_tr_b16 v[{36+4*j+2*u}:{37+4*j+2*u}], v6 offset:{u*256+j*32}")
        a(f"""
        s_mul_i32 s50, s49, {28*SLOT}
        s_mul_i32 s60, s48, {SLOT}
        s_add_u32 s50, s50, s60
        s_add_u32 s50, s50, {WGU}
        s_add_u32 s51, s50, 4096
        v_lshlrev_b32 v2, 4, v1
        s_waitcnt lgkmcnt(0)
        """)
        if E("TST", 0) == 0: tstores(a)
        a("L_h1_notf2:")
    a(f"""
    s_mul_i32 s60, s53, 3
    v_lshrrev_b32 v9, 4, v1
    v_add_u32 v9, s60, v9                  ; p
    v_and_b32 v10, 15, v9                  ; h
    v_lshrrev_b32 v9, 4, v9                ; type
    v_lshlrev_b32 v9, 8, v9
    v_lshl_add_u32 v9, v10, 10, v9
    v_and_b32 v10, 15, v1
    v_lshl_add_u32 v18, v10, 14, v9
    s_lshl_b32 s62, s52, 4
    s_add_u32 s62, s62, {FA}
    v_mov_b32 v27, 0
    s_lshl_b32 s60, s2, 10
    s_add_u32 s60, s60, {FA+256}
    v_lshl_add_u32 v17, v1, 4, s60
    s_lshr_b32 s61, s2, 4
    s_lshl_b32 s61, s61, 4
    s_add_u32 s60, s60, s61
    s_sub_u32 s60, s60, 256
    s_mov_b32 exec_lo, 0
    v_mov_b32 v17, s60
    s_mov_b32 exec_lo, -1
    """)

def tstores(a):
    for j in range(7):
        a(f"buffer_store_dwordx4 {vr(36+4*j)}, v2, {sr(SWS)}, s{50 if j < 4 else 51} offen offset:{(j%4)*1024} sc1")

def publish(a, tag, code, mask):
    a(f"""
    s_cmp_lg_u32 s{SW}, 4
    s_cbranch_scc1 L_pub_{tag}
    {code}
    v_mov_b32 v10, s{NON}
    v_mov_b32 v11, s{NON+1}
    s_mov_b64 exec, {mask:#x}
    buffer_store_dwordx2 v[10:11], v9, {sr(SWS)}, s60 offen sc1
    s_mov_b64 exec, -1
L_pub_{tag}:
    """)

def pub14(r, slot, base):
    return f"""v_lshlrev_b32 v9, 7, v1
    s_lshl_b32 s60, s{r}, 11
    s_lshl_b32 s61, s{slot}, 3
    s_add_u32 s60, s60, s61
    s_add_u32 s60, s60, {base}"""

def poll(a, tag, vaddr, mask, wide=False, dst=10, pipe=False, backoff=0):
    n = 4 if wide else 2
    ld = lambda d: f"buffer_load_dwordx{n} {vr(d, n)}, v{vaddr}, {sr(SWS)}, 0 offen sc1"
    setexec(a, mask)
    if not pipe:
        a(f"""
        s_mov_b32 s60, 0
L_poll_{tag}:
        {ld(dst)}
        s_add_u32 s60, s60, 1
        s_waitcnt vmcnt(0)
        v_cmp_ne_u64 vcc, s[{NON}:{NON+1}], v[{dst}:{dst+1}]
        s_cmp_gt_u32 s60, {POLL_MAX}
        s_cbranch_scc1 L_polld_{tag}
        {f"s_cbranch_vccz L_polld_{tag}" if backoff else ""}
        {f"s_sleep {backoff}" if backoff else ""}
        s_cbranch_vccnz L_poll_{tag}
L_polld_{tag}:
        s_mov_b64 exec, -1
        """)
        return
    a(f"""
    s_mov_b32 s60, 0
    v_mov_b32 v{dst}, 0
    v_mov_b32 v{dst+1}, 0
L_poll_{tag}:
    {ld(dst)}
    s_add_u32 s60, s60, 1
    s_sleep 4
    s_waitcnt vmcnt(8)
    v_cmp_ne_u64 vcc, s[{NON}:{NON+1}], v[{dst}:{dst+1}]
    s_cmp_gt_u32 s60, {POLL_MAX}
    s_cbranch_scc1 L_polld_{tag}
    s_cbranch_vccnz L_poll_{tag}
L_polld_{tag}:
    s_mov_b64 exec, -1
    """)

def p2_ids(a):
    a("s_and_b32 s52, s2, 15\ns_lshr_b32 s53, s2, 4")

def late_ids(a):
    a(f"""
    s_lshl_b32 s47, s5, 2
    s_and_b32 s46, s6, 3
    s_add_u32 s47, s47, s46                ; tb
    s_lshr_b32 s46, s6, 2                  ; fb
    s_and_b32 s56, s5, 1
    s_lshl_b32 s56, s56, 3
    s_and_b32 s57, s6, 7
    s_add_u32 s56, s56, s57                ; rb
    s_lshr_b32 s57, s5, 1
    s_lshl_b32 s57, s57, 2
    s_lshr_b32 s60, s6, 3
    s_add_u32 s57, s57, s60                ; cb
    """)

def p2_compute(a):
    Q = 16; O = 48; S = [112, 128]; P = 144; KV = 152; RA = 216
    pk = lambda b: f"v[{b}:{b+1}]"
    p2_ids(a)
    a(f"""
    s_lshl_b32 s54, s52, 6                 ; h*64
    s_lshl_b32 s55, s{SW3}, 4
    s_add_u32 s55, s55, s54
    s_lshl_b32 s55, s55, 12
    s_add_u32 s55, s55, {KVF}
    s_add_u32 s{SKV}, s{SWS}, s55
    s_addc_u32 s{SKV+1}, s{SWS+1}, 0
    s_mov_b32 s{SKV+2}, 65536
    s_mov_b32 s{SKV+3}, 0x00020000
    s_lshl_b32 s55, s53, 2
    s_add_u32 s55, s55, s54                ; h*64 + qb*4
    v_lshlrev_b32 v3, 2, v1
    v_mov_b32 v9, {AUX2}
    s_mov_b32 s62, 0                       ; pass
    """)
    for j in range(4):
        a(f"""
        s_add_u32 s60, s{SW3}, {j+1}
        s_and_b32 s60, s60, 3
        s_add_u32 s{56+j}, s60, s55
        s_lshl_b32 s{56+j}, s{56+j}, 11
        s_mul_i32 s60, s60, 12288
        s_add_u32 s60, s60, {RREG + (j*4096 if j < 3 else 0)}
        v_add_u32 v{RA+j}, s60, v2
        """)
    a("s_waitcnt vmcnt(0) lgkmcnt(0)")
    a.stamp(5)
    a.bar("p1X")
    a("s_mov_b32 s63, s58")
    p3_addr(a)
    a(f"s_mov_b32 s58, s63\nv_mov_b32 v9, {AUX2}")
    def zero():
        for r in range(64): a(f"v_mov_b32 v{O+r}, 0")
        for r in range(4): a(f"v_mov_b32 v{P+4+r}, 0\nv_mov_b32 v{KV+48+12+r}, 0")
    if DRY & 2:
        a("s_mov_b32 s61, 0")
        dry_call(a, "2", 4)
    a.bar("p2P")
    a.stamp(6)
    def kvl(t):
        kt, f = divmod(t, 4)
        return f"buffer_load_dwordx4 {vr(KV+16*kt+4*f)}, v2, {sr(SKV)}, s61 offen offset:{f*1024} sc1"
    def ql(j):
        a(f"buffer_load_dwordx4 {vr(Q+8*j+4)}, v2, {sr(SWS)}, s{56+j} offen offset:1024 sc1")
        a(f"buffer_load_dwordx4 {vr(Q+8*j)}, v2, {sr(SWS)}, s{56+j} offen sc1")
    KG = E("KVG", 4)
    a(f"ds_read_b32 v5, v9 offset:4\ns_and_b32 s61, s53, {KG-1}\ns_mul_i32 s61, s61, {65536//KG}")
    ql(0); a(kvl(0)); a(kvl(1)); ql(1); a(kvl(2)); a(kvl(3)); ql(2); ql(3)
    NPRE = E("NPRE", 6)
    adv = "s_add_u32 s61, s61, 4096\ns_and_b32 s61, s61, 0xffff"
    for t in range(4, NPRE):
        if t % 4 == 0: a(adv)
        a(kvl(t))
    def patch(j):
        return ["s_mov_b32 exec_lo, 0", f"v_lshlrev_b32 v6, 16, v{Q+8*j+6}", "v_mul_f32 v6, v5, v6", "v_add_u32 v6, 0x8000ffff, v6",
                f"v_lshrrev_b32 v{Q+8*j+6}, 16, v6", "s_mov_b32 exec_lo, -1"]
    a(f"s_waitcnt vmcnt({6+NPRE}) lgkmcnt(0)")
    a.emit(*patch(0))
    a(f"""
    s_waitcnt vmcnt({4+NPRE})
    v_mfma_f32_32x32x16_bf16 {vr(S[0],16)}, {vr(KV)}, {vr(Q)}, 0
    v_mfma_f32_32x32x16_bf16 {vr(S[0],16)}, {vr(KV+4)}, {vr(Q+4)}, {vr(S[0],16)}
    s_waitcnt vmcnt({NPRE-4})
    """)
    for j in (1, 2, 3): a.emit(*patch(j))
    a("s_branch L_p2_first" if False else "")
    a.stamp(7)
    def wr(j): return [f"ds_write_b128 v{RA+j}, {vr(O+16*j+4*q)} offset:{q*1024}" for q in range(4)]
    adv = "s_add_u32 s61, s61, 4096\ns_and_b32 s61, s61, 0xffff"
    def body(kind):
        last = kind == "last"; first = kind == "first"
        vm = VM()
        if first:
            for t in range(4, NPRE): vm.add(f"t{t}")
            todo = list(range(NPRE, 29))
        else:
            for t in range(13): vm.add(f"t{t}")
            todo = list(range(13, 16 if last else 29))
        def ld():
            if not todo: return
            t = todo.pop(0)
            if t % 4 == 0: a(adv)
            a(f"buffer_load_dwordx4 {vr(KV+16*((t//4)%4)+4*(t%4))}, v2, {sr(SKV)}, s61 offen offset:{(t%4)*1024} sc1")
            vm.add(f"t{t}")
        for u in range(16):
            kt, qi = divmod(u, 4)
            ktn, qn = divmod((u + 1) % 16, 4)
            ktp, qp = divmod((u - 1) % 16, 4)
            Sc, Sn = S[u & 1], S[(u + 1) & 1]
            e = lambda r: f"v_exp_f32 v{Sc+r}, v{Sc+r}"
            c = lambda r: f"v_cvt_pk_bf16_f32 v{P+r}, v{Sc+2*r}, v{Sc+2*r+1}"
            A = f"v_mfma_f32_32x32x16_bf16 {vr(Sn,16)}, {vr(KV+16*ktn)}, {vr(Q+8*qn)}, 0"
            B = f"v_mfma_f32_32x32x16_bf16 {vr(O+16*qp,16)}, {vr(KV+16*ktp+12)}, {vr(P+4)}, {vr(O+16*qp,16)}"
            C = f"v_mfma_f32_32x32x16_bf16 {vr(Sn,16)}, {vr(KV+16*ktn+4)}, {vr(Q+8*qn+4)}, {vr(Sn,16)}"
            D = f"v_mfma_f32_32x32x16_bf16 {vr(O+16*qi,16)}, {vr(KV+16*kt+8)}, {vr(P)}, {'0' if first and kt == 0 else vr(O+16*qi,16)}"
            W = ["", "", "", ""]
            gi = {"first": 0, "mid": 16, "last": 32}[kind] + u
            if DRY & 2 and gi % 12 == 0:
                if gi: a("s_cbranch_execz L_dry2_ret")
                a(f"L_dry2_{gi//12}:")
            if (last and u == 8) or (first and u == 3):
                if DRY & 2: a(f"s_cbranch_execz L_dry2s{gi}")
                a.bar("p2R0" if last else "p2Y")
                if DRY & 2: a(f"L_dry2s{gi}:")
            if last and u in (14, 15): W = wr(u - 14)
            fin = last and u == 15
            extra = lambda: first and todo and todo[0] < 13 + u
            if qi == 3 and not fin: a(vm.wait(f"t{4*(kt+1)+1}"))
            if not fin: a(A)
            if extra(): ld()
            a.emit(W[0], e(0), e(1), e(2), e(3), c(0), c(1))
            if qi == 1: a(vm.wait(f"t{4*kt+3}"))
            if not (first and u == 0): a(B)
            if extra(): ld()
            a.emit(W[1], e(4), e(5), e(6), e(7), c(2), c(3))
            if not fin: a(C)
            if todo and todo[0] <= 13 + u: ld()
            a.emit(W[2], e(8), e(9), e(10), e(11), c(4), c(5))
            if qi == 0: a(vm.wait(f"t{4*kt+2}"))
            a(D)
            if extra(): ld()
            a.emit(W[3], e(12), e(13), e(14), e(15), c(6), c(7))
        assert not todo
    a("L_p2_first:")
    body("first")
    a("s_mov_b32 s63, 0\nL_p2_loop:")
    body("mid")
    a(f"""
    s_add_u32 s63, s63, 1
    s_cmp_lt_u32 s63, 2
    {"s_cbranch_execz L_p2_lastb" if DRY & 2 else ""}
    s_cbranch_scc1 L_p2_loop
L_p2_lastb:
    """)
    body("last")
    a(f"v_mfma_f32_32x32x16_bf16 {vr(O+48,16)}, {vr(KV+48+12)}, {vr(P+4)}, {vr(O+48,16)}")
    a.emit(*wr(2))
    if DRY & 2: a("s_cbranch_execz L_dry2_ret")
    a(f"""
    s_lshl_b32 s60, s53, 2
    s_add_u32 s60, s60, s{SW3}
    s_lshl_b32 s60, s60, 15
    s_lshl_b32 s61, s52, 11
    s_add_u32 s60, s60, s61
    s_add_u32 s60, s60, {OF}
    v_mov_b32 v6, 0x1f800000
    v_mov_b32 v7, 0x5f800000
    s_waitcnt lgkmcnt(0)
    """)
    a.stamp(8)
    a.bar("p2R1")
    a.stamp(9)
    OW = O + 48
    for q in range(12):
        a(f"ds_read_b128 {vr(O+4*q)}, v{RA+3} offset:{q*1024}")
    for j in range(3):
        a(f"s_waitcnt lgkmcnt({8-4*j})")
        for r in range(0, 16, 2):
            a(f"v_pk_add_f32 {pk(OW+r)}, {pk(OW+r)}, {pk(O+16*j+r)}")
    a(f"""
    v_mov_b32 v10, v{OW+12}
    v_mov_b32 v11, v{OW+12}
    v_permlane32_swap_b32 v10, v11          ; v11 = l
    v_rcp_f32 v10, v11
    v_cmp_nge_f32 vcc, v11, v6
    v_cmp_gt_f32 s[58:59], v11, v7
    v_mov_b32 v11, v10
    """)
    for r in range(0, 16, 2):
        a(f"v_pk_mul_f32 {pk(OW+r)}, {pk(OW+r)}, v[10:11]")
    for r in range(8):
        a(f"v_cvt_pk_bf16_f32 v{P+r}, v{OW+2*r}, v{OW+2*r+1}")
    a(f"""
    buffer_store_dwordx4 {vr(P)}, v2, {sr(SWS)}, s60 offen sc1
    s_mov_b32 exec_lo, 0
    v_mov_b32 v{P+6}, 0
    v_mov_b32 v{P+7}, 0
    s_mov_b32 exec_lo, -1
    buffer_store_dwordx4 {vr(P+4)}, v2, {sr(SWS)}, s60 offen offset:1024 sc1
    s_or_b64 vcc, vcc, s[58:59]
    s_cbranch_scc0 L_p2_ok
    v_mov_b32 v10, 1
    ds_write_b32 v9, v10
L_p2_ok:
    """)
    a.stamp(10)
    p3_pre(a)
    a("s_waitcnt vmcnt(0) lgkmcnt(0)")
    a.bar("p2R2")
    a(f"""
    s_cmp_lg_u32 s62, 0
    s_cbranch_scc1 L_p2_done
    ds_read_b32 v10, v9
    s_waitcnt lgkmcnt(0)
    v_readfirstlane_b32 s60, v10
    s_cmp_eq_u32 s60, 0
    s_cbranch_scc1 L_p2_done
    s_mov_b32 s62, 1
    s_mov_b32 exec_lo, 0
    """)
    for j in range(4): a(f"v_mov_b32 v{Q+8*j+6}, 0")
    a("s_mov_b32 exec_lo, -1")
    for j in range(4): a(f"v_mov_b32 v{O+j}, 0xff800000")
    a(f"""
    s_mov_b32 s61, 0
L_p2_mx:
    buffer_load_dwordx4 {vr(KV)}, v2, {sr(SKV)}, s61 offen sc1
    buffer_load_dwordx4 {vr(KV+4)}, v2, {sr(SKV)}, s61 offen offset:1024 sc1
    s_waitcnt vmcnt(0)
    """)
    for j in range(4):
        a(f"""
        v_mfma_f32_32x32x16_bf16 {vr(S[0],16)}, {vr(KV)}, {vr(Q+8*j)}, 0
        v_mfma_f32_32x32x16_bf16 {vr(S[0],16)}, {vr(KV+4)}, {vr(Q+8*j+4)}, {vr(S[0],16)}
        """)
        for r in range(8):
            a(f"v_max3_f32 v{O+j}, v{S[0]+2*r}, v{S[0]+2*r+1}, v{O+j}")
    a("s_add_u32 s61, s61, 4096\ns_cmp_lt_u32 s61, 65536\ns_cbranch_scc1 L_p2_mx")
    for j in range(4):
        a(f"""
        v_mov_b32 v10, v{O+j}
        v_permlane32_swap_b32 v{O+j}, v10
        v_max_f32 v{O+j}, v{O+j}, v10
        s_add_u32 s60, s{SW3}, {j+1}
        s_and_b32 s60, s60, 3
        s_lshl_b32 s60, s60, 10
        s_add_u32 s60, s60, {RREG}
        v_add_u32 v{O+8+j}, s60, v3
        s_lshl_b32 s61, s{SW3}, 8
        v_add_u32 v10, s61, v{O+8+j}
        ds_write_b32 v10, v{O+j}
        """)
    a("s_waitcnt lgkmcnt(0)\ns_barrier")
    for j in range(4):
        for w in range(4):
            a(f"ds_read_b32 v{O+16+4*j+w}, v{O+8+j} offset:{256*w}")
        a("s_waitcnt lgkmcnt(0)")
    for j in range(4):
        b = O + 16 + 4*j
        a(f"""
        v_max3_f32 v10, v{b}, v{b+1}, v{b+2}
        v_max_f32 v10, v10, v{b+3}
        v_sub_f32 v10, 0, v10
        v_and_b32 v11, 0xffff0000, v10
        v_sub_f32 v14, v10, v11
        v_cvt_pk_bf16_f32 v10, v11, v14
        s_mov_b32 exec_lo, 0
        v_mov_b32 v{Q+8*j+6}, v10
        s_mov_b32 exec_lo, -1
        """)
    a(f"s_and_b32 s61, s53, {KG-1}\ns_mul_i32 s61, s61, {65536//KG}")
    for t in range(NPRE):
        if t and t % 4 == 0: a(adv)
        a(kvl(t))
    a(f"""
    s_waitcnt vmcnt(0)
    v_mfma_f32_32x32x16_bf16 {vr(S[0],16)}, {vr(KV)}, {vr(Q)}, 0
    v_mfma_f32_32x32x16_bf16 {vr(S[0],16)}, {vr(KV+4)}, {vr(Q+4)}, {vr(S[0],16)}
    s_nop 15
    s_branch L_p2_first
L_p2_done:
    """)
    a.stamp(11)

def gu_dma(a, n, tag, vm, thr=None):
    if not TF:
        for t in range(n):
            a(f"""
            s_mov_b32 m0, s59
            s_add_u32 s59, s59, {SLOT}
            buffer_load_dwordx4 v20, {sr(SG)}, s58 offen lds
            s_add_u32 m0, m0, 4384
            s_add_u32 s60, s58, {16*3584}
            buffer_load_dwordx4 v20, {sr(SU)}, s58 offen lds
            s_sub_u32 s61, s60, {28*16*3584}
            s_cmp_ge_u32 s60, {28*16*3584}
            s_cselect_b32 s58, s61, s60
            {f"s_waitcnt vmcnt({thr})" if thr is not None else ""}
            """)
        vm.add(tag, 2 * n)
        return
    n //= 4
    for t in range(n):
        a(f"""
        s_mul_i32 s60, s63, {4*SLOT}
        s_add_u32 s60, s60, s58
        s_mov_b32 m0, s59
        s_add_u32 s61, s60, 4096
        """)
        for q in range(4): a(f"buffer_load_dwordx4 v2, {sr(SWS)}, s60 offen offset:{q*1024} sc1 lds")
        a(f"s_add_u32 m0, m0, 4096\ns_add_u32 s59, s59, {4*SLOT}")
        for q in range(3): a(f"buffer_load_dwordx4 v2, {sr(SWS)}, s61 offen offset:{q*1024} sc1 lds")
        a("s_add_u32 s63, s63, 1\ns_cmp_eq_u32 s63, 7\ns_cselect_b32 s63, 0, s63")
    vm.add(tag, 7 * n)

def rot4(a, dst):
    a(f"""
    s_lshr_b32 s60, s6, 3
    s_lshl_b32 s60, s60, 1
    s_and_b32 s{dst}, s6, 7
    s_add_u32 s{dst}, s{dst}, s60
    s_cmp_ge_u32 s{dst}, 7
    s_cselect_b32 s60, 7, 0
    s_sub_u32 s{dst}, s{dst}, s60
    """)

def rot5(a, dst, add=0):
    a(f"""
    s_and_b32 s60, s6, 3
    s_mul_i32 s60, s60, {E('TBROT', 1)}
    s_lshl_b32 s{dst}, s46, 2
    s_add_u32 s{dst}, s{dst}, s60
    s_add_u32 s{dst}, s{dst}, {add}
    s_mul_i32 s60, s5, {E("XR5", 7)}
    s_lshr_b32 s60, s60, 1
    s_add_u32 s{dst}, s{dst}, s60
    s_cmp_ge_u32 s{dst}, 28
    s_cselect_b32 s60, 28, 0
    s_sub_u32 s{dst}, s{dst}, s60
    s_cmp_ge_u32 s{dst}, 28
    s_cselect_b32 s60, 28, 0
    s_sub_u32 s{dst}, s{dst}, s60
    s_cmp_ge_u32 s{dst}, 28
    s_cselect_b32 s60, 28, 0
    s_sub_u32 s{dst}, s{dst}, s60
    """)

def tr128_addr(a, dst, sft, sxh, hfshift):
    a(f"""
    v_bfe_u32 v9, v1, 2, 2                 ; r
    v_lshl_add_u32 v10, v13, {hfshift}, v9
    v_lshlrev_b32 v10, 7, v10
    v_lshrrev_b32 v9, 1, v9
    v_xor_b32 v9, s{sft}, v9
    v_lshl_add_u32 v10, v9, 6, v10
    v_bfe_u32 v9, v1, 4, 1                 ; ch
    {f"v_xor_b32 v9, s{sxh}, v9" if sxh else ""}
    v_lshl_add_u32 v10, v9, 5, v10
    v_and_b32 v9, 1, v1
    v_lshl_add_u32 v10, v9, 4, v10
    v_bfe_u32 v9, v1, 1, 1
    v_lshl_add_u32 v{dst}, v9, 3, v10
    """)

def wd_loop(a, n, tag, lds=True, throttle=False):
    ld = (lambda: f"buffer_load_dwordx4 v21, {sr(SD)}, s60 offen lds\ns_add_u32 m0, m0, 1024") if lds else (lambda: f"buffer_load_dwordx4 v[24:27], v21, {sr(SD)}, s60 offen")
    a(f"""
    s_mov_b32 s61, 0
L_wd_{tag}:
    s_mul_i32 s60, s54, {16*896}
    s_add_u32 s60, s60, s55
    {ld()}
    s_add_u32 s60, s60, {8*896}
    s_add_u32 s54, s54, 1
    {ld()}
    s_cmp_eq_u32 s54, 28
    s_cselect_b32 s54, 0, s54
    s_add_u32 s61, s61, 1
    {f"s_waitcnt vmcnt({PFW})" if throttle else ""}
    s_cmp_lt_u32 s61, {n}
    s_cbranch_scc1 L_wd_{tag}
    """)

A5H = 88
def p2_helper(a, vm):
    late_ids(a)
    a(f"""
    v_lshlrev_b32 v2, 4, v1
    v_lshrrev_b32 v9, 3, v1
    v_mul_u32_u24 v9, 896, v9
    v_bfe_u32 v10, v1, 4, 1
    v_lshlrev_b32 v10, 2, v10
    v_and_b32 v11, 7, v1
    v_xor_b32 v10, v10, v11
    v_lshl_add_u32 v21, v10, 4, v9
    v_lshrrev_b32 v9, 4, v1
    v_mul_u32_u24 v9, {4*3584}, v9
    v_and_b32 v10, 15, v1
    v_lshl_add_u32 v20, v10, 4, v9
    v_lshlrev_b32 v9, 3, v1
    v_mov_b32 v10, 0
    v_mov_b32 v11, 0
    v_add_u32 v9, {GAP}, v9
    ds_write_b64 v9, v[10:11]
    s_lshr_b32 s58, s{SW3}, 1
    s_and_b32 s59, s{SW3}, 1
    """)
    tr128_addr(a, 4, 58, 59, 3)
    rot5(a, 54)
    a(f"""
    s_lshl_b32 s60, s{SW3}, 14
    s_add_u32 s7, s60, {RREG}
    v_add_u32 v4, s7, v4
    v_xor_b32 v5, 64, v4
    s_mul_i32 s55, s{SW3}, {28*16*896}
    s_lshl_b32 s60, s46, 7
    s_add_u32 s55, s55, s60
    """)
    rot4(a, 63)
    if TF:
        a(f"""
        s_mul_i32 s59, s{SW3}, {SLOT}
        s_mul_i32 s58, s57, {28*SLOT}
        s_add_u32 s58, s58, s59
        s_add_u32 s58, s58, {WGU}
        """)
    else:
        a(f"""
        s_lshl_b32 s58, s63, 6
        s_add_u32 s58, s58, s{SW3}
        s_mul_i32 s58, s58, 3584
        s_mul_i32 s59, s57, 224
        s_and_b32 s59, s59, 0xffffffc0
        s_add_u32 s58, s58, s59
        s_mul_i32 s59, s{SW3}, 1088
        """)
    a(f"""
    s_mul_i32 s54, s54, {16*896}
    s_add_u32 s54, s54, s55
    s_add_u32 s49, s55, {28*16*896}
    s_mov_b32 s52, {"s48" if TF else "99"}
    """)
    lv = VM()
    def wd(p, dstbase, doff):
        a(f"""
        s_add_u32 m0, s{dstbase}, {doff}
        s_add_u32 s60, s54, {8*896}
        buffer_load_dwordx4 v21, {sr(SD)}, s54 offen lds
        s_add_u32 m0, m0, 1024
        s_add_u32 s54, s54, {16*896}
        buffer_load_dwordx4 v21, {sr(SD)}, s60 offen lds
        s_cmp_eq_u32 s54, s49
        s_cselect_b32 s54, s55, s54
        """)
        lv.add(f"w{p}", 2)
    p2_helper.wd = wd
    a.bar("p1X")
    a(f"""
    s_cmp_lg_u32 s{SW}, 4
    s_cbranch_scc1 L_h2_npub
    ds_read_b32 v26, v14
    s_mov_b32 exec_hi, 0xffff
    s_waitcnt lgkmcnt(0)
    buffer_store_dwordx4 v[24:27], v18, {sr(SWS)}, s62 offen sc1
    s_mov_b32 exec_hi, -1
L_h2_npub:
    """)
    EB = -1
    a(f"s_cmp_lg_u32 s{SW}, 4\ns_cbranch_scc1 L_h2_np")
    a.stamp(5)
    poll(a, "A", 17, 0x1ffffffff, wide=True, dst=28, pipe=(EB >= 0))
    a(f"""
    s_nop 4
    v_mov_b32 v32, v30
    v_max_u32_dpp v32, v32, v32 row_shr:1 row_mask:0xf bank_mask:0xf
    v_max_u32_dpp v32, v32, v32 row_shr:2 row_mask:0xf bank_mask:0xf
    v_max_u32_dpp v32, v32, v32 row_shr:4 row_mask:0xf bank_mask:0xf
    v_max_u32_dpp v32, v32, v32 row_shr:8 row_mask:0xf bank_mask:0xf
    v_sqrt_f32 v32, v32
    v_mov_b32 v9, {AUX2}
    v_mul_f32 v32, {f2u(1.0+1.0/128):#x}, v32
    v_mov_b32 v33, 0
    s_mov_b64 exec, 0x8000
    ds_write_b32 v9, v33
    ds_write_b32 v9, v32 offset:4
    s_mov_b64 exec, -1
    s_waitcnt lgkmcnt(0)
L_h2_np:
    """)
    a.bar("p2P")
    a.bar("p2Y")
    lv.q = []
    if TF and E("TST", 0) == 1:
        a("s_cmp_ge_u32 s52, 28\ns_cbranch_scc1 L_h2_notf2")
        tstores(a)
    a(f"""
L_h2_notf2:
    v_lshlrev_b32 v7, 12, v1
    s_lshl_b32 s53, s57, 8
    s_lshl_b32 s61, s52, 3
    s_add_u32 s53, s53, s61
    s_add_u32 s53, s53, {FT}
    """)
    def tflag(tag):
        a(f"""
        s_cmp_ge_u32 s52, 28
        s_cbranch_scc1 L_h2_nf{tag}
        s_mov_b64 exec, 0xffff
        buffer_store_dwordx2 v[24:25], v7, {sr(SWS)}, s53 offen sc1
        s_mov_b64 exec, -1
L_h2_nf{tag}:
        """)
    a("s_cmp_lt_u32 s6, 28\ns_cbranch_scc1 L_h2_act\ns_waitcnt vmcnt(0)")
    tflag("i")
    a("s_branch L_h2_nowo\nL_h2_act:")
    a.stamp(6)
    def aread(p):
        for f in range(2):
            for u in range(2):
                b = A5H + 8*p + 4*f + 2*u
                a(f"ds_read_b64_tr_b16 v[{b}:{b+1}], v{4+f} offset:{(p%8)*2048+u*512}")
    D = max(1, (PFW + 1) // 2)
    e0 = max(EB, 0)
    flagged = False
    for p in range(NA5 + D):
        if e0 <= p < NA5:
            if p >= 8: a("s_waitcnt lgkmcnt(8)")
            wd(p, 7, (p % 8) * 2048)
        if p == NA5:
            a(f"""
            s_mul_i32 s{SKV+2}, s{SW3}, {14*8*896}
            s_lshl_b32 s60, s46, 7
            s_add_u32 s{SKV+2}, s{SKV+2}, s60
            s_mul_i32 s{SKV+3}, s{SW3}, 14336
            s_add_u32 s{SKV+3}, s{SKV+3}, {WOREG}
            s_and_b32 s62, s6, 3
            s_mul_i32 s62, s62, 7
            s_lshr_b32 s62, s62, 1
            """)
        def wo(n):
            for _ in range(n):
                a(f"""
                s_lshl_b32 s60, s62, 10
                s_add_u32 m0, s60, s{SKV+3}
                s_mul_i32 s60, s62, {8*896}
                s_add_u32 s60, s60, s{SKV+2}
                buffer_load_dwordx4 v21, {sr(SWO)}, s60 offen lds
                s_add_u32 s62, s62, 1
                s_cmp_eq_u32 s62, 14
                s_cselect_b32 s62, 0, s62
                """)
                lv.add("wo")
        if p >= NA5: wo(2)
        q = p - D
        if q >= 0:
            w = lv.wait(f"w{q}")
            a(w)
            if w and not flagged:
                tflag("a"); flagged = True
            aread(q)
    a.stamp(9)
    for k in range(7 - D):
        wo(2)
        a(f"s_waitcnt vmcnt({2*D})")
    a.stamp(10)
    a(f"""
L_h2_nowo:
    s_lshl_b32 s60, s56, 4
    s_add_u32 s60, s60, s57
    s_lshl_b32 s60, s60, 8
    s_add_u32 s60, s60, {FT}
    v_lshl_add_u32 v17, v1, 3, s60
    """)
    if TF: poll(a, "T", 17, 0xfffffff, backoff=40)
    a.stamp(11)
    gu_dma(a, 4, "g0", vm, thr=PFW)
    p2_ids(a)
    WPRE = E("WPRE", 0)
    if WPRE & 1:
        a(f"""
        v_lshlrev_b32 v9, 7, v1
        s_lshl_b32 s60, s56, 2
        s_add_u32 s60, s60, s{SW3}
        s_mul_i32 s60, s60, {112*1024}
        s_mul_i32 s61, s57, 7168
        s_add_u32 s60, s60, s61
        s_add_u32 s60, s60, {HH}
        s_mov_b32 exec_hi, 0xffffff
        buffer_load_dword v22, v9, {sr(SWS)}, s60 offen sc1
        s_mov_b32 exec_hi, -1
        """)
    if WPRE & 2:
        a(f"""
        v_lshlrev_b32 v9, 7, v1
        s_lshl_b32 s60, s53, 2
        s_add_u32 s60, s60, s{SW3}
        s_lshl_b32 s60, s60, 15
        s_lshl_b32 s61, s52, 11
        s_add_u32 s60, s60, s61
        s_add_u32 s60, s60, {OF}
        s_mov_b64 exec, 0xffff
        buffer_load_dword v22, v9, {sr(SWS)}, s60 offen sc1
        s_cmp_ge_u32 s6, 28
        s_cbranch_scc1 L_h2_nowp
        s_and_b32 s60, s{SW3}, 1
        s_lshl_b32 s61, s47, 1
        s_add_u32 s60, s60, s61                ; tt
        s_mul_i32 s60, s60, 14
        s_lshr_b32 s61, s{SW3}, 1
        s_add_u32 s60, s60, s61
        s_lshl_b32 s61, s46, 1
        s_add_u32 s60, s60, s61
        s_lshl_b32 s61, s60, 11
        s_add_u32 s61, s61, {HF}
        buffer_load_dword v23, v9, {sr(SWS)}, s61 offen sc1
        s_lshl_b32 s61, s60, 8
        s_add_u32 s61, s61, {ST}
        s_mov_b64 exec, 3
        buffer_load_dword v22, v9, {sr(SWS)}, s61 offen sc1
L_h2_nowp:
        s_mov_b64 exec, -1
        """)
    a("s_mov_b32 s62, 0\ns_waitcnt lgkmcnt(0)")
    vm.q = []
    a.stamp(7)
    a("L_h2_again:")
    a.bar("p2R0")
    a("s_waitcnt vmcnt(0)")
    a.bar("p2R1")
    a.bar("p2R2")
    a(f"""
    s_cmp_lg_u32 s62, 0
    s_cbranch_scc1 L_h2_done
    v_mov_b32 v9, {AUX2}
    ds_read_b32 v10, v9
    s_waitcnt lgkmcnt(0)
    v_readfirstlane_b32 s60, v10
    s_cmp_eq_u32 s60, 0
    s_cbranch_scc1 L_h2_done
    s_mov_b32 s62, 1
    s_barrier
    s_barrier
    s_branch L_h2_again
L_h2_done:
    """)

def p3_addr(a):
    a(f"s_lshr_b32 s58, s{SW3}, 1")
    tr128_addr(a, 220, 58, None, 2)
    a(f"""
    s_lshr_b32 s60, s6, 2
    s_mul_i32 s60, s60, {2*3584}
    s_add_u32 s60, s60, {WOREG}
    v_add_u32 v220, s60, v220
    """)

def p3_pre(a):
    AF = 64
    a(f"""
    s_cmp_ge_u32 s6, 28
    s_cbranch_scc1 L_p3_skipA
    s_lshr_b32 s58, s6, 2                  ; fb
    """)
    for g in range(8):
        if g >= 2:
            a(f"""
            s_cmp_ge_u32 s58, {8-g}
            s_cselect_b32 s59, {(-57344) & 0xffffffff:#x}, 0
            v_add_u32 v{221+(g&1)}, s59, v220
            """)
        for n in (2*g, 2*g+1):
            for f in range(2):
                for u in range(2):
                    b = AF + 8*n + 4*f + 2*u
                    a(f"ds_read_b64_tr_b16 v[{b}:{b+1}], v{220 if g < 2 else 221+(g&1)} offset:{n*3584+f*2048+u*1024}")
        a("s_waitcnt lgkmcnt(6)")
    a("L_p3_skipA:")

def p3_compute(a):
    ACC = 16; BF = 32; AF = 64; XR = 192; T = 200
    late_ids(a)
    a(f"""
    s_cmp_ge_u32 s6, 28
    s_cbranch_scc1 L_p3_skipB
    s_and_b32 s52, s{SW3}, 1               ; tt_l
    s_lshr_b32 s53, s{SW3}, 1              ; ft_l
    s_lshl_b32 s54, s47, 1
    s_add_u32 s54, s54, s52                ; tt
    s_lshl_b32 s55, s46, 1
    s_add_u32 s55, s55, s53                ; ft
    v_mul_u32_u24 v3, 896, v12
    v_lshl_add_u32 v3, v13, 4, v3
    s_mul_i32 s60, s54, {32*896}
    s_lshl_b32 s61, s55, 6
    s_add_u32 s60, s60, s61
    buffer_load_dwordx4 {vr(XR)}, v3, {sr(SX)}, s60 offen
    buffer_load_dwordx4 {vr(XR+4)}, v3, {sr(SX)}, s60 offen offset:32
    s_lshl_b32 s60, s52, 15
    s_add_u32 s60, s60, {RREG}
    v_add_u32 v5, s60, v2
    s_mul_i32 s58, s54, 28672
    s_lshl_b32 s61, s55, 11
    s_add_u32 s58, s58, s61
    s_add_u32 s58, s58, {HF}
    s_mul_i32 s59, s54, 14
    s_add_u32 s59, s59, s55
    s_lshl_b32 s59, s59, 8
    s_add_u32 s59, s59, {ST}
    v_lshlrev_b32 v14, 3, v1
    s_waitcnt vmcnt(0)
    """)
    for r in range(8):
        a(f"v_lshlrev_b32 v{ACC+2*r}, 16, v{XR+r}\nv_and_b32 v{ACC+2*r+1}, 0xffff0000, v{XR+r}")
    a("v_mov_b32 v6, 0\nv_mov_b32 v7, 0")
    a.bar("p3P")
    for st in range(4):
        a.bar(f"p3s{st}")
        if st == 0: a.stamp(13)
        for q in range(8):
            a(f"ds_read_b128 {vr(BF+4*q)}, v5 offset:{(8*st+q)*1024}")
        for q in range(8):
            p = 8*st + q
            a(f"s_waitcnt lgkmcnt({7-q})")
            a(f"v_mfma_f32_32x32x16_bf16 {vr(ACC,16)}, {vr(AF+4*p)}, {vr(BF+4*q)}, {vr(ACC,16)}")
    a.stamp(14)
    for r in range(8):
        a(f"v_cvt_pk_bf16_f32 v{T+r}, v{ACC+2*r}, v{ACC+2*r+1}")
    a(f"""
    buffer_store_dwordx4 {vr(T)}, v2, {sr(SWS)}, s58 offen sc1
    buffer_store_dwordx4 {vr(T+4)}, v2, {sr(SWS)}, s58 offen offset:1024 sc1
    """)
    for r in range(8):
        a(f"v_dot2c_f32_bf16 v6, v{T+r}, v15\nv_dot2c_f32_bf16 v7, v{T+r}, v{T+r}")
    a(f"""
    v_mov_b32 v8, v6
    v_mov_b32 v9, v7
    v_permlane32_swap_b32 v6, v8
    v_permlane32_swap_b32 v7, v9
    v_add_f32 v6, v6, v8
    v_add_f32 v7, v7, v9
    s_mov_b32 exec_hi, 0
    buffer_store_dwordx2 v[6:7], v14, {sr(SWS)}, s59 offen sc1
    s_mov_b32 exec_hi, -1
L_p3_skipB:
    """)
    a.stamp(15)

def p3_helper(a, vm):
    if E("PR4", 0): a("s_setprio 3")
    publish(a, "B", pub14(53, 52, FB), 0x7f7f)
    gu_dma(a, 8 if TF else 7, "g1", vm)
    a.stamp(12)
    a(f"""
    s_cmp_ge_u32 s6, 28
    s_cbranch_scc1 L_h3_skip
    s_and_b32 s52, s{SW3}, 1
    s_lshr_b32 s53, s{SW3}, 1
    s_lshl_b32 s62, s47, 1
    s_add_u32 s62, s62, s52
    s_lshl_b32 s62, s62, 15
    s_lshl_b32 s53, s53, 10
    s_add_u32 s62, s62, s53
    s_add_u32 s62, s62, {OF}
    s_lshl_b32 s52, s52, 15
    s_add_u32 s52, s52, s53
    s_add_u32 s52, s52, {RREG}             ; dst
    s_lshl_b32 s53, s46, 12
    s_cmp_lg_u32 s{SW}, 4
    s_cbranch_scc1 L_h3_np
    s_lshl_b32 s60, s47, 3
    s_add_u32 s60, s60, s46
    s_lshl_b32 s60, s60, 7
    s_add_u32 s60, s60, {FB}
    v_lshl_add_u32 v17, v1, 3, s60
    """)
    poll(a, "B", 17, 0xffff)
    a("L_h3_np:")
    a.bar("p3P")
    a.stamp(13)
    a(f"""
    s_mov_b32 m0, s52
    s_mov_b32 s61, 0
L_h3_o:
    s_add_u32 s60, s53, s62
    buffer_load_dwordx4 v2, {sr(SWS)}, s60 offen sc1 lds
    s_add_u32 m0, m0, 2048
    s_add_u32 s53, s53, 2048
    s_and_b32 s53, s53, 0x7fff
    s_add_u32 s61, s61, 1
    s_cmp_lt_u32 s61, 16
    s_cbranch_scc1 L_h3_o
    """)
    for st in range(4):
        a(f"s_waitcnt vmcnt({12-4*st})")
        a.bar(f"p3s{st}")
    a("L_h3_skip:")

NBW = E('NBW', 12)
SCH4 = E('SCH4', 0)
P4B = [(3, 10, 17, 20), (3, 7, 10, 17, 18), (10, 17, 21)][SCH4]
NR4 = 1 if TF else 2
def p4_compute(a):
    ACC = 16; AF = 128; T = 156; OUT = 164; STT = 172; BF = 188
    RS, CC = 6, 7
    vm = VM()
    a(f"""
    s_lshl_b32 s54, s56, 2
    s_add_u32 s54, s54, s{SW3}             ; tt
    s_mul_i32 s55, s54, 28672
    s_add_u32 s55, s55, {HF}
    s_add_u32 s53, s55, 28672              ; end
    """)
    rot4(a, 58)
    a(f"""
    s_lshl_b32 s58, s58, 12
    s_add_u32 s58, s58, s55
    """)
    if TF: a("v_mov_b32 v4, v2")
    else:
        a(f"""
        v_bfe_u32 v9, v1, 2, 2
        v_mul_u32_u24 v10, 1088, v9
        v_lshl_add_u32 v10, v13, 9, v10
        v_and_b32 v9, 1, v1
        v_lshl_add_u32 v10, v9, 4, v10
        v_bfe_u32 v9, v1, 4, 1
        v_lshl_add_u32 v10, v9, 3, v10
        v_bfe_u32 v9, v1, 1, 1
        v_mul_u32_u24 v9, 4384, v9
        s_mul_i32 s60, s57, 224
        s_and_b32 s60, s60, 63
        v_add3_u32 v4, v10, v9, s60
        """)
    a(f"""
    v_mov_b32 v8, 0xffff0000
    v_mul_u32_u24 v5, {7*256}, v13
    v_lshl_add_u32 v5, v12, 3, v5
    s_mul_i32 s59, s54, {14*256}
    s_add_u32 s59, s59, {ST}
    s_mul_i32 s62, s54, {112*1024}
    s_mul_i32 s61, s57, 7168
    s_add_u32 s62, s62, s61
    s_add_u32 s62, s62, {HH}
    s_add_u32 s63, s62, 4096
    s_waitcnt vmcnt(0)
    """)
    a.bar("p3X")
    a.stamp(16)
    base = [0]
    def tr(p, j):
        L = []
        slot = p % NSLOT
        off = slot * SLOT - base[0]
        if j == 0 and (off < 0 or off + SLOT > 65536):
            L.append(f"v_add_u32 v4, {off & 0xffffffff:#x}, v4")
            base[0] = slot * SLOT; off = 0
        if TF: L.append(f"ds_read_b128 {vr(AF+4*j)}, v4 offset:{off + j*1024}")
        else:
            for u in range(2):
                b = AF + 4*j + 2*u
                L.append(f"ds_read_b64_tr_b16 v[{b}:{b+1}], v4 offset:{off + u*256 + j*32}")
        return L
    if DRY & 1: dry_call(a, "4", 4, save=(58,))
    for j in range(7): a.emit(*tr(0, j))
    a.bar("p4P")
    a.stamp(17)
    def bload(p):
        vm.add(f"b{p}")
        L = [f"buffer_load_dwordx4 {vr(BF+4*(p%NBW))}, v2, {sr(SWS)}, s58 offen offset:{(p%4)*1024} sc1"]
        if p % 4 == 3: L += ["s_add_u32 s58, s58, 4096", "s_cmp_eq_u32 s58, s53", "s_cselect_b32 s58, s55, s58"]
        return L
    for q in range(7):
        a(f"buffer_load_dwordx2 v[{STT+2*q}:{STT+2*q+1}], v5, {sr(SWS)}, s59 offen offset:{q*256} sc1")
    vm.add("st", 7)
    for p in range(8): a.emit(*bload(p))
    nb = [8]
    if SCH4 == 1: a.bar("p4Q")
    a(vm.wait("st"))
    pk = lambda b: f"v[{b}:{b+1}]"
    a(f"""
    v_pk_add_f32 {pk(STT+2)}, {pk(STT+2)}, {pk(STT+8)}
    v_pk_add_f32 {pk(STT+4)}, {pk(STT+4)}, {pk(STT+10)}
    v_pk_add_f32 {pk(STT+6)}, {pk(STT+6)}, {pk(STT+12)}
    v_pk_add_f32 {pk(STT)}, {pk(STT)}, {pk(STT+2)}
    v_pk_add_f32 {pk(STT+4)}, {pk(STT+4)}, {pk(STT+6)}
    v_pk_add_f32 {pk(STT)}, {pk(STT)}, {pk(STT+4)}
    v_mov_b32 v{STT+2}, v{STT}
    v_mov_b32 v{STT+3}, v{STT+1}
    v_permlane32_swap_b32 v{STT}, v{STT+2}
    v_permlane32_swap_b32 v{STT+1}, v{STT+3}
    v_pk_add_f32 {pk(STT)}, {pk(STT)}, {pk(STT+2)}
    v_mul_f32 v{STT}, {f2u(1.0/448):#x}, v{STT}
    v_mul_f32 v{STT+1}, {f2u(1.0/448):#x}, v{STT+1}
    v_fma_f32 v{STT+1}, -v{STT}, v{STT}, v{STT+1}
    v_max_f32 v{STT+1}, 0, v{STT+1}
    v_add_f32 v{STT+1}, {f2u(1e-5):#x}, v{STT+1}
    v_rsq_f32 v{RS}, v{STT+1}
    v_mul_f32 v{CC}, v{STT}, v{RS}
    v_sub_f32 v{CC}, 0, v{CC}
    """)
    def norm(p):
        f = BF + 4*(p % NBW)
        L = []
        for i in range(4):
            L += [f"v_lshlrev_b32 v{T+2*i}, 16, v{f+i}", f"v_and_b32 v{T+2*i+1}, v8, v{f+i}"]
        for i in range(8):
            L.append(f"v_fma_f32 v{T+i}, v{T+i}, v{RS}, v{CC}")
        for i in range(4):
            L.append(f"v_cvt_pk_bf16_f32 v{f+i}, v{T+2*i}, v{T+2*i+1}")
        return L
    a(vm.wait("b0"))
    a.emit(*norm(0))
    a.stamp(18)
    NT = E("NT4", 3)
    PT = 28 - NT
    seq = [(p, j) for p in range(PT) for j in range(7)] + [(p, j) for j in range(7) for p in range(PT, 28)]
    N = len(seq)
    def rd(i):
        p, j = seq[i]
        L = []
        off = (p % NSLOT) * SLOT - base[0]
        force = NT > 1 and i == 7 * PT and ((27 % NSLOT) + 1) * SLOT - base[0] > 65536
        if off < 0 or off + SLOT > 65536 or force:
            L.append(f"v_add_u32 v4, {off & 0xffffffff:#x}, v4")
            base[0] = (p % NSLOT) * SLOT; off = 0
        r = AF + 4 * (i % 7)
        if TF: L.append(f"ds_read_b128 {vr(r)}, v4 offset:{off + j*1024}")
        else: L += [f"ds_read_b64_tr_b16 v[{r+2*u}:{r+2*u+1}], v4 offset:{off + u*256 + j*32}" for u in range(2)]
        return L
    def epi(j):
        acc = ACC + 16*j; o = OUT + 4*(j & 1)
        L = []
        for g in range(2):
            L += [f"v_max_f32 v{acc+8*g+c}, 0, v{acc+8*g+c}" for c in range(4)]
            L += [f"v_mul_f32 v{acc+8*g+c}, v{acc+8*g+c}, v{acc+8*g+4+c}" for c in range(4)]
            L += [f"v_cvt_pk_bf16_f32 v{o+2*g}, v{acc+8*g}, v{acc+8*g+1}", f"v_cvt_pk_bf16_f32 v{o+2*g+1}, v{acc+8*g+2}, v{acc+8*g+3}"]
        L.append(f"buffer_store_dwordx4 {vr(o)}, v2, {sr(SWS)}, s{62 if j < 4 else 63} offen offset:{(j%4)*1024} sc1")
        return L
    fill = []
    nn = [1]
    normed = {0}
    def need_norm(upto):
        while nn[0] <= upto and nn[0] < 28:
            fill.append(("w", nn[0])); fill.extend(norm(nn[0])); fill.append(("d", nn[0])); nn[0] += 1
    def pop(k):
        while fill and k > 0:
            x = fill.pop(0)
            if isinstance(x, tuple):
                if x[0] == "w": a(vm.wait(f"b{x[1]}"))
                else: normed.add(x[1])
            else:
                a(x); k -= 1
                if x.startswith("buffer_store"): vm.add("st")
        while fill and isinstance(fill[0], tuple) and fill[0][0] == "d":
            normed.add(fill.pop(0)[1])
    FAST = PT - (NT - 1) * 20 // 8 - 1
    for i, (p, j) in enumerate(seq):
        kmaj = i < 7 * PT
        if kmaj and j == 0:
            if "p4st" in XV and p in (3, 7, 10, 17): a.stamp({3: 1, 7: 3, 10: 5, 17: 9}[p])
            CUT = {0: 0, 7: 1, 14: 2, 21: 3}
            if DRY & 1:
                if p in CUT and p: a("s_cbranch_execz L_dry4_ret")
                elif p in P4B: a(f"s_cbranch_execz L_dry4s{p}")
            if p in P4B: a.bar(f"p4b{p}")
            if DRY & 1:
                if p in CUT: a(f"L_dry4_{CUT[p]}:")
                elif p in P4B: a(f"L_dry4s{p}:")
            if "p4st" in XV and p in (3, 7, 10, 13, 18, 22): a.stamp({3: 2, 7: 4, 10: 6, 13: 8, 18: 10, 22: 12}[p])
            need_norm(p + 1 if p < FAST else 27)
        while p not in normed: pop(1)
        if i % 7 in (0, 4):
            last_needed = i + (3 if i % 7 == 0 else 2)
            a(f"s_waitcnt lgkmcnt({max(0, min(N - 1, i + 6) - last_needed) * NR4})")
        a(f"v_mfma_f32_32x32x16_bf16 {vr(ACC+16*j,16)}, {vr(AF+4*(i%7))}, {vr(BF+4*(p%NBW))}, {'0' if p==0 else vr(ACC+16*j,16)}")
        if i + 7 < N: a.emit(*rd(i + 7))
        if kmaj:
            pop(4 if p >= FAST else (3, 4, 3, 3, 4, 3, 0)[j])
            if j in (3, 6) and nb[0] < 28 and nb[0] <= p + NBW - (1 if j == 3 else 0):
                a.emit(*bload(nb[0])); nb[0] += 1
        else:
            if p == PT + min(1, NT - 1) and j >= 1: fill.extend(epi(j - 1))
            pop(-(-21 // NT))
    a.stamp(19)
    pop(999)
    a.emit(*epi(6))
    if DRY & 1: a("s_cbranch_execz L_dry4_ret")
    a.stamp(21)
    a("s_waitcnt vmcnt(0)")
    a.bar("p4X")
    a.stamp(23)

def p4_helper(a, vm):
    a.bar("p3X")
    a("s_cmp_ge_u32 s6, 28\ns_cbranch_scc1 L_pub_C")
    publish(a, "C", f"""v_lshlrev_b32 v9, 7, v1
    s_lshr_b32 s60, s47, 1
    s_lshl_b32 s60, s60, 11
    s_and_b32 s61, s47, 1
    s_mul_i32 s61, s61, 7
    s_add_u32 s61, s61, s46
    s_lshl_b32 s61, s61, 3
    s_add_u32 s60, s60, s61
    s_add_u32 s60, s60, {FC}""", 0xffff)
    a(f"""
    s_cmp_lg_u32 s{SW}, 4
    s_cbranch_scc1 L_h4_np
    s_lshl_b32 s60, s56, 4
    s_add_u32 s60, s60, s57
    s_lshl_b32 s60, s60, 7
    s_add_u32 s60, s60, {FC}
    v_lshl_add_u32 v17, v1, 3, s60
    """)
    a.stamp(16)
    poll(a, "C", 17, 0x3fff)
    a("L_h4_np:")
    if SCH4 == 2: a(vm.wait("g1"))
    a.bar("p4P")
    assert not TF
    if SCH4 == 1:
        a.bar("p4Q")
        gu_dma(a, 7, "g2", vm)
        a(f"s_sub_u32 s59, s59, {NSLOT*SLOT}")
        a(vm.wait("g1"))
        a.bar("p4b3")
        gu_dma(a, 3, "g3", vm)
        a.bar("p4b7")
        gu_dma(a, 4, "g4", vm)
        a(vm.wait("g2"))
        a.bar("p4b10")
        gu_dma(a, 3, "g5", vm)
        a(vm.wait("g5"))
        a.bar("p4b17")
        a.bar("p4b18")
    elif SCH4 == 0:
        a(vm.wait("g1"))
        a.bar("p4b3")
        gu_dma(a, 7, "g2", vm)
        a(f"s_sub_u32 s59, s59, {NSLOT*SLOT}")
        gu_dma(a, 3, "g3", vm)
        a(vm.wait("g2"))
        a.bar("p4b10")
        gu_dma(a, 7, "g4", vm)
        a(vm.wait("g3"))
        a.bar("p4b17")
        a(vm.wait("g4"))
        a.bar("p4b20")
    else:
        gu_dma(a, 7, "g2", vm, thr=4)
        a(f"s_sub_u32 s59, s59, {NSLOT*SLOT}")
        a(vm.wait("g2"))
        a.bar("p4b10")
        gu_dma(a, 4, "g3", vm)
        gu_dma(a, 6, "g4", vm)
        a(vm.wait("g3"))
        a.bar("p4b17")
        a(vm.wait("g4"))
        a.bar("p4b21")
    a(f"""
    s_cmp_ge_u32 s6, 28
    s_cbranch_scc1 L_h4_nowd
    s_mul_i32 s60, s{SW3}, {(28-NA5)*2048}
    s_add_u32 s7, s60, {B1}
    """)
    for p in range(28 - NA5): p2_helper.wd(p, 7, p * 2048)
    a("L_h4_nowd:\ns_waitcnt vmcnt(0)")
    vm.q = []
    a.bar("p4X")

def p5_main(a, tag):
    helper = tag == "h"
    ACC = 24
    NC = 28 - NA5
    AR = A5H
    AREA = NA5 * 2048
    vm = VM()
    pk = lambda b: f"v[{b}:{b+1}]"
    HR = 240 if helper else 16
    a(f"""
    s_lshr_b32 s52, s{SW}, 2
    s_lshl_b32 s54, s47, 1
    s_add_u32 s53, s54, s52
    s_lshl_b32 s63, s46, 2
    s_add_u32 s63, s63, s{SW3}
    s_mul_i32 s62, s53, 28672
    s_lshl_b32 s61, s63, 10
    s_add_u32 s62, s62, s61
    s_add_u32 s62, s62, {HF}
    buffer_load_dwordx4 {vr(HR)}, v2, {sr(SWS)}, s62 offen sc1
    v_mul_u32_u24 v3, 896, v12
    v_lshl_add_u32 v3, v13, 4, v3
    s_mul_i32 s62, s53, {32*896}
    s_lshl_b32 s61, s63, 5
    s_add_u32 s62, s62, s61
    s_mul_i32 s7, s{SW3}, {AREA}
    v_add_u32 v8, s7, v2
    """)
    if helper:
        a(f"""
        s_cmp_lg_u32 s{SW}, 4
        s_cbranch_scc1 L_h5_np
        s_lshl_b32 s60, s47, 3
        s_add_u32 s60, s60, s46
        s_lshl_b32 s60, s60, 7
        s_add_u32 s60, s60, {FD}
        v_lshl_add_u32 v17, v1, 3, s60
        """)
        a.stamp(23)
        poll(a, "D", 17, 0xffff)
        a("L_h5_np:")
    else:
        a(f"""
        s_mul_i32 s60, s{SW3}, 28672
        s_add_u32 s60, s60, {HH}
        s_mul_i32 s55, s54, {112*1024}
        s_add_u32 s55, s55, s60
        s_add_u32 s58, s55, {112*1024}
        """)
        rot5(a, 59, 0)
        rot5(a, 52, NA5)
        a(f"s_lshl_b32 s59, s59, 10\ns_lshl_b32 s52, s52, 10\ns_lshr_b32 s60, s{SW3}, 1\ns_and_b32 s61, s{SW3}, 1")
        tr128_addr(a, 4, 60, 61, 3)
        a(f"""
        s_mul_i32 s60, s{SW3}, {NC*2048}
        s_add_u32 s60, s60, {B1}
        v_xor_b32 v5, 64, v4
        v_add_u32 v4, s60, v4
        v_add_u32 v5, s60, v5
        """)
        for p in range(NC):
            for f in range(2):
                for u in range(2):
                    b = AR + 8*p + 4*f + 2*u
                    a(f"ds_read_b64_tr_b16 v[{b}:{b+1}], v{4+f} offset:{p*2048+u*512}")
            if p % 2 == 1: a("s_waitcnt lgkmcnt(4)")
        a("s_waitcnt lgkmcnt(0)\ns_mov_b32 m0, s7")
    a(f"s_setprio {3 if (E('PR5', 1) == (2 if helper else 1)) else 0}")
    a.bar("p5P")
    a.stamp(24)
    adv = lambda r: f"s_add_u32 s{r}, s{r}, 1024\ns_cmp_eq_u32 s{r}, 28672\ns_cselect_b32 s{r}, 0, s{r}"
    def mf(p, b0, b1):
        for tl, b in ((0, b0), (1, b1)):
            for f in range(2):
                acc = ACC + 32*tl + 16*f
                a(f"v_mfma_f32_32x32x16_bf16 {vr(acc,16)}, {vr(AR+8*p+4*f)}, {vr(b)}, {'0' if p==0 else vr(acc,16)}")
    T = 96 if helper else 232
    def tail_addr():
        for j in range(1, 8):
            a(f"""
            s_xor_b32 s60, s{SW3}, {j & 3}
            s_mul_i32 s60, s60, {AREA}
            v_add_u32 v{T+8+j}, s60, v2
            """)
    def wr_part():
        o = 14336 if helper else 0
        for j in range(1, 8):
            a(f"ds_write_b128 v8, {vr(ACC+8*j)} offset:{o+(j-1)*2048}\nds_write_b128 v8, {vr(ACC+8*j+4)} offset:{o+(j-1)*2048+1024}")
        for r in range(4):
            a(f"v_lshlrev_b32 v{T+2*r}, 16, v{HR+r}\nv_and_b32 v{T+2*r+1}, 0xffff0000, v{HR+r}")
        for r in range(0, 8, 2):
            a(f"v_pk_add_f32 {pk(ACC+r)}, {pk(ACC+r)}, {pk(T+r)}")
    def unpack_hr():
        for r in range(4):
            a(f"v_lshlrev_b32 v{T+2*r}, 16, v{HR+r}\nv_and_b32 v{T+2*r+1}, 0xffff0000, v{HR+r}")
    def last_group(ps, breg, wait, o):
        pend = []
        n = len(ps)
        for tl, f in ((1, 1), (1, 0), (0, 1), (0, 0)):
            acc = ACC + 32*tl + 16*f
            for k, p in enumerate(ps):
                wait(tl, f, k)
                a(f"v_mfma_f32_32x32x16_bf16 {vr(acc,16)}, {vr(AR+8*p+4*f)}, {vr(breg(k, tl))}, {vr(acc,16)}")
                if len(pend) > 4 or (pend and tl == 0 and k >= n - 2):
                    a(pend.pop(0)); a(pend.pop(0))
            j0 = 4*tl + 2*f
            for j in (j0, j0 + 1):
                if j: pend += [f"ds_write_b128 v8, {vr(ACC+8*j)} offset:{o+(j-1)*2048}", f"ds_write_b128 v8, {vr(ACC+8*j+4)} offset:{o+(j-1)*2048+1024}"]
        a.stamp(25)
        a.emit(*pend)
        for r in range(0, 8, 2):
            a(f"v_pk_add_f32 {pk(ACC+r)}, {pk(ACC+r)}, {pk(T+r)}")
    GH = [[2, 3, 3, 3, 4, 4], [2, 2, 3, 4, 4, 4], [3, 4, 4, 4, 4]][E('G5', 1)]
    if helper:
        BB = [16, 248]
        rd = lambda p: a(f"ds_read_b128 {vr(BB[p&1])}, v8 offset:{p*2048}\nds_read_b128 {vr(BB[p&1]+4)}, v8 offset:{p*2048+1024}")
        p = 0
        for g, n in enumerate(GH):
            a.bar(f"p5g{g}")
            rd(p)
            for k in range(n):
                if k + 1 < n: rd(p + 1)
                a(f"s_waitcnt lgkmcnt({2 if k + 1 < n else 0})")
                mf(p, BB[p&1], BB[p&1]+4)
                p += 1
            if g == 2:
                tail_addr()
        a.stamp(25)
        a("s_waitcnt vmcnt(0)")
        wr_part()
    else:
        BR = AR + 8*NC
        items = [("h", g) for g in range(len(GH))] + [("c", 0), ("c", 1), ("c", 2)]
        pc = [0]
        def issue(it):
            if it[0] == "h":
                for k in range(GH[it[1]]):
                    a(f"""
                    s_add_u32 s60, s59, s58
                    s_add_u32 s61, s59, s55
                    buffer_load_dwordx4 v2, {sr(SWS)}, s60 offen sc1 lds
                    s_add_u32 m0, m0, 1024
                    {adv(59)}
                    buffer_load_dwordx4 v2, {sr(SWS)}, s61 offen sc1 lds
                    s_add_u32 m0, m0, 1024
                    """)
                    vm.add(f"h{it[1]}", 2)
            else:
                for k in range(3):
                    a(f"""
                    s_add_u32 s60, s52, s55
                    s_add_u32 s61, s52, s58
                    buffer_load_dwordx4 {vr(BR+8*pc[0])}, v2, {sr(SWS)}, s60 offen sc1
                    buffer_load_dwordx4 {vr(BR+8*pc[0]+4)}, v2, {sr(SWS)}, s61 offen sc1
                    {adv(52)}
                    """)
                    vm.add(f"c{pc[0]}", 2); pc[0] += 1
        LA = E('LA5', 2)
        for it in items[:LA]: issue(it)
        nxt = LA
        for g in range(len(GH)):
            a(vm.wait(f"h{g}"))
            a.bar(f"p5g{g}")
            if nxt < len(items): issue(items[nxt]); nxt += 1
        while nxt < len(items): issue(items[nxt]); nxt += 1
        tail_addr(); unpack_hr()
        NL = 3
        for p in range(NC - NL):
            a(vm.wait(f"c{p}"))
            mf(p, BR+8*p, BR+8*p+4)
        ps = list(range(NC - NL, NC))
        last_group(ps, lambda k, tl: BR + 8*ps[k] + 4*tl, lambda tl, f, k: a(vm.wait(f"c{ps[k]}")), 0)
    a("s_waitcnt lgkmcnt(0)")
    a.bar("p5R1")
    for j in range(1, 8):
        o = 14336 if (helper != (j >= 4)) else 0
        a(f"ds_read_b128 {vr(ACC+8*j)}, v{T+8+j} offset:{o+(j-1)*2048}\nds_read_b128 {vr(ACC+8*j+4)}, v{T+8+j} offset:{o+(j-1)*2048+1024}")
    for j in range(7):
        a(f"s_waitcnt lgkmcnt({12-2*j})")
        for r in range(0, 8, 2):
            a(f"v_pk_add_f32 {pk(ACC+r)}, {pk(ACC+r)}, {pk(ACC+8+8*j+r)}")
    for r in range(4):
        a(f"v_cvt_pk_bf16_f32 v{T+r}, v{ACC+2*r}, v{ACC+2*r+1}")
    a(f"buffer_store_dwordx4 {vr(T)}, v3, {sr(SOUT)}, s62 offen {os.environ.get('OUTF', '')}")
    a.stamp(26)

def p5_compute(a):
    a("s_cmp_ge_u32 s6, 28\ns_cbranch_scc1 L_p5_skip_c")
    p5_main(a, "c")
    a("L_p5_skip_c:")

def p5_helper(a):
    publish(a, "D", pub14(56, 57, FD), 0x7f7f)
    a("s_cmp_ge_u32 s6, 28\ns_cbranch_scc1 L_p5_skip_h")
    p5_main(a, "h")
    a("L_p5_skip_h:")

def build(path):
    a = Asm()
    prologue(a)
    C = Role("c"); H = Role("h"); vm = VM()
    p1_compute(C); p1_helper(H)
    p2_compute(C); p2_helper(H, vm)
    p3_compute(C); p3_helper(H, vm)
    p4_compute(C); p4_helper(H, vm)
    p5_compute(C); p5_helper(H)
    assert C.bars == H.bars, (C.bars, H.bars)
    if "nopf" in XV or "nohtr" in XV:
        i0 = H.lines.index("L_h2_act:"); i1 = H.lines.index("L_h2_nowo:")
        H.lines = [l for k, l in enumerate(H.lines) if not (i0 < k < i1 and (("nopf" in XV and l.startswith("buffer_load")) or ("nohtr" in XV and l.startswith("ds_read"))))]
    if "nodma4" in XV:
        i0 = max(k for k, l in enumerate(H.lines) if l.startswith("L_h4_np")); i1 = H.lines.index("L_h4_nowd:")
        H.lines = [l for k, l in enumerate(H.lines) if not (i0 < k < i1 and l.startswith("buffer_load"))]
    if "c4" in XV:
        i0 = max(k for k, l in enumerate(C.lines) if l.startswith("v_rsq_f32")) + 30; i1 = max(k for k, l in enumerate(C.lines) if l.startswith("v_max_f32 v16, 0"))
        def drop(l):
            if "nobl" in XV and (l.startswith("buffer_load") or l.startswith("s_waitcnt vmcnt")): return True
            if "nonorm" in XV and (l.startswith("v_lshlrev_b32 v1") or l.startswith("v_and_b32 v1") or l.startswith("v_fma_f32 v1") or l.startswith("v_cvt_pk")): return True
            if "notr" in XV and l.startswith("ds_read_b64_tr"): return True
            return False
        C.lines = [l for k, l in enumerate(C.lines) if not (i0 < k < i1 and drop(l))]
    if "nostat" in XV: H.lines = [l for l in H.lines if not l.startswith("v_mfma_f32_16x16")]
    if "nocs" in XV: C.lines = [l for l in C.lines if not l.startswith("v_mfma_f32_16x16")]
    if "hprio" in XV:
        i0 = H.lines.index("L_h2_act:"); H.lines.insert(i0 + 1, "s_setprio 3")
    a.lines += H.lines
    stamp_end(a)
    a("s_endpgm\nL_compute:")
    a.lines += C.lines
    probe(a)
    stamp_end(a)
    a("L_end:\ns_endpgm")
    body = a.finish(True)
    hdr = open(f"cdna_kernels/{NAME}.s.ref").read().split("; Override launch")[0]
    out = hdr + "; @launch grid=(256,1,1) block=(512,1,1) lds=163840\n"
    out += '.amdgcn_target "amdgcn-amd-amdhsa--gfx950"\n.text\n'
    out += f".globl {KNAME}\n.p2align 8\n.type {KNAME},@function\n{KNAME}:\n{body}\n"
    out += f""".section .rodata,"a"
.p2align 6
.amdhsa_kernel {KNAME}
  .amdhsa_next_free_vgpr 256
  .amdhsa_next_free_sgpr 102
  .amdhsa_accum_offset 256
  .amdhsa_group_segment_fixed_size 0
  .amdhsa_kernarg_size 80
  .amdhsa_user_sgpr_count 2
  .amdhsa_user_sgpr_kernarg_segment_ptr 1
  .amdhsa_system_sgpr_workgroup_id_x 1
.end_amdhsa_kernel
"""
    open(path, "w").write(out)

if __name__ == "__main__":
    build(sys.argv[1] if len(sys.argv) > 1 else f"cdna_kernels/{NAME}.s")
```

```python
import sys, math, os, struct
from asmlib import Asm

NAME = "sequential_preLN__softmax_full_mha__glu_gated_reglu__prompt"
KNAME = NAME + "_kernel"
E = lambda k, d: int(os.environ.get(k, d))
DIAG = E("DIAG", 0)
PFW = E("PFW", 3)
ROTG = E("ROTG", 3)
XV = os.environ.get("XV", "")
POLL_MAX = 40000

def f2u(x): return struct.unpack('<I', struct.pack('<f', x))[0]
def vr(b, n=4): return f"v[{b}:{b+n-1}]"
def sr(b): return f"s[{b}:{b+3}]"

QF, KVF, FL, OF, HF, ST, HH, TS = 0x000000, 0x200000, 0x600000, 0x700000, 0x900000, 0xB00000, 0xC00000, 0x4000000
WS_BYTES = 0x10000000
FA, FB, FC, FD, FT = FL, FL + 0x40000, FL + 0x48000, FL + 0x50000, FL + 0x60000
WGU = 0x1400000
SW, SW3 = 3, 4
SX, SWQ, SWO, SWS, SG, SU, SD, SOUT, SDBG = 8, 12, 16, 20, 24, 28, 32, 36, 40
NON, SKV = 44, 48
AUX1 = 161792
CS1, KN1, CSP, TSTG = AUX1 + 1024, AUX1 + 1536, 159744, 143360
TF = E('TF', 0)
SLOT = 7168 if TF else 8736
NSLOT = 20 if TF else 18
WOREG = 35072
GAP = WOREG + 57344
AUX2 = 97280
RREG = 98304
B1 = 8 * SLOT if TF else 10 * SLOT
NA5 = 19

PROBE2 = E('PROBE2', 0)
CLK = 's_memrealtime' if E('RT', 0) else 's_memtime'
class Role(Asm):
    def __init__(self, tag):
        super().__init__(); self.tag = tag; self.bars = []
    def bar(self, name):
        self.bars.append(name); self("s_barrier")
    def stamp(self, i):
        if PROBE2 == i and self.tag == "c":
            self("s_memrealtime s[94:95]\ns_waitcnt lgkmcnt(0)")
        if DIAG:
            self(f"{CLK} s[100:101]\ns_waitcnt lgkmcnt(0)\ns_mov_b32 s{64+i}, s100")

class VM:
    def __init__(self): self.q = []
    def add(self, tag, n=1): self.q += [tag] * n
    def wait(self, tag):
        idx = [i for i, t in enumerate(self.q) if t == tag]
        if not idx: return ""
        n = len(self.q) - 1 - idx[-1]
        self.q = self.q[idx[-1] + 1:]
        assert n <= 63
        return f"s_waitcnt vmcnt({n})"

PROBE = E("PROBE", 0)
def probe(a):
    if PROBE2:
        a(f"""
        s_cmp_lg_u32 s2, {E('PWG', 8)}
        s_cbranch_scc1 L_probe_done
        s_waitcnt vmcnt(0) lgkmcnt(0)
        s_memrealtime s[98:99]
        s_waitcnt lgkmcnt(0)
        s_sub_u32 s94, s94, s96
        s_mul_i32 s94, s94, 10
        s_min_u32 s94, s94, 100000
L_probe_l:
        s_sleep 8
        s_memrealtime s[92:93]
        s_waitcnt lgkmcnt(0)
        s_sub_u32 s92, s92, s98
        s_cmp_lt_u32 s92, s94
        s_cbranch_scc1 L_probe_l
L_probe_done:
        """)
    if PROBE:
        a(f"""
        s_cmp_lg_u32 s2, 8
        s_cbranch_scc1 L_probe_done
        s_waitcnt vmcnt(0) lgkmcnt(0)
        s_memrealtime s[98:99]
        s_waitcnt lgkmcnt(0)
        s_sub_u32 s98, s98, s96
        s_cmp_lt_u32 s98, {PROBE}
        s_cbranch_scc1 L_probe_done
        s_mov_b32 s60, 0
L_probe_l:
        s_sleep 127
        s_add_u32 s60, s60, 1
        s_cmp_lt_u32 s60, 40
        s_cbranch_scc1 L_probe_l
L_probe_done:
        """)

def stamp_end(a):
    if DIAG:
        a(f"""
        s_mov_b64 exec, -1
        s_waitcnt vmcnt(0) lgkmcnt(0)
        {CLK} s[100:101]
        s_memrealtime s[98:99]
        s_waitcnt lgkmcnt(0)
        s_mov_b32 s93, s100
        s_mov_b32 s94, s96
        s_mov_b32 s95, s98
        s_lshl_b32 s60, s2, 3
        s_add_u32 s60, s60, s{SW}
        s_lshl_b32 s60, s60, 7
        s_add_u32 s60, s60, {TS}
        v_mov_b32 v0, 0
        """)
        for i in range(32):
            a(f"v_mov_b32 v{4+i}, s{64+i}")
        a("s_mov_b64 exec, 1")
        for i in range(8):
            a(f"buffer_store_dwordx4 v[{4+4*i}:{7+4*i}], v0, {sr(SWS)}, s60 offen offset:{16*i}")

DRY = E("DRY", 0)
def dry_call(a, tag, n, save=()):
    for k, r in enumerate(save): a(f"s_mov_b32 s{84+k + (0 if not DIAG else 18)}, s{r}" if False else f"s_mov_b32 s{(7, 61)[k]}, s{r}")
    a("s_mov_b64 exec, 0")
    for k in range(n):
        a(f"s_cmp_eq_u32 s{SW3}, {k}\ns_cbranch_scc1 L_dry{tag}_{k}")
    a(f"L_dry{tag}_ret:\ns_mov_b64 exec, -1\ns_nop 15")
    for k, r in enumerate(save): a(f"s_mov_b32 s{r}, s{(7, 61)[k]}")

def setexec(a, m):
    a(f"s_mov_b32 exec_lo, {m & 0xffffffff:#x}\ns_mov_b32 exec_hi, {m >> 32:#x}")

def prologue(a):
    if PROBE or PROBE2: a("s_memrealtime s[96:97]")
    if DIAG:
        a(f"s_memrealtime s[96:97]\n{CLK} s[100:101]")
    a(f"""
    s_cmp_ge_u32 s2, 256
    s_cbranch_scc1 L_end
    s_load_dwordx16 s[64:79], s[0:1], 0
    s_load_dwordx4 s[80:83], s[0:1], 64
    s_getpc_b64 s[6:7]
    s_lshr_b32 s5, s2, 3
    s_and_b32 s5, s5, 7
    s_lshl_b32 s5, s5, 13
    v_lshl_add_u32 v1, v0, 4, s5
    v_min_u32 v1, L_end-{KNAME}-16, v1
    s_and_b32 s6, s6, 0xffffff00
    global_load_dwordx4 v[252:255], v1, s[6:7]
    v_lshrrev_b32 v1, 6, v0
    v_readfirstlane_b32 s{SW}, v1
    v_and_b32 v1, 63, v0                   ; lane
    s_and_b32 s5, s2, 7                    ; xcd
    s_lshr_b32 s6, s2, 3                   ; i
    s_and_b32 s{SW3}, s{SW}, 3
    s_lshr_b32 s52, s5, 1
    s_lshl_b32 s52, s52, 2
    s_and_b32 s53, s6, 3
    s_add_u32 s52, s52, s53                ; rb
    s_and_b32 s53, s5, 1
    s_lshl_b32 s53, s53, 3
    s_lshr_b32 s54, s6, 2
    s_add_u32 s53, s53, s54                ; cb
    s_lshl_b32 s54, s52, 2
    s_add_u32 s54, s54, s{SW3}             ; tt
    s_and_b32 s55, s53, 1
    s_lshl_b32 s55, s55, 3                 ; colshift
    s_mov_b32 s{SX+2}, {2048*896:#x}
    s_mov_b32 s{SX+3}, 0x00020000
    s_mov_b32 s{SWQ+2}, {448*2688:#x}
    s_mov_b32 s{SWQ+3}, 0x00020000
    v_lshrrev_b32 v2, 3, v1
    v_mul_u32_u24 v2, 896, v2
    v_lshrrev_b32 v3, 4, v1
    v_and_b32 v9, 7, v1
    v_xor_b32 v3, v3, v9
    v_lshl_add_u32 v2, v3, 4, v2
    v_xor_b32 v3, 64, v2
    s_mul_i32 s56, s54, {32*896}
    s_lshl_b32 s57, s{SW3}, 12
    """)
    for u in range(3):
        a(f"""
        v_add_u32 v9, {64*u}, v1
        v_mul_u32_u24 v10, 43691, v9
        v_lshrrev_b32 v10, 19, v10
        v_mul_u32_u24 v11, 12, v10
        v_sub_u32 v11, v9, v11
        v_min_u32 v11, 10, v11
        v_mul_u32_u24 v10, 2688, v10
        v_lshl_add_u32 v{16+u}, v11, 4, v10
        """)
    magic = (65536 + ROTG - 1) // ROTG
    assert all((i * magic) >> 16 == i // ROTG for i in range(32))
    a(f"""
    s_mul_i32 s58, s53, 168
    s_sub_u32 s58, s58, s55
    s_mul_i32 s59, s{SW3}, {16*2688}
    s_add_u32 s58, s58, s59
    s_mul_i32 s59, s{SW3}, 3072
    s_add_u32 s59, s59, 16384
    s_mul_i32 s46, s6, {magic}
    s_lshr_b32 s46, s46, 16
    s_mul_i32 s46, s46, {ROTG}
    s_sub_u32 s46, s6, s46                 ; i mod G
    s_mul_i32 s46, s46, {(7*256)//ROTG}
    s_lshr_b32 s46, s46, 8                 ; first chunk
    s_mul_i32 s47, s5, {E("XR1", 1)}
    s_add_u32 s46, s46, s47
    s_mul_i32 s47, s46, 9363
    s_lshr_b32 s47, s47, 16
    s_mul_i32 s47, s47, 7
    s_sub_u32 s46, s46, s47
    s_mov_b32 s47, 0
    s_waitcnt lgkmcnt(0)
    s_mov_b64 s[{SX}:{SX+1}], s[64:65]
    s_mov_b64 s[{SWQ}:{SWQ+1}], s[66:67]
    s_cmp_lt_u32 s{SW}, 4
    s_cbranch_scc1 L_compute
    """)

def common_setup(a):
    for d, nb in ((SWO, 448*896), (SWS, WS_BYTES), (SG, 448*3584), (SU, 448*3584), (SD, 1792*896), (SOUT, 2048*896), (SDBG, 256)):
        a(f"s_mov_b32 s{d+2}, {nb:#x}\ns_mov_b32 s{d+3}, 0x00020000")
    for d, src in ((SWO, 68), (SG, 72), (SU, 74), (SD, 76), (SOUT, 78), (SDBG, 80), (SWS, 82)):
        a(f"s_mov_b64 s[{d}:{d+1}], s[{src}:{src+1}]")
    if DIAG:
        for i in range(0, 32, 2):
            a(f"s_mov_b64 s[{64+i}:{65+i}], 0")
        a("s_mov_b32 s64, s100")
    a(f"""
    v_and_b32 v12, 31, v1                  ; t
    v_lshrrev_b32 v13, 5, v1               ; hf
    v_mov_b32 v15, 0x3f803f80
    """)

def p1_adv(a):
    a(f"""
    s_add_u32 s46, s46, 1
    s_cmp_eq_u32 s46, 7
    s_cselect_b32 s46, 0, s46
    s_add_u32 s47, s47, 28672
    s_cmp_eq_u32 s47, {5*28672}
    s_cselect_b32 s47, 0, s47
    """)

def p1_issue(a):
    a(f"""
    s_lshl_b32 s60, s46, 7
    s_add_u32 s60, s60, s56
    s_add_u32 m0, s57, s47
    s_mul_i32 s61, s46, {4*16*2688}
    """)
    for q in range(4):
        a(f"buffer_load_dwordx4 v{2+(q&1)}, {sr(SX)}, s60 offen lds")
        if q < 3: a("s_add_u32 m0, m0, 1024\ns_add_u32 s60, s60, 7168")
    a(f"s_add_u32 m0, s59, s47\ns_add_u32 s61, s61, s58")
    for u in range(3):
        a(f"buffer_load_dwordx4 v{16+u}, {sr(SWQ)}, s61 offen lds")
        if u < 2: a("s_add_u32 m0, m0, 1024")
    p1_adv(a)

def rebase_ops(c, regs):
    d = 28672 if c % 5 else -4 * 28672
    return [f"v_add_u32 v{r}, {d & 0xffffffff:#x}, v{r}" for r in regs]

def p1_compute(a):
    ACC = 16; WA = 64; XF = 100; CSA = 112; SEL = 124; WAD = 128
    common_setup(a)
    a(f"""
    v_bfe_u32 v14, v12, 1, 3
    v_xor_b32 v14, v14, v13
    v_lshlrev_b32 v14, 4, v14
    v_lshl_add_u32 v14, v12, 7, v14
    s_lshl_b32 s61, s{SW3}, 5
    v_xor_b32 v14, s61, v14
    v_add_u32 v4, s57, v14
    v_xor_b32 v5, 32, v4
    v_xor_b32 v6, 64, v4
    v_xor_b32 v7, 96, v4
    v_bfe_u32 v9, v1, 4, 1                 ; ch
    v_bfe_u32 v10, v1, 2, 2                ; r
    v_lshl_add_u32 v10, v13, 3, v10
    v_mul_u32_u24 v10, 192, v10
    v_lshl_add_u32 v10, v9, 5, v10
    v_and_b32 v11, 3, v1
    v_lshl_add_u32 v10, v11, 3, v10
    """)
    for i in range(4):
        a(f"""
        s_xor_b32 s61, s{SW3}, {i}
        s_mul_i32 s61, s61, 3072
        s_add_u32 s61, s61, s55
        s_add_u32 s61, s61, 16384
        v_add_u32 v{WAD+i}, s61, v10
        """)
    p1_adv(a)
    if E('SCH1', 1) == 0: p1_adv(a)
    p1_issue(a)
    if E("FPRE", 1):
        a(f"""
        s_cmp_lg_u32 s{SW}, 0
        s_cbranch_scc1 L_p1_nofp
        s_lshl_b32 s60, s2, 10
        s_add_u32 s60, s60, {FA}
        v_lshl_add_u32 v9, v1, 7, s60
        s_lshl_b32 s60, s5, 2
        s_and_b32 s61, s6, 3
        s_add_u32 s60, s60, s61
        s_lshl_b32 s60, s60, 3
        s_lshr_b32 s61, s6, 2
        s_add_u32 s60, s60, s61
        s_lshl_b32 s60, s60, 7             ; (tb*8+fb)*128
        s_add_u32 s61, s60, {FB}
        v_writelane_b32 v9, s61, 6
        s_add_u32 s61, s60, {FD}
        v_writelane_b32 v9, s61, 7
        s_lshl_b32 s61, s2, 7
        s_add_u32 s61, s61, {FC}
        v_writelane_b32 v9, s61, 8
        s_mov_b64 exec, 0x1ff
        buffer_load_dword v251, v9, {sr(SWS)}, 0 offen sc1
        s_mov_b64 exec, -1
L_p1_nofp:
        """)
    for r in range(4): a(f"v_mov_b32 v{SEL+r}, 0")
    setexec(a, 0x0002000100020001)
    for r in range(4): a(f"v_mov_b32 v{SEL+r}, v15")
    a(f"""
    s_mov_b64 exec, -1
    s_lshl_b32 s60, s{SW3}, 9
    s_add_u32 s60, s60, {CSP}
    v_lshl_add_u32 v132, v1, 2, s60
    v_lshlrev_b32 v2, 4, v1                ; lane*16
    s_lshl_b32 s56, s{SW3}, 8
    s_add_u32 s56, s56, {AUX1}
    v_lshl_add_u32 v133, v12, 2, s56
    v_lshl_add_u32 v134, v13, 4, s56
    v_lshlrev_b32 v135, 4, v13
    v_add_u32 v135, {CS1}, v135
    v_lshlrev_b32 v136, 2, v12
    v_add_u32 v136, {CS1}, v136
    v_mov_b32 v14, {KN1}
    v_mov_b32 v228, -1
    v_mov_b32 v229, 0
    v_mov_b32 v230, 0
    v_mov_b32 v231, -1
    v_mov_b32 v232, 0
    s_mov_b32 exec_lo, 0
    v_mov_b32 v228, 0
    v_mov_b32 v229, v15                    ; K pad
    v_mov_b32 v230, 0xffff
    s_mov_b32 exec_lo, 0xf0000000
    s_mov_b32 exec_hi, 0xf0000000
    v_mov_b32 v231, 0                      ; V keep
    s_mov_b32 exec_lo, 0x10000000
    s_mov_b32 exec_hi, 0x10000000
    v_mov_b32 v232, v15
    s_mov_b64 exec, -1
    s_mul_i32 s60, s53, 3
    """)
    for j in range(3):
        a(f"""
        s_add_u32 s61, s60, {j}
        s_and_b32 s62, s61, 15
        s_lshl_b32 s62, s62, 6
        s_add_u32 s62, s62, s54
        s_lshl_b32 s{57+j}, s62, 11
        s_lshl_b32 s62, s62, 12
        s_add_u32 s62, s62, {KVF}
        s_cmp_ge_u32 s61, 16
        s_cselect_b32 s{57+j}, s62, s{57+j}
        s_add_u32 s62, s62, 2048
        s_cmp_ge_u32 s61, 32
        s_cselect_b32 s{57+j}, s62, s{57+j}
        """)
    def reads(ks):
        c, i = divmod(ks, 4)
        pre = []
        if i == 0 and c in (2, 4, 5):
            d = {2: 2*28672, 4: 2*28672, 5: -4*28672}[c]
            pre = [f"v_add_u32 v{r}, {d & 0xffffffff:#x}, v{r}" for r in (4, 5, 6, 7, WAD, WAD+1, WAD+2, WAD+3)]
        so = 28672 if c in (1, 3, 6) else 0
        buf = WA + 12 * (ks % 3)
        L = [f"ds_read_b128 {vr(XF+4*(ks%3))}, v{4+i} offset:{so}"]
        for j in range(3):
            for u in range(2):
                L.append(f"ds_read_b64_tr_b16 v[{buf+4*j+2*u}:{buf+4*j+2*u+1}], v{WAD+i} offset:{so+u*768+j*56}")
        return pre, L
    a(f"""
    s_cmp_eq_u32 s53, 10
    s_cbranch_scc1 L_p1_v1
    s_cmp_gt_u32 s53, 10
    s_cbranch_scc1 L_p1_v2
    """)
    QS = f2u(28 ** -0.5 * math.log2(math.e))
    MEAN, RSTD, CS, P0 = 64, 80, 140, 204
    pk = lambda b: f"v[{b}:{b+1}]"
    def epilogue(types):
        n = 0
        if "Q" in types or "K" in types:
            a("ds_read_b32 v10, v133\nds_read_b32 v11, v133 offset:128"); n += 2
        for j in range(3):
            if types[j] != "V":
                for q in range(4): a(f"ds_read_b128 {vr(CS+16*j+4*q)}, v135 offset:{128*j+32*q}")
                n += 4
        if "V" in types:
            if n: a("s_waitcnt lgkmcnt(4)")
            for j in range(3):
                if types[j] == "V": a(f"ds_read_b32 v{100+2*j}, v136 offset:{128*j}")
            for q in range(4):
                a(f"ds_read_b128 {vr(MEAN+4*q)}, v134 offset:{32*q}\nds_read_b128 {vr(RSTD+4*q)}, v134 offset:{128+32*q}")
        st = lambda j, h: f"buffer_store_dwordx4 {vr(P0+8*j+4*h)}, v2, {sr(SWS)}, s{57+j} offen offset:{1024*h} sc1"
        SC = {"Q": 188, "K": 196}
        if n:
            a(f"s_waitcnt lgkmcnt({12 if 'V' not in types else 13})")
            for t in sorted(set(types) - {"V"}):
                b = SC[t]
                a(f"""
                {f"v_mul_f32 v{b}, {QS:#x}, v11" if t == "Q" else f"v_mov_b32 v{b}, v11"}
                v_mul_f32 v{b+2}, -v10, v{b}
                v_mov_b32 v{b+1}, v{b}
                v_mov_b32 v{b+3}, v{b+2}
                """.replace("v_mul_f32 v%d, -v10" % (b+2), "v_mul_f32_e64 v%d, -v10" % (b+2)))
        carry = []
        for j in range(3):
            acc = ACC + 16*j; P = P0 + 8*j; t = types[j]
            S1 = []; S2 = []
            if t == "V":
                S1 += ["s_waitcnt lgkmcnt(0)", f"v_sub_f32 v{100+2*j}, 0, v{100+2*j}", f"v_mov_b32 v{101+2*j}, v{100+2*j}"]
                S1 += [f"v_pk_fma_f32 {pk(acc+r)}, {pk(MEAN+r)}, {pk(100+2*j)}, {pk(acc+r)}" for r in range(0, 16, 2)]
                S1 += [f"v_pk_mul_f32 {pk(acc+r)}, {pk(acc+r)}, {pk(RSTD+r)}" for r in range(0, 16, 2)]
                S1 += [f"v_cvt_pk_bf16_f32 v{P+r}, v{acc+2*r}, v{acc+2*r+1}" for r in range(8)]
                S1 += [f"v_and_or_b32 v{P+r}, v{P+r}, v231, v232" for r in range(4)] + [st(j, 0)]
                S1 += [f"v_and_or_b32 v{P+r}, v{P+r}, v231, v232" for r in range(4, 8)] + [st(j, 1)]
            else:
                b = SC[t]
                S1 += [f"v_pk_mul_f32 {pk(acc+r)}, {pk(acc+r)}, {pk(b)}" for r in range(0, 16, 2)]
                S1 += [f"s_waitcnt lgkmcnt({8 if 'V' not in types else 13})" if j == 0 else "s_waitcnt lgkmcnt(0)" if j == 1 else ""]
                S1 += [f"v_pk_fma_f32 {pk(acc+r)}, {pk(CS+16*j+r)}, {pk(b+2)}, {pk(acc+r)}" for r in range(0, 16, 2)]
                S1 += [f"v_cvt_pk_bf16_f32 v{P+r}, v{acc+2*r}, v{acc+2*r+1}" for r in range(4)] + [st(j, 0)]
                S1 += [f"v_cvt_pk_bf16_f32 v{P+r}, v{acc+2*r}, v{acc+2*r+1}" for r in range(4, 8)]
                S1 += [f"v_and_b32 v{P+7}, v{P+7}, v228"]
                if t == "K": S1 += [f"v_and_or_b32 v{P+6}, v{P+6}, v228, v229", st(j, 1)]
                else: S1 += [f"v_and_b32 v{P+6}, v{P+6}, v228"]
                n0, n1 = 234 + 2*j, 235 + 2*j
                S2 += [f"v_dot2_f32_bf16 v{n0}, v{P}, v{P}, 0", f"v_dot2_f32_bf16 v{n1}, v{P+1}, v{P+1}, 0"]
                S2 += [f"v_dot2_f32_bf16 v{n0+(r&1)}, v{P+r}, v{P+r}, v{n0+(r&1)}" for r in range(2, 8)]
                S2 += ["", "", f"v_add_f32 v{n0}, v{n0}, v{n1}", f"v_mov_b32 v{n1}, v{n0}", "", f"v_permlane32_swap_b32 v{n0}, v{n1}", f"v_add_f32 v{n0}, v{n0}, v{n1}"]
                if t == "Q":
                    S2 += [f"v_sqrt_f32 v{n0}, v{n0}", f"v_mul_f32 v{n0}, {f2u(1.0+1.0/128):#x}, v{n0}", f"v_add_u32 v{n0}, 0xffff, v{n0}",
                           f"v_lshrrev_b32 v{n0}, 16, v{n0}", f"v_and_or_b32 v{P+6}, v{n0}, v230, v{P+6}", st(j, 1)]
                else:
                    S2 += [f"ds_max_u32 v14, v{n0} offset:{4*j}"]
            for ins in S1:
                a(ins)
                if carry: a(carry.pop(0))
            a.emit(*carry); carry = S2
        a.emit(*carry)
    bars0 = list(a.bars)
    for var, isv in enumerate(((0,0,0), (0,0,1), (1,1,1))):
        a.bars = list(bars0)
        a(f"L_p1_v{var}:")
        a.bar("p1s0")
        a.stamp(1)
        a.emit(*reads(0)[1]); a.emit(*reads(1)[1])
        LATE = E("LATE1", 7)
        for ks in range(28):
            st_next = (ks + 2) // 4
            if ks % 4 == 2 and ks < 26 and st_next < LATE:
                if ks == (2 if E('SCH1', 1) else 6): a(f"s_waitcnt vmcnt({1 if E('FPRE', 1) else 0})" if False else "s_waitcnt vmcnt(0)")
                a.bar(f"p1s{st_next}")
            if ks % 4 == 0 and ks // 4 >= LATE:
                a.bar(f"p1s{ks//4}")
                pre, rd = reads(ks); a.emit(*pre); a.emit(*rd); a.emit(*reads(ks + 1)[1])
            ahead = ks < 26 and not (st_next >= LATE and st_next != ks // 4)
            pre, rd = reads(ks + 2) if ahead else ([], [])
            buf = WA + 12 * (ks % 3)
            a.emit(*pre)
            prev_ahead = (ks + 1 < 28) and not ((ks + 1) // 4 >= LATE and (ks + 1) // 4 != ks // 4)
            if ks < 27: a(f"s_waitcnt lgkmcnt({13 if ks == 26 else 7 if prev_ahead else 0})")
            for j in range(3):
                A, B = vr(buf + 4*j), vr(XF + 4*(ks % 3))
                if isv[j]: A, B = B, A
                C = "0" if ks == 0 else vr(ACC + 16*j, 16)
                a(f"v_mfma_f32_32x32x16_bf16 {vr(ACC+16*j,16)}, {A}, {B}, {C}")
                a.emit(*rd[[0,3,5][j]:[3,5,7][j]])
            if ks % 4 == 0:
                for j in range(3):
                    a(f"v_mfma_f32_16x16x32_bf16 {vr(CSA+4*j)}, {vr(SEL)}, {vr(buf+4*j)}, {'0' if ks == 0 else vr(CSA+4*j)}")
            if ks == 25:
                a("s_mov_b64 exec, 0xffff")
                for j in range(3):
                    a(f"ds_write_b32 v132, v{CSA+4*j} offset:{128*j}\nds_write_b32 v132, v{CSA+4*j+1} offset:{128*j+64}")
                a("s_mov_b64 exec, -1")
            if ks == 26:
                a("s_waitcnt lgkmcnt(0)")
                a.bar("p1C")
        a.stamp(2)
        if var == 0:
            a("s_cmp_lt_u32 s53, 5\ns_cbranch_scc1 L_p1_eQQQ\ns_cmp_eq_u32 s53, 5\ns_cbranch_scc1 L_p1_eQKK")
            eps = ("KKK", "QQQ", "QKK")
        else:
            eps = (("KKV",), ("VVV",))[var - 1]
        bars1 = list(a.bars)
        for ep in eps:
            a.bars = list(bars1)
            a(f"L_p1_e{ep}:")
            a.bar("p1S")
            a.stamp(3)
            epilogue(ep)
            if ep != "VVV": a("s_branch L_p1_done")
    a("L_p1_done:")
    a.stamp(4)

def p1_helper(a):
    XF = 96; G = 68; SM = 76; ONES = 88; SEL = 84; CSA = 64
    vm = VM()
    SCH = E("SCH1", 1)
    if SCH == 0:
        a("L_h1_il:")
        p1_issue(a)
        a(f"s_cmp_lt_u32 s47, {2*28672}\ns_cbranch_scc1 L_h1_il")
        p1_adv(a)
        vm.add("s0", 7); vm.add("s1", 7)
        sched = {0: [3], 1: [4], 2: [5], 3: [6]}
    else:
        p1_issue(a); p1_adv(a)
        vm.add("s0", 7)
        sched = [None, {0: [2], 1: [3, 4], 2: [5], 3: [6]}, {0: [2, 3], 1: [4], 2: [5], 3: [6]}, {0: [2], 1: [3], 2: [4, 5], 3: [6]}][SCH]
    common_setup(a)
    a.stamp(1)
    a(f"""
    s_cmp_lg_u32 s{SW}, 4
    s_cbranch_scc1 L_h_nononce
    s_cmp_lg_u32 s2, 0
    s_cbranch_scc1 L_h_nononce
    s_memrealtime s[{NON}:{NON+1}]
    s_waitcnt lgkmcnt(0)
    s_or_b32 s{NON+1}, s{NON+1}, 0x80000000
    v_mov_b32 v10, s{NON}
    v_mov_b32 v11, s{NON+1}
    v_mov_b32 v9, 0
    s_mov_b64 exec, 1
    buffer_store_dwordx2 v[10:11], v9, {sr(SDBG)}, 0 offen sc1
    s_mov_b64 exec, -1
L_h_nononce:
    v_and_b32 v9, 15, v1
    v_lshrrev_b32 v10, 1, v9
    v_lshrrev_b32 v11, 4, v1
    v_xor_b32 v10, v10, v11
    v_lshlrev_b32 v10, 4, v10
    v_lshl_add_u32 v10, v9, 7, v10
    v_add_u32 v4, s57, v10
    v_xor_b32 v5, 64, v4
    v_lshlrev_b32 v14, 2, v11
    v_add_u32 v14, {KN1}, v14
    v_mov_b32 v10, 0
    ds_write_b32 v14, v10
    s_and_b32 s63, s{SW}, 1
    s_lshl_b32 s60, s{SW3}, 7
    v_lshl_add_u32 v8, v12, 2, s60
    v_add_u32 v19, {CS1}, v8
    v_add_u32 v8, {CSP}, v8
    s_lshl_b32 s60, s{SW3}, 8
    s_add_u32 s60, s60, {AUX1}
    v_lshl_add_u32 v9, v9, 2, s60
    {"s_setprio 3" if E("HPRIO", 1) else ""}
    """)
    for r in range(4): a(f"v_mov_b32 v{ONES+r}, v15")
    STAG = E("STAG", 0)
    def work(c):
        xf = XF + 16 * (c & 1)
        for i in range(4):
            th, kh = i & 1, i >> 1
            z = (c == 0 and kh == 0)
            a(f"v_mfma_f32_16x16x32_bf16 {vr(G+4*th)}, {vr(xf+4*i)}, {vr(xf+4*i)}, {'0' if z else vr(G+4*th)}")
            a(f"v_mfma_f32_16x16x32_bf16 {vr(SM+4*th)}, {vr(ONES)}, {vr(xf+4*i)}, {'0' if z else vr(SM+4*th)}")
    for c in range(7):
        a(vm.wait(f"s{c}"))
        a("s_waitcnt lgkmcnt(0)")
        if c in (0, 3, 6): a.stamp(2 + c // 3)
        a.bar(f"p1s{c}")
        if c > 0: a.emit(*rebase_ops(c, (4, 5)))
        xf = XF + 16 * (c & 1)
        for i in range(4):
            a(f"ds_read_b128 {vr(xf+4*i)}, v{4+(i>>1)} offset:{(i&1)*2048}")
        for n in sched.get(c, []):
            p1_issue(a)
            vm.add(f"s{n}", 7)
        if 0 < c <= 4: work(c - 1)
        if c in (4, 5):
            a("s_waitcnt lgkmcnt(0)")
            work(c)
        n = c + 3
        if n <= 6:
            if n == 6 and TF:
                a(f"""
                s_and_b32 s48, s5, 1
                s_lshl_b32 s48, s48, 3
                s_and_b32 s60, s6, 7
                s_add_u32 s48, s48, s60
                s_lshl_b32 s60, s{SW3}, 4
                s_add_u32 s48, s48, s60
                s_cmp_ge_u32 s48, 28
                s_cbranch_scc1 L_h1_notf
                s_lshr_b32 s49, s5, 1
                s_lshl_b32 s49, s49, 2
                s_lshr_b32 s60, s6, 3
                s_add_u32 s49, s49, s60            ; cb4
                s_mul_i32 s50, s48, {16*3584}
                s_mul_i32 s60, s49, 224
                s_and_b32 s61, s60, 63
                s_sub_u32 s60, s60, s61
                s_add_u32 s50, s50, s60
                s_lshl_b32 s51, s{SW3}, 13
                s_add_u32 s51, s51, {TSTG}
                s_add_u32 s61, s61, s51
                v_lshrrev_b32 v10, 4, v1
                v_mul_u32_u24 v10, {4*3584}, v10
                v_and_b32 v11, 15, v1
                v_lshl_add_u32 v20, v11, 4, v10
                v_bfe_u32 v10, v1, 2, 2
                v_lshlrev_b32 v10, 10, v10
                v_lshl_add_u32 v10, v13, 9, v10
                v_and_b32 v11, 1, v1
                v_lshl_add_u32 v10, v11, 4, v10
                v_bfe_u32 v11, v1, 4, 1
                v_lshl_add_u32 v10, v11, 3, v10
                v_bfe_u32 v11, v1, 1, 1
                v_lshl_add_u32 v10, v11, 12, v10
                v_add_u32 v6, s61, v10
                """)
                for i in range(4):
                    a(f"""
                    s_add_u32 m0, s51, {i*1024}
                    s_nop 0
                    buffer_load_dwordx4 v20, {sr(SG)}, s50 offen lds
                    s_add_u32 m0, s51, {i*1024+4096}
                    s_nop 0
                    buffer_load_dwordx4 v20, {sr(SU)}, s50 offen lds
                    s_add_u32 s50, s50, 3584
                    """)
                a("s_branch L_h1_tf\nL_h1_notf:")
                for i in range(8): a(f"buffer_load_dword v22, v1, {sr(SDBG)}, 0 offen offset:512")
                a("L_h1_tf:")
                vm.add("t", 8)
    a("s_waitcnt lgkmcnt(0)")
    work(6)
    for r in range(1, 4):
        setexec(a, sum(1 << (20*g + r) for g in range(4)))
        a(f"v_mov_b32 v{G}, v{G+r}\nv_mov_b32 v{G+4}, v{G+4+r}")
    setexec(a, sum(15 << (20*g) for g in range(4)))
    for th in range(2):
        mn, sq = SM + 4*th, G + 4*th
        a(f"""
        v_mul_f32 v{mn}, {f2u(1.0/448):#x}, v{mn}
        v_mul_f32 v{sq}, {f2u(1.0/448):#x}, v{sq}
        v_fma_f32 v{sq}, -v{mn}, v{mn}, v{sq}
        v_max_f32 v{sq}, 0, v{sq}
        v_add_f32 v{sq}, {f2u(1e-5):#x}, v{sq}
        v_rsq_f32 v{sq}, v{sq}
        ds_write_b32 v9, v{mn} offset:{64*th}
        s_nop 0
        ds_write_b32 v9, v{sq} offset:{128+64*th}
        """)
    a("s_mov_b64 exec, -1")
    a.bar("p1C")
    for w in range(4): a(f"ds_read_b32 v{CSA+w}, v8 offset:{512*w}")
    a(f"""
    s_waitcnt lgkmcnt(0)
    v_add_f32 v{CSA}, v{CSA}, v{CSA+1}
    v_add_f32 v{CSA+2}, v{CSA+2}, v{CSA+3}
    v_add_f32 v{CSA}, v{CSA}, v{CSA+2}
    ds_write_b32 v19, v{CSA}
    s_waitcnt lgkmcnt(0)
    s_setprio 0
    """)
    a.bar("p1S")
    a(f"""
    v_mov_b32 v9, 0
    s_mov_b32 s60, 0
L_h_nl:
    buffer_load_dwordx2 v[24:25], v9, {sr(SDBG)}, 0 offen sc1
    s_add_u32 s60, s60, 1
    s_waitcnt vmcnt(0)
    v_readfirstlane_b32 s{NON}, v24
    v_readfirstlane_b32 s{NON+1}, v25
    s_cmp_gt_u32 s60, {POLL_MAX}
    s_cbranch_scc1 L_h_gotnonce
    s_cmp_eq_u32 s{NON+1}, 0
    s_cbranch_scc1 L_h_nl
L_h_gotnonce:
    """)
    if TF:
        a("s_cmp_ge_u32 s48, 28\ns_cbranch_scc1 L_h1_notf2")
        for j in range(7):
            for u in range(2):
                a(f"ds_read_b64_tr_b16 v[{36+4*j+2*u}:{37+4*j+2*u}], v6 offset:{u*256+j*32}")
        a(f"""
        s_mul_i32 s50, s49, {28*SLOT}
        s_mul_i32 s60, s48, {SLOT}
        s_add_u32 s50, s50, s60
        s_add_u32 s50, s50, {WGU}
        s_add_u32 s51, s50, 4096
        v_lshlrev_b32 v2, 4, v1
        s_waitcnt lgkmcnt(0)
        """)
        if E("TST", 0) == 0: tstores(a)
        a("L_h1_notf2:")
    a(f"""
    s_mul_i32 s60, s53, 3
    v_lshrrev_b32 v9, 4, v1
    v_add_u32 v9, s60, v9                  ; p
    v_and_b32 v10, 15, v9                  ; h
    v_lshrrev_b32 v9, 4, v9                ; type
    v_lshlrev_b32 v9, 8, v9
    v_lshl_add_u32 v9, v10, 10, v9
    v_and_b32 v10, 15, v1
    v_lshl_add_u32 v18, v10, 14, v9
    s_lshl_b32 s62, s52, 4
    s_add_u32 s62, s62, {FA}
    v_mov_b32 v27, 0
    s_lshl_b32 s60, s2, 10
    s_add_u32 s60, s60, {FA+256}
    v_lshl_add_u32 v17, v1, 4, s60
    s_lshr_b32 s61, s2, 4
    s_lshl_b32 s61, s61, 4
    s_add_u32 s60, s60, s61
    s_sub_u32 s60, s60, 256
    s_mov_b32 exec_lo, 0
    v_mov_b32 v17, s60
    s_mov_b32 exec_lo, -1
    """)

def tstores(a):
    for j in range(7):
        a(f"buffer_store_dwordx4 {vr(36+4*j)}, v2, {sr(SWS)}, s{50 if j < 4 else 51} offen offset:{(j%4)*1024} sc1")

def pub_prep(a, code, mask):
    a(f"""
    {code}
    v_add_u32 v19, s60, v9
    s_lshl_b32 s61, s{SW3}, 2
    s_lshl_b32 s50, 15, s61
    s_and_b32 s50, s50, {mask:#x}
    s_mov_b32 s51, 0
    """)

def pub_fire(a):
    a(f"""
    s_mov_b64 exec, s[50:51]
    buffer_store_dwordx2 v[24:25], v19, {sr(SWS)}, 0 offen sc1
    s_mov_b64 exec, -1
    """)

def pub14(r, slot, base):
    return f"""v_lshlrev_b32 v9, 7, v1
    s_lshl_b32 s60, s{r}, 11
    s_lshl_b32 s61, s{slot}, 3
    s_add_u32 s60, s60, s61
    s_add_u32 s60, s60, {base}"""

def poll(a, tag, vaddr, mask, wide=False, dst=10, pipe=False, backoff=0):
    n = 4 if wide else 2
    ld = lambda d: f"buffer_load_dwordx{n} {vr(d, n)}, v{vaddr}, {sr(SWS)}, 0 offen sc1"
    setexec(a, mask)
    if not pipe:
        a(f"""
        s_mov_b32 s60, 0
L_poll_{tag}:
        {ld(dst)}
        s_add_u32 s60, s60, 1
        s_waitcnt vmcnt(0)
        v_cmp_ne_u64 vcc, s[{NON}:{NON+1}], v[{dst}:{dst+1}]
        s_cmp_gt_u32 s60, {POLL_MAX}
        s_cbranch_scc1 L_polld_{tag}
        {f"s_cbranch_vccz L_polld_{tag}" if backoff else ""}
        {f"s_sleep {backoff}" if backoff else ""}
        s_cbranch_vccnz L_poll_{tag}
L_polld_{tag}:
        s_mov_b64 exec, -1
        """)
        return
    a(f"""
    s_mov_b32 s60, 0
    v_mov_b32 v{dst}, 0
    v_mov_b32 v{dst+1}, 0
L_poll_{tag}:
    {ld(dst)}
    s_add_u32 s60, s60, 1
    s_sleep 4
    s_waitcnt vmcnt(8)
    v_cmp_ne_u64 vcc, s[{NON}:{NON+1}], v[{dst}:{dst+1}]
    s_cmp_gt_u32 s60, {POLL_MAX}
    s_cbranch_scc1 L_polld_{tag}
    s_cbranch_vccnz L_poll_{tag}
L_polld_{tag}:
    s_mov_b64 exec, -1
    """)

def p2_ids(a):
    a("s_and_b32 s52, s2, 15\ns_lshr_b32 s53, s2, 4")

def late_ids(a):
    a(f"""
    s_lshl_b32 s47, s5, 2
    s_and_b32 s46, s6, 3
    s_add_u32 s47, s47, s46                ; tb
    s_lshr_b32 s46, s6, 2                  ; fb
    s_and_b32 s56, s5, 1
    s_lshl_b32 s56, s56, 3
    s_and_b32 s57, s6, 7
    s_add_u32 s56, s56, s57                ; rb
    s_lshr_b32 s57, s5, 1
    s_lshl_b32 s57, s57, 2
    s_lshr_b32 s60, s6, 3
    s_add_u32 s57, s57, s60                ; cb
    """)

def p2_compute(a):
    Q = 16; O = 48; S = [112, 128]; P = 144; KV = 152; RA = 216
    pk = lambda b: f"v[{b}:{b+1}]"
    p2_ids(a)
    a(f"""
    s_lshl_b32 s54, s52, 6                 ; h*64
    s_lshl_b32 s55, s{SW3}, 4
    s_add_u32 s55, s55, s54
    s_lshl_b32 s55, s55, 12
    s_add_u32 s55, s55, {KVF}
    s_add_u32 s{SKV}, s{SWS}, s55
    s_addc_u32 s{SKV+1}, s{SWS+1}, 0
    s_mov_b32 s{SKV+2}, 65536
    s_mov_b32 s{SKV+3}, 0x00020000
    s_lshl_b32 s55, s53, 2
    s_add_u32 s55, s55, s54                ; h*64 + qb*4
    v_lshlrev_b32 v3, 2, v1
    v_mov_b32 v9, {AUX2}
    s_mov_b32 s62, 0                       ; pass
    """)
    for j in range(4):
        a(f"""
        s_add_u32 s60, s{SW3}, {j+1}
        s_and_b32 s60, s60, 3
        s_add_u32 s{56+j}, s60, s55
        s_lshl_b32 s{56+j}, s{56+j}, 11
        s_mul_i32 s60, s60, 12288
        s_add_u32 s60, s60, {RREG + (j*4096 if j < 3 else 0)}
        v_add_u32 v{RA+j}, s60, v2
        """)
    a("s_waitcnt vmcnt(0) lgkmcnt(0)")
    a.stamp(5)
    a.bar("p1X")
    a("s_mov_b32 s63, s58")
    p3_addr(a)
    a(f"s_mov_b32 s58, s63\nv_mov_b32 v9, {AUX2}")
    def zero():
        for r in range(64): a(f"v_mov_b32 v{O+r}, 0")
        for r in range(4): a(f"v_mov_b32 v{P+4+r}, 0\nv_mov_b32 v{KV+48+12+r}, 0")
    if DRY & 2:
        a("s_mov_b32 s61, 0")
        dry_call(a, "2", 4)
    a.bar("p2P")
    a.stamp(6)
    def kvl(t):
        kt, f = divmod(t, 4)
        return f"buffer_load_dwordx4 {vr(KV+16*kt+4*f)}, v2, {sr(SKV)}, s61 offen offset:{f*1024} sc1"
    def ql(j):
        a(f"buffer_load_dwordx4 {vr(Q+8*j+4)}, v2, {sr(SWS)}, s{56+j} offen offset:1024 sc1")
        a(f"buffer_load_dwordx4 {vr(Q+8*j)}, v2, {sr(SWS)}, s{56+j} offen sc1")
    KG = E("KVG", 4)
    a(f"ds_read_b32 v5, v9 offset:4\ns_and_b32 s61, s53, {KG-1}\ns_mul_i32 s61, s61, {65536//KG}")
    ql(0); a(kvl(0)); a(kvl(1)); ql(1); a(kvl(2)); a(kvl(3)); ql(2); ql(3)
    NPRE = E("NPRE", 6)
    adv = "s_add_u32 s61, s61, 4096\ns_and_b32 s61, s61, 0xffff"
    for t in range(4, NPRE):
        if t % 4 == 0: a(adv)
        a(kvl(t))
    def patch(j):
        return ["s_mov_b32 exec_lo, 0", f"v_lshlrev_b32 v6, 16, v{Q+8*j+6}", "v_mul_f32 v6, v5, v6", "v_add_u32 v6, 0x8000ffff, v6",
                f"v_lshrrev_b32 v{Q+8*j+6}, 16, v6", "s_mov_b32 exec_lo, -1"]
    a(f"s_waitcnt vmcnt({6+NPRE}) lgkmcnt(0)")
    a.emit(*patch(0))
    a(f"""
    s_waitcnt vmcnt({4+NPRE})
    v_mfma_f32_32x32x16_bf16 {vr(S[0],16)}, {vr(KV)}, {vr(Q)}, 0
    v_mfma_f32_32x32x16_bf16 {vr(S[0],16)}, {vr(KV+4)}, {vr(Q+4)}, {vr(S[0],16)}
    s_waitcnt vmcnt({NPRE-4})
    """)
    for j in (1, 2, 3): a.emit(*patch(j))
    a("s_branch L_p2_first" if False else "")
    a.stamp(7)
    def wr(j): return [f"ds_write_b128 v{RA+j}, {vr(O+16*j+4*q)} offset:{q*1024}" for q in range(4)]
    adv = "s_add_u32 s61, s61, 4096\ns_and_b32 s61, s61, 0xffff"
    def body(kind):
        last = kind == "last"; first = kind == "first"
        vm = VM()
        if first:
            for t in range(4, NPRE): vm.add(f"t{t}")
            todo = list(range(NPRE, 29))
        else:
            for t in range(13): vm.add(f"t{t}")
            todo = list(range(13, 16 if last else 29))
        def ld():
            if not todo: return
            t = todo.pop(0)
            if t % 4 == 0: a(adv)
            a(f"buffer_load_dwordx4 {vr(KV+16*((t//4)%4)+4*(t%4))}, v2, {sr(SKV)}, s61 offen offset:{(t%4)*1024} sc1")
            vm.add(f"t{t}")
        for u in range(16):
            kt, qi = divmod(u, 4)
            ktn, qn = divmod((u + 1) % 16, 4)
            ktp, qp = divmod((u - 1) % 16, 4)
            Sc, Sn = S[u & 1], S[(u + 1) & 1]
            e = lambda r: f"v_exp_f32 v{Sc+r}, v{Sc+r}"
            c = lambda r: f"v_cvt_pk_bf16_f32 v{P+r}, v{Sc+2*r}, v{Sc+2*r+1}"
            A = f"v_mfma_f32_32x32x16_bf16 {vr(Sn,16)}, {vr(KV+16*ktn)}, {vr(Q+8*qn)}, 0"
            B = f"v_mfma_f32_32x32x16_bf16 {vr(O+16*qp,16)}, {vr(KV+16*ktp+12)}, {vr(P+4)}, {vr(O+16*qp,16)}"
            C = f"v_mfma_f32_32x32x16_bf16 {vr(Sn,16)}, {vr(KV+16*ktn+4)}, {vr(Q+8*qn+4)}, {vr(Sn,16)}"
            D = f"v_mfma_f32_32x32x16_bf16 {vr(O+16*qi,16)}, {vr(KV+16*kt+8)}, {vr(P)}, {'0' if first and kt == 0 else vr(O+16*qi,16)}"
            W = ["", "", "", ""]
            gi = {"first": 0, "mid": 16, "last": 32}[kind] + u
            if DRY & 2 and gi % 12 == 0:
                if gi: a("s_cbranch_execz L_dry2_ret")
                a(f"L_dry2_{gi//12}:")
            if (last and u == 8) or (first and u == 3):
                if DRY & 2: a(f"s_cbranch_execz L_dry2s{gi}")
                a.bar("p2R0" if last else "p2Y")
                if DRY & 2: a(f"L_dry2s{gi}:")
            if last and u in (14, 15): W = wr(u - 14)
            fin = last and u == 15
            extra = lambda: first and todo and todo[0] < 13 + u
            if qi == 3 and not fin: a(vm.wait(f"t{4*(kt+1)+1}"))
            if not fin: a(A)
            if extra(): ld()
            a.emit(W[0], e(0), e(1), e(2), e(3), c(0), c(1))
            if qi == 1: a(vm.wait(f"t{4*kt+3}"))
            if not (first and u == 0): a(B)
            if extra(): ld()
            a.emit(W[1], e(4), e(5), e(6), e(7), c(2), c(3))
            if not fin: a(C)
            if todo and todo[0] <= 13 + u: ld()
            a.emit(W[2], e(8), e(9), e(10), e(11), c(4), c(5))
            if qi == 0: a(vm.wait(f"t{4*kt+2}"))
            a(D)
            if extra(): ld()
            a.emit(W[3], e(12), e(13), e(14), e(15), c(6), c(7))
        assert not todo
    a("L_p2_first:")
    body("first")
    a("s_mov_b32 s63, 0\nL_p2_loop:")
    body("mid")
    a(f"""
    s_add_u32 s63, s63, 1
    s_cmp_lt_u32 s63, 2
    {"s_cbranch_execz L_p2_lastb" if DRY & 2 else ""}
    s_cbranch_scc1 L_p2_loop
L_p2_lastb:
    """)
    body("last")
    a(f"v_mfma_f32_32x32x16_bf16 {vr(O+48,16)}, {vr(KV+48+12)}, {vr(P+4)}, {vr(O+48,16)}")
    a.emit(*wr(2))
    if DRY & 2: a("s_cbranch_execz L_dry2_ret")
    a(f"""
    s_lshl_b32 s60, s53, 2
    s_add_u32 s60, s60, s{SW3}
    s_lshl_b32 s60, s60, 15
    s_lshl_b32 s61, s52, 11
    s_add_u32 s60, s60, s61
    s_add_u32 s60, s60, {OF}
    v_mov_b32 v6, 0x1f800000
    v_mov_b32 v7, 0x5f800000
    s_waitcnt lgkmcnt(0)
    """)
    a.stamp(8)
    a.bar("p2R1")
    a.stamp(9)
    OW = O + 48
    for q in range(12):
        a(f"ds_read_b128 {vr(O+4*q)}, v{RA+3} offset:{q*1024}")
    for j in range(3):
        a(f"s_waitcnt lgkmcnt({8-4*j})")
        for r in range(0, 16, 2):
            a(f"v_pk_add_f32 {pk(OW+r)}, {pk(OW+r)}, {pk(O+16*j+r)}")
    a(f"""
    v_mov_b32 v10, v{OW+12}
    v_mov_b32 v11, v{OW+12}
    v_permlane32_swap_b32 v10, v11          ; v11 = l
    v_rcp_f32 v10, v11
    v_cmp_nge_f32 vcc, v11, v6
    v_cmp_gt_f32 s[58:59], v11, v7
    v_mov_b32 v11, v10
    """)
    for r in range(0, 16, 2):
        a(f"v_pk_mul_f32 {pk(OW+r)}, {pk(OW+r)}, v[10:11]")
    for r in range(8):
        a(f"v_cvt_pk_bf16_f32 v{P+r}, v{OW+2*r}, v{OW+2*r+1}")
    a(f"""
    buffer_store_dwordx4 {vr(P)}, v2, {sr(SWS)}, s60 offen sc1
    s_mov_b32 exec_lo, 0
    v_mov_b32 v{P+6}, 0
    v_mov_b32 v{P+7}, 0
    s_mov_b32 exec_lo, -1
    buffer_store_dwordx4 {vr(P+4)}, v2, {sr(SWS)}, s60 offen offset:1024 sc1
    s_or_b64 vcc, vcc, s[58:59]
    s_cbranch_scc0 L_p2_ok
    v_mov_b32 v10, 1
    ds_write_b32 v9, v10
L_p2_ok:
    """)
    a.stamp(10)
    a("s_waitcnt lgkmcnt(0)")
    a.bar("p2F")
    a("ds_read_b32 v14, v9")
    p3_pre(a)
    a(f"""
    s_waitcnt lgkmcnt(0)
    v_readfirstlane_b32 s60, v14
    s_andn2_b32 s60, s60, s62
    s_cmp_eq_u32 s60, 0
    s_waitcnt vmcnt(0)
    """)
    a.bar("p2R2")
    a(f"""
    s_cbranch_scc1 L_p2_done
    s_mov_b32 s62, 1
    s_mov_b32 exec_lo, 0
    """)
    for j in range(4): a(f"v_mov_b32 v{Q+8*j+6}, 0")
    a("s_mov_b32 exec_lo, -1")
    for j in range(4): a(f"v_mov_b32 v{O+j}, 0xff800000")
    a(f"""
    s_mov_b32 s61, 0
L_p2_mx:
    buffer_load_dwordx4 {vr(KV)}, v2, {sr(SKV)}, s61 offen sc1
    buffer_load_dwordx4 {vr(KV+4)}, v2, {sr(SKV)}, s61 offen offset:1024 sc1
    s_waitcnt vmcnt(0)
    """)
    for j in range(4):
        a(f"""
        v_mfma_f32_32x32x16_bf16 {vr(S[0],16)}, {vr(KV)}, {vr(Q+8*j)}, 0
        v_mfma_f32_32x32x16_bf16 {vr(S[0],16)}, {vr(KV+4)}, {vr(Q+8*j+4)}, {vr(S[0],16)}
        """)
        for r in range(8):
            a(f"v_max3_f32 v{O+j}, v{S[0]+2*r}, v{S[0]+2*r+1}, v{O+j}")
    a("s_add_u32 s61, s61, 4096\ns_cmp_lt_u32 s61, 65536\ns_cbranch_scc1 L_p2_mx")
    for j in range(4):
        a(f"""
        v_mov_b32 v10, v{O+j}
        v_permlane32_swap_b32 v{O+j}, v10
        v_max_f32 v{O+j}, v{O+j}, v10
        s_add_u32 s60, s{SW3}, {j+1}
        s_and_b32 s60, s60, 3
        s_lshl_b32 s60, s60, 10
        s_add_u32 s60, s60, {RREG}
        v_add_u32 v{O+8+j}, s60, v3
        s_lshl_b32 s61, s{SW3}, 8
        v_add_u32 v10, s61, v{O+8+j}
        ds_write_b32 v10, v{O+j}
        """)
    a("s_waitcnt lgkmcnt(0)\ns_barrier")
    for j in range(4):
        for w in range(4):
            a(f"ds_read_b32 v{O+16+4*j+w}, v{O+8+j} offset:{256*w}")
        a("s_waitcnt lgkmcnt(0)")
    for j in range(4):
        b = O + 16 + 4*j
        a(f"""
        v_max3_f32 v10, v{b}, v{b+1}, v{b+2}
        v_max_f32 v10, v10, v{b+3}
        v_sub_f32 v10, 0, v10
        v_and_b32 v11, 0xffff0000, v10
        v_sub_f32 v14, v10, v11
        v_cvt_pk_bf16_f32 v10, v11, v14
        s_mov_b32 exec_lo, 0
        v_mov_b32 v{Q+8*j+6}, v10
        s_mov_b32 exec_lo, -1
        """)
    a(f"s_and_b32 s61, s53, {KG-1}\ns_mul_i32 s61, s61, {65536//KG}")
    for t in range(NPRE):
        if t and t % 4 == 0: a(adv)
        a(kvl(t))
    a(f"""
    s_waitcnt vmcnt(0)
    v_mfma_f32_32x32x16_bf16 {vr(S[0],16)}, {vr(KV)}, {vr(Q)}, 0
    v_mfma_f32_32x32x16_bf16 {vr(S[0],16)}, {vr(KV+4)}, {vr(Q+4)}, {vr(S[0],16)}
    s_nop 15
    s_branch L_p2_first
L_p2_done:
    """)
    a.stamp(11)

def gu_dma(a, n, tag, vm, thr=None):
    if not TF:
        for t in range(n):
            a(f"""
            s_mov_b32 m0, s59
            s_add_u32 s59, s59, {SLOT}
            buffer_load_dwordx4 v20, {sr(SG)}, s58 offen lds
            s_add_u32 m0, m0, 4384
            s_add_u32 s60, s58, {16*3584}
            buffer_load_dwordx4 v20, {sr(SU)}, s58 offen lds
            s_sub_u32 s61, s60, {28*16*3584}
            s_cmp_ge_u32 s60, {28*16*3584}
            s_cselect_b32 s58, s61, s60
            {f"s_waitcnt vmcnt({thr})" if thr is not None else ""}
            """)
        vm.add(tag, 2 * n)
        return
    n //= 4
    for t in range(n):
        a(f"""
        s_mul_i32 s60, s63, {4*SLOT}
        s_add_u32 s60, s60, s58
        s_mov_b32 m0, s59
        s_add_u32 s61, s60, 4096
        """)
        for q in range(4): a(f"buffer_load_dwordx4 v2, {sr(SWS)}, s60 offen offset:{q*1024} sc1 lds")
        a(f"s_add_u32 m0, m0, 4096\ns_add_u32 s59, s59, {4*SLOT}")
        for q in range(3): a(f"buffer_load_dwordx4 v2, {sr(SWS)}, s61 offen offset:{q*1024} sc1 lds")
        a("s_add_u32 s63, s63, 1\ns_cmp_eq_u32 s63, 7\ns_cselect_b32 s63, 0, s63")
    vm.add(tag, 7 * n)

def rot4(a, dst):
    a(f"""
    s_lshr_b32 s60, s6, 3
    s_lshl_b32 s60, s60, 1
    s_and_b32 s{dst}, s6, 7
    s_add_u32 s{dst}, s{dst}, s60
    s_cmp_ge_u32 s{dst}, 7
    s_cselect_b32 s60, 7, 0
    s_sub_u32 s{dst}, s{dst}, s60
    """)

def rot5(a, dst, add=0):
    a(f"""
    s_and_b32 s60, s6, 3
    s_mul_i32 s60, s60, {E('TBROT', 1)}
    s_lshl_b32 s{dst}, s46, 2
    s_add_u32 s{dst}, s{dst}, s60
    s_add_u32 s{dst}, s{dst}, {add}
    s_mul_i32 s60, s5, {E("XR5", 7)}
    s_lshr_b32 s60, s60, 1
    s_add_u32 s{dst}, s{dst}, s60
    s_cmp_ge_u32 s{dst}, 28
    s_cselect_b32 s60, 28, 0
    s_sub_u32 s{dst}, s{dst}, s60
    s_cmp_ge_u32 s{dst}, 28
    s_cselect_b32 s60, 28, 0
    s_sub_u32 s{dst}, s{dst}, s60
    s_cmp_ge_u32 s{dst}, 28
    s_cselect_b32 s60, 28, 0
    s_sub_u32 s{dst}, s{dst}, s60
    """)

def tr128_addr(a, dst, sft, sxh, hfshift):
    a(f"""
    v_bfe_u32 v9, v1, 2, 2                 ; r
    v_lshl_add_u32 v10, v13, {hfshift}, v9
    v_lshlrev_b32 v10, 7, v10
    v_lshrrev_b32 v9, 1, v9
    v_xor_b32 v9, s{sft}, v9
    v_lshl_add_u32 v10, v9, 6, v10
    v_bfe_u32 v9, v1, 4, 1                 ; ch
    {f"v_xor_b32 v9, s{sxh}, v9" if sxh else ""}
    v_lshl_add_u32 v10, v9, 5, v10
    v_and_b32 v9, 1, v1
    v_lshl_add_u32 v10, v9, 4, v10
    v_bfe_u32 v9, v1, 1, 1
    v_lshl_add_u32 v{dst}, v9, 3, v10
    """)

def wd_loop(a, n, tag, lds=True, throttle=False):
    ld = (lambda: f"buffer_load_dwordx4 v21, {sr(SD)}, s60 offen lds\ns_add_u32 m0, m0, 1024") if lds else (lambda: f"buffer_load_dwordx4 v[24:27], v21, {sr(SD)}, s60 offen")
    a(f"""
    s_mov_b32 s61, 0
L_wd_{tag}:
    s_mul_i32 s60, s54, {16*896}
    s_add_u32 s60, s60, s55
    {ld()}
    s_add_u32 s60, s60, {8*896}
    s_add_u32 s54, s54, 1
    {ld()}
    s_cmp_eq_u32 s54, 28
    s_cselect_b32 s54, 0, s54
    s_add_u32 s61, s61, 1
    {f"s_waitcnt vmcnt({PFW})" if throttle else ""}
    s_cmp_lt_u32 s61, {n}
    s_cbranch_scc1 L_wd_{tag}
    """)

H_TAIL = []
A5H = 88
def p2_helper(a, vm):
    late_ids(a)
    a(f"""
    v_lshlrev_b32 v2, 4, v1
    v_lshrrev_b32 v9, 3, v1
    v_mul_u32_u24 v9, 896, v9
    v_bfe_u32 v10, v1, 4, 1
    v_lshlrev_b32 v10, 2, v10
    v_and_b32 v11, 7, v1
    v_xor_b32 v10, v10, v11
    v_lshl_add_u32 v21, v10, 4, v9
    v_lshrrev_b32 v9, 4, v1
    v_mul_u32_u24 v9, {4*3584}, v9
    v_and_b32 v10, 15, v1
    v_lshl_add_u32 v20, v10, 4, v9
    v_lshlrev_b32 v9, 3, v1
    v_mov_b32 v10, 0
    v_mov_b32 v11, 0
    v_add_u32 v9, {GAP}, v9
    ds_write_b64 v9, v[10:11]
    s_lshr_b32 s58, s{SW3}, 1
    s_and_b32 s59, s{SW3}, 1
    """)
    tr128_addr(a, 4, 58, 59, 3)
    rot5(a, 54)
    a(f"""
    s_lshl_b32 s60, s{SW3}, 14
    s_add_u32 s7, s60, {RREG}
    v_add_u32 v4, s7, v4
    v_xor_b32 v5, 64, v4
    s_mul_i32 s55, s{SW3}, {28*16*896}
    s_lshl_b32 s60, s46, 7
    s_add_u32 s55, s55, s60
    """)
    rot4(a, 63)
    if TF:
        a(f"""
        s_mul_i32 s59, s{SW3}, {SLOT}
        s_mul_i32 s58, s57, {28*SLOT}
        s_add_u32 s58, s58, s59
        s_add_u32 s58, s58, {WGU}
        """)
    else:
        a(f"""
        s_lshl_b32 s58, s63, 6
        s_add_u32 s58, s58, s{SW3}
        s_mul_i32 s58, s58, 3584
        s_mul_i32 s59, s57, 224
        s_and_b32 s59, s59, 0xffffffc0
        s_add_u32 s58, s58, s59
        s_mul_i32 s59, s{SW3}, 1088
        """)
    a(f"""
    s_mul_i32 s54, s54, {16*896}
    s_add_u32 s54, s54, s55
    s_add_u32 s49, s55, {28*16*896}
    s_mov_b32 s52, {"s48" if TF else "99"}
    """)
    lv = VM()
    def wd(p, dstbase, doff):
        a(f"""
        s_add_u32 m0, s{dstbase}, {doff}
        s_add_u32 s60, s54, {8*896}
        buffer_load_dwordx4 v21, {sr(SD)}, s54 offen lds
        s_add_u32 m0, m0, 1024
        s_add_u32 s54, s54, {16*896}
        buffer_load_dwordx4 v21, {sr(SD)}, s60 offen lds
        s_cmp_eq_u32 s54, s49
        s_cselect_b32 s54, s55, s54
        """)
        lv.add(f"w{p}", 2)
    p2_helper.wd = wd
    a.bar("p1X")
    a(f"""
    s_cmp_lg_u32 s{SW}, 4
    s_cbranch_scc1 L_h2_npub
    ds_read_b32 v26, v14
    s_mov_b32 exec_hi, 0xffff
    s_waitcnt lgkmcnt(0)
    buffer_store_dwordx4 v[24:27], v18, {sr(SWS)}, s62 offen sc1
    s_mov_b32 exec_hi, -1
L_h2_npub:
    """)
    EB = -1
    a(f"s_cmp_lg_u32 s{SW}, 4\ns_cbranch_scc1 L_h2_np")
    a.stamp(5)
    poll(a, "A", 17, 0x1ffffffff, wide=True, dst=28, pipe=(EB >= 0))
    a(f"""
    s_nop 4
    v_mov_b32 v32, v30
    v_max_u32_dpp v32, v32, v32 row_shr:1 row_mask:0xf bank_mask:0xf
    v_max_u32_dpp v32, v32, v32 row_shr:2 row_mask:0xf bank_mask:0xf
    v_max_u32_dpp v32, v32, v32 row_shr:4 row_mask:0xf bank_mask:0xf
    v_max_u32_dpp v32, v32, v32 row_shr:8 row_mask:0xf bank_mask:0xf
    v_sqrt_f32 v32, v32
    v_mov_b32 v9, {AUX2}
    v_mul_f32 v32, {f2u(1.0+1.0/128):#x}, v32
    v_mov_b32 v33, 0
    s_mov_b64 exec, 0x8000
    ds_write_b32 v9, v33
    ds_write_b32 v9, v32 offset:4
    s_mov_b64 exec, -1
    s_waitcnt lgkmcnt(0)
L_h2_np:
    """)
    a.bar("p2P")
    a.bar("p2Y")
    lv.q = []
    if TF and E("TST", 0) == 1:
        a("s_cmp_ge_u32 s52, 28\ns_cbranch_scc1 L_h2_notf2")
        tstores(a)
    a(f"""
L_h2_notf2:
    v_lshlrev_b32 v7, 12, v1
    s_lshl_b32 s53, s57, 8
    s_lshl_b32 s61, s52, 3
    s_add_u32 s53, s53, s61
    s_add_u32 s53, s53, {FT}
    """)
    def tflag(tag):
        if TF: a(f"""
        s_cmp_ge_u32 s52, 28
        s_cbranch_scc1 L_h2_nf{tag}
        s_mov_b64 exec, 0xffff
        buffer_store_dwordx2 v[24:25], v7, {sr(SWS)}, s53 offen sc1
        s_mov_b64 exec, -1
L_h2_nf{tag}:
        """)
    if TF:
        a("s_cmp_lt_u32 s6, 28\ns_cbranch_scc1 L_h2_act\ns_waitcnt vmcnt(0)")
        tflag("i")
        a("s_branch L_h2_nowo\nL_h2_act:")
    else:
        a("s_cmp_ge_u32 s6, 28\ns_cbranch_scc1 L_h2_nowo\nL_h2_act:")
    a.stamp(6)
    def aread(p):
        for f in range(2):
            for u in range(2):
                b = A5H + 8*p + 4*f + 2*u
                a(f"ds_read_b64_tr_b16 v[{b}:{b+1}], v{4+f} offset:{(p%8)*2048+u*512}")
    D = max(1, (PFW + 1) // 2)
    e0 = max(EB, 0)
    flagged = False
    for p in range(NA5 + D):
        if e0 <= p < NA5:
            if p >= 8: a("s_waitcnt lgkmcnt(8)")
            wd(p, 7, (p % 8) * 2048)
        if p == NA5:
            a(f"""
            s_mul_i32 s{SKV+2}, s{SW3}, {14*8*896}
            s_lshl_b32 s60, s46, 7
            s_add_u32 s{SKV+2}, s{SKV+2}, s60
            s_mul_i32 s{SKV+3}, s{SW3}, 14336
            s_add_u32 s{SKV+3}, s{SKV+3}, {WOREG}
            s_and_b32 s62, s6, 3
            s_mul_i32 s62, s62, 7
            s_lshr_b32 s62, s62, 1
            """)
        def wo(n):
            for _ in range(n):
                a(f"""
                s_lshl_b32 s60, s62, 10
                s_add_u32 m0, s60, s{SKV+3}
                s_mul_i32 s60, s62, {8*896}
                s_add_u32 s60, s60, s{SKV+2}
                buffer_load_dwordx4 v21, {sr(SWO)}, s60 offen lds
                s_add_u32 s62, s62, 1
                s_cmp_eq_u32 s62, 14
                s_cselect_b32 s62, 0, s62
                """)
                lv.add("wo")
        if p >= NA5: wo(2)
        q = p - D
        if q >= 0:
            w = lv.wait(f"w{q}")
            a(w)
            if w and not flagged:
                tflag("a"); flagged = True
            aread(q)
    a.stamp(9)
    for k in range(7 - D):
        wo(2)
        a(f"s_waitcnt vmcnt({2*D})")
    a.stamp(10)
    a(f"""
L_h2_nowo:
    s_lshl_b32 s60, s56, 4
    s_add_u32 s60, s60, s57
    s_lshl_b32 s60, s60, 8
    s_add_u32 s60, s60, {FT}
    v_lshl_add_u32 v17, v1, 3, s60
    """)
    if TF: poll(a, "T", 17, 0xfffffff, backoff=40)
    a.stamp(11)
    gu_dma(a, 4, "g0", vm, thr=PFW)
    p2_ids(a)
    WPRE = E("WPRE", 0)
    if WPRE & 1:
        a(f"""
        v_lshlrev_b32 v9, 7, v1
        s_lshl_b32 s60, s56, 2
        s_add_u32 s60, s60, s{SW3}
        s_mul_i32 s60, s60, {112*1024}
        s_mul_i32 s61, s57, 7168
        s_add_u32 s60, s60, s61
        s_add_u32 s60, s60, {HH}
        s_mov_b32 exec_hi, 0xffffff
        buffer_load_dword v22, v9, {sr(SWS)}, s60 offen sc1
        s_mov_b32 exec_hi, -1
        """)
    if WPRE & 2:
        a(f"""
        v_lshlrev_b32 v9, 7, v1
        s_lshl_b32 s60, s53, 2
        s_add_u32 s60, s60, s{SW3}
        s_lshl_b32 s60, s60, 15
        s_lshl_b32 s61, s52, 11
        s_add_u32 s60, s60, s61
        s_add_u32 s60, s60, {OF}
        s_mov_b64 exec, 0xffff
        buffer_load_dword v22, v9, {sr(SWS)}, s60 offen sc1
        s_cmp_ge_u32 s6, 28
        s_cbranch_scc1 L_h2_nowp
        s_and_b32 s60, s{SW3}, 1
        s_lshl_b32 s61, s47, 1
        s_add_u32 s60, s60, s61                ; tt
        s_mul_i32 s60, s60, 14
        s_lshr_b32 s61, s{SW3}, 1
        s_add_u32 s60, s60, s61
        s_lshl_b32 s61, s46, 1
        s_add_u32 s60, s60, s61
        s_lshl_b32 s61, s60, 11
        s_add_u32 s61, s61, {HF}
        buffer_load_dword v23, v9, {sr(SWS)}, s61 offen sc1
        s_lshl_b32 s61, s60, 8
        s_add_u32 s61, s61, {ST}
        s_mov_b64 exec, 3
        buffer_load_dword v22, v9, {sr(SWS)}, s61 offen sc1
L_h2_nowp:
        s_mov_b64 exec, -1
        """)
    a("s_mov_b32 s62, 0\ns_waitcnt lgkmcnt(0)")
    vm.q = []
    a.stamp(7)
    pub_prep(a, pub14(53, 52, FB), 0x7f7f)
    a(f"v_mov_b32 v9, {AUX2}\nL_h2_again:")
    a.bar("p2R0")
    a("s_waitcnt vmcnt(0)")
    a.bar("p2R1")
    a.bar("p2F")
    a(f"""
    ds_read_b32 v10, v9
    s_waitcnt lgkmcnt(0)
    v_readfirstlane_b32 s60, v10
    s_andn2_b32 s60, s60, s62
    s_cmp_lg_u32 s60, 0
    """)
    a.bar("p2R2")
    a("s_cbranch_scc1 L_h2_redo")
    H_TAIL.append(f"""
L_h2_redo:
    s_mov_b32 s62, 1
    s_barrier
    s_barrier
    s_branch L_h2_again
    """)

def p3_addr(a):
    a(f"s_lshr_b32 s58, s{SW3}, 1")
    tr128_addr(a, 220, 58, None, 2)
    a(f"""
    s_lshr_b32 s60, s6, 2
    s_mul_i32 s60, s60, {2*3584}
    s_add_u32 s60, s60, {WOREG}
    v_add_u32 v220, s60, v220
    """)

def p3_pre(a):
    AF = 64
    a(f"""
    s_cmp_ge_u32 s6, 28
    s_cbranch_scc1 L_p3_skipA
    s_lshr_b32 s58, s6, 2                  ; fb
    """)
    for g in range(8):
        if g >= 2:
            a(f"""
            s_cmp_ge_u32 s58, {8-g}
            s_cselect_b32 s59, {(-57344) & 0xffffffff:#x}, 0
            v_add_u32 v{221+(g&1)}, s59, v220
            """)
        for n in (2*g, 2*g+1):
            for f in range(2):
                for u in range(2):
                    b = AF + 8*n + 4*f + 2*u
                    a(f"ds_read_b64_tr_b16 v[{b}:{b+1}], v{220 if g < 2 else 221+(g&1)} offset:{n*3584+f*2048+u*1024}")
        a("s_waitcnt lgkmcnt(6)")
    a("L_p3_skipA:")

def p3_compute(a):
    ACC = 16; BF = 32; AF = 64; XR = 192; T = 200
    late_ids(a)
    a(f"""
    s_cmp_ge_u32 s6, 28
    s_cbranch_scc1 L_p3_skipB
    s_and_b32 s52, s{SW3}, 1               ; tt_l
    s_lshr_b32 s53, s{SW3}, 1              ; ft_l
    s_lshl_b32 s54, s47, 1
    s_add_u32 s54, s54, s52                ; tt
    s_lshl_b32 s55, s46, 1
    s_add_u32 s55, s55, s53                ; ft
    v_mul_u32_u24 v3, 896, v12
    v_lshl_add_u32 v3, v13, 4, v3
    s_mul_i32 s60, s54, {32*896}
    s_lshl_b32 s61, s55, 6
    s_add_u32 s60, s60, s61
    buffer_load_dwordx4 {vr(XR)}, v3, {sr(SX)}, s60 offen
    buffer_load_dwordx4 {vr(XR+4)}, v3, {sr(SX)}, s60 offen offset:32
    s_lshl_b32 s60, s52, 15
    s_add_u32 s60, s60, {RREG}
    v_add_u32 v5, s60, v2
    s_mul_i32 s58, s54, 28672
    s_lshl_b32 s61, s55, 11
    s_add_u32 s58, s58, s61
    s_add_u32 s58, s58, {HF}
    s_mul_i32 s59, s54, 14
    s_add_u32 s59, s59, s55
    s_lshl_b32 s59, s59, 8
    s_add_u32 s59, s59, {ST}
    v_lshlrev_b32 v14, 3, v1
    s_waitcnt vmcnt(0)
    """)
    for r in range(8):
        a(f"v_lshlrev_b32 v{ACC+2*r}, 16, v{XR+r}\nv_and_b32 v{ACC+2*r+1}, 0xffff0000, v{XR+r}")
    a("v_mov_b32 v6, 0\nv_mov_b32 v7, 0")
    a.bar("p3P")
    for st in range(4):
        a.bar(f"p3s{st}")
        if st == 0: a.stamp(13)
        for q in range(8):
            a(f"ds_read_b128 {vr(BF+4*q)}, v5 offset:{(8*st+q)*1024}")
        for q in range(8):
            p = 8*st + q
            a(f"s_waitcnt lgkmcnt({7-q})")
            a(f"v_mfma_f32_32x32x16_bf16 {vr(ACC,16)}, {vr(AF+4*p)}, {vr(BF+4*q)}, {vr(ACC,16)}")
    a.stamp(14)
    for r in range(8):
        a(f"v_cvt_pk_bf16_f32 v{T+r}, v{ACC+2*r}, v{ACC+2*r+1}")
    a(f"""
    buffer_store_dwordx4 {vr(T)}, v2, {sr(SWS)}, s58 offen sc1
    buffer_store_dwordx4 {vr(T+4)}, v2, {sr(SWS)}, s58 offen offset:1024 sc1
    """)
    for r in range(8):
        a(f"v_dot2c_f32_bf16 v6, v{T+r}, v15\nv_dot2c_f32_bf16 v7, v{T+r}, v{T+r}")
    a(f"""
    v_mov_b32 v8, v6
    v_mov_b32 v9, v7
    v_permlane32_swap_b32 v6, v8
    v_permlane32_swap_b32 v7, v9
    v_add_f32 v6, v6, v8
    v_add_f32 v7, v7, v9
    s_mov_b32 exec_hi, 0
    buffer_store_dwordx2 v[6:7], v14, {sr(SWS)}, s59 offen sc1
    s_mov_b32 exec_hi, -1
L_p3_skipB:
    """)
    a.stamp(15)

def p3_helper(a, vm):
    if E("PR4", 0): a("s_setprio 3")
    pub_fire(a)
    gu_dma(a, 8 if TF else 7, "g1", vm)
    a.stamp(12)
    a(f"""
    s_cmp_ge_u32 s6, 28
    s_cbranch_scc1 L_h3_skip
    s_and_b32 s52, s{SW3}, 1
    s_lshr_b32 s53, s{SW3}, 1
    s_lshl_b32 s62, s47, 1
    s_add_u32 s62, s62, s52
    s_lshl_b32 s62, s62, 15
    s_lshl_b32 s53, s53, 10
    s_add_u32 s62, s62, s53
    s_add_u32 s62, s62, {OF}
    s_lshl_b32 s52, s52, 15
    s_add_u32 s52, s52, s53
    s_add_u32 s52, s52, {RREG}             ; dst
    s_lshl_b32 s53, s46, 12
    s_cmp_lg_u32 s{SW}, 4
    s_cbranch_scc1 L_h3_np
    s_lshl_b32 s60, s47, 3
    s_add_u32 s60, s60, s46
    s_lshl_b32 s60, s60, 7
    s_add_u32 s60, s60, {FB}
    v_lshl_add_u32 v17, v1, 3, s60
    """)
    poll(a, "B", 17, 0xffff)
    a("L_h3_np:")
    a.bar("p3P")
    a.stamp(13)
    a(f"""
    s_mov_b32 m0, s52
    s_mov_b32 s61, 0
L_h3_o:
    s_add_u32 s60, s53, s62
    buffer_load_dwordx4 v2, {sr(SWS)}, s60 offen sc1 lds
    s_add_u32 m0, m0, 2048
    s_add_u32 s53, s53, 2048
    s_and_b32 s53, s53, 0x7fff
    s_add_u32 s61, s61, 1
    s_cmp_lt_u32 s61, 16
    s_cbranch_scc1 L_h3_o
    """)
    for st in range(4):
        a(f"s_waitcnt vmcnt({12-4*st})")
        a.bar(f"p3s{st}")
    a("L_h3_skip:")

NBW = E('NBW', 12)
SCH4 = E('SCH4', 0)
P4B = [(3, 10, 17, 20), (3, 7, 10, 17, 18), (10, 17, 21)][SCH4]
NR4 = 1 if TF else 2
def p4_compute(a):
    ACC = 16; AF = 128; T = 156; OUT = 164; STT = 172; BF = 188
    RS, CC = 6, 7
    vm = VM()
    a(f"""
    s_lshl_b32 s54, s56, 2
    s_add_u32 s54, s54, s{SW3}             ; tt
    s_mul_i32 s55, s54, 28672
    s_add_u32 s55, s55, {HF}
    s_add_u32 s53, s55, 28672              ; end
    """)
    rot4(a, 58)
    a(f"""
    s_lshl_b32 s58, s58, 12
    s_add_u32 s58, s58, s55
    """)
    if TF: a("v_mov_b32 v4, v2")
    else:
        a(f"""
        v_bfe_u32 v9, v1, 2, 2
        v_mul_u32_u24 v10, 1088, v9
        v_lshl_add_u32 v10, v13, 9, v10
        v_and_b32 v9, 1, v1
        v_lshl_add_u32 v10, v9, 4, v10
        v_bfe_u32 v9, v1, 4, 1
        v_lshl_add_u32 v10, v9, 3, v10
        v_bfe_u32 v9, v1, 1, 1
        v_mul_u32_u24 v9, 4384, v9
        s_mul_i32 s60, s57, 224
        s_and_b32 s60, s60, 63
        v_add3_u32 v4, v10, v9, s60
        """)
    a(f"""
    v_mov_b32 v8, 0xffff0000
    v_mul_u32_u24 v5, {7*256}, v13
    v_lshl_add_u32 v5, v12, 3, v5
    s_mul_i32 s59, s54, {14*256}
    s_add_u32 s59, s59, {ST}
    s_mul_i32 s62, s54, {112*1024}
    s_mul_i32 s61, s57, 7168
    s_add_u32 s62, s62, s61
    s_add_u32 s62, s62, {HH}
    s_add_u32 s63, s62, 4096
    s_waitcnt vmcnt(0)
    """)
    a.bar("p3X")
    a.stamp(16)
    base = [0]
    def tr(p, j):
        L = []
        slot = p % NSLOT
        off = slot * SLOT - base[0]
        if j == 0 and (off < 0 or off + SLOT > 65536):
            L.append(f"v_add_u32 v4, {off & 0xffffffff:#x}, v4")
            base[0] = slot * SLOT; off = 0
        if TF: L.append(f"ds_read_b128 {vr(AF+4*j)}, v4 offset:{off + j*1024}")
        else:
            for u in range(2):
                b = AF + 4*j + 2*u
                L.append(f"ds_read_b64_tr_b16 v[{b}:{b+1}], v4 offset:{off + u*256 + j*32}")
        return L
    if DRY & 1: dry_call(a, "4", 4, save=(58,))
    for j in range(7): a.emit(*tr(0, j))
    a.bar("p4P")
    a.stamp(17)
    def bload(p):
        vm.add(f"b{p}")
        L = [f"buffer_load_dwordx4 {vr(BF+4*(p%NBW))}, v2, {sr(SWS)}, s58 offen offset:{(p%4)*1024} sc1"]
        if p % 4 == 3: L += ["s_add_u32 s58, s58, 4096", "s_cmp_eq_u32 s58, s53", "s_cselect_b32 s58, s55, s58"]
        return L
    for q in range(7):
        a(f"buffer_load_dwordx2 v[{STT+2*q}:{STT+2*q+1}], v5, {sr(SWS)}, s59 offen offset:{q*256} sc1")
    vm.add("st", 7)
    for p in range(8): a.emit(*bload(p))
    nb = [8]
    if SCH4 == 1: a.bar("p4Q")
    a(vm.wait("st"))
    pk = lambda b: f"v[{b}:{b+1}]"
    a(f"""
    v_pk_add_f32 {pk(STT+2)}, {pk(STT+2)}, {pk(STT+8)}
    v_pk_add_f32 {pk(STT+4)}, {pk(STT+4)}, {pk(STT+10)}
    v_pk_add_f32 {pk(STT+6)}, {pk(STT+6)}, {pk(STT+12)}
    v_pk_add_f32 {pk(STT)}, {pk(STT)}, {pk(STT+2)}
    v_pk_add_f32 {pk(STT+4)}, {pk(STT+4)}, {pk(STT+6)}
    v_pk_add_f32 {pk(STT)}, {pk(STT)}, {pk(STT+4)}
    v_mov_b32 v{STT+2}, v{STT}
    v_mov_b32 v{STT+3}, v{STT+1}
    v_permlane32_swap_b32 v{STT}, v{STT+2}
    v_permlane32_swap_b32 v{STT+1}, v{STT+3}
    v_pk_add_f32 {pk(STT)}, {pk(STT)}, {pk(STT+2)}
    v_mul_f32 v{STT}, {f2u(1.0/448):#x}, v{STT}
    v_mul_f32 v{STT+1}, {f2u(1.0/448):#x}, v{STT+1}
    v_fma_f32 v{STT+1}, -v{STT}, v{STT}, v{STT+1}
    v_max_f32 v{STT+1}, 0, v{STT+1}
    v_add_f32 v{STT+1}, {f2u(1e-5):#x}, v{STT+1}
    v_rsq_f32 v{RS}, v{STT+1}
    v_mul_f32 v{CC}, v{STT}, v{RS}
    v_sub_f32 v{CC}, 0, v{CC}
    """)
    def norm(p):
        f = BF + 4*(p % NBW)
        L = []
        for i in range(4):
            L += [f"v_lshlrev_b32 v{T+2*i}, 16, v{f+i}", f"v_and_b32 v{T+2*i+1}, v8, v{f+i}"]
        for i in range(8):
            L.append(f"v_fma_f32 v{T+i}, v{T+i}, v{RS}, v{CC}")
        for i in range(4):
            L.append(f"v_cvt_pk_bf16_f32 v{f+i}, v{T+2*i}, v{T+2*i+1}")
        return L
    a(vm.wait("b0"))
    a.emit(*norm(0))
    a.stamp(18)
    NT = E("NT4", 3)
    PT = 28 - NT
    seq = [(p, j) for p in range(PT) for j in range(7)] + [(p, j) for j in range(7) for p in range(PT, 28)]
    N = len(seq)
    def rd(i):
        p, j = seq[i]
        L = []
        off = (p % NSLOT) * SLOT - base[0]
        force = NT > 1 and i == 7 * PT and ((27 % NSLOT) + 1) * SLOT - base[0] > 65536
        if off < 0 or off + SLOT > 65536 or force:
            L.append(f"v_add_u32 v4, {off & 0xffffffff:#x}, v4")
            base[0] = (p % NSLOT) * SLOT; off = 0
        r = AF + 4 * (i % 7)
        if TF: L.append(f"ds_read_b128 {vr(r)}, v4 offset:{off + j*1024}")
        else: L += [f"ds_read_b64_tr_b16 v[{r+2*u}:{r+2*u+1}], v4 offset:{off + u*256 + j*32}" for u in range(2)]
        return L
    def epi(j):
        acc = ACC + 16*j; o = OUT + 4*(j & 1)
        L = []
        for g in range(2):
            L += [f"v_max_f32 v{acc+8*g+c}, 0, v{acc+8*g+c}" for c in range(4)]
            L += [f"v_mul_f32 v{acc+8*g+c}, v{acc+8*g+c}, v{acc+8*g+4+c}" for c in range(4)]
            L += [f"v_cvt_pk_bf16_f32 v{o+2*g}, v{acc+8*g}, v{acc+8*g+1}", f"v_cvt_pk_bf16_f32 v{o+2*g+1}, v{acc+8*g+2}, v{acc+8*g+3}"]
        L.append(f"buffer_store_dwordx4 {vr(o)}, v2, {sr(SWS)}, s{62 if j < 4 else 63} offen offset:{(j%4)*1024} sc1")
        return L
    fill = []
    nn = [1]
    normed = {0}
    def need_norm(upto):
        while nn[0] <= upto and nn[0] < 28:
            fill.append(("w", nn[0])); fill.extend(norm(nn[0])); fill.append(("d", nn[0])); nn[0] += 1
    def pop(k):
        while fill and k > 0:
            x = fill.pop(0)
            if isinstance(x, tuple):
                if x[0] == "w": a(vm.wait(f"b{x[1]}"))
                else: normed.add(x[1])
            else:
                a(x); k -= 1
                if x.startswith("buffer_store"): vm.add("st")
        while fill and isinstance(fill[0], tuple) and fill[0][0] == "d":
            normed.add(fill.pop(0)[1])
    FAST = PT - (NT - 1) * 20 // 8 - 1
    for i, (p, j) in enumerate(seq):
        kmaj = i < 7 * PT
        if kmaj and j == 0:
            if "p4st" in XV and p in (3, 7, 10, 17): a.stamp({3: 1, 7: 3, 10: 5, 17: 9}[p])
            CUT = {0: 0, 7: 1, 14: 2, 21: 3}
            if DRY & 1:
                if p in CUT and p: a("s_cbranch_execz L_dry4_ret")
                elif p in P4B: a(f"s_cbranch_execz L_dry4s{p}")
            if p in P4B: a.bar(f"p4b{p}")
            if DRY & 1:
                if p in CUT: a(f"L_dry4_{CUT[p]}:")
                elif p in P4B: a(f"L_dry4s{p}:")
            if "p4st" in XV and p in (3, 7, 10, 13, 18, 22): a.stamp({3: 2, 7: 4, 10: 6, 13: 8, 18: 10, 22: 12}[p])
            need_norm(p + 1 if p < FAST else 27)
        while p not in normed: pop(1)
        if i % 7 in (0, 4):
            last_needed = i + (3 if i % 7 == 0 else 2)
            a(f"s_waitcnt lgkmcnt({max(0, min(N - 1, i + 6) - last_needed) * NR4})")
        a(f"v_mfma_f32_32x32x16_bf16 {vr(ACC+16*j,16)}, {vr(AF+4*(i%7))}, {vr(BF+4*(p%NBW))}, {'0' if p==0 else vr(ACC+16*j,16)}")
        if i + 7 < N: a.emit(*rd(i + 7))
        if kmaj:
            pop(4 if p >= FAST else (3, 4, 3, 3, 4, 3, 0)[j])
            if j in (3, 6) and nb[0] < 28 and nb[0] <= p + NBW - (1 if j == 3 else 0):
                a.emit(*bload(nb[0])); nb[0] += 1
        else:
            if p == PT + min(1, NT - 1) and j >= 1: fill.extend(epi(j - 1))
            pop(-(-21 // NT))
    a.stamp(19)
    pop(999)
    a.emit(*epi(6))
    if DRY & 1: a("s_cbranch_execz L_dry4_ret")
    a.stamp(21)
    a("s_waitcnt vmcnt(0)")
    a.bar("p4X")
    a.stamp(23)

def p4_helper(a, vm):
    pub_prep(a, f"""v_lshlrev_b32 v9, 7, v1
    s_lshr_b32 s60, s47, 1
    s_lshl_b32 s60, s60, 11
    s_and_b32 s61, s47, 1
    s_mul_i32 s61, s61, 7
    s_add_u32 s61, s61, s46
    s_lshl_b32 s61, s61, 3
    s_add_u32 s60, s60, s61
    s_add_u32 s60, s60, {FC}""", 0xffff)
    a("s_cmp_ge_u32 s6, 28")
    a.bar("p3X")
    a("s_cbranch_scc1 L_pub_C")
    pub_fire(a)
    a("L_pub_C:")
    a(f"""
    s_cmp_lg_u32 s{SW}, 4
    s_cbranch_scc1 L_h4_np
    s_lshl_b32 s60, s56, 4
    s_add_u32 s60, s60, s57
    s_lshl_b32 s60, s60, 7
    s_add_u32 s60, s60, {FC}
    v_lshl_add_u32 v17, v1, 3, s60
    """)
    a.stamp(16)
    poll(a, "C", 17, 0x3fff)
    a("L_h4_np:")
    if SCH4 == 2: a(vm.wait("g1"))
    a.bar("p4P")
    assert not TF
    if SCH4 == 1:
        a.bar("p4Q")
        gu_dma(a, 7, "g2", vm)
        a(f"s_sub_u32 s59, s59, {NSLOT*SLOT}")
        a(vm.wait("g1"))
        a.bar("p4b3")
        gu_dma(a, 3, "g3", vm)
        a.bar("p4b7")
        gu_dma(a, 4, "g4", vm)
        a(vm.wait("g2"))
        a.bar("p4b10")
        gu_dma(a, 3, "g5", vm)
        a(vm.wait("g5"))
        a.bar("p4b17")
        a.bar("p4b18")
    elif SCH4 == 0:
        a(vm.wait("g1"))
        a.bar("p4b3")
        gu_dma(a, 7, "g2", vm)
        a(f"s_sub_u32 s59, s59, {NSLOT*SLOT}")
        gu_dma(a, 3, "g3", vm)
        a(vm.wait("g2"))
        a.bar("p4b10")
        gu_dma(a, 7, "g4", vm)
        a(vm.wait("g3"))
        a.bar("p4b17")
        a(vm.wait("g4"))
        a.bar("p4b20")
    else:
        gu_dma(a, 7, "g2", vm, thr=4)
        a(f"s_sub_u32 s59, s59, {NSLOT*SLOT}")
        a(vm.wait("g2"))
        a.bar("p4b10")
        gu_dma(a, 4, "g3", vm)
        gu_dma(a, 6, "g4", vm)
        a(vm.wait("g3"))
        a.bar("p4b17")
        a(vm.wait("g4"))
        a.bar("p4b21")
    a(f"""
    s_cmp_ge_u32 s6, 28
    s_cbranch_scc1 L_h4_nowd
    s_mul_i32 s60, s{SW3}, {(28-NA5)*2048}
    s_add_u32 s7, s60, {B1}
    """)
    for p in range(28 - NA5): p2_helper.wd(p, 7, p * 2048)
    a("L_h4_nowd:")
    pub_prep(a, pub14(56, 57, FD), 0x7f7f)
    a("s_waitcnt vmcnt(0)")
    vm.q = []
    a.bar("p4X")

def p5_main(a, tag):
    helper = tag == "h"
    ACC = 24
    NC = 28 - NA5
    AR = A5H
    AREA = NA5 * 2048
    vm = VM()
    pk = lambda b: f"v[{b}:{b+1}]"
    HR = 240 if helper else 16
    a(f"""
    s_lshr_b32 s52, s{SW}, 2
    s_lshl_b32 s54, s47, 1
    s_add_u32 s53, s54, s52
    s_lshl_b32 s63, s46, 2
    s_add_u32 s63, s63, s{SW3}
    s_mul_i32 s62, s53, 28672
    s_lshl_b32 s61, s63, 10
    s_add_u32 s62, s62, s61
    s_add_u32 s62, s62, {HF}
    buffer_load_dwordx4 {vr(HR)}, v2, {sr(SWS)}, s62 offen sc1
    v_mul_u32_u24 v3, 896, v12
    v_lshl_add_u32 v3, v13, 4, v3
    s_mul_i32 s62, s53, {32*896}
    s_lshl_b32 s61, s63, 5
    s_add_u32 s62, s62, s61
    s_mul_i32 s7, s{SW3}, {AREA}
    v_add_u32 v8, s7, v2
    """)
    if helper:
        a(f"""
        s_cmp_lg_u32 s{SW}, 4
        s_cbranch_scc1 L_h5_np
        s_lshl_b32 s60, s47, 3
        s_add_u32 s60, s60, s46
        s_lshl_b32 s60, s60, 7
        s_add_u32 s60, s60, {FD}
        v_lshl_add_u32 v17, v1, 3, s60
        """)
        a.stamp(23)
        poll(a, "D", 17, 0xffff)
        a("L_h5_np:")
    else:
        a(f"""
        s_mul_i32 s60, s{SW3}, 28672
        s_add_u32 s60, s60, {HH}
        s_mul_i32 s55, s54, {112*1024}
        s_add_u32 s55, s55, s60
        s_add_u32 s58, s55, {112*1024}
        """)
        rot5(a, 59, 0)
        rot5(a, 52, NA5)
        a(f"s_lshl_b32 s59, s59, 10\ns_lshl_b32 s52, s52, 10\ns_lshr_b32 s60, s{SW3}, 1\ns_and_b32 s61, s{SW3}, 1")
        tr128_addr(a, 4, 60, 61, 3)
        a(f"""
        s_mul_i32 s60, s{SW3}, {NC*2048}
        s_add_u32 s60, s60, {B1}
        v_xor_b32 v5, 64, v4
        v_add_u32 v4, s60, v4
        v_add_u32 v5, s60, v5
        """)
        for p in range(NC):
            for f in range(2):
                for u in range(2):
                    b = AR + 8*p + 4*f + 2*u
                    a(f"ds_read_b64_tr_b16 v[{b}:{b+1}], v{4+f} offset:{p*2048+u*512}")
            if p % 2 == 1: a("s_waitcnt lgkmcnt(4)")
        a("s_waitcnt lgkmcnt(0)\ns_mov_b32 m0, s7")
    a(f"s_setprio {3 if (E('PR5', 1) == (2 if helper else 1)) else 0}")
    a.bar("p5P")
    a.stamp(24)
    adv = lambda r: f"s_add_u32 s{r}, s{r}, 1024\ns_cmp_eq_u32 s{r}, 28672\ns_cselect_b32 s{r}, 0, s{r}"
    def mf(p, b0, b1):
        for tl, b in ((0, b0), (1, b1)):
            for f in range(2):
                acc = ACC + 32*tl + 16*f
                a(f"v_mfma_f32_32x32x16_bf16 {vr(acc,16)}, {vr(AR+8*p+4*f)}, {vr(b)}, {'0' if p==0 else vr(acc,16)}")
    T = 96 if helper else 232
    def tail_addr():
        for j in range(1, 8):
            a(f"""
            s_xor_b32 s60, s{SW3}, {j & 3}
            s_mul_i32 s60, s60, {AREA}
            v_add_u32 v{T+8+j}, s60, v2
            """)
    def wr_part():
        o = 14336 if helper else 0
        for j in range(1, 8):
            a(f"ds_write_b128 v8, {vr(ACC+8*j)} offset:{o+(j-1)*2048}\nds_write_b128 v8, {vr(ACC+8*j+4)} offset:{o+(j-1)*2048+1024}")
        for r in range(4):
            a(f"v_lshlrev_b32 v{T+2*r}, 16, v{HR+r}\nv_and_b32 v{T+2*r+1}, 0xffff0000, v{HR+r}")
        for r in range(0, 8, 2):
            a(f"v_pk_add_f32 {pk(ACC+r)}, {pk(ACC+r)}, {pk(T+r)}")
    def unpack_hr():
        for r in range(4):
            a(f"v_lshlrev_b32 v{T+2*r}, 16, v{HR+r}\nv_and_b32 v{T+2*r+1}, 0xffff0000, v{HR+r}")
    def last_group(ps, breg, wait, o):
        pend = []
        n = len(ps)
        for tl, f in ((1, 1), (1, 0), (0, 1), (0, 0)):
            acc = ACC + 32*tl + 16*f
            for k, p in enumerate(ps):
                wait(tl, f, k)
                a(f"v_mfma_f32_32x32x16_bf16 {vr(acc,16)}, {vr(AR+8*p+4*f)}, {vr(breg(k, tl))}, {vr(acc,16)}")
                if len(pend) > 4 or (pend and tl == 0 and k >= n - 2):
                    a(pend.pop(0)); a(pend.pop(0))
            j0 = 4*tl + 2*f
            for j in (j0, j0 + 1):
                if j: pend += [f"ds_write_b128 v8, {vr(ACC+8*j)} offset:{o+(j-1)*2048}", f"ds_write_b128 v8, {vr(ACC+8*j+4)} offset:{o+(j-1)*2048+1024}"]
        a.stamp(25)
        a.emit(*pend)
        for r in range(0, 8, 2):
            a(f"v_pk_add_f32 {pk(ACC+r)}, {pk(ACC+r)}, {pk(T+r)}")
    GH = [[2, 3, 3, 3, 4, 4], [2, 2, 3, 4, 4, 4], [3, 4, 4, 4, 4]][E('G5', 1)]
    if helper:
        BB = [16, 248]
        rd = lambda p: a(f"ds_read_b128 {vr(BB[p&1])}, v8 offset:{p*2048}\nds_read_b128 {vr(BB[p&1]+4)}, v8 offset:{p*2048+1024}")
        p = 0
        for g, n in enumerate(GH):
            a.bar(f"p5g{g}")
            rd(p)
            for k in range(n):
                if k + 1 < n: rd(p + 1)
                a(f"s_waitcnt lgkmcnt({2 if k + 1 < n else 0})")
                mf(p, BB[p&1], BB[p&1]+4)
                p += 1
            if g == 2:
                tail_addr()
        a.stamp(25)
        a("s_waitcnt vmcnt(0)")
        wr_part()
    else:
        BR = AR + 8*NC
        items = [("h", g) for g in range(len(GH))] + [("c", 0), ("c", 1), ("c", 2)]
        pc = [0]
        def issue(it):
            if it[0] == "h":
                for k in range(GH[it[1]]):
                    a(f"""
                    s_add_u32 s60, s59, s58
                    s_add_u32 s61, s59, s55
                    buffer_load_dwordx4 v2, {sr(SWS)}, s60 offen sc1 lds
                    s_add_u32 m0, m0, 1024
                    {adv(59)}
                    buffer_load_dwordx4 v2, {sr(SWS)}, s61 offen sc1 lds
                    s_add_u32 m0, m0, 1024
                    """)
                    vm.add(f"h{it[1]}", 2)
            else:
                for k in range(3):
                    a(f"""
                    s_add_u32 s60, s52, s55
                    s_add_u32 s61, s52, s58
                    buffer_load_dwordx4 {vr(BR+8*pc[0])}, v2, {sr(SWS)}, s60 offen sc1
                    buffer_load_dwordx4 {vr(BR+8*pc[0]+4)}, v2, {sr(SWS)}, s61 offen sc1
                    {adv(52)}
                    """)
                    vm.add(f"c{pc[0]}", 2); pc[0] += 1
        LA = E('LA5', 2)
        for it in items[:LA]: issue(it)
        nxt = LA
        for g in range(len(GH)):
            a(vm.wait(f"h{g}"))
            a.bar(f"p5g{g}")
            if nxt < len(items): issue(items[nxt]); nxt += 1
        while nxt < len(items): issue(items[nxt]); nxt += 1
        tail_addr(); unpack_hr()
        NL = 3
        for p in range(NC - NL):
            a(vm.wait(f"c{p}"))
            mf(p, BR+8*p, BR+8*p+4)
        ps = list(range(NC - NL, NC))
        last_group(ps, lambda k, tl: BR + 8*ps[k] + 4*tl, lambda tl, f, k: a(vm.wait(f"c{ps[k]}")), 0)
    a("s_waitcnt lgkmcnt(0)")
    a.bar("p5R1")
    for j in range(1, 8):
        o = 14336 if (helper != (j >= 4)) else 0
        a(f"ds_read_b128 {vr(ACC+8*j)}, v{T+8+j} offset:{o+(j-1)*2048}\nds_read_b128 {vr(ACC+8*j+4)}, v{T+8+j} offset:{o+(j-1)*2048+1024}")
    for j in range(7):
        a(f"s_waitcnt lgkmcnt({12-2*j})")
        for r in range(0, 8, 2):
            a(f"v_pk_add_f32 {pk(ACC+r)}, {pk(ACC+r)}, {pk(ACC+8+8*j+r)}")
    for r in range(4):
        a(f"v_cvt_pk_bf16_f32 v{T+r}, v{ACC+2*r}, v{ACC+2*r+1}")
    a(f"buffer_store_dwordx4 {vr(T)}, v3, {sr(SOUT)}, s62 offen {os.environ.get('OUTF', '')}")
    a.stamp(26)

def p5_compute(a):
    a("s_cmp_ge_u32 s6, 28\ns_cbranch_scc1 L_p5_skip_c")
    p5_main(a, "c")
    a("L_p5_skip_c:")

def p5_helper(a):
    pub_fire(a)
    a("s_cmp_ge_u32 s6, 28\ns_cbranch_scc1 L_p5_skip_h")
    p5_main(a, "h")
    a("L_p5_skip_h:")

def build(path):
    a = Asm()
    prologue(a)
    C = Role("c"); H = Role("h"); vm = VM()
    p1_compute(C); p1_helper(H)
    p2_compute(C); p2_helper(H, vm)
    p3_compute(C); p3_helper(H, vm)
    p4_compute(C); p4_helper(H, vm)
    p5_compute(C); p5_helper(H)
    assert C.bars == H.bars, (C.bars, H.bars)
    if "nopf" in XV or "nohtr" in XV:
        i0 = H.lines.index("L_h2_act:"); i1 = H.lines.index("L_h2_nowo:")
        H.lines = [l for k, l in enumerate(H.lines) if not (i0 < k < i1 and (("nopf" in XV and l.startswith("buffer_load")) or ("nohtr" in XV and l.startswith("ds_read"))))]
    if "nodma4" in XV:
        i0 = max(k for k, l in enumerate(H.lines) if l.startswith("L_h4_np")); i1 = H.lines.index("L_h4_nowd:")
        H.lines = [l for k, l in enumerate(H.lines) if not (i0 < k < i1 and l.startswith("buffer_load"))]
    if "c4" in XV:
        i0 = max(k for k, l in enumerate(C.lines) if l.startswith("v_rsq_f32")) + 30; i1 = max(k for k, l in enumerate(C.lines) if l.startswith("v_max_f32 v16, 0"))
        def drop(l):
            if "nobl" in XV and (l.startswith("buffer_load") or l.startswith("s_waitcnt vmcnt")): return True
            if "nonorm" in XV and (l.startswith("v_lshlrev_b32 v1") or l.startswith("v_and_b32 v1") or l.startswith("v_fma_f32 v1") or l.startswith("v_cvt_pk")): return True
            if "notr" in XV and l.startswith("ds_read_b64_tr"): return True
            return False
        C.lines = [l for k, l in enumerate(C.lines) if not (i0 < k < i1 and drop(l))]
    if "nostat" in XV: H.lines = [l for l in H.lines if not l.startswith("v_mfma_f32_16x16")]
    if "nocs" in XV: C.lines = [l for l in C.lines if not l.startswith("v_mfma_f32_16x16")]
    if "hprio" in XV:
        i0 = H.lines.index("L_h2_act:"); H.lines.insert(i0 + 1, "s_setprio 3")
    a.lines += H.lines
    stamp_end(a)
    a("s_endpgm")
    for t in H_TAIL: a(t)
    a("L_compute:")
    a.lines += C.lines
    probe(a)
    stamp_end(a)
    a("L_end:\ns_endpgm")
    body = a.finish(True)
    hdr = open(f"cdna_kernels/{NAME}.s.ref").read().split("; Override launch")[0]
    out = hdr + "; @launch grid=(256,1,1) block=(512,1,1) lds=163840\n"
    out += '.amdgcn_target "amdgcn-amd-amdhsa--gfx950"\n.text\n'
    out += f".globl {KNAME}\n.p2align 8\n.type {KNAME},@function\n{KNAME}:\n{body}\n"
    out += f""".section .rodata,"a"
.p2align 6
.amdhsa_kernel {KNAME}
  .amdhsa_next_free_vgpr 256
  .amdhsa_next_free_sgpr 102
  .amdhsa_accum_offset 256
  .amdhsa_group_segment_fixed_size 0
  .amdhsa_kernarg_size 80
  .amdhsa_user_sgpr_count 2
  .amdhsa_user_sgpr_kernarg_segment_ptr 1
  .amdhsa_system_sgpr_workgroup_id_x 1
.end_amdhsa_kernel
"""
    open(path, "w").write(out)

if __name__ == "__main__":
    build(sys.argv[1] if len(sys.argv) > 1 else f"cdna_kernels/{NAME}.s")
```
